```python
import torch

def _softmax(x, axis=-1):
    return torch.softmax(x, dim=axis)
def _gelu(x):
    return torch.nn.functional.gelu(x, approximate="tanh")
def _silu(x):
    return torch.nn.functional.silu(x)
def _sigmoid(x):
    return torch.sigmoid(x)
def _layernorm(x, axis=-1, eps=1e-5):
    m = x.mean(dim=axis, keepdim=True)
    v = x.var(dim=axis, keepdim=True, unbiased=False)
    return (x - m) / torch.sqrt(v + eps)
def _scatter_add(tgt, idx, src, axis=0):
    return tgt.clone().index_add_(axis, idx, src)
def _segment_sum(src, seg, n):
    out = torch.zeros((n,) + src.shape[1:], dtype=src.dtype)
    return out.index_add_(0, seg, src)
def _pad(x, pw):
    flat = tuple(v for pair in reversed(pw) for v in pair)
    return torch.nn.functional.pad(x, flat)

kernel_name = 'gated_mix__sliding_block_cached__geglu_ffn__decode'

def setup_inputs():

    _w = (lambda a: (lambda t: t.to(torch.bfloat16) if t.is_floating_point() else t)(torch.as_tensor(a)))
    def _A_setup():
        B, Sq, D = 2, 1, 1024
        Hq, Hkv, Sk, Dh = 32, 4, 32768, 128
        assert Hq % Hkv == 0, (Hq, Hkv)
        return {
            "x": _w((lambda *s: torch.randn(*s, dtype=torch.bfloat16) * 0.05)(B, Sq, D)),
            "k_cache": _w((lambda *s: torch.randn(*s, dtype=torch.bfloat16) * 6.4)(B, Hkv, Sk, Dh)),
            "v_cache": _w((lambda *s: torch.randn(*s, dtype=torch.bfloat16) * 0.4)(B, Hkv, Sk, Dh)),
            "wq": _w((lambda *s: torch.randn(*s, dtype=torch.bfloat16) * 6.4)(D, Hq * Dh) * (D ** -0.5)),
            "wo": _w((lambda *s: torch.randn(*s, dtype=torch.bfloat16) * 0.4)(Hq * Dh, D) * ((Hq * Dh) ** -0.5)),
        }
    _A_in = _A_setup()

    def _B_setup():
        B, S, D, F = 2, 1, 1024, 3584
        return {
            "x": _w((lambda *s: torch.randn(*s, dtype=torch.bfloat16) * 0.05)(B, S, D)),
            "w_gate": _w((lambda *s: torch.randn(*s, dtype=torch.bfloat16) * 0.05)(D, F)),
            "w_up": _w((lambda *s: torch.randn(*s, dtype=torch.bfloat16) * 0.05)(D, F)),
            "w_down": _w((lambda *s: torch.randn(*s, dtype=torch.bfloat16) * 0.05)(F, D)),
        }
    _B_in = _B_setup()

    return {
        "A_x": _A_in["x"],
        "A_k_cache": _A_in["k_cache"],
        "A_v_cache": _A_in["v_cache"],
        "A_wq": _A_in["wq"],
        "A_wo": _A_in["wo"],
        "B_x": _B_in["x"],
        "B_w_gate": _B_in["w_gate"],
        "B_w_up": _B_in["w_up"],
        "B_w_down": _B_in["w_down"],
        "gate_w": _w((lambda *s: torch.randn(*s, dtype=torch.bfloat16) * 0.05)(1024) * 16.0),
    }

def reference(A_x, A_k_cache, A_v_cache, A_wq, A_wo, B_x, B_w_gate, B_w_up, B_w_down, gate_w):
    def _A_ref(x, k_cache, v_cache, wq, wo):
        B, Sq, D = x.shape
        Hq, Dh = 32, 128
        Hkv, Sk = k_cache.shape[1], k_cache.shape[2]
        W = min(4096, max(256, Sk // 4))
        rep = Hq // Hkv
        q = (lambda x, *d: x.permute(*d))((x @ wq).reshape(B, Sq, Hq, Dh), 0, 2, 1, 3)
        k = (lambda x, n, axis: torch.repeat_interleave(x, n, dim=axis))(k_cache[:, :, Sk - W:, :], rep, axis=1)
        v = (lambda x, n, axis: torch.repeat_interleave(x, n, dim=axis))(v_cache[:, :, Sk - W:, :], rep, axis=1)
        scores = torch.einsum("bhqd,bhkd->bhqk", q, k) * (Dh ** -0.5)
        p = _softmax(scores, axis=-1)
        o = torch.einsum("bhqk,bhkd->bhqd", p, v)
        return (lambda x, *d: x.permute(*d))(o, 0, 2, 1, 3).reshape(B, Sq, Hq * Dh) @ wo

    def _B_ref(x, w_gate, w_up, w_down):
        return (_gelu(x @ w_gate) * (x @ w_up)) @ w_down

    x = A_x
    g = _sigmoid((x * gate_w).sum(-1, keepdims=True))
    a = _A_ref(x, A_k_cache, A_v_cache, A_wq, A_wo)
    b = _B_ref(x, B_w_gate, B_w_up, B_w_down)
    return g * a + (1 - g) * b
```

```python
import re

VCC = [("s", 106), ("s", 107)]
EXEC = [("s", 126), ("s", 127)]
M0 = [("s", 124)]
TRANS = ("v_exp_f32", "v_log_f32", "v_rcp_f32", "v_rsq_f32", "v_sqrt_f32", "v_sin_f32", "v_cos_f32")


def split_ops(s):
    out, cur, depth = [], "", 0
    for ch in s:
        if ch == "[":
            depth += 1
        elif ch == "]":
            depth -= 1
        if ch == "," and depth == 0:
            out.append(cur.strip())
            cur = ""
        else:
            cur += ch
    if cur.strip():
        out.append(cur.strip())
    mods = ""
    if out:
        parts = out[-1].split(None, 1)
        out[-1] = parts[0]
        mods = parts[1] if len(parts) > 1 else ""
    return out, mods


def regs(op):
    op = op.strip().lstrip("-").strip("|")
    if op == "vcc":
        return list(VCC)
    if op == "vcc_lo":
        return [VCC[0]]
    if op == "vcc_hi":
        return [VCC[1]]
    if op == "exec":
        return list(EXEC)
    if op == "exec_lo":
        return [EXEC[0]]
    if op == "exec_hi":
        return [EXEC[1]]
    if op == "m0":
        return list(M0)
    m = re.fullmatch(r"([vsa])(\d+)", op)
    if m:
        return [(m.group(1), int(m.group(2)))]
    m = re.fullmatch(r"([vsa])\[(\d+):(\d+)\]", op)
    if m:
        return [(m.group(1), i) for i in range(int(m.group(2)), int(m.group(3)) + 1)]
    return []


class Ins:
    def __init__(self, text):
        self.text = text
        t = text.split(";")[0].strip()
        self.label = None
        self.mn = ""
        self.defs, self.uses = set(), set()
        self.states = 0
        self.kind = "none"
        if not t or t.startswith("."):
            return
        if t.endswith(":"):
            self.label = t[:-1]
            return
        p = t.split(None, 1)
        mn = self.mn = p[0]
        ops, mods = split_ops(p[1]) if len(p) > 1 else ([], "")
        self.ops, self.mods = ops, mods
        self.states = 1
        R = [regs(o) for o in ops]
        allr = lambda xs: set(r for x in xs for r in x)
        self.dpp = mn.endswith("_dpp") or "quad_perm" in mods or "row_" in mods
        self.trans = mn.replace("_e32", "").replace("_e64", "") in TRANS
        self.perm = mn.startswith("v_permlane")
        self.rdlane = mn.startswith("v_readlane") or mn.startswith("v_readfirstlane")
        self.opsel = "op_sel" in mods or "dst_sel" in mods
        self.target = None
        self.uncond = False
        if mn.startswith("v_mfma"):
            self.kind = "mfma"
            self.defs = set(R[0])
            self.A, self.B, self.C = set(R[1]), set(R[2]), set(R[3])
            self.uses = self.A | self.B | self.C
            assert "16x16x32" in mn or "16x16x16" in mn, mn
        elif mn.startswith("v_"):
            self.kind = "valu"
            if mn == "v_nop":
                return
            if self.perm:
                self.defs = allr(R)
                self.uses = allr(R)
            else:
                self.defs = set(R[0])
                self.uses = allr(R[1:])
                if mn.startswith(("v_fmac", "v_mac", "v_dot2c", "v_pk_fmac")) or self.dpp:
                    self.uses |= set(R[0])
                if "_co_" in mn:
                    self.defs |= set(R[1])
                if mn.startswith("v_cmpx"):
                    raise ValueError("no cmpx")
                if mn.startswith("v_cndmask") and len(ops) == 3:
                    self.uses |= set(VCC)
        elif mn.startswith("ds_"):
            self.kind = "ds"
            if mn.startswith("ds_read") or "_rtn" in mn or "permute" in mn:
                self.defs = set(R[0])
                self.uses = allr(R[1:])
            else:
                self.uses = allr(R)
        elif mn.startswith(("buffer_", "global_")):
            self.kind = "vmem"
            self.lds = bool(re.search(r"\blds\b", mods)) or "_lds_" in mn
            self.store = "store" in mn or "atomic" in mn
            self.wide = self.store and ("x3" in mn or "x4" in mn)
            if self.store:
                self.uses = allr(R)
                self.data = set(R[0]) if mn.startswith("buffer_") else set(R[1])
            elif self.lds:
                self.uses = allr(R) | set(M0)
            else:
                self.defs = set(R[0]) if R else set()
                self.uses = allr(R[1:])
        elif mn.startswith("s_"):
            self.kind = "salu"
            if mn == "s_nop":
                self.states = int(ops[0], 0) + 1
            elif mn.startswith(("s_cbranch", "s_branch")):
                self.target = ops[0]
                self.uncond = mn == "s_branch"
            elif mn == "s_endpgm":
                self.uncond = True
            elif mn.startswith(("s_cmp", "s_waitcnt", "s_barrier", "s_setprio", "s_sleep", "s_bitcmp")):
                self.uses = allr(R)
            else:
                self.defs = set(R[0]) if R else set()
                self.uses = allr(R[1:])
                if "saveexec" in mn:
                    self.defs |= set(EXEC)
        else:
            raise ValueError("unknown instruction: " + text)


def need(p, c):
    n = 0
    if p.kind == "valu":
        vd = set(r for r in p.defs if r[0] in "va")
        sd = set(r for r in p.defs if r[0] == "s")
        if vd & c.uses:
            if c.kind == "mfma":
                n = max(n, 2)
            if c.kind == "valu":
                if c.dpp or c.perm:
                    n = max(n, 2)
                if c.rdlane:
                    n = max(n, 1)
                if p.opsel:
                    n = max(n, 1)
            if p.trans:
                n = max(n, 1)
        if p.opsel and vd & c.defs and c.kind == "valu":
            n = max(n, 1)
        if sd & c.uses:
            if c.kind == "valu":
                n = max(n, 4 if c.mn.startswith(("v_readlane", "v_writelane")) else 2)
            if c.kind == "vmem":
                n = max(n, 5)
            if c.kind == "mfma":
                n = max(n, 2)
    if p.kind == "mfma":
        d = p.defs
        if c.kind == "mfma":
            if d & (c.A | c.B):
                n = max(n, 8)
            if d & c.C and c.C != d:
                n = max(n, 6)
            if d & c.defs and not (c.C == d and c.defs == d):
                n = max(n, 8)
        elif c.kind in ("valu", "ds", "vmem"):
            if d & (c.uses | c.defs):
                n = max(n, 8)
        if c.kind == "valu" and p.C & c.defs:
            n = max(n, 3)
    if p.kind == "vmem" and p.store and p.wide:
        if p.data & c.defs:
            n = max(n, 2)
    if p.kind == "ds" and p.mn in ("ds_write_b128", "ds_write_b96") and c.kind == "valu":
        if p.uses & c.defs:
            n = max(n, 1)
    if p.kind == "salu" and set(M0) & p.defs:
        if c.kind == "vmem" and c.lds:
            n = max(n, 1)
    return n


MAXW = 8


def hazard_pass(lines):
    ins = [Ins(t) for t in lines]
    added = 0
    while True:
        labels = {x.label: i for i, x in enumerate(ins) if x.label}
        brs = {}
        for i, x in enumerate(ins):
            if x.kind == "salu" and x.target:
                brs.setdefault(x.target, []).append(i)

        def preds(i):
            out = []
            if i > 0 and not (ins[i - 1].kind == "salu" and ins[i - 1].uncond):
                out.append(i - 1)
            if ins[i].label:
                out += brs.get(ins[i].label, [])
            return out

        fix = None
        for i, c in enumerate(ins):
            if c.kind in ("none",) or c.label:
                continue
            worst = 0
            stack = [(j, 0) for j in preds(i)]
            seen = set()
            while stack:
                j, dist = stack.pop()
                if (j, dist) in seen or dist >= MAXW:
                    continue
                seen.add((j, dist))
                p = ins[j]
                if p.kind != "none" and not p.label:
                    worst = max(worst, need(p, c) - dist)
                for k in preds(j):
                    stack.append((k, dist + p.states))
            if worst > 0:
                fix = (i, worst)
                break
        if fix is None:
            break
        i, w = fix
        ins.insert(i, Ins(f"s_nop {w-1}"))
        added += 1
    return [x.text for x in ins], added


class Asm:
    def __init__(self):
        self.L = []
        self.nl = 0
        self.mute = False

    def __call__(self, s):
        if self.mute:
            return
        for line in s.strip().split("\n"):
            line = line.strip()
            if line:
                self.L.append(line)

    def lab(self, p="L"):
        self.nl += 1
        return f"{p}_{self.nl}"
```

```python
import sys, struct
from asmlib import Asm, hazard_pass

NAME = "gated_mix__sliding_block_cached__geglu_ffn__decode"

PROG = 0
CQ, CP, CO, CH, FA, FB, FC = 0x100, 0x104, 0x108, 0x10C, 0x110, 0x114, 0x118
ZERO = 0x200
QS, PS, MS, OS, HS = 0x400, 0xD00, 0x1600, 0x1680, 0x18C0
PITCH = 288
RA, RB, RC, RD = 0x2000, 0xA000, 0x12000, 0x1A000
LDS_TOTAL = 0x22000
QP, GUP, EPOCH, ML, FP, OP, WS_END = 0, 0x20000, 0x5F000, 0x60000, 0x80000, 0x100000, 0x200000
TAGM = 0xFFF


def f32(x):
    return "0x%08x" % struct.unpack("<I", struct.pack("<f", x))[0]


LOG2E = 1.4426950408889634
SCALE = 128 ** -0.5
GC1 = -2.0 * LOG2E * 0.7978845608028654
GC2 = GC1 * 0.044715


def gen(D=24, stamps=False, spl1=(4, 8), splwo=(4, 8), splwd=(4, 6, 7), pf_kib=18, ntflag="nt"):
    A = Asm()
    d = D // 4
    assert D % 4 == 0

    def stamp(i):
        if stamps:
            A(f"s_memrealtime s[{84+2*i}:{85+2*i}]")

    def dump_stamps(base):
        if not stamps:
            return
        A("s_waitcnt lgkmcnt(0)")
        A("s_add_u32 s28, s28, 0x8000000")
        A("s_addc_u32 s29, s29, 0")
        A("s_mul_i32 s55, s2, 192")
        A("v_mov_b32 v5, s55")
        for j in range(8):
            A(f"v_mov_b32 v6, s{84+2*j}")
            A(f"v_mov_b32 v7, s{85+2*j}")
            A(f"global_store_dwordx2 v5, v[6:7], s[28:29] offset:{8*(base+j)}")
            A("s_nop 1")

    BUD, SPROG = "s30", "s31"

    def budget(k=1):
        A(f"s_sub_u32 {BUD}, {BUD}, {k}")
        A("s_cbranch_scc1 L_end")

    stamp(0)
    A("s_cmp_ge_u32 s2, 256")
    A("s_cbranch_scc1 L_end")
    A("s_load_dwordx16 s[4:19], s[0:1], 0")
    A("s_load_dwordx8 s[20:27], s[0:1], 64")
    A("s_load_dwordx2 s[28:29], s[0:1], 96")
    A("s_getpc_b64 s[32:33]")
    A("v_lshlrev_b32 v1, 4, v0")
    A("global_load_dwordx4 v[136:139], v1, s[32:33]")
    if pf_kib > 9:
        A("v_add_u32 v2, 9216, v1")
        A("global_load_dwordx4 v[140:143], v2, s[32:33]")
    A("v_lshrrev_b32 v1, 6, v0")
    A("v_and_b32 v0, 63, v0")
    A("v_readfirstlane_b32 s3, v1")
    A(f"s_mov_b32 {BUD}, 0x100000")
    A("s_cmp_lg_u32 s3, 0")
    A("s_cbranch_scc1 L_worker")

    A("s_setprio 3")
    A("v_mov_b32 v4, 0\nv_mov_b32 v5, 0\nv_mov_b32 v6, 0\nv_mov_b32 v7, 0")
    A("v_lshlrev_b32 v2, 4, v0")
    A("ds_write_b128 v2, v[4:7]")
    W8, W7, VK, VV, VO = 10, 14, 18, 22, 24
    vP, vPa, vFr, vFa, vT = 28, 29, 30, 31, 32
    A(f"""
    v_lshrrev_b32 v4, 3, v0
    v_and_b32 v5, 7, v0
    v_and_b32 v6, 2, v4
    v_xor_b32 v5, v5, v6
    v_lshlrev_b32 v5, 4, v5
    v_xor_b32 v6, 64, v5
    v_lshl_add_u32 v{W8}, v4, 13, v5
    v_lshl_add_u32 v{W8+1}, v4, 13, v6
    v_add_u32 v{W8+1}, {65536-1024}, v{W8+1}
    v_add_u32 v{W8+2}, {2*(65536-1024)}, v{W8}
    v_add_u32 v{W8+3}, {2*(65536-1024)}, v{W8+1}
    v_mul_u32_u24 v7, 7168, v4
    v_add_u32 v{W7}, v7, v5
    v_add_u32 v{W7+1}, v7, v6
    v_add_u32 v{W7+1}, {8*7168-1024}, v{W7+1}
    v_add_u32 v{W7+2}, {2*(8*7168-1024)}, v{W7}
    v_add_u32 v{W7+3}, {2*(8*7168-1024)}, v{W7+1}
    v_lshrrev_b32 v4, 4, v0
    v_and_b32 v5, 15, v0
    v_xor_b32 v6, v5, v4
    v_lshlrev_b32 v6, 4, v6
    v_lshl_add_u32 v{VK}, v4, 8, v6
    v_xor_b32 v{VK+1}, 64, v{VK}
    v_xor_b32 v{VK+2}, 128, v{VK}
    v_xor_b32 v{VK+3}, 192, v{VK}
    v_lshlrev_b32 v6, 1, v4
    v_xor_b32 v6, v5, v6
    v_lshlrev_b32 v6, 4, v6
    v_lshl_add_u32 v{VV}, v4, 8, v6
    v_xor_b32 v{VV+1}, 128, v{VV}
    v_lshl_add_u32 v{VO}, v4, 11, v6
    v_add_u32 v{VO+1}, 7168, v{VO}
    v_xor_b32 v7, 128, v{VO}
    v_add_u32 v{VO+2}, {2*7168}, v7
    v_add_u32 v{VO+3}, {3*7168}, v7
    v_mov_b32 v{vP}, {-d}
    v_lshlrev_b32 v{vPa}, 2, v0
    """)
    A(f"""
    s_and_b32 s67, s2, 3
    s_lshr_b32 s68, s2, 2
    s_lshl_b32 s68, s68, 7
    s_lshl_b32 s60, s67, 21
    s_add_u32 s60, s60, s68
    s_mul_i32 s63, s67, {256*7168}
    s_add_u32 s63, s63, s68
    s_mov_b32 s64, s63
    s_and_b32 s67, s2, 7
    s_lshl_b32 s61, s67, 23
    s_lshr_b32 s68, s2, 3
    s_lshl_b32 s69, s68, 15
    s_add_u32 s61, s61, s69
    s_add_u32 s61, s61, {28672*256}
    s_mov_b32 s62, s61
    s_and_b32 s68, s68, 3
    s_lshl_b32 s67, s67, 2
    s_add_u32 s67, s67, s68
    s_lshr_b32 s68, s2, 5
    s_lshl_b32 s68, s68, 8
    s_lshl_b32 s65, s67, 18
    s_add_u32 s65, s65, s68
    s_mul_i32 s66, s67, {112*2048}
    s_add_u32 s66, s66, s68
    s_cmp_lt_u32 s2, 224
    s_mov_b32 s70, {RD}
    s_mov_b32 s71, {RA}
    s_mov_b32 s72, {FA}
    s_cmov_b32 s70, {RB}
    s_cmov_b32 s71, {RC}
    s_cmov_b32 s72, {FC}
    """)
    srds = [(32, 10, 8 << 20), (36, 6, 64 << 20), (40, 8, 64 << 20), (44, 16, 7 << 20), (48, 18, 7 << 20),
            (52, 12, 8 << 20), (56, 20, 7 << 20)]
    for r, p, n in srds:
        A(f"s_mov_b32 s{r+2}, {n}")
        A(f"s_mov_b32 s{r+3}, 0x20000")
    A(f"s_mov_b32 m0, {RA}")
    A("s_waitcnt lgkmcnt(0)")
    for r, p, n in srds[:1]:
        A(f"s_mov_b64 s[{r}:{r+1}], s[{p}:{p+1}]")

    def group(srd, vo, soff):
        for t in range(4):
            off = f" offset:{1024*t}" if t else ""
            A(f"buffer_load_dwordx4 v{vo[t]}, s[{srd}:{srd+3}], {soff} offen{off} {ntflag} lds")

    def publish():
        A(f"v_add_u32 v{vP}, 1, v{vP}")
        A(f"ds_max_i32 v{vPa}, v{vP}")

    def tloop(srd, vo, soff, step, ng, base, free=None, skip=0):
        if not skip:
            A(f"s_mov_b32 m0, {base}")
        if isinstance(base, int):
            A(f"s_mov_b32 s73, {base + ng*4096}")
        else:
            A(f"s_add_u32 s73, {base}, {ng*4096}")
        if free is not None:
            A(f"v_mov_b32 v{vFa}, {free}")
        L = A.lab("L_ld")
        A(f"{L}:")
        group(srd, vo, soff)
        if free is not None:
            A(f"ds_read_b32 v{vFr}, v{vFa}")
        A(f"s_add_u32 {soff}, {soff}, {step}")
        A("s_add_u32 m0, m0, 4096")
        A(f"s_waitcnt vmcnt({D})")
        publish()
        A("s_cmp_lg_u32 m0, s73")
        A(f"s_cbranch_scc1 {L}")
        if free is not None:
            ok, sp = A.lab("L_fok"), A.lab("L_fsp")
            A("s_waitcnt lgkmcnt(0)")
            A(f"v_readfirstlane_b32 s74, v{vFr}")
            A("s_cmp_ge_u32 s74, 4")
            A(f"s_cbranch_scc1 {ok}")
            A("s_waitcnt vmcnt(0)")
            A(f"v_add_u32 v{vT}, {d}, v{vP}")
            A(f"ds_max_i32 v{vPa}, v{vT}")
            A(f"{sp}:")
            A(f"ds_read_b32 v{vFr}, v{vFa}")
            A("s_waitcnt lgkmcnt(0)")
            A(f"v_readfirstlane_b32 s74, v{vFr}")
            budget()
            A("s_cmp_lt_u32 s74, 4")
            A(f"s_cbranch_scc1 {sp}")
            A(f"{ok}:")

    w8 = [W8 + t for t in range(4)]
    w7 = [W7 + t for t in range(4)]
    vk = [VK + t for t in range(4)]
    vv = [VV, VV, VV + 1, VV + 1]
    vo = [VO + t for t in range(4)]
    NPEEL = 2
    for g in range(NPEEL):
        group(32, w8, "s60")
        A(f"s_add_u32 s60, s60, {32*8192}")
        A("s_add_u32 m0, m0, 4096")
        A(f"v_add_u32 v{vP}, 1, v{vP}")
        if g == 0:
            for r, p, n in srds[1:]:
                A(f"s_mov_b64 s[{r}:{r+1}], s[{p}:{p+1}]")
    A("s_barrier")
    stamp(1)
    tloop(32, w8, "s60", 32 * 8192, 8, RA, skip=NPEEL)
    stamp(2)
    tloop(36, vk, "s61", 4096, 8, RB)
    tloop(40, vv, "s62", 4096, 8, RC)
    stamp(3)
    A("s_cmp_ge_u32 s2, 224")
    A("s_cbranch_scc1 L_ld_wo")
    tloop(44, w7, "s63", 32 * 7168, 8, RD, free=FA)
    tloop(48, w7, "s64", 32 * 7168, 8, RA, free=FB)
    A("L_ld_wo:")
    stamp(4)
    tloop(52, vo, "s65", 16 * 2048, 8, "s70", free="s72")
    stamp(5)
    tloop(56, vo, "s66", 16 * 2048, 7, "s71")
    stamp(6)
    for k in range(d - 1, -1, -1):
        A(f"s_waitcnt vmcnt({4*k})")
        publish()
    stamp(7)
    dump_stamps(0)
    A("s_endpgm")

    vN, vQ, vZ, vMK, vONE = 1, 2, 3, 4, 33
    aW, aV0, aV1 = 10, 24, 25
    X, F, ACC = 40, 72, 104
    T = ["s50", "s51", "s52", "s53"]
    SW = "s54"
    WS = "s[36:39]"
    A("L_worker:")
    A(f"""
    s_sub_u32 {SW}, s3, 1
    s_and_b32 {SW}, {SW}, 3
    s_mov_b32 {SPROG}, 0
    v_and_b32 v{vN}, 15, v0
    v_lshrrev_b32 v{vQ}, 4, v0
    v_mov_b32 v{vZ}, 0
    v_mov_b32 v{vMK}, 0x{0xFFFFFFFF ^ TAGM:x}
    v_mov_b32 v{vONE}, 1
    s_and_b32 s55, s2, 3
    s_lshl_b32 s55, s55, 9
    v_and_b32 v5, 1, v0
    v_lshlrev_b32 v5, 11, v5
    v_lshl_add_u32 v5, v{vQ}, 4, v5
    s_mov_b32 s34, 4096
    s_mov_b32 s35, 0x20000
    s_mov_b32 s38, {WS_END}
    s_mov_b32 s39, 0x20000
    s_waitcnt lgkmcnt(0)
    s_mov_b64 s[32:33], s[4:5]
    s_mov_b64 s[36:37], s[28:29]
    s_load_dwordx2 s[48:49], s[28:29], {EPOCH}
    """)
    for s in range(8):
        A(f"buffer_load_dwordx4 v[{X+4*s}:{X+4*s+3}], v5, s[32:35], s55 offen offset:{64*s}")
    A("s_barrier")
    A(f"""
    v_bfe_u32 v5, v0, 2, 2
    v_lshl_add_u32 v5, v{vQ}, 3, v5
    v_and_b32 v6, 3, v0
    v_lshlrev_b32 v6, 3, v6
    v_bfe_u32 v7, v0, 3, 2
    v_xor_b32 v7, {SW}, v7
    v_lshl_add_u32 v7, v7, 5, v6
    v_lshl_add_u32 v{aW}, v5, 7, v7
    s_lshl_b32 s55, {SW}, 1
    v_bfe_u32 v7, v0, 2, 3
    v_xor_b32 v7, s55, v7
    v_lshl_add_u32 v7, v7, 5, v6
    v_lshl_add_u32 v{aV0}, v5, 8, v7
    s_mov_b32 s60, 0x00030003
    s_mov_b32 s61, 0x00030003
    s_mov_b32 s62, 0x000f000f
    s_mov_b32 s63, 0x000f000f
    s_mov_b32 s64, 0xff00ff00
    s_mov_b32 s65, 0xff00ff00
    s_mov_b32 s66, 0xcccccccc
    s_mov_b32 s67, 0xcccccccc
    s_and_b32 s68, s2, 7
    s_lshl_b32 s68, s68, 2
    s_bfe_u32 s69, s2, 0x20003
    s_add_u32 s68, s68, s69
    s_lshr_b32 s69, s2, 5
    s_cmp_lt_u32 s2, 224
    s_cselect_b32 s70, 0, 16
    s_mov_b32 s71, {RD}
    s_mov_b32 s72, {RA}
    s_cmov_b32 s71, {RB}
    s_cmov_b32 s72, {RC}
    """)
    RB3, CB3, ADJ, REGWO, REGWD = "s68", "s69", "s70", "s71", "s72"
    M_N2, M_N4, M_HI8, M_B1 = "s[60:61]", "s[62:63]", "s[64:65]", "s[66:67]"
    oFP = 32
    A(f"""
    s_lshl_b32 s55, {CB3}, 4
    s_lshl_b32 s56, {SW}, 2
    s_add_u32 s55, s55, s56
    s_lshl_b32 s55, s55, 11
    s_lshl_b32 s56, {RB3}, 5
    s_add_u32 s55, s55, s56
    s_add_u32 s55, s55, {FP}
    v_and_b32 v5, 1, v0
    v_lshlrev_b32 v5, 7, v5
    v_and_b32 v6, 2, v0
    v_add_u32 v5, v5, v6
    v_lshrrev_b32 v6, 5, v0
    v_add_u32 v5, v5, v6
    v_lshlrev_b32 v5, 11, v5
    v_and_b32 v6, 16, v0
    v_add3_u32 v{oFP}, v5, v6, s55
    s_waitcnt lgkmcnt(0)
    s_add_u32 s48, s48, 1
    s_addc_u32 s49, s49, 0
    s_and_b32 s50, s48, {TAGM}
    s_lshr_b32 s55, s48, 12
    s_add_u32 s55, s55, s48
    s_and_b32 s51, s55, {TAGM}
    s_lshr_b64 s[56:57], s[48:49], 24
    s_add_u32 s55, s56, s48
    s_and_b32 s52, s55, {TAGM}
    s_lshr_b32 s55, s49, 4
    s_add_u32 s55, s55, s48
    s_and_b32 s53, s55, {TAGM}
    """)

    def wait_prog(thr):
        ok, sp = A.lab("L_pok"), A.lab("L_psp")
        A(f"s_cmp_ge_i32 {SPROG}, {thr}")
        A(f"s_cbranch_scc1 {ok}")
        A(f"{sp}:")
        A(f"ds_read_b32 v5, v{vZ} offset:{PROG}")
        A("s_waitcnt lgkmcnt(0)")
        A(f"v_readfirstlane_b32 {SPROG}, v5")
        budget()
        A(f"s_cmp_lt_i32 {SPROG}, {thr}")
        A(f"s_cbranch_scc1 {sp}")
        A(f"{ok}:")

    def wait_prog_adj(thr):
        A(f"s_sub_u32 s55, {thr}, {ADJ}")
        wait_prog("s55")

    def arrive(cnt):
        A("s_mov_b64 exec, 1")
        A(f"ds_add_u32 v{vZ}, v{vONE} offset:{cnt}")
        A("s_mov_b64 exec, -1")

    def wait_cnt(cnt, n, reads):
        sp = A.lab("L_csp")
        A(f"{sp}:")
        A(f"ds_read_b32 v5, v{vZ} offset:{cnt}")
        for r in reads:
            A(r)
        A("s_waitcnt lgkmcnt(0)")
        A("v_readfirstlane_b32 s55, v5")
        budget()
        A(f"s_cmp_lt_u32 s55, {n}")
        A(f"s_cbranch_scc1 {sp}")

    def tag4(dst, src):
        for j in range(4):
            A(f"v_and_or_b32 v{dst+j}, v{src+j}, v{vMK}, {T[j]}")

    def gather4(loads):
        g = A.lab("L_g")
        A(f"{g}:")
        for dst, vo_, off in loads:
            o = f" offset:{off}" if off else ""
            A(f"buffer_load_dwordx4 v[{dst}:{dst+3}], v{vo_}, {WS}, 0 offen{o} sc1")
        n = len(loads)
        for i, (dst, vo_, off) in enumerate(loads):
            A(f"s_waitcnt vmcnt({n-1-i})")
            for j in range(4):
                A(f"v_xor_b32 v{dst+j}, {T[j]}, v{dst+j}")
            if i == 0:
                A(f"v_or3_b32 v5, v{dst}, v{dst+1}, v{dst+2}")
                A(f"v_or_b32 v5, v5, v{dst+3}")
            else:
                A(f"v_or3_b32 v5, v5, v{dst}, v{dst+1}")
                A(f"v_or3_b32 v5, v5, v{dst+2}, v{dst+3}")
        A(f"v_and_b32 v5, {TAGM}, v5")
        A("v_cmp_ne_u32 vcc, 0, v5")
        budget(16)
        A("s_mov_b64 exec, vcc")
        A(f"s_cbranch_vccnz {g}")
        A("s_mov_b64 exec, -1")

    def mfma(dst, a, b, c):
        cs = "0" if c is None else f"v[{c}:{c+3}]"
        A(f"v_mfma_f32_16x16x32_bf16 v[{dst}:{dst+3}], v[{a}:{a+3}], v[{b}:{b+3}], {cs}")

    def gemv64(areg, acc, gbase, splits, first_vm=False, adj=False):
        s0 = 0
        for k, s1 in enumerate(splits):
            wait_prog(gbase + s1)
            for s in range(s0, s1):
                A(f"ds_read_b64_tr_b16 v[{F+4*s}:{F+4*s+1}], v{areg} offset:{4096*s}")
                A(f"ds_read_b64_tr_b16 v[{F+4*s+2}:{F+4*s+3}], v{areg} offset:{4096*s+512}")
            if k == 0 and first_vm:
                A("s_waitcnt vmcnt(0)")
            for s in range(s0, s1):
                A(f"s_waitcnt lgkmcnt({2*(s1-1-s)})")
                mfma(acc, F + 4 * s, X + 4 * s, None if s == 0 else acc)
            s0 = s1

    def bf16_round_pair(pk, lo, hi, a, b):
        A(f"v_cvt_pk_bf16_f32 v{pk}, v{a}, v{b}")
        A(f"v_lshlrev_b32 v{lo}, 16, v{pk}")
        A(f"v_and_b32 v{hi}, 0xffff0000, v{pk}")

    DPPM = "row_mask:0xf bank_mask:0xf"

    A("s_cmp_gt_u32 s3, 4")
    A("s_cbranch_scc1 L_F")

    oQP, oQG, aQsW, aQsR, aK = 11, 12, 13, 14, 15
    aPsW, aMsW, aPlo, aPhi, aMsR = 19, 20, 21, 22, 23
    oOP, oML, oOPG, oMLG, aOsW, aOsR = 26, 27, 28, 29, 30, 31
    SB, SG, SSPL = "s73", "s74", "s75"
    SC = "s76"
    A(f"""
    v_add_u32 v{aW}, {RA}, v{aW}
    s_bfe_u32 {SB}, s2, 0x10002
    s_and_b32 {SG}, s2, 3
    s_lshr_b32 {SSPL}, s2, 3
    s_mov_b32 {SC}, {f32(LOG2E)}
    """)
    A(f"""
    s_lshr_b32 s55, s2, 4
    s_lshl_b32 s55, s55, 12
    s_and_b32 s56, s2, 3
    s_lshl_b32 s56, s56, 10
    s_add_u32 s55, s55, s56
    s_bfe_u32 s56, s2, 0x20002
    s_lshl_b32 s56, s56, 8
    s_add_u32 s55, s55, s56
    s_lshl_b32 s56, {SW}, 6
    s_add_u32 s55, s55, s56
    v_and_b32 v5, 1, v0
    v_lshlrev_b32 v5, 16, v5
    v_lshl_add_u32 v5, v{vQ}, 4, v5
    v_add_u32 v{oQP}, s55, v5
    """)
    A(f"""
    s_and_b32 s55, s2, 7
    s_lshl_b32 s55, s55, 2
    s_add_u32 s55, s55, {SW}
    s_lshl_b32 s55, s55, 12
    v_lshlrev_b32 v5, 4, v0
    v_add_u32 v{oQG}, s55, v5
    """)
    A(f"""
    s_mul_i32 s55, {SW}, {2*PITCH}
    s_add_u32 s55, s55, {QS}
    v_lshrrev_b32 v5, 5, v0
    v_mul_u32_u24 v5, {PITCH}, v5
    v_and_b32 v6, 31, v0
    v_lshl_add_u32 v5, v6, 3, v5
    v_add_u32 v{aQsW}, s55, v5
    v_and_b32 v6, 7, v0
    v_mul_u32_u24 v7, {PITCH}, v6
    v_lshl_add_u32 v8, v{vQ}, 4, v7
    v_add_u32 v{aQsR}, {QS}, v8
    v_add_u32 v8, {PS}, v8
    v_mov_b32 v9, {ZERO}
    v_cndmask_b32 v{aPlo}, v8, v9, {M_HI8}
    v_cndmask_b32 v{aPhi}, v9, v8, {M_HI8}
    v_lshlrev_b32 v9, 4, v6
    v_add_u32 v{aMsR}, {MS}, v9
    s_lshl_b32 s55, {SW}, 2
    v_add_u32 v{aMsW}, s55, v{aMsR}
    s_lshl_b32 s55, {SW}, 6
    s_add_u32 s55, s55, {PS}
    v_and_b32 v9, 8, v0
    v_lshlrev_b32 v9, 2, v9
    v_lshl_add_u32 v9, v{vQ}, 3, v9
    v_add3_u32 v{aPsW}, v7, v9, s55
    """)
    A(f"""
    s_and_b32 s55, s2, 7
    s_lshl_b32 s55, s55, 8
    s_add_u32 s55, s55, {SSPL}
    s_lshl_b32 s56, s55, 9
    s_lshl_b32 s57, {SW}, 7
    s_add_u32 s56, s56, s57
    s_add_u32 s56, s56, {OP}
    v_lshlrev_b32 v9, 1, v9
    v_lshl_add_u32 v9, v6, 14, v9
    v_add_u32 v{oOP}, s56, v9
    s_lshl_b32 s56, s55, 4
    s_add_u32 s56, s56, {ML}
    v_lshlrev_b32 v9, 9, v6
    v_add_u32 v{oML}, s56, v9
    """)
    A(f"""
    s_lshl_b32 s55, {SW}, 13
    s_add_u32 s55, s55, {RB}
    v_xor_b32 v5, v{vQ}, v{vN}
    v_lshlrev_b32 v5, 4, v5
    v_lshl_add_u32 v5, v{vN}, 8, v5
    v_add_u32 v{aK}, s55, v5
    v_xor_b32 v{aK+1}, 64, v{aK}
    v_xor_b32 v{aK+2}, 128, v{aK}
    v_xor_b32 v{aK+3}, 192, v{aK}
    v_add_u32 v{aV0}, {RC}, v{aV0}
    v_xor_b32 v{aV1}, 32, v{aV0}
    """)
    A(f"""
    s_lshl_b32 s55, {RB3}, 14
    s_lshl_b32 s56, {SW}, 7
    s_add_u32 s55, s55, s56
    s_add_u32 s55, s55, {OP}
    v_lshrrev_b32 v5, 5, v0
    v_bfe_u32 v7, v0, 3, 2
    v_lshlrev_b32 v8, 19, v5
    v_lshl_add_u32 v8, v7, 12, v8
    v_lshl_add_u32 v8, v6, 4, v8
    v_add_u32 v{oOPG}, s55, v8
    s_lshl_b32 s55, {RB3}, 9
    s_add_u32 s55, s55, {ML}
    v_lshlrev_b32 v8, 14, v5
    v_lshl_add_u32 v8, v7, 7, v8
    v_and_b32 v9, 3, v0
    v_lshl_add_u32 v8, v9, 4, v8
    v_add_u32 v{oMLG}, s55, v8
    s_lshl_b32 s55, {SW}, 6
    s_add_u32 s55, s55, {OS}
    v_mul_u32_u24 v8, {PITCH}, v5
    v_lshl_add_u32 v8, v6, 3, v8
    v_bfe_u32 v9, v0, 4, 1
    v_lshl_add_u32 v8, v9, 2, v8
    v_add_u32 v{aOsW}, s55, v8
    v_and_b32 v9, 1, v0
    v_mul_u32_u24 v9, {PITCH}, v9
    v_lshl_add_u32 v9, v{vQ}, 4, v9
    v_add_u32 v{aOsR}, {OS}, v9
    """)
    ONES = 132
    A(f"""
    v_mov_b32 v{ONES}, 0x3f803f80
    v_mov_b32 v{ONES+1}, 0x3f803f80
    v_mov_b32 v{ONES+2}, 0x3f803f80
    v_mov_b32 v{ONES+3}, 0x3f803f80
    s_lshl_b32 s55, {SW}, 1
    s_lshl_b32 s78, 3, s55
    s_mov_b32 s79, 0
    """)
    stamp(1)
    gemv64(aW, ACC, 0, spl1, first_vm=True)
    arrive(FA)
    tag4(ACC + 4, ACC)
    A(f"s_mov_b64 exec, {M_N2}")
    A(f"buffer_store_dwordx4 v[{ACC+4}:{ACC+7}], v{oQP}, {WS}, 0 offen sc1")
    A("s_mov_b64 exec, -1")
    stamp(2)
    G = X
    gather4([(G + 4 * r, oQG, 1024 * r) for r in range(4)])
    A(f"""
    v_pk_add_f32 v[{G}:{G+1}], v[{G}:{G+1}], v[{G+4}:{G+5}]
    v_pk_add_f32 v[{G+2}:{G+3}], v[{G+2}:{G+3}], v[{G+6}:{G+7}]
    v_pk_add_f32 v[{G+8}:{G+9}], v[{G+8}:{G+9}], v[{G+12}:{G+13}]
    v_pk_add_f32 v[{G+10}:{G+11}], v[{G+10}:{G+11}], v[{G+14}:{G+15}]
    v_pk_add_f32 v[{G}:{G+1}], v[{G}:{G+1}], v[{G+8}:{G+9}]
    v_pk_add_f32 v[{G+2}:{G+3}], v[{G+2}:{G+3}], v[{G+10}:{G+11}]
    v_cvt_pk_bf16_f32 v6, v{G}, v{G+1}
    v_cvt_pk_bf16_f32 v7, v{G+2}, v{G+3}
    ds_write_b64 v{aQsW}, v[6:7]
    """)
    arrive(CQ)
    stamp(3)
    A(f"s_lshl_b32 s77, {SW}, 1")
    A("s_add_u32 s77, s77, 10")
    wait_prog("s77")
    for t in range(2):
        for s in range(4):
            r = F + 16 * t + 4 * s
            A(f"ds_read_b128 v[{r}:{r+3}], v{aK+s} offset:{4096*t}")
    arrive(FB)
    QF = X + 16
    wait_cnt(CQ, 8, [f"ds_read_b128 v[{QF+4*s}:{QF+4*s+3}], v{aQsR} offset:{64*s}" for s in range(4)])
    for s in range(4):
        for t in range(2):
            mfma(ACC + 4 * t, F + 16 * t + 4 * s, QF + 4 * s, None if s == 0 else ACC + 4 * t)
    S = X
    for j in range(4):
        A(f"v_cndmask_b32 v{S+j}, v{ACC+j}, v{ACC+4+j}, {M_HI8}")
    bf16_round_pair(6, S, S + 1, S, S + 1)
    bf16_round_pair(7, S + 2, S + 3, S + 2, S + 3)
    for j in range(4):
        A(f"v_mul_f32 v{S+j}, {f32(SCALE)}, v{S+j}")
    bf16_round_pair(6, S, S + 1, S, S + 1)
    bf16_round_pair(7, S + 2, S + 3, S + 2, S + 3)
    A(f"""
    v_max3_f32 v6, v{S}, v{S+1}, v{S+2}
    v_max_f32 v6, v6, v{S+3}
    v_max_f32_dpp v6, v6, v6 row_ror:8 {DPPM}
    v_mov_b32 v7, v6
    v_permlane16_swap_b32 v6, v7
    v_max_f32 v6, v6, v7
    v_mov_b32 v7, v6
    v_permlane32_swap_b32 v6, v7
    v_max_f32 v6, v6, v7
    v_mul_f32 v7, {SC}, v6
    """)
    for j in range(4):
        A(f"v_fma_f32 v{S+j}, v{S+j}, {SC}, -v7")
    for j in range(4):
        A(f"v_exp_f32 v{S+j}, v{S+j}")
    A(f"""
    v_cvt_pk_bf16_f32 v8, v{S}, v{S+1}
    v_cvt_pk_bf16_f32 v9, v{S+2}, v{S+3}
    ds_write_b64 v{aPsW}, v[8:9]
    s_mov_b64 exec, 0xff
    ds_write_b32 v{aMsW}, v6
    """)
    arrive(CP)
    stamp(4)
    wait_prog(24)
    for t in range(2):
        for s in range(4):
            r = F + 16 * t + 4 * s
            A(f"ds_read_b64_tr_b16 v[{r}:{r+1}], v{aV0+t} offset:{8192*s}")
            A(f"ds_read_b64_tr_b16 v[{r+2}:{r+3}], v{aV0+t} offset:{8192*s+1024}")
    arrive(FC)
    PL, PH, MSV = X, X + 16, 36
    rd = [f"ds_read_b128 v[{MSV}:{MSV+3}], v{aMsR}"]
    for s in range(4):
        rd.append(f"ds_read_b128 v[{PL+4*s}:{PL+4*s+3}], v{aPlo} offset:{64*s}")
        rd.append(f"ds_read_b128 v[{PH+4*s}:{PH+4*s+3}], v{aPhi} offset:{64*s}")
    wait_cnt(CP, 4, rd)
    LA = 120
    LAs = [120, 124, 128, 144]
    fw = ["v_max3_f32 v6, v36, v37, v38", "v_max_f32 v6, v6, v39"]
    for s in range(4):
        fw.append(f"v_sub_f32 v{MSV+s}, v{MSV+s}, v6")
    for s in range(4):
        fw.append(f"v_mul_f32 v{MSV+s}, {SC}, v{MSV+s}")
    for s in range(4):
        fw.append(f"v_exp_f32 v{MSV+s}, v{MSV+s}")
    fw.append(f"v_or_b32 v148, {T[0]}, v6")
    fw.append(f"v_mov_b32 v150, {T[2]}")
    fw.append(f"v_mov_b32 v151, {T[3]}")
    k = 0
    for t in range(2):
        for s in range(4):
            mfma(ACC + 4 * s, F + 16 * t + 4 * s, (PL, PH)[t] + 4 * s, None if t == 0 else ACC + 4 * s)
            for _ in range(2):
                if k < len(fw):
                    A(fw[k]); k += 1
    while k < len(fw):
        A(fw[k]); k += 1
    O = F
    for s in range(4):
        mfma(LAs[s], ONES, PL + 4 * s, None)
        for j in range(4):
            if s == 0:
                A(f"v_mul_f32 v{O+j}, v{MSV}, v{ACC+j}")
            else:
                A(f"v_fmac_f32 v{O+j}, v{MSV+s}, v{ACC+4*s+j}")
    tag4(O + 4, O)
    A(f"buffer_store_dwordx4 v[{O+4}:{O+7}], v{oOP}, {WS}, 0 offen sc1")
    A(f"v_mul_f32 v7, v{MSV}, v{LAs[0]}")
    for s in range(1, 4):
        A(f"v_fmac_f32 v7, v{MSV+s}, v{LAs[s]}")
    A(f"v_and_or_b32 v149, v7, v{vMK}, {T[1]}")
    A("s_mov_b64 exec, s[78:79]")
    A(f"buffer_store_dwordx4 v[148:151], v{oML}, {WS}, 0 offen sc1")
    A("s_mov_b64 exec, -1")
    stamp(5)
    M0R, M1R = ACC, ACC + 4
    gather4([(M0R, oMLG, 0), (M1R, oMLG, 64)] + [(G + 4 * i, oOPG, 512 * i) for i in range(8)])
    stamp(6)
    W0, W1 = 8, 9
    OA = ACC + 8
    A(f"""
    v_max_f32 v6, v{M0R}, v{M1R}
    v_max_f32_dpp v6, v6, v6 quad_perm:[1,0,3,2] {DPPM}
    v_max_f32_dpp v6, v6, v6 quad_perm:[2,3,0,1] {DPPM}
    v_max_f32_dpp v6, v6, v6 row_ror:8 {DPPM}
    v_mov_b32 v7, v6
    v_permlane16_swap_b32 v6, v7
    v_max_f32 v6, v6, v7
    v_sub_f32 v{W0}, v{M0R}, v6
    v_sub_f32 v{W1}, v{M1R}, v6
    v_mul_f32 v{W0}, {SC}, v{W0}
    v_mul_f32 v{W1}, {SC}, v{W1}
    v_exp_f32 v{W0}, v{W0}
    v_exp_f32 v{W1}, v{W1}
    v_mul_f32 v6, v{W0}, v{M0R+1}
    v_fmac_f32 v6, v{W1}, v{M1R+1}
    """)
    lred = [f"v_add_f32_dpp v6, v6, v6 quad_perm:[1,0,3,2] {DPPM}",
            f"v_add_f32_dpp v6, v6, v6 quad_perm:[2,3,0,1] {DPPM}",
            f"v_add_f32_dpp v6, v6, v6 row_ror:8 {DPPM}",
            "v_mov_b32 v7, v6",
            "v_permlane16_swap_b32 v6, v7",
            "v_add_f32 v6, v6, v7",
            "v_rcp_f32 v6, v6"]
    for i in range(8):
        w = (W0, W1)[i >> 2]
        qp = f"quad_perm:[{i&3},{i&3},{i&3},{i&3}] {DPPM}"
        for j in range(4):
            op = "v_mul_f32_dpp" if i == 0 else "v_fmac_f32_dpp"
            A(f"{op} v{OA+j}, v{w}, v{G+4*i+j} {qp}")
        if i < len(lred):
            A(lred[i])
    for j in range(4):
        A(f"v_add_f32_dpp v{OA+j}, v{OA+j}, v{OA+j} row_ror:8 {DPPM}")
    A(f"""
    v_permlane16_swap_b32 v{OA}, v{OA+2}
    v_permlane16_swap_b32 v{OA+1}, v{OA+3}
    v_add_f32 v{OA}, v{OA}, v{OA+2}
    v_add_f32 v{OA+1}, v{OA+1}, v{OA+3}
    v_mul_f32 v{OA}, v{OA}, v6
    v_mul_f32 v{OA+1}, v{OA+1}, v6
    v_cvt_pk_bf16_f32 v7, v{OA}, v{OA+1}
    ds_write_b32 v{aOsW}, v7
    """)
    arrive(CO)
    A(f"s_sub_u32 s55, {REGWO}, {RC}")
    A(f"v_add_u32 v{aV0}, s55, v{aV0}")
    A(f"v_add_u32 v{aV1}, s55, v{aV1}")
    BF = X
    wait_cnt(CO, 4, [f"ds_read_b128 v[{BF+4*s}:{BF+4*s+3}], v{aOsR} offset:{64*s}" for s in range(4)])

    def gemv128(gbase, splits, nsteps):
        s0 = 0
        for g1 in splits:
            s1 = min(g1 // 2, nsteps)
            if s1 == s0:
                continue
            wait_prog_adj(gbase + 2 * s1)
            for s in range(s0, s1):
                for t in range(2):
                    r = F + 16 * t + 4 * s
                    A(f"ds_read_b64_tr_b16 v[{r}:{r+1}], v{aV0+t} offset:{8192*s}")
                    A(f"ds_read_b64_tr_b16 v[{r+2}:{r+3}], v{aV0+t} offset:{8192*s+1024}")
            n = 4 * (s1 - s0)
            for s in range(s0, s1):
                for t in range(2):
                    n -= 2
                    A(f"s_waitcnt lgkmcnt({n})")
                    mfma(ACC + 4 * t, F + 16 * t + 4 * s, BF + 4 * s, None if s == 0 else ACC + 4 * t)
            s0 = s1

    def publish_fp(off):
        for j in range(4):
            A(f"v_cndmask_b32 v{ACC+8+j}, v{ACC+j}, v{ACC+4+j}, {M_B1}")
        tag4(ACC + 8, ACC + 8)
        A(f"s_mov_b64 exec, {M_N4}")
        o = f" offset:{off}" if off else ""
        A(f"buffer_store_dwordx4 v[{ACC+8}:{ACC+11}], v{oFP}, {WS}, 0 offen{o} sc1")
        A("s_mov_b64 exec, -1")

    gemv128(40, splwo, 4)
    publish_fp(0)
    stamp(7)
    if stamps:
        A(f"s_cmp_lg_u32 {SW}, 0")
        A("s_cbranch_scc1 L_end")
        dump_stamps(8)
    A("s_endpgm")

    A("L_F:")
    arrive(CQ)
    aWg, aWu, oGU, oGG, vTL, aHsW, aHsR, aT0, aT1, aHsT, vCo, oFG, oOut = 11, 12, 13, 14, 15, 16, 17, 18, 19, 20, 21, 22, 23
    A(f"""
    v_add_u32 v{aWg}, {RD}, v{aW}
    v_add_u32 v{aWu}, {RA}, v{aW}
    v_add_u32 v{aV0}, {REGWD}, v{aV0}
    v_xor_b32 v{aV1}, 32, v{aV0}
    """)
    A(f"""
    s_lshr_b32 s55, s2, 2
    s_lshl_b32 s55, s55, 11
    s_and_b32 s56, s2, 3
    s_lshl_b32 s56, s56, 8
    s_add_u32 s55, s55, s56
    s_lshl_b32 s56, {SW}, 6
    s_add_u32 s55, s55, s56
    s_add_u32 s55, s55, {GUP}
    v_and_b32 v5, 1, v0
    v_mul_u32_u24 v5, {56*2048}, v5
    v_and_b32 v6, 2, v0
    v_lshl_add_u32 v5, v6, 9, v5
    v_lshl_add_u32 v5, v{vQ}, 4, v5
    v_add_u32 v{oGU}, s55, v5
    """)
    A(f"""
    s_mul_i32 s55, {RB3}, 112
    s_mul_i32 s56, {SW}, 28
    s_add_u32 s55, s55, s56
    v_and_b32 v6, 31, v0
    v_add_u32 v7, s55, v6
    v_lshrrev_b32 v8, 6, v7
    v_and_b32 v7, 63, v7
    v_lshlrev_b32 v7, 2, v7
    v_lshl_add_u32 v7, v8, 11, v7
    v_lshrrev_b32 v5, 5, v0
    v_mul_u32_u24 v8, {56*2048}, v5
    v_add_u32 v7, v7, v8
    v_add_u32 v{oGG}, {GUP}, v7
    s_lshl_b32 s56, s56, 1
    s_add_u32 s56, s56, {HS}
    v_mul_u32_u24 v8, {PITCH}, v5
    v_lshl_add_u32 v8, v6, 1, v8
    v_add_u32 v{aHsW}, s56, v8
    v_and_b32 v9, 1, v0
    v_mul_u32_u24 v9, {PITCH}, v9
    v_lshl_add_u32 v8, v{vQ}, 4, v9
    v_add_u32 v{aHsR}, {HS}, v8
    v_lshl_add_u32 v8, v{vQ}, 3, v9
    v_add_u32 v{aHsT}, {HS+192}, v8
    v_mov_b32 v5, {T[0]}
    v_mov_b32 v6, {T[1]}
    v_mov_b32 v7, {T[2]}
    v_mov_b32 v8, {T[3]}
    s_mov_b32 s56, 0xaaaaaaaa
    s_mov_b32 s57, 0xaaaaaaaa
    v_cndmask_b32 v5, v5, v6, s[56:57]
    v_cndmask_b32 v7, v7, v8, s[56:57]
    v_cndmask_b32 v{vTL}, v5, v7, {M_B1}
    """)
    A(f"""
    v_bfe_u32 v5, v0, 2, 2
    v_lshrrev_b32 v6, 5, v0
    v_lshl_add_u32 v5, v6, 2, v5
    s_lshl_b32 s55, {SW}, 1
    v_xor_b32 v5, s55, v5
    v_and_b32 v6, 3, v0
    v_lshlrev_b32 v6, 3, v6
    v_lshl_add_u32 v5, v5, 5, v6
    v_lshrrev_b32 v6, 2, v0
    v_lshl_add_u32 v5, v6, 8, v5
    s_add_u32 s55, {REGWD}, {96*256}
    v_add_u32 v{aT0}, s55, v5
    v_xor_b32 v{aT1}, 32, v{aT0}
    """)
    A(f"s_cmp_lg_u32 {SW}, 0")
    A("s_cbranch_scc1 L_nog")
    A(f"""
    s_mov_b64 s[40:41], s[22:23]
    s_mov_b32 s42, 2048
    s_mov_b32 s43, 0x20000
    s_mov_b64 s[44:45], s[24:25]
    s_mov_b32 s46, 4096
    s_mov_b32 s47, 0x20000
    s_lshr_b32 s55, s2, 7
    s_lshl_b32 s55, s55, 11
    v_lshlrev_b32 v5, 5, v0
    buffer_load_dwordx4 v[{F}:{F+3}], v5, s[32:35], s55 offen
    buffer_load_dwordx4 v[{F+4}:{F+7}], v5, s[32:35], s55 offen offset:16
    buffer_load_dwordx4 v[{F+8}:{F+11}], v5, s[40:43], 0 offen
    buffer_load_dwordx4 v[{F+12}:{F+15}], v5, s[40:43], 0 offen offset:16
    s_lshl_b32 s55, s2, 11
    s_add_u32 s55, s55, {FP}
    v_lshlrev_b32 v5, 4, v0
    v_add_u32 v{oFG}, s55, v5
    v_and_b32 v5, 1, v0
    v_lshlrev_b32 v5, 2, v5
    v_lshrrev_b32 v6, 5, v0
    v_lshl_add_u32 v5, v6, 1, v5
    v_bfe_u32 v6, v0, 4, 1
    v_add_u32 v5, v5, v6
    v_lshlrev_b32 v5, 1, v5
    s_lshl_b32 s55, s2, 4
    v_add_u32 v{oOut}, s55, v5
    v_mov_b32 v9, 0
    s_waitcnt vmcnt(0)
    """)
    for i in range(8):
        A(f"""
        v_lshlrev_b32 v5, 16, v{F+i}
        v_lshlrev_b32 v6, 16, v{F+8+i}
        v_and_b32 v7, 0xffff0000, v{F+i}
        v_and_b32 v8, 0xffff0000, v{F+8+i}
        v_mul_f32 v5, v5, v6
        v_mul_f32 v7, v7, v8
        """)
        bf16_round_pair(6, 5, 7, 5, 7)
        A("v_add_f32 v9, v9, v5")
        A("v_add_f32 v9, v9, v7")
    A(f"""
    v_add_f32_dpp v9, v9, v9 quad_perm:[1,0,3,2] {DPPM}
    v_add_f32_dpp v9, v9, v9 quad_perm:[2,3,0,1] {DPPM}
    v_add_f32_dpp v9, v9, v9 row_ror:4 {DPPM}
    v_add_f32_dpp v9, v9, v9 row_ror:8 {DPPM}
    v_mov_b32 v8, v9
    v_permlane16_swap_b32 v9, v8
    v_add_f32 v9, v9, v8
    v_mov_b32 v8, v9
    v_permlane32_swap_b32 v9, v8
    v_add_f32 v9, v9, v8
    v_cvt_pk_bf16_f32 v9, v9, v9
    v_lshlrev_b32 v9, 16, v9
    v_mul_f32 v9, {f32(-LOG2E)}, v9
    v_exp_f32 v9, v9
    v_add_f32 v9, 1.0, v9
    v_rcp_f32 v9, v9
    v_cvt_pk_bf16_f32 v9, v9, v9
    v_lshlrev_b32 v9, 16, v9
    v_sub_f32 v8, 1.0, v9
    v_cvt_pk_bf16_f32 v8, v8, v8
    v_lshlrev_b32 v8, 16, v8
    s_mov_b32 s56, 0
    s_mov_b32 s57, -1
    v_cndmask_b32 v{vCo}, v9, v8, s[56:57]
    """)
    A("L_nog:")
    A("s_waitcnt vmcnt(0)")
    stamp(1)
    A("s_cmp_ge_u32 s2, 224")
    A("s_cbranch_scc1 L_nogu")
    gemv64(aWg, ACC, 24, spl1)
    stamp(2)
    gemv64(aWu, ACC + 4, 32, spl1)
    for j in range(4):
        A(f"v_cndmask_b32 v{ACC+8+j}, v{ACC+j}, v{ACC+4+j}, {M_B1}")
    tag4(ACC + 8, ACC + 8)
    A(f"s_mov_b64 exec, {M_N4}")
    A(f"buffer_store_dwordx4 v[{ACC+8}:{ACC+11}], v{oGU}, {WS}, 0 offen sc1")
    A("L_nogu:")
    stamp(3)
    A("s_mov_b32 s56, 0x0fffffff")
    A("s_mov_b32 s57, 0x0fffffff")
    A("s_mov_b64 exec, s[56:57]")
    g = A.lab("L_g")
    A(f"{g}:")
    for i in range(8):
        o = f" offset:{256*i}" if i else ""
        A(f"buffer_load_dword v{G+i}, v{oGG}, {WS}, 0 offen{o} sc1")
    A("s_waitcnt vmcnt(0)")
    for i in range(8):
        A(f"v_xor_b32 v{G+i}, v{vTL}, v{G+i}")
    A(f"""
    v_or3_b32 v5, v{G}, v{G+1}, v{G+2}
    v_or3_b32 v5, v5, v{G+3}, v{G+4}
    v_or3_b32 v5, v5, v{G+5}, v{G+6}
    v_or_b32 v5, v5, v{G+7}
    v_and_b32 v5, {TAGM}, v5
    v_cmp_ne_u32 vcc, 0, v5
    """)
    budget(16)
    A("s_wqm_b64 exec, vcc")
    A(f"s_cbranch_vccnz {g}")
    A("s_mov_b64 exec, s[56:57]")
    stamp(4)
    A(f"""
    v_add_f32 v{G}, v{G}, v{G+1}
    v_add_f32 v{G+2}, v{G+2}, v{G+3}
    v_add_f32 v{G+4}, v{G+4}, v{G+5}
    v_add_f32 v{G+6}, v{G+6}, v{G+7}
    v_add_f32 v{G}, v{G}, v{G+2}
    v_add_f32 v{G+4}, v{G+4}, v{G+6}
    """)
    bf16_round_pair(5, 6, 7, G, G + 4)
    A(f"""
    v_mul_f32 v8, v6, v6
    v_mov_b32 v9, {f32(GC1)}
    v_fmac_f32 v9, {f32(GC2)}, v8
    v_mul_f32 v9, v9, v6
    v_exp_f32 v9, v9
    v_add_f32 v9, 1.0, v9
    v_rcp_f32 v9, v9
    v_mul_f32 v9, v9, v6
    v_cvt_pk_bf16_f32 v9, v9, v9
    v_lshlrev_b32 v9, 16, v9
    v_mul_f32 v9, v9, v7
    v_cvt_pk_bf16_f32 v9, v9, v9
    ds_write_b16 v{aHsW}, v9
    """)
    arrive(CH)
    wait_cnt(CH, 4, [f"ds_read_b128 v[{BF+4*s}:{BF+4*s+3}], v{aHsR} offset:{64*s}" for s in range(3)]
             + [f"ds_read_b64 v[{BF+12}:{BF+13}], v{aHsT}"])
    stamp(5)
    gemv128(48, splwd, 3)
    wait_prog_adj(55)
    A(f"ds_read_b64_tr_b16 v[{F+12}:{F+13}], v{aT0}")
    A(f"ds_read_b64_tr_b16 v[{F+28}:{F+29}], v{aT1}")
    A("s_waitcnt lgkmcnt(1)")
    A(f"v_mfma_f32_16x16x16_bf16 v[{ACC}:{ACC+3}], v[{F+12}:{F+13}], v[{BF+12}:{BF+13}], v[{ACC}:{ACC+3}]")
    A("s_waitcnt lgkmcnt(0)")
    A(f"v_mfma_f32_16x16x16_bf16 v[{ACC+4}:{ACC+7}], v[{F+28}:{F+29}], v[{BF+12}:{BF+13}], v[{ACC+4}:{ACC+7}]")
    publish_fp(1024)
    stamp(6)
    A(f"s_cmp_lg_u32 {SW}, 0")
    A("s_cbranch_scc1 L_end")
    gather4([(G, oFG, 0), (G + 4, oFG, 1024)])
    for j in range(4):
        A(f"v_permlane32_swap_b32 v{G+j}, v{G+4+j}")
    for j in range(4):
        A(f"v_add_f32 v{G+j}, v{G+j}, v{G+4+j}")
    A(f"""
    v_permlane16_swap_b32 v{G}, v{G+1}
    v_permlane16_swap_b32 v{G+2}, v{G+3}
    v_add_f32 v6, v{G}, v{G+1}
    v_add_f32 v7, v{G+2}, v{G+3}
    v_add_f32_dpp v6, v6, v6 quad_perm:[2,3,0,1] {DPPM}
    v_add_f32_dpp v7, v7, v7 quad_perm:[2,3,0,1] {DPPM}
    v_add_f32_dpp v6, v6, v6 row_ror:4 {DPPM}
    v_add_f32_dpp v7, v7, v7 row_ror:4 {DPPM}
    v_add_f32_dpp v6, v6, v6 row_ror:8 {DPPM}
    v_add_f32_dpp v7, v7, v7 row_ror:8 {DPPM}
    """)
    bf16_round_pair(5, 6, 7, 6, 7)
    A(f"v_mul_f32 v6, v6, v{vCo}")
    A(f"v_mul_f32 v7, v7, v{vCo}")
    bf16_round_pair(5, 6, 7, 6, 7)
    A(f"""
    v_permlane32_swap_b32 v6, v7
    v_add_f32 v6, v6, v7
    v_cvt_pk_bf16_f32 v6, v6, v6
    s_mov_b64 exec, {M_N2}
    buffer_store_short v6, v{oOut}, s[44:47], 0 offen
    s_cmp_lg_u32 s2, 0
    s_cbranch_scc1 L_fin
    s_mov_b64 exec, 1
    v_mov_b32 v6, s48
    v_mov_b32 v7, s49
    s_mov_b32 s55, {EPOCH}
    buffer_store_dwordx2 v[6:7], off, {WS}, s55 sc1
    L_fin:
    """)
    A("s_mov_b64 exec, -1")
    stamp(7)
    dump_stamps(16)
    A("L_end:")
    A("s_endpgm")

    body, nn = hazard_pass(A.L)
    out = []
    out.append(f"; @launch grid=(256,1,1) block=(576,1,1) lds={LDS_TOTAL}")
    out.append('.amdgcn_target "amdgcn-amd-amdhsa--gfx950"')
    out.append(".text")
    out.append(f".globl {NAME}_kernel")
    out.append(".p2align 8")
    out.append(f".type {NAME}_kernel,@function")
    out.append(f"{NAME}_kernel:")
    out += ["  " + l if not l.endswith(":") else l for l in body]
    total = 9216 * (2 if pf_kib > 9 else 1) + 256
    out.append(f".fill ({total} - (. - {NAME}_kernel)) / 4, 4, 0xbf810000")
    out.append('.section .rodata,"a"')
    out.append(".p2align 6")
    out.append(f".amdhsa_kernel {NAME}_kernel")
    out.append("  .amdhsa_next_free_vgpr 152")
    out.append("  .amdhsa_next_free_sgpr 102")
    out.append("  .amdhsa_accum_offset 152")
    out.append("  .amdhsa_group_segment_fixed_size 0")
    out.append("  .amdhsa_kernarg_size 104")
    out.append("  .amdhsa_user_sgpr_count 2")
    out.append("  .amdhsa_user_sgpr_kernarg_segment_ptr 1")
    out.append("  .amdhsa_system_sgpr_workgroup_id_x 1")
    out.append(".end_amdhsa_kernel")
    return "\n".join(out) + "\n"


if __name__ == "__main__":
    import argparse, ast
    ap = argparse.ArgumentParser()
    ap.add_argument("out")
    ap.add_argument("kw", nargs="*")
    a = ap.parse_args()
    kw = {}
    for s in a.kw:
        k, v = s.split("=", 1)
        try:
            kw[k] = ast.literal_eval(v)
        except Exception:
            kw[k] = v
    open(a.out, "w").write(gen(**kw))
```

```python
import sys, struct
from asmlib import Asm, hazard_pass

NAME = "gated_mix__sliding_block_cached__geglu_ffn__decode"

PROG = 0
CQ, CP, CO, CH, FA, FB, FC = 0x100, 0x104, 0x108, 0x10C, 0x110, 0x114, 0x118
ZERO = 0x200
QS, PS, MS, OS, HS = 0x400, 0xD00, 0x1600, 0x1680, 0x18C0
PITCH = 288
RA, RB, RC, RD = 0x2000, 0xA000, 0x12000, 0x1A000
LDS_TOTAL = 0x22000
QP, GUP, EPOCH, ML, FP, OP, WS_END = 0, 0x20000, 0x5F000, 0x60000, 0x80000, 0x100000, 0x200000
QF, OF, GF = 0x58000, 0x59000, 0x5A000
TAGM = 0xFFF


def f32(x):
    return "0x%08x" % struct.unpack("<I", struct.pack("<f", x))[0]


LOG2E = 1.4426950408889634
SCALE = 128 ** -0.5
GC1 = -2.0 * LOG2E * 0.7978845608028654
GC2 = GC1 * 0.044715


def gen(D=24, stamps=False, spl1=(4, 8), splwo=(4, 8), splwd=(4, 6, 7), pf_kib=18, ntflag="nt", hints="", hmax=4000, gq=0, go=0, gg=0, kfirst=False, fpol="", prew="", dq=4, do=8, dg=8, cst="", pfmode=1, xmask=True, nog=False, nost=False, xmap=False, stpol="sc1"):
    A = Asm()
    d = D // 4
    assert D % 4 == 0

    VST = 152

    def stamp(i):
        if stamps:
            if i == 0:
                A(f"v_mov_b32 v{VST}, 0")
            A("s_memrealtime s[96:97]")
            A("s_waitcnt lgkmcnt(0)")
            A(f"v_writelane_b32 v{VST}, s96, {i}")

    def dstamp():
        if stamps:
            A("s_memrealtime s[96:97]")
            A("s_waitcnt lgkmcnt(0)")
            A(f"v_writelane_b32 v{VST}, s96, m0")
            A("s_add_u32 m0, m0, 1")
            A("s_min_u32 m0, m0, 63")

    def dump_stamps(base=0):
        if not stamps:
            return
        A("s_mov_b64 exec, -1")
        A("s_add_u32 s28, s28, 0x8000000")
        A("s_addc_u32 s29, s29, 0")
        A("s_mul_i32 s55, s2, 9")
        A("s_add_u32 s55, s55, s3")
        A("s_lshl_b32 s55, s55, 8")
        A("v_lshlrev_b32 v5, 2, v0")
        A("v_add_u32 v5, s55, v5")
        A(f"global_store_dword v5, v{VST}, s[28:29]")

    BUD, SPROG = "s30", "s31"

    def budget(k=1):
        A(f"s_sub_u32 {BUD}, {BUD}, {k}")
        A("s_cbranch_scc1 L_end")

    stamp(0)
    W8, W7, VK, VV, VO = 10, 14, 18, 22, 24
    vP, vPa, vFr, vFa, vT = 28, 29, 30, 31, 32
    A("s_cmp_ge_u32 s2, 256")
    A("s_cbranch_scc1 L_end")
    A("s_load_dwordx2 s[32:33], s[0:1], 24")
    A("s_load_dwordx16 s[4:19], s[0:1], 0")
    A("s_load_dwordx8 s[20:27], s[0:1], 64")
    A("s_load_dwordx2 s[28:29], s[0:1], 96")
    A(f"""
    v_lshrrev_b32 v1, 6, v0
    v_lshrrev_b32 v34, 3, v0
    v_readfirstlane_b32 s3, v1
    v_and_b32 v35, 7, v0
    v_and_b32 v36, 2, v34
    s_mov_b32 {BUD}, 0x100000
    s_cmp_lg_u32 s3, 0
    s_cbranch_scc1 L_worker
    """)
    if xmap:
        MAP1 = """s_bfe_u32 s67, s2, 0x10002
        s_lshl_b32 s67, s67, 1
        s_lshr_b32 s69, s2, 7
        s_add_u32 s67, s67, s69
        s_and_b32 s68, s2, 3
        s_lshl_b32 s68, s68, 4
        s_bfe_u32 s69, s2, 0x40003
        s_add_u32 s68, s68, s69"""
        MAP2 = f"""s_lshr_b32 s69, s2, 3
        s_mul_i32 s67, s69, 37
        s_lshr_b32 s67, s67, 8
        s_mul_i32 s68, s67, 7
        s_sub_u32 s68, s69, s68
        s_and_b32 s69, s2, 7
        s_mul_i32 s69, s69, 7
        s_add_u32 s68, s68, s69
        s_lshl_b32 s68, s68, 7"""
    else:
        MAP1 = """s_and_b32 s67, s2, 3
        s_lshr_b32 s68, s2, 2"""
        MAP2 = ""
    A(f"""
    s_setprio 3
    v_xor_b32 v35, v35, v36
    v_lshlrev_b32 v35, 4, v35
    v_xor_b32 v36, 64, v35
    v_lshl_add_u32 v{W8}, v34, 13, v35
    v_lshl_add_u32 v{W8+1}, v34, 13, v36
    v_add_u32 v{W8+1}, {65536-1024}, v{W8+1}
    v_add_u32 v{W8+2}, {2*(65536-1024)}, v{W8}
    v_add_u32 v{W8+3}, {2*(65536-1024)}, v{W8+1}
    {MAP1}
    s_lshl_b32 s68, s68, 7
    s_lshl_b32 s60, s67, 21
    s_add_u32 s60, s60, s68
    s_mov_b32 s34, {8<<20}
    s_mov_b32 s35, 0x20000
    s_mov_b32 m0, {RA}
    s_waitcnt lgkmcnt(0)
    """)
    srds = [(32, 10, 8 << 20), (36, 6, 64 << 20), (40, 8, 64 << 20), (44, 16, 7 << 20), (48, 18, 7 << 20),
            (52, 12, 8 << 20), (56, 20, 7 << 20)]

    def loader_setup():
        A(f"""
        v_mul_u32_u24 v7, 7168, v34
        v_add_u32 v{W7}, v7, v35
        v_add_u32 v{W7+1}, v7, v36
        v_add_u32 v{W7+1}, {8*7168-1024}, v{W7+1}
        v_add_u32 v{W7+2}, {2*(8*7168-1024)}, v{W7}
        v_add_u32 v{W7+3}, {2*(8*7168-1024)}, v{W7+1}
        v_lshrrev_b32 v4, 4, v0
        v_and_b32 v5, 15, v0
        v_xor_b32 v6, v5, v4
        v_lshlrev_b32 v6, 4, v6
        v_lshl_add_u32 v{VK}, v4, 8, v6
        v_xor_b32 v{VK+1}, 64, v{VK}
        v_xor_b32 v{VK+2}, 128, v{VK}
        v_xor_b32 v{VK+3}, 192, v{VK}
        v_lshlrev_b32 v6, 1, v4
        v_xor_b32 v6, v5, v6
        v_lshlrev_b32 v6, 4, v6
        v_lshl_add_u32 v{VV}, v4, 8, v6
        v_xor_b32 v{VV+1}, 128, v{VV}
        v_lshl_add_u32 v{VO}, v4, 11, v6
        v_add_u32 v{VO+1}, 7168, v{VO}
        v_xor_b32 v7, 128, v{VO}
        v_add_u32 v{VO+2}, {2*7168}, v7
        v_add_u32 v{VO+3}, {3*7168}, v7
        v_mov_b32 v{vP}, {NPEEL-d}
        v_lshlrev_b32 v{vPa}, 2, v0
        {MAP2}
        s_mul_i32 s63, s67, {256*7168}
        s_add_u32 s63, s63, s68
        s_mov_b32 s64, s63
        s_and_b32 s67, s2, 7
        s_lshl_b32 s61, s67, 23
        s_lshr_b32 s68, s2, 3
        s_lshl_b32 s69, s68, 15
        s_add_u32 s61, s61, s69
        s_add_u32 s61, s61, {28672*256}
        s_mov_b32 s62, s61
        s_and_b32 s68, s68, 3
        s_lshl_b32 s67, s67, 2
        s_add_u32 s67, s67, s68
        s_lshr_b32 s68, s2, 5
        s_lshl_b32 s68, s68, 8
        s_lshl_b32 s65, s67, 18
        s_add_u32 s65, s65, s68
        s_mul_i32 s66, s67, {112*2048}
        s_add_u32 s66, s66, s68
        s_cmp_lt_u32 s2, 224
        s_mov_b32 s70, {RD}
        s_mov_b32 s71, {RA}
        s_mov_b32 s72, {FA}
        s_cmov_b32 s70, {RB}
        s_cmov_b32 s71, {RC}
        s_cmov_b32 s72, {FC}
        """)
        for r, p, n in srds[1:]:
            A(f"s_mov_b64 s[{r}:{r+1}], s[{p}:{p+1}]")
            A(f"s_mov_b32 s{r+2}, {n}")
            A(f"s_mov_b32 s{r+3}, 0x20000")

    NPEEL = min(d, 7)

    def group(srd, vo, soff):
        for t in range(4):
            off = f" offset:{1024*t}" if t else ""
            A(f"buffer_load_dwordx4 v{vo[t]}, s[{srd}:{srd+3}], {soff} offen{off} {ntflag} lds")

    def publish():
        A(f"v_add_u32 v{vP}, 1, v{vP}")
        A(f"ds_max_i32 v{vPa}, v{vP}")

    def tloop(srd, vo, soff, step, ng, base, free=None, skip=0):
        if not skip:
            A(f"s_mov_b32 m0, {base}")
        if isinstance(base, int):
            A(f"s_mov_b32 s73, {base + ng*4096}")
        else:
            A(f"s_add_u32 s73, {base}, {ng*4096}")
        if free is not None:
            A(f"v_mov_b32 v{vFa}, {free}")
        L = A.lab("L_ld")
        A(f"{L}:")
        group(srd, vo, soff)
        if free is not None:
            A(f"ds_read_b32 v{vFr}, v{vFa}")
        A(f"s_add_u32 {soff}, {soff}, {step}")
        A("s_add_u32 m0, m0, 4096")
        A(f"s_waitcnt vmcnt({D})")
        publish()
        A("s_cmp_lg_u32 m0, s73")
        A(f"s_cbranch_scc1 {L}")
        if free is not None:
            ok, sp = A.lab("L_fok"), A.lab("L_fsp")
            A("s_waitcnt lgkmcnt(0)")
            A(f"v_readfirstlane_b32 s74, v{vFr}")
            A("s_cmp_ge_u32 s74, 4")
            A(f"s_cbranch_scc1 {ok}")
            A("s_waitcnt vmcnt(0)")
            A(f"v_add_u32 v{vT}, {d}, v{vP}")
            A(f"ds_max_i32 v{vPa}, v{vT}")
            A(f"{sp}:")
            A(f"ds_read_b32 v{vFr}, v{vFa}")
            A("s_waitcnt lgkmcnt(0)")
            A(f"v_readfirstlane_b32 s74, v{vFr}")
            budget()
            A("s_cmp_lt_u32 s74, 4")
            A(f"s_cbranch_scc1 {sp}")
            A(f"{ok}:")

    w8 = [W8 + t for t in range(4)]
    w7 = [W7 + t for t in range(4)]
    vk = [VK + t for t in range(4)]
    vv = [VV, VV, VV + 1, VV + 1]
    vo = [VO + t for t in range(4)]
    A("L_ld0:")
    group(32, w8, "s60")
    A(f"s_add_u32 s60, s60, {32*8192}")
    A("s_add_u32 m0, m0, 4096")
    A(f"s_cmp_lg_u32 m0, {RA + NPEEL*4096}")
    A("s_cbranch_scc1 L_ld0")
    stamp(1)
    loader_setup()
    A("s_barrier")
    tloop(32, w8, "s60", 32 * 8192, 8, RA, skip=NPEEL)
    stamp(2)
    tloop(36, vk, "s61", 4096, 8, RB)
    tloop(40, vv, "s62", 4096, 8, RC)
    stamp(3)
    A("s_cmp_ge_u32 s2, 224")
    A("s_cbranch_scc1 L_ld_wo")
    tloop(44, w7, "s63", 32 * 7168, 8, RD, free=FA)
    tloop(48, w7, "s64", 32 * 7168, 8, RA, free=FB)
    A("L_ld_wo:")
    stamp(4)
    tloop(52, vo, "s65", 16 * 2048, 8, "s70", free="s72")
    stamp(5)
    tloop(56, vo, "s66", 16 * 2048, 7, "s71")
    stamp(6)
    for k in range(d - 1, -1, -1):
        A(f"s_waitcnt vmcnt({4*k})")
        publish()
    stamp(7)
    dump_stamps(0)
    A("s_endpgm")

    vN, vQ, vZ, vMK, vONE, vT16 = 1, 2, 3, 4, 33, 34
    aW, aV0, aV1 = 10, 24, 25
    X, F, ACC = 40, 72, 104
    T = ["s50", "s51", "s52", "s53"]
    SW = "s54"
    WS = "s[36:39]"
    A("L_worker:")
    if stamps:
        A("s_mov_b32 m0, 32")
    A("s_getpc_b64 s[40:41]")
    if pfmode == 0:
        A("v_lshlrev_b32 v1, 4, v0")
        A("global_load_dwordx4 v[136:139], v1, s[40:41] offset:-1024")
        if pf_kib > 8:
            A("v_add_u32 v2, 8192, v1")
            A("global_load_dwordx4 v[140:143], v2, s[40:41] offset:-1024")
    elif pfmode == 1:
        A("s_cmp_gt_u32 s3, 2")
        A("s_cbranch_scc1 L_nopf")
        A("v_lshlrev_b32 v1, 7, v0")
        A("v_add_u32 v1, -8192, v1")
        A("global_load_dword v136, v1, s[40:41]")
        A("L_nopf:")
    A(f"""
    v_and_b32 v0, 63, v0
    v_mov_b32 v4, 0
    v_mov_b32 v5, 0
    v_mov_b32 v6, 0
    v_mov_b32 v7, 0
    v_lshlrev_b32 v2, 4, v0
    ds_write_b128 v2, v[4:7]
    s_waitcnt lgkmcnt(0)
    s_load_dwordx2 s[48:49], s[28:29], {EPOCH}
    s_sub_u32 {SW}, s3, 1
    s_and_b32 {SW}, {SW}, 3
    s_mov_b32 {SPROG}, 0
    v_and_b32 v{vN}, 15, v0
    v_lshrrev_b32 v{vQ}, 4, v0
    v_mov_b32 v{vZ}, 0
    v_mov_b32 v{vMK}, 0x{0xFFFFFFFF ^ TAGM:x}
    v_mov_b32 v{vONE}, 1
    s_and_b32 s55, s2, 3
    s_lshl_b32 s55, s55, 9
    v_and_b32 v5, 1, v0
    v_lshlrev_b32 v5, 11, v5
    v_lshl_add_u32 v5, v{vQ}, 4, v5
    s_mov_b32 s34, 4096
    s_mov_b32 s35, 0x20000
    s_mov_b32 s38, {WS_END}
    s_mov_b32 s39, 0x20000
    s_mov_b64 s[32:33], s[4:5]
    s_mov_b64 s[36:37], s[28:29]
    """)
    if xmask:
        A("s_mov_b32 exec_lo, 0x000f000f")
        A("s_mov_b32 exec_hi, 0x000f000f")
    for s in range(8):
        A(f"buffer_load_dwordx4 v[{X+4*s}:{X+4*s+3}], v5, s[32:35], s55 offen offset:{64*s}")
    A("s_mov_b64 exec, -1")
    A("s_barrier")
    A(f"""
    v_bfe_u32 v5, v0, 2, 2
    v_lshl_add_u32 v5, v{vQ}, 3, v5
    v_and_b32 v6, 3, v0
    v_lshlrev_b32 v6, 3, v6
    v_bfe_u32 v7, v0, 3, 2
    v_xor_b32 v7, {SW}, v7
    v_lshl_add_u32 v7, v7, 5, v6
    v_lshl_add_u32 v{aW}, v5, 7, v7
    s_lshl_b32 s55, {SW}, 1
    v_bfe_u32 v7, v0, 2, 3
    v_xor_b32 v7, s55, v7
    v_lshl_add_u32 v7, v7, 5, v6
    v_lshl_add_u32 v{aV0}, v5, 8, v7
    s_mov_b32 s60, 0x00030003
    s_mov_b32 s61, 0x00030003
    s_mov_b32 s62, 0x000f000f
    s_mov_b32 s63, 0x000f000f
    s_mov_b32 s64, 0xff00ff00
    s_mov_b32 s65, 0xff00ff00
    s_mov_b32 s66, 0xcccccccc
    s_mov_b32 s67, 0xcccccccc
    s_and_b32 s68, s2, 7
    s_lshl_b32 s68, s68, 2
    s_bfe_u32 s69, s2, 0x20003
    s_add_u32 s68, s68, s69
    s_lshr_b32 s69, s2, 5
    s_cmp_lt_u32 s2, 224
    s_cselect_b32 s70, 0, 16
    s_mov_b32 s71, {RD}
    s_mov_b32 s72, {RA}
    s_cmov_b32 s71, {RB}
    s_cmov_b32 s72, {RC}
    """)
    RB3, CB3, ADJ, REGWO, REGWD = "s68", "s69", "s70", "s71", "s72"
    M_N2, M_N4, M_HI8, M_B1 = "s[60:61]", "s[62:63]", "s[64:65]", "s[66:67]"
    oFP = 32
    A(f"""
    s_lshl_b32 s55, {CB3}, 4
    s_lshl_b32 s56, {SW}, 2
    s_add_u32 s55, s55, s56
    s_lshl_b32 s55, s55, 11
    s_lshl_b32 s56, {RB3}, 5
    s_add_u32 s55, s55, s56
    s_add_u32 s55, s55, {FP}
    v_and_b32 v5, 1, v0
    v_lshlrev_b32 v5, 7, v5
    v_and_b32 v6, 2, v0
    v_add_u32 v5, v5, v6
    v_lshrrev_b32 v6, 5, v0
    v_add_u32 v5, v5, v6
    v_lshlrev_b32 v5, 11, v5
    v_and_b32 v6, 16, v0
    v_add3_u32 v{oFP}, v5, v6, s55
    s_waitcnt lgkmcnt(0)
    s_add_u32 s48, s48, 1
    s_addc_u32 s49, s49, 0
    s_and_b32 s50, s48, {TAGM}
    s_lshr_b32 s55, s48, 12
    s_add_u32 s55, s55, s48
    s_and_b32 s51, s55, {TAGM}
    s_lshr_b64 s[56:57], s[48:49], 24
    s_add_u32 s55, s56, s48
    s_and_b32 s52, s55, {TAGM}
    s_lshr_b32 s55, s49, 4
    s_add_u32 s55, s55, s48
    s_and_b32 s53, s55, {TAGM}
    s_and_b32 s58, s48, 0xffff
    s_mul_i32 s58, s58, 0x10001
    s_mov_b32 s59, s58
    v_mov_b32 v{vT16}, s58
    """)

    def hint(loads, pairs):
        lh, ld = A.lab("L_h"), A.lab("L_hd")
        A(f"s_mov_b32 s57, {hmax}")
        A(f"{lh}:")
        for l in loads:
            A(l)
        A("s_waitcnt lgkmcnt(0)")
        A("s_sub_u32 s57, s57, 1")
        A(f"s_cbranch_scc1 {ld}")
        for p in pairs:
            A(f"s_cmp_lg_u64 s[{p}:{p+1}], s[58:59]")
            A(f"s_cbranch_scc1 {lh}")
        A(f"{ld}:")

    def flag(soff):
        sk = A.lab("L_fl")
        A(f"s_cmp_lg_u32 {SW}, 3")
        A(f"s_cbranch_scc1 {sk}")
        A("s_mov_b64 exec, 1")
        A(f"buffer_store_short v{vT16}, off, {WS}, {soff} sc1")
        A(f"{sk}:")
        A("s_mov_b64 exec, -1")

    def wait_prog(thr):
        ok, sp = A.lab("L_pok"), A.lab("L_psp")
        A(f"s_cmp_ge_i32 {SPROG}, {thr}")
        A(f"s_cbranch_scc1 {ok}")
        A(f"{sp}:")
        A(f"ds_read_b32 v5, v{vZ} offset:{PROG}")
        A("s_waitcnt lgkmcnt(0)")
        A(f"v_readfirstlane_b32 {SPROG}, v5")
        budget()
        A(f"s_cmp_lt_i32 {SPROG}, {thr}")
        A(f"s_cbranch_scc1 {sp}")
        A(f"{ok}:")

    def wait_prog_adj(thr):
        A(f"s_sub_u32 s55, {thr}, {ADJ}")
        wait_prog("s55")

    def arrive(cnt):
        A("s_mov_b64 exec, 1")
        A(f"ds_add_u32 v{vZ}, v{vONE} offset:{cnt}")
        A("s_mov_b64 exec, -1")

    def wait_cnt(cnt, n, reads):
        sp = A.lab("L_csp")
        A(f"{sp}:")
        A(f"ds_read_b32 v5, v{vZ} offset:{cnt}")
        for r in reads:
            A(r)
        A("s_waitcnt lgkmcnt(0)")
        A("v_readfirstlane_b32 s55, v5")
        budget()
        A(f"s_cmp_lt_u32 s55, {n}")
        A(f"s_cbranch_scc1 {sp}")

    def tag4(dst, src):
        for j in range(4):
            A(f"v_and_or_b32 v{dst+j}, v{src+j}, v{vMK}, {T[j]}")

    MASKS = [80, 82, 84, 86, 88, 90, 92, 94, 6, 8]

    def gather4(loads, first=None):
        if first is None:
            first = fpol
        if nog:
            return
        g, dn = A.lab("L_g"), A.lab("L_gd")
        n = len(loads)

        def chk(i, dst):
            m = MASKS[i]
            for j in range(4):
                A(f"v_xor_b32 v{dst+j}, {T[j]}, v{dst+j}")
            A(f"v_or3_b32 v5, v{dst}, v{dst+1}, v{dst+2}")
            A(f"v_or_b32 v5, v5, v{dst+3}")
            A(f"v_and_b32 v5, {TAGM}, v5")
            A(f"v_cmp_ne_u32 s[{m}:{m+1}], 0, v5")

        def anym():
            if n == 1:
                A(f"s_mov_b64 vcc, s[{MASKS[0]}:{MASKS[0]+1}]")
            for i in range(1, n):
                src = f"s[{MASKS[0]}:{MASKS[0]+1}]" if i == 1 else "vcc"
                A(f"s_or_b64 vcc, {src}, s[{MASKS[i]}:{MASKS[i]+1}]")

        for dst, vo_, off in loads:
            o = f" offset:{off}" if off else ""
            A(f"buffer_load_dwordx4 v[{dst}:{dst+3}], v{vo_}, {WS}, 0 offen{o} {first}")
        for i, (dst, vo_, off) in enumerate(loads):
            A(f"s_waitcnt vmcnt({n-1-i})")
            chk(i, dst)
        anym()
        dstamp()
        A(f"s_cbranch_vccz {dn}")
        A(f"{g}:")
        for i, (dst, vo_, off) in enumerate(loads):
            o = f" offset:{off}" if off else ""
            A(f"s_mov_b64 exec, s[{MASKS[i]}:{MASKS[i]+1}]")
            A(f"buffer_load_dwordx4 v[{dst}:{dst+3}], v{vo_}, {WS}, 0 offen{o} sc1")
        for i, (dst, vo_, off) in enumerate(loads):
            A(f"s_mov_b64 exec, s[{MASKS[i]}:{MASKS[i]+1}]")
            A(f"s_waitcnt vmcnt({n-1-i})")
            chk(i, dst)
        anym()
        dstamp()
        budget(16)
        A(f"s_cbranch_vccnz {g}")
        A("s_mov_b64 exec, -1")
        A(f"{dn}:")

    def mfma(dst, a, b, c):
        cs = "0" if c is None else f"v[{c}:{c+3}]"
        A(f"v_mfma_f32_16x16x32_bf16 v[{dst}:{dst+3}], v[{a}:{a+3}], v[{b}:{b+3}], {cs}")

    def gemv64(areg, acc, gbase, splits, first_vm=False, adj=False):
        s0 = 0
        for k, s1 in enumerate(splits):
            wait_prog(gbase + s1)
            for s in range(s0, s1):
                A(f"ds_read_b64_tr_b16 v[{F+4*s}:{F+4*s+1}], v{areg} offset:{4096*s}")
                A(f"ds_read_b64_tr_b16 v[{F+4*s+2}:{F+4*s+3}], v{areg} offset:{4096*s+512}")
            if k == 0 and first_vm is not False:
                A(f"s_waitcnt vmcnt({first_vm})")
            for s in range(s0, s1):
                A(f"s_waitcnt lgkmcnt({2*(s1-1-s)})")
                mfma(acc, F + 4 * s, X + 4 * s, None if s == 0 else acc)
            s0 = s1

    def bf16_round_pair(pk, lo, hi, a, b):
        A(f"v_cvt_pk_bf16_f32 v{pk}, v{a}, v{b}")
        A(f"v_lshlrev_b32 v{lo}, 16, v{pk}")
        A(f"v_and_b32 v{hi}, 0xffff0000, v{pk}")

    DPPM = "row_mask:0xf bank_mask:0xf"

    A("s_cmp_gt_u32 s3, 4")
    A("s_cbranch_scc1 L_F")

    oQP, oQG, aQsW, aQsR, aK = 11, 12, 13, 14, 15
    aPsW, aMsW, aPlo, aPhi, aMsR = 19, 20, 21, 22, 23
    oOP, oML, oOPG, oMLG, aOsW, aOsR = 26, 27, 28, 29, 30, 31
    SB, SG, SSPL = "s73", "s74", "s75"
    SC = "s76"
    A(f"""
    v_add_u32 v{aW}, {RA}, v{aW}
    s_bfe_u32 {SB}, s2, 0x10002
    s_and_b32 {SG}, s2, 3
    s_lshr_b32 {SSPL}, s2, 3
    s_mov_b32 {SC}, {f32(LOG2E)}
    """)
    A(f"""
    s_lshr_b32 s55, s2, 4
    s_lshl_b32 s55, s55, 12
    s_and_b32 s56, s2, 3
    s_lshl_b32 s56, s56, 10
    s_add_u32 s55, s55, s56
    s_bfe_u32 s56, s2, 0x20002
    s_lshl_b32 s56, s56, 8
    s_add_u32 s55, s55, s56
    s_lshl_b32 s56, {SW}, 6
    s_add_u32 s55, s55, s56
    v_and_b32 v5, 1, v0
    v_lshlrev_b32 v5, 16, v5
    v_lshl_add_u32 v5, v{vQ}, 4, v5
    v_add_u32 v{oQP}, s55, v5
    """)
    A(f"""
    s_and_b32 s55, s2, 7
    s_lshl_b32 s55, s55, 2
    s_add_u32 s55, s55, {SW}
    s_lshl_b32 s55, s55, 12
    v_lshlrev_b32 v5, 4, v0
    v_add_u32 v{oQG}, s55, v5
    """)
    A(f"""
    s_mul_i32 s55, {SW}, {2*PITCH}
    s_add_u32 s55, s55, {QS}
    v_lshrrev_b32 v5, 5, v0
    v_mul_u32_u24 v5, {PITCH}, v5
    v_and_b32 v6, 31, v0
    v_lshl_add_u32 v5, v6, 3, v5
    v_add_u32 v{aQsW}, s55, v5
    v_and_b32 v6, 7, v0
    v_mul_u32_u24 v7, {PITCH}, v6
    v_lshl_add_u32 v8, v{vQ}, 4, v7
    v_add_u32 v{aQsR}, {QS}, v8
    v_add_u32 v8, {PS}, v8
    v_mov_b32 v9, {ZERO}
    v_cndmask_b32 v{aPlo}, v8, v9, {M_HI8}
    v_cndmask_b32 v{aPhi}, v9, v8, {M_HI8}
    v_lshlrev_b32 v9, 4, v6
    v_add_u32 v{aMsR}, {MS}, v9
    s_lshl_b32 s55, {SW}, 2
    v_add_u32 v{aMsW}, s55, v{aMsR}
    s_lshl_b32 s55, {SW}, 6
    s_add_u32 s55, s55, {PS}
    v_and_b32 v9, 8, v0
    v_lshlrev_b32 v9, 2, v9
    v_lshl_add_u32 v9, v{vQ}, 3, v9
    v_add3_u32 v{aPsW}, v7, v9, s55
    """)
    A(f"""
    s_and_b32 s55, s2, 7
    s_lshl_b32 s55, s55, 8
    s_add_u32 s55, s55, {SSPL}
    s_lshl_b32 s56, s55, 9
    s_lshl_b32 s57, {SW}, 7
    s_add_u32 s56, s56, s57
    s_add_u32 s56, s56, {OP}
    v_lshlrev_b32 v9, 1, v9
    v_lshl_add_u32 v9, v6, 14, v9
    v_add_u32 v{oOP}, s56, v9
    s_lshl_b32 s56, s55, 4
    s_add_u32 s56, s56, {ML}
    v_lshlrev_b32 v9, 9, v6
    v_add_u32 v{oML}, s56, v9
    """)
    A(f"""
    s_lshl_b32 s55, {SW}, 13
    s_add_u32 s55, s55, {RB}
    v_xor_b32 v5, v{vQ}, v{vN}
    v_lshlrev_b32 v5, 4, v5
    v_lshl_add_u32 v5, v{vN}, 8, v5
    v_add_u32 v{aK}, s55, v5
    v_xor_b32 v{aK+1}, 64, v{aK}
    v_xor_b32 v{aK+2}, 128, v{aK}
    v_xor_b32 v{aK+3}, 192, v{aK}
    v_add_u32 v{aV0}, {RC}, v{aV0}
    v_xor_b32 v{aV1}, 32, v{aV0}
    """)
    A(f"""
    s_lshl_b32 s55, {RB3}, 14
    s_lshl_b32 s56, {SW}, 7
    s_add_u32 s55, s55, s56
    s_add_u32 s55, s55, {OP}
    v_lshrrev_b32 v5, 5, v0
    v_bfe_u32 v7, v0, 3, 2
    v_lshlrev_b32 v8, 19, v5
    v_lshl_add_u32 v8, v7, 12, v8
    v_lshl_add_u32 v8, v6, 4, v8
    v_add_u32 v{oOPG}, s55, v8
    s_lshl_b32 s55, {RB3}, 9
    s_add_u32 s55, s55, {ML}
    v_lshlrev_b32 v8, 14, v5
    v_lshl_add_u32 v8, v7, 7, v8
    v_and_b32 v9, 3, v0
    v_lshl_add_u32 v8, v9, 4, v8
    v_add_u32 v{oMLG}, s55, v8
    s_lshl_b32 s55, {SW}, 6
    s_add_u32 s55, s55, {OS}
    v_mul_u32_u24 v8, {PITCH}, v5
    v_lshl_add_u32 v8, v6, 3, v8
    v_bfe_u32 v9, v0, 4, 1
    v_lshl_add_u32 v8, v9, 2, v8
    v_add_u32 v{aOsW}, s55, v8
    v_and_b32 v9, 1, v0
    v_mul_u32_u24 v9, {PITCH}, v9
    v_lshl_add_u32 v9, v{vQ}, 4, v9
    v_add_u32 v{aOsR}, {OS}, v9
    """)
    ONES = 132
    A(f"""
    v_mov_b32 v{ONES}, 0x3f803f80
    v_mov_b32 v{ONES+1}, 0x3f803f80
    v_mov_b32 v{ONES+2}, 0x3f803f80
    v_mov_b32 v{ONES+3}, 0x3f803f80
    s_lshl_b32 s55, {SW}, 1
    s_lshl_b32 s78, 3, s55
    s_mov_b32 s79, 0
    """)
    MQ = M_N2
    if "q" in cst:
        A(f"""
        s_lshl_b32 s55, s2, 9
        s_lshl_b32 s56, {SW}, 7
        s_add_u32 s55, s55, s56
        v_lshlrev_b32 v5, 4, v0
        v_add_u32 v{oQP}, s55, v5
        """)
        MQ = "0xff"
    if "o" in cst:
        A(f"""
        s_lshl_b32 s55, s2, 12
        s_lshl_b32 s56, {SW}, 10
        s_add_u32 s55, s55, s56
        s_add_u32 s55, s55, {OP}
        v_lshlrev_b32 v5, 4, v0
        v_add_u32 v{oOP}, s55, v5
        s_lshl_b32 s55, s2, 7
        s_add_u32 s55, s55, {ML}
        v_add_u32 v{oML}, s55, v5
        s_cmp_eq_u32 {SW}, 0
        s_cselect_b32 s78, 0xff, 0
        """)
    npw = 0
    if prew:
        A(f"s_xor_b32 s55, {T[0]}, 1")
        for j in range(4):
            A(f"v_mov_b32 v{144+j}, s55")
    if "q" in prew:
        A(f"s_mov_b64 exec, {M_N2}")
        A(f"buffer_store_dwordx4 v[144:147], v{oQP}, {WS}, 0 offen sc1")
        A("s_mov_b64 exec, -1")
        npw += 1
    if "o" in prew:
        A(f"buffer_store_dwordx4 v[144:147], v{oOP}, {WS}, 0 offen sc1")
        A("s_mov_b64 exec, s[78:79]")
        A(f"buffer_store_dwordx4 v[144:147], v{oML}, {WS}, 0 offen sc1")
        A("s_mov_b64 exec, -1")
        npw += 2
    if "f" in prew:
        A(f"s_mov_b64 exec, {M_N4}")
        A(f"buffer_store_dwordx4 v[144:147], v{oFP}, {WS}, 0 offen sc1")
        A("s_mov_b64 exec, -1")
        npw += 1
    stamp(1)
    gemv64(aW, ACC, 0, spl1, first_vm=npw)
    arrive(FA)
    tag4(ACC + 4, ACC)
    A(f"s_mov_b64 exec, {MQ}")
    A(f"buffer_store_dwordx4 v[{ACC+4}:{ACC+7}], v{oQP}, {WS}, 0 offen sc1")
    A("s_mov_b64 exec, -1")
    stamp(2)
    def kfrags():
        A(f"s_lshl_b32 s77, {SW}, 1")
        A("s_add_u32 s77, s77, 10")
        wait_prog("s77")
        for t in range(2):
            for s in range(4):
                r = F + 16 * t + 4 * s
                A(f"ds_read_b128 v[{r}:{r+3}], v{aK+s} offset:{4096*t}")
        arrive(FB)
    G = X
    if gq:
        wait_prog(gq)
    if kfirst:
        kfrags()
    gather4([(G + 4 * r, oQG, 1024 * r) for r in range(dq)])
    A(f"""
    v_pk_add_f32 v[{G}:{G+1}], v[{G}:{G+1}], v[{G+4}:{G+5}]
    v_pk_add_f32 v[{G+2}:{G+3}], v[{G+2}:{G+3}], v[{G+6}:{G+7}]
    v_pk_add_f32 v[{G+8}:{G+9}], v[{G+8}:{G+9}], v[{G+12}:{G+13}]
    v_pk_add_f32 v[{G+10}:{G+11}], v[{G+10}:{G+11}], v[{G+14}:{G+15}]
    v_pk_add_f32 v[{G}:{G+1}], v[{G}:{G+1}], v[{G+8}:{G+9}]
    v_pk_add_f32 v[{G+2}:{G+3}], v[{G+2}:{G+3}], v[{G+10}:{G+11}]
    v_cvt_pk_bf16_f32 v6, v{G}, v{G+1}
    v_cvt_pk_bf16_f32 v7, v{G+2}, v{G+3}
    ds_write_b64 v{aQsW}, v[6:7]
    """)
    arrive(CQ)
    stamp(3)
    if not kfirst:
        kfrags()
    QF = X + 16
    wait_cnt(CQ, 8, [f"ds_read_b128 v[{QF+4*s}:{QF+4*s+3}], v{aQsR} offset:{64*s}" for s in range(4)])
    for s in range(4):
        for t in range(2):
            mfma(ACC + 4 * t, F + 16 * t + 4 * s, QF + 4 * s, None if s == 0 else ACC + 4 * t)
    S = X
    for j in range(4):
        A(f"v_cndmask_b32 v{S+j}, v{ACC+j}, v{ACC+4+j}, {M_HI8}")
    bf16_round_pair(6, S, S + 1, S, S + 1)
    bf16_round_pair(7, S + 2, S + 3, S + 2, S + 3)
    for j in range(4):
        A(f"v_mul_f32 v{S+j}, {f32(SCALE)}, v{S+j}")
    bf16_round_pair(6, S, S + 1, S, S + 1)
    bf16_round_pair(7, S + 2, S + 3, S + 2, S + 3)
    A(f"""
    v_max3_f32 v6, v{S}, v{S+1}, v{S+2}
    v_max_f32 v6, v6, v{S+3}
    v_max_f32_dpp v6, v6, v6 row_ror:8 {DPPM}
    v_mov_b32 v7, v6
    v_permlane16_swap_b32 v6, v7
    v_max_f32 v6, v6, v7
    v_mov_b32 v7, v6
    v_permlane32_swap_b32 v6, v7
    v_max_f32 v6, v6, v7
    v_mul_f32 v7, {SC}, v6
    """)
    for j in range(4):
        A(f"v_fma_f32 v{S+j}, v{S+j}, {SC}, -v7")
    for j in range(4):
        A(f"v_exp_f32 v{S+j}, v{S+j}")
    A(f"""
    v_cvt_pk_bf16_f32 v8, v{S}, v{S+1}
    v_cvt_pk_bf16_f32 v9, v{S+2}, v{S+3}
    ds_write_b64 v{aPsW}, v[8:9]
    s_mov_b64 exec, 0xff
    ds_write_b32 v{aMsW}, v6
    """)
    arrive(CP)
    stamp(4)
    wait_prog(24)
    for t in range(2):
        for s in range(4):
            r = F + 16 * t + 4 * s
            A(f"ds_read_b64_tr_b16 v[{r}:{r+1}], v{aV0+t} offset:{8192*s}")
            A(f"ds_read_b64_tr_b16 v[{r+2}:{r+3}], v{aV0+t} offset:{8192*s+1024}")
    arrive(FC)
    PL, PH, MSV = X, X + 16, 36
    rd = [f"ds_read_b128 v[{MSV}:{MSV+3}], v{aMsR}"]
    for s in range(4):
        rd.append(f"ds_read_b128 v[{PL+4*s}:{PL+4*s+3}], v{aPlo} offset:{64*s}")
        rd.append(f"ds_read_b128 v[{PH+4*s}:{PH+4*s+3}], v{aPhi} offset:{64*s}")
    wait_cnt(CP, 4, rd)
    LA = 120
    LAs = [120, 124, 128, 144]
    fw = ["v_max3_f32 v6, v36, v37, v38", "v_max_f32 v6, v6, v39"]
    for s in range(4):
        fw.append(f"v_sub_f32 v{MSV+s}, v{MSV+s}, v6")
    for s in range(4):
        fw.append(f"v_mul_f32 v{MSV+s}, {SC}, v{MSV+s}")
    for s in range(4):
        fw.append(f"v_exp_f32 v{MSV+s}, v{MSV+s}")
    fw.append(f"v_or_b32 v148, {T[0]}, v6")
    fw.append(f"v_mov_b32 v150, {T[2]}")
    fw.append(f"v_mov_b32 v151, {T[3]}")
    k = 0
    for t in range(2):
        for s in range(4):
            mfma(ACC + 4 * s, F + 16 * t + 4 * s, (PL, PH)[t] + 4 * s, None if t == 0 else ACC + 4 * s)
            for _ in range(2):
                if k < len(fw):
                    A(fw[k]); k += 1
    while k < len(fw):
        A(fw[k]); k += 1
    O = F
    for s in range(4):
        mfma(LAs[s], ONES, PL + 4 * s, None)
        for j in range(4):
            if s == 0:
                A(f"v_mul_f32 v{O+j}, v{MSV}, v{ACC+j}")
            else:
                A(f"v_fmac_f32 v{O+j}, v{MSV+s}, v{ACC+4*s+j}")
    tag4(O + 4, O)
    A(f"buffer_store_dwordx4 v[{O+4}:{O+7}], v{oOP}, {WS}, 0 offen sc1")
    A(f"v_mul_f32 v7, v{MSV}, v{LAs[0]}")
    for s in range(1, 4):
        A(f"v_fmac_f32 v7, v{MSV+s}, v{LAs[s]}")
    A(f"v_and_or_b32 v149, v7, v{vMK}, {T[1]}")
    A("s_mov_b64 exec, s[78:79]")
    A(f"buffer_store_dwordx4 v[148:151], v{oML}, {WS}, 0 offen sc1")
    A("s_mov_b64 exec, -1")
    stamp(5)
    M0R, M1R = ACC, ACC + 4
    if go:
        wait_prog(go)
    gather4([(M0R, oMLG, 0), (M1R, oMLG, 64)] + [(G + 4 * i, oOPG, 512 * i) for i in range(do)])
    stamp(6)
    W0, W1 = 8, 9
    OA = ACC + 8
    A(f"""
    v_max_f32 v6, v{M0R}, v{M1R}
    v_max_f32_dpp v6, v6, v6 quad_perm:[1,0,3,2] {DPPM}
    v_max_f32_dpp v6, v6, v6 quad_perm:[2,3,0,1] {DPPM}
    v_max_f32_dpp v6, v6, v6 row_ror:8 {DPPM}
    v_mov_b32 v7, v6
    v_permlane16_swap_b32 v6, v7
    v_max_f32 v6, v6, v7
    v_sub_f32 v{W0}, v{M0R}, v6
    v_sub_f32 v{W1}, v{M1R}, v6
    v_mul_f32 v{W0}, {SC}, v{W0}
    v_mul_f32 v{W1}, {SC}, v{W1}
    v_exp_f32 v{W0}, v{W0}
    v_exp_f32 v{W1}, v{W1}
    v_mul_f32 v6, v{W0}, v{M0R+1}
    v_fmac_f32 v6, v{W1}, v{M1R+1}
    """)
    lred = [f"v_add_f32_dpp v6, v6, v6 quad_perm:[1,0,3,2] {DPPM}",
            f"v_add_f32_dpp v6, v6, v6 quad_perm:[2,3,0,1] {DPPM}",
            f"v_add_f32_dpp v6, v6, v6 row_ror:8 {DPPM}",
            "v_mov_b32 v7, v6",
            "v_permlane16_swap_b32 v6, v7",
            "v_add_f32 v6, v6, v7",
            "v_rcp_f32 v6, v6"]
    for i in range(8):
        w = (W0, W1)[i >> 2]
        qp = f"quad_perm:[{i&3},{i&3},{i&3},{i&3}] {DPPM}"
        for j in range(4):
            op = "v_mul_f32_dpp" if i == 0 else "v_fmac_f32_dpp"
            A(f"{op} v{OA+j}, v{w}, v{G+4*i+j} {qp}")
        if i < len(lred):
            A(lred[i])
    for j in range(4):
        A(f"v_add_f32_dpp v{OA+j}, v{OA+j}, v{OA+j} row_ror:8 {DPPM}")
    A(f"""
    v_permlane16_swap_b32 v{OA}, v{OA+2}
    v_permlane16_swap_b32 v{OA+1}, v{OA+3}
    v_add_f32 v{OA}, v{OA}, v{OA+2}
    v_add_f32 v{OA+1}, v{OA+1}, v{OA+3}
    v_mul_f32 v{OA}, v{OA}, v6
    v_mul_f32 v{OA+1}, v{OA+1}, v6
    v_cvt_pk_bf16_f32 v7, v{OA}, v{OA+1}
    ds_write_b32 v{aOsW}, v7
    """)
    arrive(CO)
    A(f"s_sub_u32 s55, {REGWO}, {RC}")
    A(f"v_add_u32 v{aV0}, s55, v{aV0}")
    A(f"v_add_u32 v{aV1}, s55, v{aV1}")
    BF = X
    wait_cnt(CO, 4, [f"ds_read_b128 v[{BF+4*s}:{BF+4*s+3}], v{aOsR} offset:{64*s}" for s in range(4)])

    def gemv128(gbase, splits, nsteps):
        s0 = 0
        for g1 in splits:
            s1 = min(g1 // 2, nsteps)
            if s1 == s0:
                continue
            wait_prog_adj(gbase + 2 * s1)
            for s in range(s0, s1):
                for t in range(2):
                    r = F + 16 * t + 4 * s
                    A(f"ds_read_b64_tr_b16 v[{r}:{r+1}], v{aV0+t} offset:{8192*s}")
                    A(f"ds_read_b64_tr_b16 v[{r+2}:{r+3}], v{aV0+t} offset:{8192*s+1024}")
            n = 4 * (s1 - s0)
            for s in range(s0, s1):
                for t in range(2):
                    n -= 2
                    A(f"s_waitcnt lgkmcnt({n})")
                    mfma(ACC + 4 * t, F + 16 * t + 4 * s, BF + 4 * s, None if s == 0 else ACC + 4 * t)
            s0 = s1

    def publish_fp(off):
        for j in range(4):
            A(f"v_cndmask_b32 v{ACC+8+j}, v{ACC+j}, v{ACC+4+j}, {M_B1}")
        tag4(ACC + 8, ACC + 8)
        A(f"s_mov_b64 exec, {M_N4}")
        o = f" offset:{off}" if off else ""
        A(f"buffer_store_dwordx4 v[{ACC+8}:{ACC+11}], v{oFP}, {WS}, 0 offen{o} sc1")
        A("s_mov_b64 exec, -1")

    gemv128(40, splwo, 4)
    publish_fp(0)
    stamp(7)
    dump_stamps(8)
    A("s_endpgm")

    A("L_F:")
    arrive(CQ)
    aWg, aWu, oGU, oGG, vTL, aHsW, aHsR, aT0, aT1, aHsT, vCo, oFG, oOut = 11, 12, 13, 14, 15, 16, 17, 18, 19, 20, 21, 22, 23
    A(f"""
    v_add_u32 v{aWg}, {RD}, v{aW}
    v_add_u32 v{aWu}, {RA}, v{aW}
    v_add_u32 v{aV0}, {REGWD}, v{aV0}
    v_xor_b32 v{aV1}, 32, v{aV0}
    """)
    A(f"""
    s_lshr_b32 s55, s2, 2
    s_lshl_b32 s55, s55, 11
    s_and_b32 s56, s2, 3
    s_lshl_b32 s56, s56, 8
    s_add_u32 s55, s55, s56
    s_lshl_b32 s56, {SW}, 6
    s_add_u32 s55, s55, s56
    s_add_u32 s55, s55, {GUP}
    v_and_b32 v5, 1, v0
    v_mul_u32_u24 v5, {56*2048}, v5
    v_and_b32 v6, 2, v0
    v_lshl_add_u32 v5, v6, 9, v5
    v_lshl_add_u32 v5, v{vQ}, 4, v5
    v_add_u32 v{oGU}, s55, v5
    """)
    MG = M_N4
    if "g" in cst:
        A(f"""
        s_lshl_b32 s55, s2, 10
        s_lshl_b32 s56, {SW}, 8
        s_add_u32 s55, s55, s56
        s_add_u32 s55, s55, {GUP}
        v_lshlrev_b32 v5, 4, v0
        v_add_u32 v{oGU}, s55, v5
        """)
        MG = "0xffff"
    A(f"""
    s_mul_i32 s55, {RB3}, 112
    s_mul_i32 s56, {SW}, 28
    s_add_u32 s55, s55, s56
    v_and_b32 v6, 31, v0
    v_add_u32 v7, s55, v6
    v_lshrrev_b32 v8, 6, v7
    v_and_b32 v7, 63, v7
    v_lshlrev_b32 v7, 2, v7
    v_lshl_add_u32 v7, v8, 11, v7
    v_lshrrev_b32 v5, 5, v0
    v_mul_u32_u24 v8, {56*2048}, v5
    v_add_u32 v7, v7, v8
    v_add_u32 v{oGG}, {GUP}, v7
    s_lshl_b32 s56, s56, 1
    s_add_u32 s56, s56, {HS}
    v_mul_u32_u24 v8, {PITCH}, v5
    v_lshl_add_u32 v8, v6, 1, v8
    v_add_u32 v{aHsW}, s56, v8
    v_and_b32 v9, 1, v0
    v_mul_u32_u24 v9, {PITCH}, v9
    v_lshl_add_u32 v8, v{vQ}, 4, v9
    v_add_u32 v{aHsR}, {HS}, v8
    v_lshl_add_u32 v8, v{vQ}, 3, v9
    v_add_u32 v{aHsT}, {HS+192}, v8
    v_mov_b32 v5, {T[0]}
    v_mov_b32 v6, {T[1]}
    v_mov_b32 v7, {T[2]}
    v_mov_b32 v8, {T[3]}
    s_mov_b32 s56, 0xaaaaaaaa
    s_mov_b32 s57, 0xaaaaaaaa
    v_cndmask_b32 v5, v5, v6, s[56:57]
    v_cndmask_b32 v7, v7, v8, s[56:57]
    v_cndmask_b32 v{vTL}, v5, v7, {M_B1}
    """)
    A(f"""
    v_bfe_u32 v5, v0, 2, 2
    v_lshrrev_b32 v6, 5, v0
    v_lshl_add_u32 v5, v6, 2, v5
    s_lshl_b32 s55, {SW}, 1
    v_xor_b32 v5, s55, v5
    v_and_b32 v6, 3, v0
    v_lshlrev_b32 v6, 3, v6
    v_lshl_add_u32 v5, v5, 5, v6
    v_lshrrev_b32 v6, 2, v0
    v_lshl_add_u32 v5, v6, 8, v5
    s_add_u32 s55, {REGWD}, {96*256}
    v_add_u32 v{aT0}, s55, v5
    v_xor_b32 v{aT1}, 32, v{aT0}
    """)
    A(f"s_cmp_lg_u32 {SW}, 0")
    A("s_cbranch_scc1 L_nog")
    A(f"""
    s_mov_b64 s[40:41], s[22:23]
    s_mov_b32 s42, 2048
    s_mov_b32 s43, 0x20000
    s_mov_b64 s[44:45], s[24:25]
    s_mov_b32 s46, 4096
    s_mov_b32 s47, 0x20000
    s_lshr_b32 s55, s2, 7
    s_lshl_b32 s55, s55, 11
    v_lshlrev_b32 v5, 5, v0
    buffer_load_dwordx4 v[{F}:{F+3}], v5, s[32:35], s55 offen
    buffer_load_dwordx4 v[{F+4}:{F+7}], v5, s[32:35], s55 offen offset:16
    buffer_load_dwordx4 v[{F+8}:{F+11}], v5, s[40:43], 0 offen
    buffer_load_dwordx4 v[{F+12}:{F+15}], v5, s[40:43], 0 offen offset:16
    s_lshl_b32 s55, s2, 11
    s_add_u32 s55, s55, {FP}
    v_lshlrev_b32 v5, 4, v0
    v_add_u32 v{oFG}, s55, v5
    v_and_b32 v5, 1, v0
    v_lshlrev_b32 v5, 2, v5
    v_lshrrev_b32 v6, 5, v0
    v_lshl_add_u32 v5, v6, 1, v5
    v_bfe_u32 v6, v0, 4, 1
    v_add_u32 v5, v5, v6
    v_lshlrev_b32 v5, 1, v5
    s_lshl_b32 s55, s2, 4
    v_add_u32 v{oOut}, s55, v5
    v_mov_b32 v9, 0
    s_waitcnt vmcnt(0)
    """)
    for i in range(8):
        A(f"""
        v_lshlrev_b32 v5, 16, v{F+i}
        v_lshlrev_b32 v6, 16, v{F+8+i}
        v_and_b32 v7, 0xffff0000, v{F+i}
        v_and_b32 v8, 0xffff0000, v{F+8+i}
        v_mul_f32 v5, v5, v6
        v_mul_f32 v7, v7, v8
        """)
        bf16_round_pair(6, 5, 7, 5, 7)
        A("v_add_f32 v9, v9, v5")
        A("v_add_f32 v9, v9, v7")
    A(f"""
    v_add_f32_dpp v9, v9, v9 quad_perm:[1,0,3,2] {DPPM}
    v_add_f32_dpp v9, v9, v9 quad_perm:[2,3,0,1] {DPPM}
    v_add_f32_dpp v9, v9, v9 row_ror:4 {DPPM}
    v_add_f32_dpp v9, v9, v9 row_ror:8 {DPPM}
    v_mov_b32 v8, v9
    v_permlane16_swap_b32 v9, v8
    v_add_f32 v9, v9, v8
    v_mov_b32 v8, v9
    v_permlane32_swap_b32 v9, v8
    v_add_f32 v9, v9, v8
    v_cvt_pk_bf16_f32 v9, v9, v9
    v_lshlrev_b32 v9, 16, v9
    v_mul_f32 v9, {f32(-LOG2E)}, v9
    v_exp_f32 v9, v9
    v_add_f32 v9, 1.0, v9
    v_rcp_f32 v9, v9
    v_cvt_pk_bf16_f32 v9, v9, v9
    v_lshlrev_b32 v9, 16, v9
    v_sub_f32 v8, 1.0, v9
    v_cvt_pk_bf16_f32 v8, v8, v8
    v_lshlrev_b32 v8, 16, v8
    s_mov_b32 s56, 0
    s_mov_b32 s57, -1
    v_cndmask_b32 v{vCo}, v9, v8, s[56:57]
    """)
    A("L_nog:")
    A("s_waitcnt vmcnt(0)")
    if prew:
        A(f"s_xor_b32 s55, {T[0]}, 1")
        for j in range(4):
            A(f"v_mov_b32 v{144+j}, s55")
    if "f" in prew:
        A(f"s_mov_b64 exec, {M_N4}")
        A(f"buffer_store_dwordx4 v[144:147], v{oFP}, {WS}, 0 offen offset:1024 sc1")
        A("s_mov_b64 exec, -1")
    stamp(1)
    A("s_cmp_ge_u32 s2, 224")
    A("s_cbranch_scc1 L_nogu")
    if "g" in prew:
        A(f"s_mov_b64 exec, {M_N4}")
        A(f"buffer_store_dwordx4 v[144:147], v{oGU}, {WS}, 0 offen sc1")
        A("s_mov_b64 exec, -1")
    gemv64(aWg, ACC, 24, spl1)
    stamp(2)
    gemv64(aWu, ACC + 4, 32, spl1)
    for j in range(4):
        A(f"v_cndmask_b32 v{ACC+8+j}, v{ACC+j}, v{ACC+4+j}, {M_B1}")
    tag4(ACC + 8, ACC + 8)
    A(f"s_mov_b64 exec, {MG}")
    A(f"buffer_store_dwordx4 v[{ACC+8}:{ACC+11}], v{oGU}, {WS}, 0 offen sc1")
    A("L_nogu:")
    stamp(3)
    A("s_mov_b64 exec, -1")
    if gg:
        A(f"s_sub_u32 s56, 55, {ADJ}")
        A(f"s_min_u32 s56, s56, {gg}")
        wait_prog("s56")
    A("s_mov_b32 s56, 0x0fffffff")
    A("s_mov_b32 s57, 0x0fffffff")
    A("s_mov_b64 exec, s[56:57]")
    g, gdn = A.lab("L_g"), A.lab("L_gd")

    def gchk(i):
        m = MASKS[i]
        A(f"v_xor_b32 v{G+i}, v{vTL}, v{G+i}")
        A(f"v_and_b32 v5, {TAGM}, v{G+i}")
        A(f"v_cmp_ne_u32 vcc, 0, v5")
        A(f"s_wqm_b64 s[{m}:{m+1}], vcc")

    def gany():
        for i in range(1, dg):
            src = f"s[{MASKS[0]}:{MASKS[0]+1}]" if i == 1 else "vcc"
            A(f"s_or_b64 vcc, {src}, s[{MASKS[i]}:{MASKS[i]+1}]")

    if nog:
        A(f"s_branch {gdn}")
    for i in range(dg):
        o = f" offset:{256*i}" if i else ""
        A(f"buffer_load_dword v{G+i}, v{oGG}, {WS}, 0 offen{o} {fpol}")
    for i in range(dg):
        A(f"s_waitcnt vmcnt({dg-1-i})")
        gchk(i)
    gany()
    dstamp()
    A(f"s_cbranch_vccz {gdn}")
    A(f"{g}:")
    for i in range(dg):
        o = f" offset:{256*i}" if i else ""
        A(f"s_mov_b64 exec, s[{MASKS[i]}:{MASKS[i]+1}]")
        A(f"buffer_load_dword v{G+i}, v{oGG}, {WS}, 0 offen{o} sc1")
    for i in range(dg):
        A(f"s_mov_b64 exec, s[{MASKS[i]}:{MASKS[i]+1}]")
        A(f"s_waitcnt vmcnt({dg-1-i})")
        gchk(i)
    gany()
    dstamp()
    budget(16)
    A(f"s_cbranch_vccnz {g}")
    A("s_mov_b64 exec, s[56:57]")
    A(f"{gdn}:")
    stamp(4)
    A(f"""
    v_add_f32 v{G}, v{G}, v{G+1}
    v_add_f32 v{G+2}, v{G+2}, v{G+3}
    v_add_f32 v{G+4}, v{G+4}, v{G+5}
    v_add_f32 v{G+6}, v{G+6}, v{G+7}
    v_add_f32 v{G}, v{G}, v{G+2}
    v_add_f32 v{G+4}, v{G+4}, v{G+6}
    """)
    bf16_round_pair(5, 6, 7, G, G + 4)
    A(f"""
    v_mul_f32 v8, v6, v6
    v_mov_b32 v9, {f32(GC1)}
    v_fmac_f32 v9, {f32(GC2)}, v8
    v_mul_f32 v9, v9, v6
    v_exp_f32 v9, v9
    v_add_f32 v9, 1.0, v9
    v_rcp_f32 v9, v9
    v_mul_f32 v9, v9, v6
    v_cvt_pk_bf16_f32 v9, v9, v9
    v_lshlrev_b32 v9, 16, v9
    v_mul_f32 v9, v9, v7
    v_cvt_pk_bf16_f32 v9, v9, v9
    ds_write_b16 v{aHsW}, v9
    """)
    arrive(CH)
    wait_cnt(CH, 4, [f"ds_read_b128 v[{BF+4*s}:{BF+4*s+3}], v{aHsR} offset:{64*s}" for s in range(3)]
             + [f"ds_read_b64 v[{BF+12}:{BF+13}], v{aHsT}"])
    stamp(5)
    gemv128(48, splwd, 3)
    wait_prog_adj(55)
    A(f"ds_read_b64_tr_b16 v[{F+12}:{F+13}], v{aT0}")
    A(f"ds_read_b64_tr_b16 v[{F+28}:{F+29}], v{aT1}")
    A("s_waitcnt lgkmcnt(1)")
    A(f"v_mfma_f32_16x16x16_bf16 v[{ACC}:{ACC+3}], v[{F+12}:{F+13}], v[{BF+12}:{BF+13}], v[{ACC}:{ACC+3}]")
    A("s_waitcnt lgkmcnt(0)")
    A(f"v_mfma_f32_16x16x16_bf16 v[{ACC+4}:{ACC+7}], v[{F+28}:{F+29}], v[{BF+12}:{BF+13}], v[{ACC+4}:{ACC+7}]")
    publish_fp(1024)
    stamp(6)
    A(f"s_cmp_lg_u32 {SW}, 0")
    A("s_cbranch_scc1 L_fin")
    gather4([(G, oFG, 0), (G + 4, oFG, 1024)], first="sc1")
    for j in range(4):
        A(f"v_permlane32_swap_b32 v{G+j}, v{G+4+j}")
    for j in range(4):
        A(f"v_add_f32 v{G+j}, v{G+j}, v{G+4+j}")
    A(f"""
    v_permlane16_swap_b32 v{G}, v{G+1}
    v_permlane16_swap_b32 v{G+2}, v{G+3}
    v_add_f32 v6, v{G}, v{G+1}
    v_add_f32 v7, v{G+2}, v{G+3}
    v_add_f32_dpp v6, v6, v6 quad_perm:[2,3,0,1] {DPPM}
    v_add_f32_dpp v7, v7, v7 quad_perm:[2,3,0,1] {DPPM}
    v_add_f32_dpp v6, v6, v6 row_ror:4 {DPPM}
    v_add_f32_dpp v7, v7, v7 row_ror:4 {DPPM}
    v_add_f32_dpp v6, v6, v6 row_ror:8 {DPPM}
    v_add_f32_dpp v7, v7, v7 row_ror:8 {DPPM}
    """)
    bf16_round_pair(5, 6, 7, 6, 7)
    A(f"v_mul_f32 v6, v6, v{vCo}")
    A(f"v_mul_f32 v7, v7, v{vCo}")
    bf16_round_pair(5, 6, 7, 6, 7)
    A(f"""
    v_permlane32_swap_b32 v6, v7
    v_add_f32 v6, v6, v7
    v_cvt_pk_bf16_f32 v6, v6, v6
    s_mov_b64 exec, {M_N2}
    buffer_store_short v6, v{oOut}, s[44:47], 0 offen
    s_cmp_lg_u32 s2, 0
    s_cbranch_scc1 L_fin
    s_mov_b64 exec, 1
    v_mov_b32 v6, s48
    v_mov_b32 v7, s49
    s_mov_b32 s55, {EPOCH}
    buffer_store_dwordx2 v[6:7], off, {WS}, s55 sc1
    L_fin:
    """)
    A("s_mov_b64 exec, -1")
    stamp(7)
    dump_stamps(16)
    A("L_end:")
    A("s_endpgm")

    if nost:
        drop = {"q": oQP, "o": oOP, "m": oML, "f": oFP, "g": oGU}
        regs = [f", v{drop[c]}, " for c in (nost if isinstance(nost, str) else "qomfg")]
        A.L = [l for l in A.L if not (l.startswith("buffer_store_dwordx4") and "sc1" in l and any(r in l for r in regs))]
    if stpol != "sc1":
        A.L = [l.replace(" sc1", " " + stpol) if l.startswith("buffer_store_dwordx4") else l for l in A.L]
    body, nn = hazard_pass(A.L)
    out = []
    out.append(f"; @launch grid=(256,1,1) block=(576,1,1) lds={LDS_TOTAL}")
    out.append('.amdgcn_target "amdgcn-amd-amdhsa--gfx950"')
    out.append(".text")
    out.append(f".globl {NAME}_kernel")
    out.append(".p2align 8")
    out.append(f".type {NAME}_kernel,@function")
    out.append(f"{NAME}_kernel:")
    out += ["  " + l if not l.endswith(":") else l for l in body]
    total = 8192 * (2 if pf_kib > 8 else 1) + 2048
    out.append(f".fill ({total} - (. - {NAME}_kernel)) / 4, 4, 0xbf810000")
    out.append('.section .rodata,"a"')
    out.append(".p2align 6")
    out.append(f".amdhsa_kernel {NAME}_kernel")
    out.append("  .amdhsa_next_free_vgpr 160")
    out.append("  .amdhsa_next_free_sgpr 102")
    out.append("  .amdhsa_accum_offset 160")
    out.append("  .amdhsa_group_segment_fixed_size 0")
    out.append("  .amdhsa_kernarg_size 104")
    out.append("  .amdhsa_user_sgpr_count 2")
    out.append("  .amdhsa_user_sgpr_kernarg_segment_ptr 1")
    out.append("  .amdhsa_system_sgpr_workgroup_id_x 1")
    out.append(".end_amdhsa_kernel")
    return "\n".join(out) + "\n"


if __name__ == "__main__":
    import argparse, ast
    ap = argparse.ArgumentParser()
    ap.add_argument("out")
    ap.add_argument("kw", nargs="*")
    a = ap.parse_args()
    kw = {}
    for s in a.kw:
        k, v = s.split("=", 1)
        try:
            kw[k] = ast.literal_eval(v)
        except Exception:
            kw[k] = v
    open(a.out, "w").write(gen(**kw))
```

```python
import sys, struct
from asmlib import Asm, hazard_pass

NAME = "gated_mix__sliding_block_cached__geglu_ffn__decode"

PROG = 0
CQ, CP, CO, CH, FA, FB, FC, CA, CF = 0x100, 0x104, 0x108, 0x10C, 0x110, 0x114, 0x118, 0x11C, 0x120
FS = 0x1800
ZERO = 0x200
QS, PS, MS, OS, HS, GS, AS = 0x400, 0xD00, 0x1600, 0x1680, 0x1700, 0x1780, 0x2000
PITCH = 288
RA, RC, RD, RB = 0x3000, 0xB000, 0x13000, 0x1A000
P3 = 4224
LDS_TOTAL = RB + 8 * P3
QP, ML, EPOCH, GUP, OP, FP, WS_END = 0, 0x20000, 0x2F000, 0x40000, 0x100000, 0x200000, 0x300000
TAGM = 0xFFF


def f32(x):
    return "0x%08x" % struct.unpack("<I", struct.pack("<f", x))[0]


LOG2E = 1.4426950408889634
SCALE = 128 ** -0.5
GC1 = -2.0 * LOG2E * 0.7978845608028654
GC2 = GC1 * 0.044715


def gen(D=16, stamps=False, spl1=(4, 8), spl7=(4, 7), ntflag="nt", gq=16, go=36, gg=44, fpol="",
        nog=False, nost=False, rot=1, qmap=1, bgmap=1, D3=0, cst='', stpol='sc1', wsoff=0, half=0, ofrac=0, ostr=0, omask=0, mlin=0):
    A = Asm()
    d = D // 4
    assert D % 4 == 0
    d3 = (D3 or D) // 4
    assert d3 >= d

    VST = 152

    def stamp(i):
        if stamps:
            if i == 0:
                A(f"v_mov_b32 v{VST}, 0")
            A("s_memrealtime s[96:97]")
            A("s_waitcnt lgkmcnt(0)")
            A(f"v_writelane_b32 v{VST}, s96, {i}")

    def dstamp():
        if stamps:
            A("s_memrealtime s[96:97]")
            A("s_waitcnt lgkmcnt(0)")
            A(f"v_writelane_b32 v{VST}, s96, m0")
            A("s_add_u32 m0, m0, 1")
            A("s_min_u32 m0, m0, 63")

    def dump_stamps():
        if not stamps:
            return
        A("s_mov_b64 exec, -1")
        A("s_add_u32 s28, s28, 0x8000000")
        A("s_addc_u32 s29, s29, 0")
        A("s_mul_i32 s55, s2, 9")
        A("s_add_u32 s55, s55, s3")
        A("s_lshl_b32 s55, s55, 8")
        A("v_lshlrev_b32 v5, 2, v0")
        A("v_add_u32 v5, s55, v5")
        A(f"global_store_dword v5, v{VST}, s[28:29]")

    BUD, SPROG = "s30", "s31"

    def budget(k=1):
        A(f"s_sub_u32 {BUD}, {BUD}, {k}")
        A("s_cbranch_scc1 L_end")

    RB1, CB1 = "s100", "s101"

    def tile1():
        if qmap == 0:
            A(f"s_and_b32 {RB1}, s2, 3")
            A(f"s_lshr_b32 {CB1}, s2, 2")
        else:
            hi, lo = ("0x10000", "0x20001") if qmap == 1 else ("0x10002", "0x20000")
            A(f"""
            s_bfe_u32 {RB1}, s2, {hi}
            s_lshr_b32 s69, s2, 7
            s_lshl1_add_u32 {RB1}, {RB1}, s69
            s_bfe_u32 s69, s2, 0x40003
            s_bfe_u32 {CB1}, s2, {lo}
            s_lshl4_add_u32 {CB1}, {CB1}, s69
            """)

    def bg(dst, t):
        if bgmap == 0:
            A(f"s_and_b32 {dst}, s2, 7")
        else:
            A(f"s_and_b32 {dst}, s2, 1")
            A(f"s_bfe_u32 {t}, s2, 0x20001")
            A(f"s_lshl2_add_u32 {dst}, {dst}, {t}")

    def jidx(dst, t):
        A(f"s_and_b32 {dst}, s2, 7")
        A(f"s_lshl_b32 {dst}, {dst}, 5")
        A(f"s_lshr_b32 {t}, s2, 3")
        A(f"s_add_u32 {dst}, {dst}, {t}")

    stamp(0)
    W8, W7, VK, VV, VO = 10, 14, 18, 22, 24
    vP, vPa, vFr, vFa, vT = 28, 29, 30, 31, 32
    A(f"""
    s_cmp_ge_u32 s2, 256
    s_cbranch_scc1 L_end
    s_load_dwordx2 s[32:33], s[0:1], 24
    s_load_dwordx16 s[4:19], s[0:1], 0
    s_load_dwordx8 s[20:27], s[0:1], 64
    s_load_dwordx2 s[28:29], s[0:1], 96
    v_lshrrev_b32 v1, 6, v0
    v_lshrrev_b32 v34, 3, v0
    v_readfirstlane_b32 s3, v1
    v_and_b32 v35, 7, v0
    v_and_b32 v36, 2, v34
    s_mov_b32 {BUD}, 0x100000
    s_mov_b32 s35, 0x20000
    """)
    tile1()
    A(f"""
    s_cmp_lg_u32 s3, 0
    s_cbranch_scc1 L_worker
    s_setprio 3
    v_xor_b32 v35, v35, v36
    v_lshlrev_b32 v35, 4, v35
    v_xor_b32 v36, 64, v35
    v_lshl_add_u32 v{W8}, v34, 13, v35
    v_lshl_add_u32 v{W8+1}, v34, 13, v36
    v_add_u32 v{W8+1}, {65536-1024}, v{W8+1}
    v_add_u32 v{W8+2}, {2*(65536-1024)}, v{W8}
    v_add_u32 v{W8+3}, {2*(65536-1024)}, v{W8+1}
    s_lshl_b32 s68, {CB1}, 7
    s_lshl_b32 s60, {RB1}, 21
    s_add_u32 s60, s60, s68
    s_mov_b32 s34, {8<<20}
    s_mov_b32 m0, {RA}
    s_waitcnt lgkmcnt(0)
    """)
    srds = [(36, 6, 64 << 20), (40, 8, 64 << 20), (44, 16, 7 << 20), (48, 18, 7 << 20),
            (52, 12, 8 << 20), (56, 20, 7 << 20)]
    NPEEL = min(d, 7)

    def loader_setup():
        A(f"""
        v_lshrrev_b32 v4, 4, v0
        v_and_b32 v5, 15, v0
        v_xor_b32 v6, v5, v4
        v_lshlrev_b32 v6, 4, v6
        v_lshl_add_u32 v{VK}, v4, 8, v6
        v_xor_b32 v{VK+1}, 64, v{VK}
        v_xor_b32 v{VK+2}, 128, v{VK}
        v_xor_b32 v{VK+3}, 192, v{VK}
        v_lshlrev_b32 v6, 1, v4
        v_xor_b32 v6, v5, v6
        v_lshlrev_b32 v6, 4, v6
        v_lshl_add_u32 v{VV}, v4, 8, v6
        v_xor_b32 v{VV+1}, 128, v{VV}
        v_lshlrev_b32 v{VO}, 4, v0
        v_xor_b32 v{VO+1}, {1024+32}, v{VO}
        v_xor_b32 v{VO+2}, {2048+64}, v{VO}
        v_xor_b32 v{VO+3}, {3072+96}, v{VO}
        v_mul_u32_u24 v7, 7168, v34
        v_add_u32 v{W7}, v7, v35
        v_add_u32 v{W7+1}, v7, v36
        v_add_u32 v{W7+1}, {8*7168-1024}, v{W7+1}
        v_add_u32 v{W7+2}, {2*(8*7168-1024)}, v{W7}
        v_add_u32 v{W7+3}, {2*(8*7168-1024)}, v{W7+1}
        v_mov_b32 v{vP}, {NPEEL-d}
        v_lshlrev_b32 v{vPa}, 2, v0
        """)
        jidx("s67", "s68")
        A(f"""
        s_mul_i32 s69, s67, 7
        s_lshr_b32 s63, s69, 5
        s_lshl_b32 s63, s63, 7
        s_and_b32 s69, s69, 31
        s_mul_i32 s69, s69, {32*7168}
        s_add_u32 s63, s63, s69
        s_mov_b32 s64, s63
        s_and_b32 s69, s67, 1
        s_lshl_b32 s69, s69, 10
        s_lshr_b32 s67, s67, 1
        s_lshl_b32 s65, s67, 16
        s_add_u32 s65, s65, s69
        s_mul_i32 s66, s67, {28*2048}
        s_add_u32 s66, s66, s69
        """)
        bg("s67", "s69")
        A(f"""
        s_lshl_b32 s61, s67, 23
        s_lshl_b32 s69, s68, 15
        s_add_u32 s61, s61, s69
        s_add_u32 s61, s61, {28672*256}
        s_mov_b32 s62, s61
        """)
        for r, p, n in srds:
            A(f"s_mov_b64 s[{r}:{r+1}], s[{p}:{p+1}]")
            A(f"s_mov_b32 s{r+2}, {n}")
            A(f"s_mov_b32 s{r+3}, 0x20000")

    def group(srd, vo, soff):
        for t in range(4):
            off = f" offset:{1024*t}" if t else ""
            A(f"buffer_load_dwordx4 v{vo[t]}, s[{srd}:{srd+3}], {soff} offen{off} {ntflag} lds")

    def publish():
        A(f"v_add_u32 v{vP}, 1, v{vP}")
        A(f"ds_max_i32 v{vPa}, v{vP}")

    def tloop(srd, vo, soff, step, ng, base, free=None, skip=0, pitch=4096, wrap=False, dd=None, grow=0):
        dd = dd or d
        if not skip:
            A(f"s_mov_b32 m0, {base}")
        if free is not None:
            A(f"v_mov_b32 v{vFa}, {free}")
        for i in range(grow):
            group(srd, vo, soff)
            A(f"s_add_u32 {soff}, {soff}, {step}")
            A(f"s_add_u32 m0, m0, {pitch}")
        L = A.lab("L_ld")
        A(f"{L}:")
        group(srd, vo, soff)
        if free is not None:
            A(f"ds_read_b32 v{vFr}, v{vFa}")
        A(f"s_add_u32 {soff}, {soff}, {step}")
        if wrap:
            A(f"s_cmp_ge_u32 {soff}, {1024*7168}")
            A(f"s_cselect_b32 s73, {1024*7168-128}, 0")
            A(f"s_sub_u32 {soff}, {soff}, s73")
        A(f"s_add_u32 m0, m0, {pitch}")
        A(f"s_waitcnt vmcnt({4*dd})")
        publish()
        A(f"s_cmp_lg_u32 m0, {base + ng*pitch}")
        A(f"s_cbranch_scc1 {L}")
        if free is not None:
            ok, sp = A.lab("L_fok"), A.lab("L_fsp")
            A("s_waitcnt lgkmcnt(0)")
            A(f"v_readfirstlane_b32 s74, v{vFr}")
            A("s_cmp_ge_u32 s74, 4")
            A(f"s_cbranch_scc1 {ok}")
            A("s_waitcnt vmcnt(0)")
            A(f"v_add_u32 v{vT}, {dd}, v{vP}")
            A(f"ds_max_i32 v{vPa}, v{vT}")
            A(f"{sp}:")
            A(f"ds_read_b32 v{vFr}, v{vFa}")
            A("s_waitcnt lgkmcnt(0)")
            A(f"v_readfirstlane_b32 s74, v{vFr}")
            budget()
            A("s_cmp_lt_u32 s74, 4")
            A(f"s_cbranch_scc1 {sp}")
            A(f"{ok}:")

    w8 = [W8 + t for t in range(4)]
    w7 = [W7 + t for t in range(4)]
    vk = [VK + t for t in range(4)]
    vv = [VV, VV, VV + 1, VV + 1]
    vo = [VO + t for t in range(4)]
    A("L_ld0:")
    group(32, w8, "s60")
    A(f"s_add_u32 s60, s60, {32*8192}")
    A("s_add_u32 m0, m0, 4096")
    A(f"s_cmp_lg_u32 m0, {RA + NPEEL*4096}")
    A("s_cbranch_scc1 L_ld0")
    stamp(1)
    loader_setup()
    A("s_barrier")
    tloop(32, w8, "s60", 32 * 8192, 8, RA, skip=NPEEL)
    stamp(2)
    if not rot:
        tloop(36, vk, "s61", 4096, 8, RB)
        tloop(40, vv, "s62", 4096, 8, RC)
    else:
        A("s_bfe_u32 s67, s2, 0x30003")
        A("s_lshl_b32 s67, s67, 12")
        A("s_mov_b32 s68, s67")
        for srd, vo_, base in ((36, vk, RB), (40, vv, RC)):
            L = A.lab("L_rt")
            A(f"{L}:")
            A(f"s_add_u32 m0, s68, {base}")
            A("s_add_u32 s69, s68, s61")
            group(srd, vo_, "s69")
            A("s_add_u32 s68, s68, 4096")
            A("s_and_b32 s68, s68, 0x7fff")
            A(f"s_waitcnt vmcnt({4*d})")
            publish()
            A("s_cmp_lg_u32 s68, s67")
            A(f"s_cbranch_scc1 {L}")
    stamp(3)
    tloop(44, w7, "s63", 32 * 7168, 7, RD, free=FA, wrap=True)
    tloop(48, w7, "s64", 32 * 7168, 7, RA, free=FB, wrap=True)
    stamp(4)
    tloop(52, vo, "s65", 8192, 8, RB, free=FC, pitch=P3, dd=d3, grow=d3 - d)
    stamp(5)
    tloop(56, vo, "s66", 8192, 7, RC, pitch=P3, dd=d3)
    stamp(6)
    for k in range(d3 - 1, -1, -1):
        A(f"s_waitcnt vmcnt({4*k})")
        publish()
    stamp(7)
    dump_stamps()
    A("s_endpgm")

    vN, vQ, vZ, vMK, vONE = 1, 2, 3, 4, 33
    aW, aV0, aV1 = 10, 24, 25
    X, F, ACC = 40, 72, 104
    T = ["s50", "s51", "s52", "s53"]
    SW = "s54"
    WS = "s[36:39]"
    M_N2, M_N4, M_HI8, M_B1 = "s[60:61]", "s[62:63]", "s[64:65]", "s[66:67]"
    SJ = "s68"
    A("L_worker:")
    if stamps:
        A("s_mov_b32 m0, 32")
    A(f"""
    s_getpc_b64 s[40:41]
    s_cmp_gt_u32 s3, 2
    s_cbranch_scc1 L_nopf
    v_lshlrev_b32 v1, 7, v0
    v_add_u32 v1, -8192, v1
    global_load_dword v136, v1, s[40:41]
    L_nopf:
    v_and_b32 v0, 63, v0
    v_mov_b32 v4, 0
    v_mov_b32 v5, 0
    v_mov_b32 v6, 0
    v_mov_b32 v7, 0
    v_lshlrev_b32 v2, 4, v0
    ds_write_b128 v2, v[4:7]
    s_lshl_b32 s55, {RB1}, 9
    v_lshrrev_b32 v{vQ}, 4, v0
    v_and_b32 v9, 1, v0
    v_lshlrev_b32 v9, 11, v9
    v_lshl_add_u32 v9, v{vQ}, 4, v9
    s_mov_b32 s34, 4096
    s_mov_b32 s62, 0x000f000f
    s_mov_b32 s63, 0x000f000f
    s_waitcnt lgkmcnt(0)
    s_load_dwordx2 s[48:49], s[28:29], {EPOCH}
    s_mov_b64 s[32:33], s[4:5]
    s_cmp_gt_u32 s3, 4
    s_cbranch_scc1 L_nox
    s_mov_b64 exec, s[62:63]
    """)
    for s in range(8):
        A(f"buffer_load_dwordx4 v[{X+4*s}:{X+4*s+3}], v9, s[32:35], s55 offen offset:{64*s}")
    A(f"""
    s_mov_b64 exec, -1
    L_nox:
    s_barrier
    s_sub_u32 {SW}, s3, 1
    s_and_b32 {SW}, {SW}, 3
    s_mov_b32 {SPROG}, 0
    v_and_b32 v{vN}, 15, v0
    v_mov_b32 v{vZ}, 0
    v_mov_b32 v{vMK}, 0x{0xFFFFFFFF ^ TAGM:x}
    v_mov_b32 v{vONE}, 1
    s_mov_b32 s38, {WS_END}
    s_mov_b32 s39, 0x20000
    s_add_u32 s36, s28, {wsoff}
    s_addc_u32 s37, s29, 0
    v_bfe_u32 v5, v0, 2, 2
    v_lshl_add_u32 v5, v{vQ}, 3, v5
    v_and_b32 v6, 3, v0
    v_lshlrev_b32 v6, 3, v6
    v_bfe_u32 v7, v0, 3, 2
    v_xor_b32 v7, {SW}, v7
    v_lshl_add_u32 v7, v7, 5, v6
    v_lshl_add_u32 v{aW}, v5, 7, v7
    s_lshl_b32 s55, {SW}, 1
    v_bfe_u32 v7, v0, 2, 3
    v_xor_b32 v7, s55, v7
    v_lshl_add_u32 v7, v7, 5, v6
    v_lshl_add_u32 v{aV0}, v5, 8, v7
    s_mov_b32 s60, 0x00030003
    s_mov_b32 s61, 0x00030003
    s_waitcnt lgkmcnt(0)
    s_add_u32 s48, s48, 1
    s_addc_u32 s49, s49, 0
    s_and_b32 s50, s48, {TAGM}
    s_lshr_b32 s55, s48, 12
    s_add_u32 s55, s55, s48
    s_and_b32 s51, s55, {TAGM}
    s_lshr_b64 s[56:57], s[48:49], 24
    s_add_u32 s55, s56, s48
    s_and_b32 s52, s55, {TAGM}
    s_lshr_b32 s55, s49, 4
    s_add_u32 s55, s55, s48
    s_and_b32 s53, s55, {TAGM}
    """)
    if half:
        A(f"s_bitcmp1_b32 s2, {half}")
        A(f"s_cselect_b32 s38, s38, 0")
    a3, aBR, aAS, aGS = 140, 153, 154, 155

    def common2(reg3, bsrc):
        A(f"""
        s_mov_b32 s64, 0xff00ff00
        s_mov_b32 s65, 0xff00ff00
        s_mov_b32 s66, 0xcccccccc
        s_mov_b32 s67, 0xcccccccc
        """)
        jidx(SJ, "s55")
        A(f"""
        s_lshl_b32 s55, {SW}, 8
        s_add_u32 s55, s55, {reg3}
        v_mul_u32_u24 v5, {P3}, v{vQ}
        v_bfe_u32 v6, v0, 2, 2
        v_mul_u32_u24 v6, 1056, v6
        v_and_b32 v7, 3, v0
        v_lshl_add_u32 v5, v7, 3, v5
        v_add3_u32 v{a3}, v5, v6, s55
        v_xor_b32 v{a3+1}, 32, v{a3}
        v_xor_b32 v{a3+2}, 64, v{a3}
        v_xor_b32 v{a3+3}, 96, v{a3}
        v_and_b32 v5, 1, v0
        v_lshlrev_b32 v6, 6, v5
        v_lshl_add_u32 v6, v{vQ}, 4, v6
        v_add_u32 v{aBR}, {bsrc}, v6
        v_lshlrev_b32 v{aGS}, 3, v5
        s_lshl_b32 s55, {SW}, 10
        s_add_u32 s55, s55, {AS}
        v_lshlrev_b32 v6, 4, v0
        v_add_u32 v{aAS}, s55, v6
        """)

    def wait_prog(thr):
        ok, sp = A.lab("L_pok"), A.lab("L_psp")
        A(f"s_cmp_ge_i32 {SPROG}, {thr}")
        A(f"s_cbranch_scc1 {ok}")
        A(f"{sp}:")
        A(f"ds_read_b32 v5, v{vZ} offset:{PROG}")
        A("s_waitcnt lgkmcnt(0)")
        A(f"v_readfirstlane_b32 {SPROG}, v5")
        budget()
        A(f"s_cmp_lt_i32 {SPROG}, {thr}")
        A(f"s_cbranch_scc1 {sp}")
        A(f"{ok}:")

    def arrive(cnt):
        A("s_mov_b64 exec, 1")
        A(f"ds_add_u32 v{vZ}, v{vONE} offset:{cnt}")
        A("s_mov_b64 exec, -1")

    def wait_cnt(cnt, n, reads):
        sp = A.lab("L_csp")
        A(f"{sp}:")
        A(f"ds_read_b32 v5, v{vZ} offset:{cnt}")
        for r in reads:
            A(r)
        A("s_waitcnt lgkmcnt(0)")
        A("v_readfirstlane_b32 s55, v5")
        budget()
        A(f"s_cmp_lt_u32 s55, {n}")
        A(f"s_cbranch_scc1 {sp}")

    def tag4(dst, src):
        for j in range(4):
            A(f"v_and_or_b32 v{dst+j}, v{src+j}, v{vMK}, {T[j]}")

    MASKS = [80, 82, 84, 86, 88, 90, 92, 94]

    def gather(loads, first, hop=""):
        if nog is True or (nog and hop in nog):
            A("s_mov_b64 exec, -1")
            return
        g, dn = A.lab("L_g"), A.lab("L_gd")
        n = len(loads)

        def ld(dst, vo_, off, pol):
            o = f" offset:{off}" if off else ""
            A(f"buffer_load_dwordx4 v[{dst}:{dst+3}], v{vo_}, {WS}, 0 offen{o} {pol}")

        def chk(i, dst):
            m = MASKS[i]
            for j in range(4):
                A(f"v_xor_b32 v{dst+j}, {T[j]}, v{dst+j}")
            A(f"v_or3_b32 v5, v{dst}, v{dst+1}, v{dst+2}")
            A(f"v_or_b32 v5, v5, v{dst+3}")
            A(f"v_and_b32 v5, {TAGM}, v5")
            A(f"v_cmp_ne_u32 s[{m}:{m+1}], 0, v5")

        def anym():
            for i in range(1, n):
                src = f"s[{MASKS[0]}:{MASKS[0]+1}]" if i == 1 else "vcc"
                A(f"s_or_b64 vcc, {src}, s[{MASKS[i]}:{MASKS[i]+1}]")

        stamp({"q": 10, "o": 12, "g": 10, "f": 12}[hop])
        for dst, vo_, off in loads:
            ld(dst, vo_, off, first)
        for i, (dst, vo_, off) in enumerate(loads):
            A(f"s_waitcnt vmcnt({n-1-i})")
            chk(i, dst)
        anym()
        dstamp()
        stamp({"q": 11, "o": 13, "g": 11, "f": 13}[hop])
        A(f"s_cbranch_vccz {dn}")
        A(f"{g}:")
        for i, (dst, vo_, off) in enumerate(loads):
            A(f"s_mov_b64 exec, s[{MASKS[i]}:{MASKS[i]+1}]")
            ld(dst, vo_, off, "sc1")
        for i, (dst, vo_, off) in enumerate(loads):
            A(f"s_mov_b64 exec, s[{MASKS[i]}:{MASKS[i]+1}]")
            A(f"s_waitcnt vmcnt({n-1-i})")
            chk(i, dst)
        anym()
        dstamp()
        budget(16)
        A(f"s_cbranch_vccnz {g}")
        A(f"{dn}:")
        A("s_mov_b64 exec, -1")

    def mfma(dst, a, b, c):
        cs = "0" if c is None else f"v[{c}:{c+3}]"
        A(f"v_mfma_f32_16x16x32_bf16 v[{dst}:{dst+3}], v[{a}:{a+3}], v[{b}:{b+3}], {cs}")

    def gemv64(areg, acc, gbase, splits, first_vm=False):
        s0 = 0
        for k, s1 in enumerate(splits):
            wait_prog(gbase + s1)
            for s in range(s0, s1):
                A(f"ds_read_b64_tr_b16 v[{F+4*s}:{F+4*s+1}], v{areg} offset:{4096*s}")
                A(f"ds_read_b64_tr_b16 v[{F+4*s+2}:{F+4*s+3}], v{areg} offset:{4096*s+512}")
            if k == 0 and first_vm:
                A("s_waitcnt vmcnt(0)")
            for s in range(s0, s1):
                A(f"s_waitcnt lgkmcnt({2*(s1-1-s)})")
                mfma(acc, F + 4 * s, X + 4 * s, None if s == 0 else acc)
            s0 = s1

    def bf16_round_pair(pk, lo, hi, a, b):
        A(f"v_cvt_pk_bf16_f32 v{pk}, v{a}, v{b}")
        A(f"v_lshlrev_b32 v{lo}, 16, v{pk}")
        A(f"v_and_b32 v{hi}, 0xffff0000, v{pk}")

    DPPM = "row_mask:0xf bank_mask:0xf"
    BT = X

    def zero_bt():
        for i in range(32):
            A(f"v_mov_b32 v{BT+i}, 0")

    def bt_reads():
        rd = [f"s_mov_b64 exec, {M_N2}"]
        for t in range(8):
            rd.append(f"ds_read_b128 v[{BT+4*t}:{BT+4*t+3}], v{aBR}")
            rd.append("s_lshl_b64 exec, exec, 2" if t < 7 else "s_mov_b64 exec, -1")
        return rd

    def rd3(half):
        for t in range(8):
            r = F + 4 * t + 2 * half
            A(f"ds_read_b64_tr_b16 v[{r}:{r+1}], v{a3+(t&3)} offset:{4*P3*half + 128*(t>>2)}")

    def mm3():
        for t in range(8):
            A(f"s_waitcnt lgkmcnt({7-t})")
            mfma(ACC, F + 4 * t, BT + 4 * t, None if t == 0 else ACC)

    def red4(r):
        A(f"""
        v_permlane32_swap_b32 v{r}, v{r+2}
        v_permlane32_swap_b32 v{r+1}, v{r+3}
        v_add_f32 v{r}, v{r}, v{r+2}
        v_add_f32 v{r+1}, v{r+1}, v{r+3}
        v_permlane16_swap_b32 v{r}, v{r+1}
        v_add_f32 v{r}, v{r}, v{r+1}
        """)

    A("s_cmp_gt_u32 s3, 4")
    A("s_cbranch_scc1 L_F")

    oQP, oQG, aQsW, aQsR, aK = 11, 12, 13, 14, 15
    aPsW, aMsW, aPlo, aPhi, aMsR = 19, 20, 21, 22, 23
    oOP, oML, oOPG, oMLG, aOsW = 26, 27, 28, 29, 30
    SBG, SSPL = "s73", "s75"
    SC = "s76"
    A(f"""
    v_add_u32 v{aW}, {RA}, v{aW}
    s_lshr_b32 s55, {CB1}, 2
    s_lshl_b32 s55, s55, 12
    s_lshl_b32 s56, {RB1}, 10
    s_add_u32 s55, s55, s56
    s_and_b32 s56, {CB1}, 3
    s_lshl_b32 s56, s56, 8
    s_add_u32 s55, s55, s56
    s_lshl_b32 s56, {SW}, 6
    s_add_u32 s55, s55, s56
    v_and_b32 v5, 1, v0
    v_lshlrev_b32 v5, 16, v5
    v_lshl_add_u32 v5, v{vQ}, 4, v5
    v_add_u32 v{oQP}, s55, v5
    """)
    MQ = M_N2
    if "q" in cst:
        A(f"""
        s_lshl_b32 s55, s2, 9
        s_lshl_b32 s56, {SW}, 7
        s_add_u32 s55, s55, s56
        v_lshlrev_b32 v5, 4, v0
        v_add_u32 v{oQP}, s55, v5
        """)
        MQ = "0xff"
    stamp(1)
    gemv64(aW, ACC, 0, spl1, first_vm=True)
    arrive(FA)
    tag4(ACC + 4, ACC)
    A(f"s_mov_b64 exec, {MQ}")
    A(f"buffer_store_dwordx4 v[{ACC+4}:{ACC+7}], v{oQP}, {WS}, 0 offen sc1")
    A("s_mov_b64 exec, -1")
    stamp(2)
    common2(RB, OS)
    bg(SBG, "s55")
    A(f"""
    s_lshr_b32 {SSPL}, s2, 3
    s_mov_b32 {SC}, {f32(LOG2E)}
    """)
    A(f"""
    s_lshl_b32 s55, {SW}, 13
    s_add_u32 s55, s55, {RB}
    v_xor_b32 v5, v{vQ}, v{vN}
    v_lshlrev_b32 v5, 4, v5
    v_lshl_add_u32 v5, v{vN}, 8, v5
    v_add_u32 v{aK}, s55, v5
    v_xor_b32 v{aK+1}, 64, v{aK}
    v_xor_b32 v{aK+2}, 128, v{aK}
    v_xor_b32 v{aK+3}, 192, v{aK}
    v_add_u32 v{aV0}, {RC}, v{aV0}
    v_xor_b32 v{aV1}, 32, v{aV0}
    """)
    A(f"""
    s_lshl_b32 s55, {SBG}, 2
    s_add_u32 s55, s55, {SW}
    s_lshl_b32 s55, s55, 12
    v_lshlrev_b32 v5, 4, v0
    v_add_u32 v{oQG}, s55, v5
    """)
    A(f"""
    s_mul_i32 s55, {SW}, {2*PITCH}
    s_add_u32 s55, s55, {QS}
    v_lshrrev_b32 v5, 5, v0
    v_mul_u32_u24 v5, {PITCH}, v5
    v_and_b32 v6, 31, v0
    v_lshl_add_u32 v5, v6, 3, v5
    v_add_u32 v{aQsW}, s55, v5
    v_and_b32 v6, 7, v0
    v_mul_u32_u24 v7, {PITCH}, v6
    v_lshl_add_u32 v8, v{vQ}, 4, v7
    v_add_u32 v{aQsR}, {QS}, v8
    v_add_u32 v8, {PS}, v8
    v_mov_b32 v9, {ZERO}
    v_cndmask_b32 v{aPlo}, v8, v9, {M_HI8}
    v_cndmask_b32 v{aPhi}, v9, v8, {M_HI8}
    v_lshlrev_b32 v9, 4, v6
    v_add_u32 v{aMsR}, {MS}, v9
    s_lshl_b32 s55, {SW}, 2
    v_add_u32 v{aMsW}, s55, v{aMsR}
    s_lshl_b32 s55, {SW}, 6
    s_add_u32 s55, s55, {PS}
    v_and_b32 v9, 8, v0
    v_lshlrev_b32 v9, 2, v9
    v_lshl_add_u32 v9, v{vQ}, 3, v9
    v_add3_u32 v{aPsW}, v7, v9, s55
    """)
    A(f"""
    s_lshl_b32 s55, {SBG}, 17
    s_lshl_b32 s56, {SW}, 12
    s_add_u32 s55, s55, s56
    s_lshl_b32 s56, {SSPL}, 7
    s_add_u32 s55, s55, s56
    s_add_u32 s55, s55, {OP}
    v_lshlrev_b32 v9, 1, v9
    v_lshl_add_u32 v9, v6, 14, v9
    v_add_u32 v{oOP}, s55, v9
    s_lshl_b32 s55, {SBG}, 12
    s_lshl_b32 s56, {SSPL}, 4
    s_add_u32 s55, s55, s56
    s_add_u32 s55, s55, {ML}
    v_lshlrev_b32 v9, 9, v6
    v_add_u32 v{oML}, s55, v9
    """)
    A(f"""
    s_lshr_b32 s57, {SJ}, 1
    s_lshl_b32 s55, s57, 12
    s_lshr_b32 s56, {SW}, 1
    s_lshl_b32 s56, s56, 19
    s_add_u32 s55, s55, s56
    s_and_b32 s58, {SW}, 1
    s_lshl_b32 s59, s58, 6
    s_add_u32 s55, s55, s59
    s_add_u32 s55, s55, {OP}
    v_lshrrev_b32 v5, 2, v0
    v_and_b32 v6, 3, v0
    v_lshlrev_b32 v7, 4, v6
    v_lshl_add_u32 v8, v5, 7, v7
    v_add_u32 v{oOPG}, s55, v8
    s_lshr_b32 s57, s57, 2
    s_lshl_b32 s57, s57, 9
    s_lshr_b32 s56, s56, 5
    s_add_u32 s57, s57, s56
    s_add_u32 s57, s57, {ML}
    v_and_b32 v8, 1, v0
    v_lshlrev_b32 v8, 8, v8
    v_lshl_add_u32 v8, v5, 4, v8
    v_add_u32 v{oMLG}, s57, v8
    s_lshr_b32 s56, s56, 8
    s_lshl_b32 s58, s58, 3
    s_add_u32 s56, s56, s58
    s_add_u32 s56, s56, {OS}
    v_lshl_add_u32 v7, v{vQ}, 1, v7
    v_add_u32 v{aOsW}, s56, v7
    """)
    ONES = 132
    A(f"""
    v_mov_b32 v{ONES}, 0x3f803f80
    v_mov_b32 v{ONES+1}, 0x3f803f80
    v_mov_b32 v{ONES+2}, 0x3f803f80
    v_mov_b32 v{ONES+3}, 0x3f803f80
    s_lshl_b32 s55, {SW}, 1
    s_lshl_b32 s78, 3, s55
    s_mov_b32 s79, 0
    """)

    if "o" in cst:
        A(f"""
        s_lshl_b32 s55, s2, 12
        s_lshl_b32 s56, {SW}, 10
        s_add_u32 s55, s55, s56
        s_add_u32 s55, s55, {OP}
        v_lshlrev_b32 v5, 4, v0
        v_add_u32 v{oOP}, s55, v5
        s_lshl_b32 s55, s2, 7
        s_add_u32 s55, s55, {ML}
        v_add_u32 v{oML}, s55, v5
        s_cmp_eq_u32 {SW}, 0
        s_cselect_b32 s78, 0xff, 0
        """)

    def kfrags():
        if rot:
            wait_prog(16)
        else:
            A(f"s_lshl_b32 s77, {SW}, 1")
            A("s_add_u32 s77, s77, 10")
            wait_prog("s77")
        for t in range(2):
            for s in range(4):
                r = F + 16 * t + 4 * s
                A(f"ds_read_b128 v[{r}:{r+3}], v{aK+s} offset:{4096*t}")
        arrive(FB)

    G = X
    kfirst = gq >= 16
    if gq:
        wait_prog(gq)
    if kfirst:
        kfrags()
    gather([(G + 4 * r, oQG, 1024 * r) for r in range(4)], fpol, hop="q")
    A(f"""
    v_pk_add_f32 v[{G}:{G+1}], v[{G}:{G+1}], v[{G+4}:{G+5}]
    v_pk_add_f32 v[{G+2}:{G+3}], v[{G+2}:{G+3}], v[{G+6}:{G+7}]
    v_pk_add_f32 v[{G+8}:{G+9}], v[{G+8}:{G+9}], v[{G+12}:{G+13}]
    v_pk_add_f32 v[{G+10}:{G+11}], v[{G+10}:{G+11}], v[{G+14}:{G+15}]
    v_pk_add_f32 v[{G}:{G+1}], v[{G}:{G+1}], v[{G+8}:{G+9}]
    v_pk_add_f32 v[{G+2}:{G+3}], v[{G+2}:{G+3}], v[{G+10}:{G+11}]
    v_cvt_pk_bf16_f32 v6, v{G}, v{G+1}
    v_cvt_pk_bf16_f32 v7, v{G+2}, v{G+3}
    ds_write_b64 v{aQsW}, v[6:7]
    """)
    arrive(CQ)
    stamp(3)
    if not kfirst:
        kfrags()
    QF = X + 16
    wait_cnt(CQ, 4, [f"ds_read_b128 v[{QF+4*s}:{QF+4*s+3}], v{aQsR} offset:{64*s}" for s in range(4)])
    for s in range(4):
        for t in range(2):
            mfma(ACC + 4 * t, F + 16 * t + 4 * s, QF + 4 * s, None if s == 0 else ACC + 4 * t)
    S = X
    for j in range(4):
        A(f"v_cndmask_b32 v{S+j}, v{ACC+j}, v{ACC+4+j}, {M_HI8}")
    bf16_round_pair(6, S, S + 1, S, S + 1)
    bf16_round_pair(7, S + 2, S + 3, S + 2, S + 3)
    for j in range(4):
        A(f"v_mul_f32 v{S+j}, {f32(SCALE)}, v{S+j}")
    bf16_round_pair(6, S, S + 1, S, S + 1)
    bf16_round_pair(7, S + 2, S + 3, S + 2, S + 3)
    A(f"""
    v_max3_f32 v6, v{S}, v{S+1}, v{S+2}
    v_max_f32 v6, v6, v{S+3}
    v_max_f32_dpp v6, v6, v6 row_ror:8 {DPPM}
    v_mov_b32 v7, v6
    v_permlane16_swap_b32 v6, v7
    v_max_f32 v6, v6, v7
    v_mov_b32 v7, v6
    v_permlane32_swap_b32 v6, v7
    v_max_f32 v6, v6, v7
    v_mul_f32 v7, {SC}, v6
    """)
    for j in range(4):
        A(f"v_fma_f32 v{S+j}, v{S+j}, {SC}, -v7")
    for j in range(4):
        A(f"v_exp_f32 v{S+j}, v{S+j}")
    A(f"""
    v_cvt_pk_bf16_f32 v8, v{S}, v{S+1}
    v_cvt_pk_bf16_f32 v9, v{S+2}, v{S+3}
    ds_write_b64 v{aPsW}, v[8:9]
    s_mov_b64 exec, 0xff
    ds_write_b32 v{aMsW}, v6
    """)
    arrive(CP)
    stamp(4)
    wait_prog(24)
    for t in range(2):
        for s in range(4):
            r = F + 16 * t + 4 * s
            A(f"ds_read_b64_tr_b16 v[{r}:{r+1}], v{aV0+t} offset:{8192*s}")
            A(f"ds_read_b64_tr_b16 v[{r+2}:{r+3}], v{aV0+t} offset:{8192*s+1024}")
    arrive(FC)
    PL, PH, MSV = X, X + 16, 36
    rd = [f"ds_read_b128 v[{MSV}:{MSV+3}], v{aMsR}"]
    for s in range(4):
        rd.append(f"ds_read_b128 v[{PL+4*s}:{PL+4*s+3}], v{aPlo} offset:{64*s}")
        rd.append(f"ds_read_b128 v[{PH+4*s}:{PH+4*s+3}], v{aPhi} offset:{64*s}")
    wait_cnt(CP, 4, rd)
    LAs = [120, 124, 128, 144]
    fw = ["v_max3_f32 v6, v36, v37, v38", "v_max_f32 v6, v6, v39"]
    for s in range(4):
        fw.append(f"v_sub_f32 v{MSV+s}, v{MSV+s}, v6")
    for s in range(4):
        fw.append(f"v_mul_f32 v{MSV+s}, {SC}, v{MSV+s}")
    for s in range(4):
        fw.append(f"v_exp_f32 v{MSV+s}, v{MSV+s}")
    fw.append(f"v_or_b32 v148, {T[0]}, v6")
    fw.append(f"v_mov_b32 v150, {T[2]}")
    fw.append(f"v_mov_b32 v151, {T[3]}")
    k = 0
    for t in range(2):
        for s in range(4):
            mfma(ACC + 4 * s, F + 16 * t + 4 * s, (PL, PH)[t] + 4 * s, None if t == 0 else ACC + 4 * s)
            for _ in range(2):
                if k < len(fw):
                    A(fw[k]); k += 1
    while k < len(fw):
        A(fw[k]); k += 1
    O = F
    for s in range(4):
        mfma(LAs[s], ONES, PL + 4 * s, None)
        for j in range(4):
            if s == 0:
                A(f"v_mul_f32 v{O+j}, v{MSV}, v{ACC+j}")
            else:
                A(f"v_fmac_f32 v{O+j}, v{MSV+s}, v{ACC+4*s+j}")
    tag4(O + 4, O)
    if ofrac:
        A(f"s_lshr_b32 s55, s2, 3")
        A(f"s_and_b32 s55, s55, {ofrac-1}")
        A(f"s_cselect_b64 exec, 0, -1")
    if omask:
        A(f"v_and_b32 v{oOP}, {omask-1}, v{oOP}")
    if mlin:
        A(f"v_and_b32 v{oML}, 0xffffff80, v{oOP}")
        A(f"s_mov_b32 s78, 0xff")
    if ostr:
        A(f"v_subrev_u32 v{oOP}, {OP}, v{oOP}")
        A(f"v_and_b32 v5, 127, v{oOP}")
        A(f"v_lshrrev_b32 v{oOP}, 7, v{oOP}")
        A(f"v_lshl_add_u32 v{oOP}, v{oOP}, {7+ostr}, v5")
        A(f"s_mov_b32 s38, {1<<(20+ostr)}")
    A(f"buffer_store_dwordx4 v[{O+4}:{O+7}], v{oOP}, {WS}, 0 offen sc1")
    A("s_mov_b64 exec, -1")
    A(f"v_mul_f32 v7, v{MSV}, v{LAs[0]}")
    for s in range(1, 4):
        A(f"v_fmac_f32 v7, v{MSV+s}, v{LAs[s]}")
    A(f"v_and_or_b32 v149, v7, v{vMK}, {T[1]}")
    A("s_mov_b64 exec, s[78:79]")
    A(f"buffer_store_dwordx4 v[148:151], v{oML}, {WS}, 0 offen sc1")
    A("s_mov_b64 exec, -1")
    stamp(5)
    zero_bt()
    MR, G0, G1 = ACC, ACC + 4, ACC + 8
    if go:
        wait_prog(go)
    gather([(MR, oMLG, 0), (G0, oOPG, 0), (G1, oOPG, 2048)], fpol, hop="o")
    stamp(6)
    A(f"""
    v_max_f32_dpp v6, v{MR}, v{MR} quad_perm:[1,0,3,2] {DPPM}
    v_max_f32_dpp v6, v6, v6 row_ror:4 {DPPM}
    v_max_f32_dpp v6, v6, v6 row_ror:8 {DPPM}
    v_mov_b32 v7, v6
    v_permlane16_swap_b32 v6, v7
    v_max_f32 v6, v6, v7
    v_mov_b32 v7, v6
    v_permlane32_swap_b32 v6, v7
    v_max_f32 v6, v6, v7
    v_sub_f32 v8, v{MR}, v6
    v_mul_f32 v8, {SC}, v8
    v_exp_f32 v8, v8
    v_mul_f32 v6, v8, v{MR+1}
    """)
    lred = [f"v_add_f32_dpp v6, v6, v6 quad_perm:[1,0,3,2] {DPPM}",
            f"v_add_f32_dpp v6, v6, v6 row_ror:4 {DPPM}",
            f"v_add_f32_dpp v6, v6, v6 row_ror:8 {DPPM}",
            "v_mov_b32 v7, v6"]
    for j in range(4):
        A(f"v_mul_f32_dpp v{G0+j}, v8, v{G0+j} quad_perm:[0,0,0,0] {DPPM}")
        if j & 1:
            A(lred[j >> 1])
    for j in range(4):
        A(f"v_fmac_f32_dpp v{G0+j}, v8, v{G1+j} quad_perm:[1,1,1,1] {DPPM}")
        if j & 1:
            A(lred[2 + (j >> 1)])
    A(f"""
    v_permlane32_swap_b32 v{G0}, v{G0+2}
    v_permlane32_swap_b32 v{G0+1}, v{G0+3}
    v_permlane16_swap_b32 v6, v7
    v_add_f32 v{G0}, v{G0}, v{G0+2}
    v_add_f32 v{G0+1}, v{G0+1}, v{G0+3}
    v_add_f32 v6, v6, v7
    v_mov_b32 v7, v6
    v_permlane16_swap_b32 v{G0}, v{G0+1}
    v_permlane32_swap_b32 v6, v7
    v_add_f32 v{G0}, v{G0}, v{G0+1}
    v_add_f32 v6, v6, v7
    v_rcp_f32 v6, v6
    v_add_f32_dpp v{G0}, v{G0}, v{G0} row_ror:4 {DPPM}
    v_add_f32_dpp v{G0}, v{G0}, v{G0} row_ror:8 {DPPM}
    v_mul_f32 v{G0}, v{G0}, v6
    v_cvt_pk_bf16_f32 v7, v{G0}, v{G0}
    ds_write_b16 v{aOsW}, v7
    """)
    arrive(CO)
    wait_prog(42)
    rd3(0)
    wait_cnt(CO, 6, bt_reads() + [f"ds_read_b32 v9, v{aGS} offset:{GS}"])
    wait_prog(46)
    rd3(1)
    mm3()
    for j in range(4):
        A(f"v_mul_f32 v{ACC+4+j}, v9, v{ACC+j}")
    A(f"ds_write_b128 v{aAS}, v[{ACC+4}:{ACC+7}]")
    arrive(CA)
    stamp(7)
    dump_stamps()
    A("s_endpgm")

    A("L_F:")
    common2(RC, HS)
    aWg, aWu, oGU, oGG, aHsW, oFP, oFG, oOut = 11, 12, 13, 14, 16, 17, 22, 23
    SG0, SCB0 = "s69", "s70"
    M_GU, M_GG = "s[72:73]", "s[74:75]"
    for i in range(28):
        A(f"v_mov_b32 v{X+i}, 0")
    A(f"""
    s_mul_i32 s55, {SJ}, 7
    s_lshr_b32 {SCB0}, s55, 5
    s_and_b32 {SG0}, s55, 31
    s_mov_b32 s57, 0x00f000f0
    """)
    for s in range(7):
        A(f"""
        s_add_u32 s56, {SG0}, {s}
        s_cmp_ge_u32 s56, 32
        s_cselect_b32 exec_lo, s57, s62
        s_cselect_b32 exec_hi, s57, s62
        s_and_b32 s56, s56, 31
        s_lshl_b32 s56, s56, 6
        buffer_load_dwordx4 v[{X+4*s}:{X+4*s+3}], v9, s[32:35], s56 offen
        """)
    A(f"""
    s_mov_b64 exec, -1
    v_add_u32 v{aWg}, {RD}, v{aW}
    v_add_u32 v{aWu}, {RA}, v{aW}
    """)
    A(f"""
    s_cmp_ge_u32 {SG0}, 26
    s_cselect_b32 s72, 0x00ff00ff, s62
    s_mov_b32 s73, s72
    s_mul_i32 s55, {SCB0}, {32*9363}
    s_lshr_b32 s55, s55, 16
    s_sub_u32 s55, {SJ}, s55
    s_lshl_b32 s55, s55, 8
    s_mul_i32 s56, {SCB0}, 3072
    s_lshl_b32 s57, {SW}, 6
    s_add_u32 s56, s56, s57
    s_add_u32 s56, s56, {GUP}
    v_mov_b32 v6, s55
    v_mov_b32 v7, 3072
    s_mov_b32 s58, 0xf0f0f0f0
    s_mov_b32 s59, 0xf0f0f0f0
    v_cndmask_b32 v6, v6, v7, s[58:59]
    v_and_b32 v5, 1, v0
    v_mul_u32_u24 v5, {56*3072}, v5
    v_lshl_add_u32 v5, v{vQ}, 4, v5
    v_bfe_u32 v7, v0, 1, 1
    v_mul_u32_u24 v7, 1536, v7
    v_add3_u32 v5, v5, v6, v7
    v_add_u32 v{oGU}, s56, v5
    """)
    A(f"""
    s_lshr_b32 s55, {SJ}, 1
    s_mul_i32 s55, s55, 28
    s_and_b32 s56, {SW}, 1
    s_mul_i32 s57, s56, {56*3072}
    s_add_u32 s57, s57, {GUP}
    v_and_b32 v6, 7, v0
    v_lshl_add_u32 v7, v6, 2, s55
    v_lshrrev_b32 v8, 6, v7
    v_and_b32 v7, 63, v7
    v_lshlrev_b32 v7, 2, v7
    v_lshrrev_b32 v5, 3, v0
    v_lshl_add_u32 v7, v5, 8, v7
    v_mad_u32_u24 v7, v8, v{vMK+0 if False else 34}, v7
    """.replace(f"v_mad_u32_u24 v7, v8, v34, v7", "v_mul_u32_u24 v34, 3072, v8\n    v_add_u32 v7, v7, v34"))
    A(f"""
    v_add_u32 v{oGG}, s57, v7
    v_mul_u32_u24 v7, 37, v8
    v_lshrrev_b32 v7, 8, v7
    v_add_u32 v7, v7, v8
    v_and_b32 v7, 1, v7
    v_add_u32 v7, 5, v7
    v_cmp_lt_u32 {M_GG}, v5, v7
    v_cmp_gt_u32 vcc, 7, v6
    s_and_b64 {M_GG}, {M_GG}, vcc
    s_lshl_b32 s56, s56, 6
    s_add_u32 s56, s56, {HS}
    v_and_b32 v7, 3, v0
    v_lshlrev_b32 v7, 4, v7
    v_bfe_u32 v8, v0, 2, 1
    v_lshl_add_u32 v7, v8, 3, v7
    v_lshl_add_u32 v7, v{vQ}, 1, v7
    v_add_u32 v{aHsW}, s56, v7
    """)
    aFs = 18
    A(f"""
    s_and_b32 s55, {SJ}, 1
    s_lshl_b32 s55, s55, 2
    s_add_u32 s55, s55, {SW}
    s_lshl_b32 s55, s55, 17
    s_lshr_b32 s56, {SJ}, 1
    s_lshl_b32 s56, s56, 7
    s_add_u32 s55, s55, s56
    s_add_u32 s55, s55, {FP}
    v_lshrrev_b32 v5, 3, v0
    v_lshlrev_b32 v5, 14, v5
    v_and_b32 v6, 7, v0
    v_lshl_add_u32 v5, v6, 4, v5
    v_add_u32 v{oFP}, s55, v5
    s_mov_b64 s[40:41], s[22:23]
    s_mov_b32 s42, 2048
    s_mov_b32 s43, 0x20000
    s_mov_b64 s[44:45], s[24:25]
    s_mov_b32 s46, 4096
    s_mov_b32 s47, 0x20000
    s_lshr_b32 s57, {SJ}, 2
    s_lshl_b32 s55, s57, 14
    s_lshl_b32 s56, {SW}, 12
    s_add_u32 s55, s55, s56
    s_add_u32 s55, s55, {FP}
    v_lshlrev_b32 v5, 4, v0
    v_add_u32 v{oFG}, s55, v5
    v_lshlrev_b32 v5, 2, v6
    v_lshl_add_u32 v{aFs}, v{vQ}, 5, v5
    s_lshr_b32 s55, s57, 3
    s_lshl_b32 s55, s55, 8
    s_and_b32 s56, s57, 1
    s_lshl_b32 s56, s56, 7
    s_add_u32 s55, s55, s56
    s_and_b32 s56, s57, 6
    s_lshl_b32 s56, s56, 2
    s_add_u32 s55, s55, s56
    v_and_b32 v5, 1, v0
    v_lshlrev_b32 v5, 11, v5
    v_lshl_add_u32 v5, v{vQ}, 1, v5
    v_and_b32 v6, 6, v0
    v_lshl_add_u32 v5, v6, 4, v5
    v_add_u32 v{oOut}, s55, v5
    """)
    if "g" in cst:
        A(f"""
        s_lshl_b32 s55, s2, 10
        s_lshl_b32 s56, {SW}, 8
        s_add_u32 s55, s55, s56
        s_add_u32 s55, s55, {GUP}
        v_lshlrev_b32 v5, 4, v0
        v_add_u32 v{oGU}, s55, v5
        s_mov_b32 s72, 0xffff
        s_mov_b32 s73, 0
        """)
    for key, lg in (("f", 6), ("h", 2), ("i", 1), ("j", 3)):
        if key in cst:
            A(f"""
            s_and_b32 s55, {SJ}, 1
            s_lshl_b32 s55, s55, 2
            s_add_u32 s55, s55, {SW}
            s_lshl_b32 s55, s55, 17
            s_lshr_b32 s56, {SJ}, 1
            s_lshl_b32 s56, s56, {4+lg}
            s_add_u32 s55, s55, s56
            s_add_u32 s55, s55, {FP}
            v_lshrrev_b32 v5, {lg}, v0
            v_lshlrev_b32 v5, {11+lg}, v5
            v_and_b32 v6, {(1<<lg)-1}, v0
            v_lshl_add_u32 v5, v6, 4, v5
            v_add_u32 v{oFP}, s55, v5
            """)
    A(f"s_cmp_lt_u32 {SW}, 2")
    A("s_cbranch_scc1 L_nog")
    A(f"""
    s_and_b32 s55, {SW}, 1
    s_lshl_b32 s56, s55, 3
    s_lshl_b32 s55, s55, 11
    v_lshlrev_b32 v5, 5, v0
    buffer_load_dwordx4 v[{F}:{F+3}], v5, s[32:35], s55 offen
    buffer_load_dwordx4 v[{F+4}:{F+7}], v5, s[32:35], s55 offen offset:16
    buffer_load_dwordx4 v[{F+8}:{F+11}], v5, s[40:43], 0 offen
    buffer_load_dwordx4 v[{F+12}:{F+15}], v5, s[40:43], 0 offen offset:16
    v_mov_b32 v9, 0
    s_waitcnt vmcnt(0)
    """)
    for i in range(8):
        A(f"""
        v_lshlrev_b32 v5, 16, v{F+i}
        v_lshlrev_b32 v6, 16, v{F+8+i}
        v_and_b32 v7, 0xffff0000, v{F+i}
        v_and_b32 v8, 0xffff0000, v{F+8+i}
        v_mul_f32 v5, v5, v6
        v_mul_f32 v7, v7, v8
        """)
        bf16_round_pair(6, 5, 7, 5, 7)
        A("v_add_f32 v9, v9, v5")
        A("v_add_f32 v9, v9, v7")
    A(f"""
    v_add_f32_dpp v9, v9, v9 quad_perm:[1,0,3,2] {DPPM}
    v_add_f32_dpp v9, v9, v9 quad_perm:[2,3,0,1] {DPPM}
    v_add_f32_dpp v9, v9, v9 row_ror:4 {DPPM}
    v_add_f32_dpp v9, v9, v9 row_ror:8 {DPPM}
    v_mov_b32 v8, v9
    v_permlane16_swap_b32 v9, v8
    v_add_f32 v9, v9, v8
    v_mov_b32 v8, v9
    v_permlane32_swap_b32 v9, v8
    v_add_f32 v9, v9, v8
    v_cvt_pk_bf16_f32 v9, v9, v9
    v_lshlrev_b32 v9, 16, v9
    v_mul_f32 v9, {f32(-LOG2E)}, v9
    v_exp_f32 v9, v9
    v_add_f32 v9, 1.0, v9
    v_rcp_f32 v9, v9
    v_cvt_pk_bf16_f32 v8, v9, v9
    v_lshlrev_b32 v8, 16, v8
    v_sub_f32 v9, 1.0, v8
    v_cvt_pk_bf16_f32 v9, v9, v9
    v_lshlrev_b32 v9, 16, v9
    v_mov_b32 v5, s56
    ds_write_b64 v5, v[8:9] offset:{GS}
    """)
    arrive(CO)
    A("L_nog:")
    A("s_waitcnt vmcnt(0)")
    stamp(1)
    gemv64(aWg, ACC, 24, spl7)
    stamp(2)
    gemv64(aWu, ACC + 4, 31, spl7)
    for j in range(4):
        A(f"v_cndmask_b32 v{ACC+8+j}, v{ACC+j}, v{ACC+4+j}, {M_B1}")
    tag4(ACC + 8, ACC + 8)
    A(f"s_mov_b64 exec, {M_GU}")
    A(f"buffer_store_dwordx4 v[{ACC+8}:{ACC+11}], v{oGU}, {WS}, 0 offen sc1")
    A("s_mov_b64 exec, -1")
    stamp(3)
    zero_bt()
    A(f"s_cmp_ge_u32 {SW}, 2")
    A("s_cbranch_scc1 L_noh")
    GG, GU_ = ACC + 12, ACC + 16
    for i in range(8):
        A(f"v_mov_b32 v{GG+i}, 0")
    if gg:
        wait_prog(gg)
    A(f"s_mov_b64 exec, {M_GG}")
    gather([(GG, oGG, 0), (GU_, oGG, 1536)], fpol, hop="g")
    stamp(4)
    A(f"""
    v_permlane32_swap_b32 v{GG}, v{GG+2}
    v_permlane32_swap_b32 v{GG+1}, v{GG+3}
    v_permlane32_swap_b32 v{GU_}, v{GU_+2}
    v_permlane32_swap_b32 v{GU_+1}, v{GU_+3}
    v_add_f32 v{GG}, v{GG}, v{GG+2}
    v_add_f32 v{GG+1}, v{GG+1}, v{GG+3}
    v_add_f32 v{GU_}, v{GU_}, v{GU_+2}
    v_add_f32 v{GU_+1}, v{GU_+1}, v{GU_+3}
    v_permlane16_swap_b32 v{GG}, v{GG+1}
    v_permlane16_swap_b32 v{GU_}, v{GU_+1}
    v_add_f32 v{GG}, v{GG}, v{GG+1}
    v_add_f32 v{GU_}, v{GU_}, v{GU_+1}
    v_add_f32_dpp v{GG}, v{GG}, v{GG} row_ror:8 {DPPM}
    v_add_f32_dpp v{GU_}, v{GU_}, v{GU_} row_ror:8 {DPPM}
    """)
    bf16_round_pair(5, 6, 7, GG, GU_)
    A(f"""
    v_mul_f32 v8, v6, v6
    v_mov_b32 v9, {f32(GC1)}
    v_fmac_f32 v9, {f32(GC2)}, v8
    v_mul_f32 v9, v9, v6
    v_exp_f32 v9, v9
    v_add_f32 v9, 1.0, v9
    v_rcp_f32 v9, v9
    v_mul_f32 v9, v9, v6
    v_cvt_pk_bf16_f32 v9, v9, v9
    v_lshlrev_b32 v9, 16, v9
    v_mul_f32 v9, v9, v7
    v_cvt_pk_bf16_f32 v9, v9, v9
    ds_write_b16 v{aHsW}, v9
    """)
    arrive(CH)
    A("L_noh:")
    wait_prog(50)
    rd3(0)
    wait_cnt(CH, 2, bt_reads())
    stamp(5)
    wait_cnt(CA, 4, [f"ds_read_b128 v[{ACC+4}:{ACC+7}], v{aAS}", f"ds_read_b32 v9, v{aGS} offset:{GS+4}"])
    wait_prog(53)
    rd3(1)
    mm3()
    for j in range(4):
        A(f"v_fmac_f32 v{ACC+4+j}, v9, v{ACC+j}")
    tag4(ACC + 4, ACC + 4)
    A(f"buffer_store_dwordx4 v[{ACC+4}:{ACC+7}], v{oFP}, {WS}, 0 offen sc1")
    stamp(6)
    A(f"s_and_b32 s55, {SJ}, 3")
    A("s_cbranch_scc1 L_fin")
    gather([(G + 4 * i, oFG, 1024 * i) for i in range(4)], "sc1", hop="f")
    A(f"""
    v_pk_add_f32 v[{G}:{G+1}], v[{G}:{G+1}], v[{G+4}:{G+5}]
    v_pk_add_f32 v[{G+2}:{G+3}], v[{G+2}:{G+3}], v[{G+6}:{G+7}]
    v_pk_add_f32 v[{G+8}:{G+9}], v[{G+8}:{G+9}], v[{G+12}:{G+13}]
    v_pk_add_f32 v[{G+10}:{G+11}], v[{G+10}:{G+11}], v[{G+14}:{G+15}]
    v_pk_add_f32 v[{G}:{G+1}], v[{G}:{G+1}], v[{G+8}:{G+9}]
    v_pk_add_f32 v[{G+2}:{G+3}], v[{G+2}:{G+3}], v[{G+10}:{G+11}]
    s_lshl_b32 s55, {SW}, 7
    v_add_u32 v7, s55, v{aFs}
    """)
    red4(G)
    A(f"""
    v_add_f32_dpp v{G}, v{G}, v{G} row_ror:8 {DPPM}
    ds_write_b32 v7, v{G} offset:{FS}
    s_mov_b64 exec, 1
    ds_add_rtn_u32 v5, v{vZ}, v{vONE} offset:{CF}
    s_mov_b64 exec, -1
    ds_read_b32 v{G+4}, v{aFs} offset:{FS}
    ds_read_b32 v{G+5}, v{aFs} offset:{FS+128}
    ds_read_b32 v{G+6}, v{aFs} offset:{FS+256}
    ds_read_b32 v{G+7}, v{aFs} offset:{FS+384}
    s_waitcnt lgkmcnt(0)
    v_readfirstlane_b32 s55, v5
    v_add_f32 v{G+4}, v{G+4}, v{G+5}
    v_add_f32 v{G+6}, v{G+6}, v{G+7}
    v_add_f32 v{G+4}, v{G+4}, v{G+6}
    v_cvt_pk_bf16_f32 v6, v{G+4}, v{G+4}
    s_cmp_lg_u32 s55, 3
    s_cbranch_scc1 L_fin
    s_mov_b32 exec_lo, 0x00ff00ff
    s_mov_b32 exec_hi, 0x00ff00ff
    buffer_store_short v6, v{oOut}, s[44:47], 0 offen
    s_cmp_lg_u32 s2, 0
    s_cbranch_scc1 L_fin
    s_mov_b64 exec, 1
    v_mov_b32 v6, s48
    v_mov_b32 v7, s49
    s_mov_b32 s55, {EPOCH}
    v_mov_b32 v8, s55
    global_store_dwordx2 v8, v[6:7], s[28:29] sc1
    L_fin:
    """)
    A("s_mov_b64 exec, -1")
    stamp(7)
    dump_stamps()
    A("L_end:")
    A("s_endpgm")

    if nost:
        sel = {"q": f"v{oQP},", "o": f"v{oOP},", "m": f"v{oML},", "g": f"v{oGU},", "f": f"v{oFP},"}
        keys = list(sel.values()) if nost is True else [sel[c] for c in nost]
        A.L = [l for l in A.L if not (l.startswith("buffer_store_dwordx4") and "sc1" in l and any(k in l for k in keys))]
    if stpol != "sc1":
        A.L = [l.replace(" sc1", " " + stpol) if l.startswith("buffer_store_dwordx4") else l for l in A.L]
    body, nn = hazard_pass(A.L)
    out = []
    out.append(f"; @launch grid=(256,1,1) block=(576,1,1) lds={LDS_TOTAL}")
    out.append('.amdgcn_target "amdgcn-amd-amdhsa--gfx950"')
    out.append(".text")
    out.append(f".globl {NAME}_kernel")
    out.append(".p2align 8")
    out.append(f".type {NAME}_kernel,@function")
    out.append(f"{NAME}_kernel:")
    out += ["  " + l if not l.endswith(":") else l for l in body]
    out.append(f".fill (16384 + 64 - (. - L_worker)) / 4, 4, 0xbf810000")
    out.append('.section .rodata,"a"')
    out.append(".p2align 6")
    out.append(f".amdhsa_kernel {NAME}_kernel")
    out.append("  .amdhsa_next_free_vgpr 160")
    out.append("  .amdhsa_next_free_sgpr 102")
    out.append("  .amdhsa_accum_offset 160")
    out.append("  .amdhsa_group_segment_fixed_size 0")
    out.append("  .amdhsa_kernarg_size 104")
    out.append("  .amdhsa_user_sgpr_count 2")
    out.append("  .amdhsa_user_sgpr_kernarg_segment_ptr 1")
    out.append("  .amdhsa_system_sgpr_workgroup_id_x 1")
    out.append(".end_amdhsa_kernel")
    return "\n".join(out) + "\n"


if __name__ == "__main__":
    import argparse, ast
    ap = argparse.ArgumentParser()
    ap.add_argument("out")
    ap.add_argument("kw", nargs="*")
    a = ap.parse_args()
    kw = {}
    for s in a.kw:
        k, v = s.split("=", 1)
        try:
            kw[k] = ast.literal_eval(v)
        except Exception:
            kw[k] = v
    open(a.out, "w").write(gen(**kw))
```

```python
import sys, struct
from asmlib import Asm, hazard_pass

NAME = "gated_mix__sliding_block_cached__geglu_ffn__decode"

PROG = 0
CQ, CP, CO, CH, FA, FB, FC, CA, CF = 0x100, 0x104, 0x108, 0x10C, 0x110, 0x114, 0x118, 0x11C, 0x120
FS = 0x1800
ZERO = 0x200
QS, PS, MS, OS, HS, GS, AS = 0x400, 0xD00, 0x1600, 0x1680, 0x1700, 0x1780, 0x2000
PITCH = 288
RA, RC, RD, RB = 0x3000, 0xB000, 0x13000, 0x1A000
P3 = 4224
LDS_TOTAL = RB + 8 * P3
QP, ML, EPOCH, GUP, OP, FP, WS_END = 0, 0x20000, 0x2F000, 0x40000, 0x100000, 0x200000, 0x300000
IDT, PX = 0x2E000, 0x30000
TAGM = 0xFFF


def f32(x):
    return "0x%08x" % struct.unpack("<I", struct.pack("<f", x))[0]


LOG2E = 1.4426950408889634
SCALE = 128 ** -0.5
GC1 = -2.0 * LOG2E * 0.7978845608028654
GC2 = GC1 * 0.044715


def gen(D=16, stamps=False, spl1=(4, 8), spl7=(4, 7), ntflag="nt", gq=16, go=34, gg=44, gp=45, loc='og', ppol='sc1', once='', rpol='sc1', pre='', fpol="",
        nog=False, nost=False, rot=1, qmap=0, bgmap=0, D3=0, cst='', stpol='sc1', wsoff=0, half=0, ofrac=0, ostr=0, omask=0, mlin=0, ffrac=0, gfrac=0, plain='', qfrac=0):
    A = Asm()
    d = D // 4
    assert D % 4 == 0
    d3 = (D3 or D) // 4
    assert d3 >= d

    VST = 152

    def stamp(i):
        if stamps:
            if i == 0:
                A(f"v_mov_b32 v{VST}, 0")
            A("s_memrealtime s[96:97]")
            A("s_waitcnt lgkmcnt(0)")
            A(f"v_writelane_b32 v{VST}, s96, {i}")

    def dstamp():
        if stamps:
            A("s_memrealtime s[96:97]")
            A("s_waitcnt lgkmcnt(0)")
            A(f"v_writelane_b32 v{VST}, s96, m0")
            A("s_add_u32 m0, m0, 1")
            A("s_min_u32 m0, m0, 63")

    def dump_stamps():
        if not stamps:
            return
        A("s_mov_b64 exec, -1")
        A("s_add_u32 s28, s28, 0x8000000")
        A("s_addc_u32 s29, s29, 0")
        A("s_mul_i32 s55, s2, 9")
        A("s_add_u32 s55, s55, s3")
        A("s_lshl_b32 s55, s55, 8")
        A("v_lshlrev_b32 v5, 2, v0")
        A("v_add_u32 v5, s55, v5")
        A(f"global_store_dword v5, v{VST}, s[28:29]")

    BUD, SPROG = "s30", "s31"

    def budget(k=1):
        A(f"s_sub_u32 {BUD}, {BUD}, {k}")
        A("s_cbranch_scc1 L_end")

    RB1, CB1 = "s100", "s101"

    def tile1():
        if qmap == 0:
            A(f"s_and_b32 {RB1}, s2, 3")
            A(f"s_lshr_b32 {CB1}, s2, 2")
        else:
            hi, lo = ("0x10000", "0x20001") if qmap == 1 else ("0x10002", "0x20000")
            A(f"""
            s_bfe_u32 {RB1}, s2, {hi}
            s_lshr_b32 s69, s2, 7
            s_lshl1_add_u32 {RB1}, {RB1}, s69
            s_bfe_u32 s69, s2, 0x40003
            s_bfe_u32 {CB1}, s2, {lo}
            s_lshl4_add_u32 {CB1}, {CB1}, s69
            """)

    def bg(dst, t):
        if bgmap == 0:
            A(f"s_and_b32 {dst}, s2, 7")
        else:
            A(f"s_and_b32 {dst}, s2, 1")
            A(f"s_bfe_u32 {t}, s2, 0x20001")
            A(f"s_lshl2_add_u32 {dst}, {dst}, {t}")

    def jidx(dst, t):
        A(f"s_and_b32 {dst}, s2, 7")
        A(f"s_lshl_b32 {dst}, {dst}, 5")
        A(f"s_lshr_b32 {t}, s2, 3")
        A(f"s_add_u32 {dst}, {dst}, {t}")

    stamp(0)
    W8, W7, VK, VV, VO = 10, 14, 18, 22, 24
    vP, vPa, vFr, vFa, vT = 28, 29, 30, 31, 32
    A(f"""
    s_cmp_ge_u32 s2, 256
    s_cbranch_scc1 L_end
    s_load_dwordx2 s[32:33], s[0:1], 24
    s_load_dwordx16 s[4:19], s[0:1], 0
    s_load_dwordx8 s[20:27], s[0:1], 64
    s_load_dwordx2 s[28:29], s[0:1], 96
    v_lshrrev_b32 v1, 6, v0
    v_lshrrev_b32 v34, 3, v0
    v_readfirstlane_b32 s3, v1
    v_and_b32 v35, 7, v0
    v_and_b32 v36, 2, v34
    s_mov_b32 {BUD}, 0x100000
    s_mov_b32 s35, 0x20000
    """)
    tile1()
    A(f"""
    s_cmp_lg_u32 s3, 0
    s_cbranch_scc1 L_worker
    s_setprio 3
    v_xor_b32 v35, v35, v36
    v_lshlrev_b32 v35, 4, v35
    v_xor_b32 v36, 64, v35
    v_lshl_add_u32 v{W8}, v34, 13, v35
    v_lshl_add_u32 v{W8+1}, v34, 13, v36
    v_add_u32 v{W8+1}, {65536-1024}, v{W8+1}
    v_add_u32 v{W8+2}, {2*(65536-1024)}, v{W8}
    v_add_u32 v{W8+3}, {2*(65536-1024)}, v{W8+1}
    s_lshl_b32 s68, {CB1}, 7
    s_lshl_b32 s60, {RB1}, 21
    s_add_u32 s60, s60, s68
    s_mov_b32 s34, {8<<20}
    s_mov_b32 m0, {RA}
    s_waitcnt lgkmcnt(0)
    """)
    srds = [(36, 6, 64 << 20), (40, 8, 64 << 20), (44, 16, 7 << 20), (48, 18, 7 << 20),
            (52, 12, 8 << 20), (56, 20, 7 << 20)]
    NPEEL = min(d, 7)

    def loader_setup():
        A(f"""
        v_lshrrev_b32 v4, 4, v0
        v_and_b32 v5, 15, v0
        v_xor_b32 v6, v5, v4
        v_lshlrev_b32 v6, 4, v6
        v_lshl_add_u32 v{VK}, v4, 8, v6
        v_xor_b32 v{VK+1}, 64, v{VK}
        v_xor_b32 v{VK+2}, 128, v{VK}
        v_xor_b32 v{VK+3}, 192, v{VK}
        v_lshlrev_b32 v6, 1, v4
        v_xor_b32 v6, v5, v6
        v_lshlrev_b32 v6, 4, v6
        v_lshl_add_u32 v{VV}, v4, 8, v6
        v_xor_b32 v{VV+1}, 128, v{VV}
        v_lshlrev_b32 v{VO}, 4, v0
        v_xor_b32 v{VO+1}, {1024+32}, v{VO}
        v_xor_b32 v{VO+2}, {2048+64}, v{VO}
        v_xor_b32 v{VO+3}, {3072+96}, v{VO}
        v_mul_u32_u24 v7, 7168, v34
        v_add_u32 v{W7}, v7, v35
        v_add_u32 v{W7+1}, v7, v36
        v_add_u32 v{W7+1}, {8*7168-1024}, v{W7+1}
        v_add_u32 v{W7+2}, {2*(8*7168-1024)}, v{W7}
        v_add_u32 v{W7+3}, {2*(8*7168-1024)}, v{W7+1}
        v_mov_b32 v{vP}, {NPEEL-d}
        v_lshlrev_b32 v{vPa}, 2, v0
        """)
        jidx("s67", "s68")
        A(f"""
        s_mul_i32 s69, s67, 7
        s_lshr_b32 s63, s69, 5
        s_lshl_b32 s63, s63, 7
        s_and_b32 s69, s69, 31
        s_mul_i32 s69, s69, {32*7168}
        s_add_u32 s63, s63, s69
        s_mov_b32 s64, s63
        s_lshr_b32 s69, s67, 7
        s_xor_b32 s69, s69, s67
        s_and_b32 s69, s69, 1
        s_lshl_b32 s69, s69, 10
        s_and_b32 s65, s67, 127
        s_lshl_b32 s65, s65, 16
        s_add_u32 s65, s65, s69
        s_lshr_b32 s67, s67, 1
        s_mul_i32 s66, s67, {28*2048}
        s_add_u32 s66, s66, s69
        """)
        bg("s67", "s69")
        A(f"""
        s_lshl_b32 s61, s67, 23
        s_lshl_b32 s69, s68, 15
        s_add_u32 s61, s61, s69
        s_add_u32 s61, s61, {28672*256}
        s_mov_b32 s62, s61
        """)
        for r, p, n in srds:
            A(f"s_mov_b64 s[{r}:{r+1}], s[{p}:{p+1}]")
            A(f"s_mov_b32 s{r+2}, {n}")
            A(f"s_mov_b32 s{r+3}, 0x20000")

    def group(srd, vo, soff):
        for t in range(4):
            off = f" offset:{1024*t}" if t else ""
            A(f"buffer_load_dwordx4 v{vo[t]}, s[{srd}:{srd+3}], {soff} offen{off} {ntflag} lds")

    def publish():
        A(f"v_add_u32 v{vP}, 1, v{vP}")
        A(f"ds_max_i32 v{vPa}, v{vP}")

    def tloop(srd, vo, soff, step, ng, base, free=None, skip=0, pitch=4096, wrap=False, dd=None, grow=0):
        dd = dd or d
        if not skip:
            A(f"s_mov_b32 m0, {base}")
        if free is not None:
            A(f"v_mov_b32 v{vFa}, {free}")
        for i in range(grow):
            group(srd, vo, soff)
            A(f"s_add_u32 {soff}, {soff}, {step}")
            A(f"s_add_u32 m0, m0, {pitch}")
        L = A.lab("L_ld")
        A(f"{L}:")
        group(srd, vo, soff)
        if free is not None:
            A(f"ds_read_b32 v{vFr}, v{vFa}")
        A(f"s_add_u32 {soff}, {soff}, {step}")
        if wrap:
            A(f"s_cmp_ge_u32 {soff}, {1024*7168}")
            A(f"s_cselect_b32 s73, {1024*7168-128}, 0")
            A(f"s_sub_u32 {soff}, {soff}, s73")
        A(f"s_add_u32 m0, m0, {pitch}")
        A(f"s_waitcnt vmcnt({4*dd})")
        publish()
        A(f"s_cmp_lg_u32 m0, {base + ng*pitch}")
        A(f"s_cbranch_scc1 {L}")
        if free is not None:
            ok, sp = A.lab("L_fok"), A.lab("L_fsp")
            A("s_waitcnt lgkmcnt(0)")
            A(f"v_readfirstlane_b32 s74, v{vFr}")
            A("s_cmp_ge_u32 s74, 4")
            A(f"s_cbranch_scc1 {ok}")
            A("s_waitcnt vmcnt(0)")
            A(f"v_add_u32 v{vT}, {dd}, v{vP}")
            A(f"ds_max_i32 v{vPa}, v{vT}")
            A(f"{sp}:")
            A(f"ds_read_b32 v{vFr}, v{vFa}")
            A("s_waitcnt lgkmcnt(0)")
            A(f"v_readfirstlane_b32 s74, v{vFr}")
            budget()
            A("s_cmp_lt_u32 s74, 4")
            A(f"s_cbranch_scc1 {sp}")
            A(f"{ok}:")

    w8 = [W8 + t for t in range(4)]
    w7 = [W7 + t for t in range(4)]
    vk = [VK + t for t in range(4)]
    vv = [VV, VV, VV + 1, VV + 1]
    vo = [VO + t for t in range(4)]
    A("L_ld0:")
    group(32, w8, "s60")
    A(f"s_add_u32 s60, s60, {32*8192}")
    A("s_add_u32 m0, m0, 4096")
    A(f"s_cmp_lg_u32 m0, {RA + NPEEL*4096}")
    A("s_cbranch_scc1 L_ld0")
    stamp(1)
    loader_setup()
    A("s_barrier")
    tloop(32, w8, "s60", 32 * 8192, 8, RA, skip=NPEEL)
    stamp(2)
    if not rot:
        tloop(36, vk, "s61", 4096, 8, RB)
        tloop(40, vv, "s62", 4096, 8, RC)
    else:
        A("s_bfe_u32 s67, s2, 0x30003")
        A("s_lshl_b32 s67, s67, 12")
        A("s_mov_b32 s68, s67")
        for srd, vo_, base in ((36, vk, RB), (40, vv, RC)):
            L = A.lab("L_rt")
            A(f"{L}:")
            A(f"s_add_u32 m0, s68, {base}")
            A("s_add_u32 s69, s68, s61")
            group(srd, vo_, "s69")
            A("s_add_u32 s68, s68, 4096")
            A("s_and_b32 s68, s68, 0x7fff")
            A(f"s_waitcnt vmcnt({4*d})")
            publish()
            A("s_cmp_lg_u32 s68, s67")
            A(f"s_cbranch_scc1 {L}")
    stamp(3)
    tloop(44, w7, "s63", 32 * 7168, 7, RD, free=FA, wrap=True)
    tloop(48, w7, "s64", 32 * 7168, 7, RA, free=FB, wrap=True)
    stamp(4)
    tloop(52, vo, "s65", 8192, 8, RB, free=FC, pitch=P3, dd=d3, grow=d3 - d)
    stamp(5)
    tloop(56, vo, "s66", 8192, 7, RC, pitch=P3, dd=d3)
    stamp(6)
    for k in range(d3 - 1, -1, -1):
        A(f"s_waitcnt vmcnt({4*k})")
        publish()
    stamp(7)
    dump_stamps()
    A("s_endpgm")

    vN, vQ, vZ, vMK, vONE = 1, 2, 3, 4, 33
    aW, aV0, aV1 = 10, 24, 25
    X, F, ACC = 40, 72, 104
    T = ["s50", "s51", "s52", "s53"]
    SW = "s54"
    WS = "s[36:39]"
    M_N2, M_N4, M_HI8, M_B1 = "s[60:61]", "s[62:63]", "s[64:65]", "s[66:67]"
    SJ = "s68"
    SID = "s71"
    vID = 137
    A("L_worker:")
    if stamps:
        A("s_mov_b32 m0, 32")
    A(f"""
    s_getpc_b64 s[40:41]
    s_cmp_gt_u32 s3, 2
    s_cbranch_scc1 L_nopf
    v_lshlrev_b32 v1, 7, v0
    v_add_u32 v1, -8192, v1
    global_load_dword v136, v1, s[40:41]
    L_nopf:
    v_and_b32 v0, 63, v0
    v_mov_b32 v4, 0
    v_mov_b32 v5, 0
    v_mov_b32 v6, 0
    v_mov_b32 v7, 0
    v_lshlrev_b32 v2, 4, v0
    ds_write_b128 v2, v[4:7]
    s_lshl_b32 s55, {RB1}, 9
    v_lshrrev_b32 v{vQ}, 4, v0
    v_and_b32 v9, 1, v0
    v_lshlrev_b32 v9, 11, v9
    v_lshl_add_u32 v9, v{vQ}, 4, v9
    s_mov_b32 s34, 4096
    s_mov_b32 s62, 0x000f000f
    s_mov_b32 s63, 0x000f000f
    s_waitcnt lgkmcnt(0)
    s_load_dwordx2 s[48:49], s[28:29], {EPOCH}
    s_mov_b64 s[32:33], s[4:5]
    s_cmp_gt_u32 s3, 4
    s_cbranch_scc1 L_nox
    s_mov_b64 exec, s[62:63]
    """)
    for s in range(8):
        A(f"buffer_load_dwordx4 v[{X+4*s}:{X+4*s+3}], v9, s[32:35], s55 offen offset:{64*s}")
    A(f"""
    s_mov_b64 exec, -1
    L_nox:
    s_barrier
    s_sub_u32 {SW}, s3, 1
    s_and_b32 {SW}, {SW}, 3
    s_mov_b32 {SPROG}, 0
    v_and_b32 v{vN}, 15, v0
    v_mov_b32 v{vZ}, 0
    v_mov_b32 v{vMK}, 0x{0xFFFFFFFF ^ TAGM:x}
    v_mov_b32 v{vONE}, 1
    s_mov_b32 s38, {WS_END}
    s_mov_b32 s39, 0x20000
    s_add_u32 s36, s28, {wsoff}
    s_addc_u32 s37, s29, 0
    v_bfe_u32 v5, v0, 2, 2
    v_lshl_add_u32 v5, v{vQ}, 3, v5
    v_and_b32 v6, 3, v0
    v_lshlrev_b32 v6, 3, v6
    v_bfe_u32 v7, v0, 3, 2
    v_xor_b32 v7, {SW}, v7
    v_lshl_add_u32 v7, v7, 5, v6
    v_lshl_add_u32 v{aW}, v5, 7, v7
    s_lshl_b32 s55, {SW}, 1
    v_bfe_u32 v7, v0, 2, 3
    v_xor_b32 v7, s55, v7
    v_lshl_add_u32 v7, v7, 5, v6
    v_lshl_add_u32 v{aV0}, v5, 8, v7
    s_mov_b32 s60, 0x00030003
    s_mov_b32 s61, 0x00030003
    s_waitcnt lgkmcnt(0)
    s_add_u32 s48, s48, 1
    s_addc_u32 s49, s49, 0
    s_and_b32 s50, s48, {TAGM}
    s_lshr_b32 s55, s48, 12
    s_add_u32 s55, s55, s48
    s_and_b32 s51, s55, {TAGM}
    s_lshr_b64 s[56:57], s[48:49], 24
    s_add_u32 s55, s56, s48
    s_and_b32 s52, s55, {TAGM}
    s_lshr_b32 s55, s49, 4
    s_add_u32 s55, s55, s48
    s_and_b32 s53, s55, {TAGM}
    s_getreg_b32 s55, hwreg(HW_REG_XCC_ID, 0, 4)
    s_lshl4_add_u32 {SID}, s48, s55
    """)
    if half:
        A(f"s_bitcmp1_b32 s2, {half}")
        A(f"s_cselect_b32 s38, s38, 0")
    a3, aBR, aAS, aGS = 140, 153, 154, 155

    def common2(reg3, bsrc):
        A(f"""
        s_mov_b32 s64, 0xff00ff00
        s_mov_b32 s65, 0xff00ff00
        s_mov_b32 s66, 0xcccccccc
        s_mov_b32 s67, 0xcccccccc
        """)
        jidx(SJ, "s55")
        A(f"""
        s_lshl_b32 s55, {SW}, 8
        s_add_u32 s55, s55, {reg3}
        v_mul_u32_u24 v5, {P3}, v{vQ}
        v_bfe_u32 v6, v0, 2, 2
        v_mul_u32_u24 v6, 1056, v6
        v_and_b32 v7, 3, v0
        v_lshl_add_u32 v5, v7, 3, v5
        v_add3_u32 v{a3}, v5, v6, s55
        v_xor_b32 v{a3+1}, 32, v{a3}
        v_xor_b32 v{a3+2}, 64, v{a3}
        v_xor_b32 v{a3+3}, 96, v{a3}
        v_and_b32 v5, 1, v0
        v_lshlrev_b32 v6, 6, v5
        v_lshl_add_u32 v6, v{vQ}, 4, v6
        v_add_u32 v{aBR}, {bsrc}, v6
        v_lshlrev_b32 v{aGS}, 3, v5
        s_lshl_b32 s55, {SW}, 10
        s_add_u32 s55, s55, {AS}
        v_lshlrev_b32 v6, 4, v0
        v_add_u32 v{aAS}, s55, v6
        """)

    def id_load():
        A(f"""
        s_and_b32 s55, s2, 7
        s_lshl_b32 s55, s55, 7
        s_add_u32 s55, s55, {IDT}
        v_and_b32 v5, 31, v0
        v_lshlrev_b32 v5, 2, v5
        buffer_load_dword v{vID}, v5, {WS}, s55 offen
        """)

    def id_check(dst):
        A(f"v_cmp_ne_u32 {dst}, {SID}, v{vID}")

    def pub(stores, key, flag):
        def emit(pol):
            for ex, t in stores:
                if ex is not None:
                    A(f"s_mov_b64 exec, {ex}")
                A(t + pol)
        if key not in loc:
            emit(" sc1")
        else:
            a, b = A.lab("L_pw"), A.lab("L_pd")
            A(f"s_cmp_lg_u64 {flag}, 0")
            A(f"s_cbranch_scc1 {a}")
            emit("")
            stamp(20)
            A(f"s_branch {b}")
            A(f"{a}:")
            emit(" sc1")
            stamp(21)
            A(f"{b}:")
        A("s_mov_b64 exec, -1")

    def wait_prog(thr):
        ok, sp = A.lab("L_pok"), A.lab("L_psp")
        A(f"s_cmp_ge_i32 {SPROG}, {thr}")
        A(f"s_cbranch_scc1 {ok}")
        A(f"{sp}:")
        A(f"ds_read_b32 v5, v{vZ} offset:{PROG}")
        A("s_waitcnt lgkmcnt(0)")
        A(f"v_readfirstlane_b32 {SPROG}, v5")
        budget()
        A(f"s_cmp_lt_i32 {SPROG}, {thr}")
        A(f"s_cbranch_scc1 {sp}")
        A(f"{ok}:")

    def arrive(cnt):
        A("s_mov_b64 exec, 1")
        A(f"ds_add_u32 v{vZ}, v{vONE} offset:{cnt}")
        A("s_mov_b64 exec, -1")

    def wait_cnt(cnt, n, reads):
        sp = A.lab("L_csp")
        A(f"{sp}:")
        A(f"ds_read_b32 v5, v{vZ} offset:{cnt}")
        for r in reads:
            A(r)
        A("s_waitcnt lgkmcnt(0)")
        A("v_readfirstlane_b32 s55, v5")
        budget()
        A(f"s_cmp_lt_u32 s55, {n}")
        A(f"s_cbranch_scc1 {sp}")

    def tag4(dst, src):
        for j in range(4):
            A(f"v_and_or_b32 v{dst+j}, v{src+j}, v{vMK}, {T[j]}")

    MASKS = [80, 82, 84, 86, 88, 90, 92, 94]

    def gather(loads, first, hop=""):
        if nog is True or (nog and hop in nog):
            A("s_mov_b64 exec, -1")
            return
        g, dn = A.lab("L_g"), A.lab("L_gd")
        n = len(loads)

        def ld(dst, vo_, off, pol):
            o = f" offset:{off}" if off else ""
            A(f"buffer_load_dwordx4 v[{dst}:{dst+3}], v{vo_}, {WS}, 0 offen{o} {pol}")

        def chk(i, dst):
            m = MASKS[i]
            for j in range(4):
                A(f"v_xor_b32 v{dst+j}, {T[j]}, v{dst+j}")
            A(f"v_or3_b32 v5, v{dst}, v{dst+1}, v{dst+2}")
            A(f"v_or_b32 v5, v5, v{dst+3}")
            A(f"v_and_b32 v5, {TAGM}, v5")
            A(f"v_cmp_ne_u32 s[{m}:{m+1}], 0, v5")

        def anym():
            for i in range(1, n):
                src = f"s[{MASKS[0]}:{MASKS[0]+1}]" if i == 1 else "vcc"
                A(f"s_or_b64 vcc, {src}, s[{MASKS[i]}:{MASKS[i]+1}]")

        stamp({"q": 10, "o": 12, "g": 10, "f": 12}[hop])
        for dst, vo_, off in loads:
            ld(dst, vo_, off, first)
        for i, (dst, vo_, off) in enumerate(loads):
            A(f"s_waitcnt vmcnt({n-1-i})")
            chk(i, dst)
        anym()
        dstamp()
        stamp({"q": 11, "o": 13, "g": 11, "f": 13}[hop])
        if hop in once:
            A("s_mov_b64 exec, -1")
            return
        A(f"s_cbranch_vccz {dn}")
        A(f"{g}:")
        for i, (dst, vo_, off) in enumerate(loads):
            A(f"s_mov_b64 exec, s[{MASKS[i]}:{MASKS[i]+1}]")
            ld(dst, vo_, off, "sc1")
        for i, (dst, vo_, off) in enumerate(loads):
            A(f"s_mov_b64 exec, s[{MASKS[i]}:{MASKS[i]+1}]")
            A(f"s_waitcnt vmcnt({n-1-i})")
            chk(i, dst)
        anym()
        dstamp()
        budget(16)
        A(f"s_cbranch_vccnz {g}")
        A(f"{dn}:")
        A("s_mov_b64 exec, -1")

    def mfma(dst, a, b, c):
        cs = "0" if c is None else f"v[{c}:{c+3}]"
        A(f"v_mfma_f32_16x16x32_bf16 v[{dst}:{dst+3}], v[{a}:{a+3}], v[{b}:{b+3}], {cs}")

    def gemv64(areg, acc, gbase, splits, first_vm=False):
        s0 = 0
        for k, s1 in enumerate(splits):
            wait_prog(gbase + s1)
            for s in range(s0, s1):
                A(f"ds_read_b64_tr_b16 v[{F+4*s}:{F+4*s+1}], v{areg} offset:{4096*s}")
                A(f"ds_read_b64_tr_b16 v[{F+4*s+2}:{F+4*s+3}], v{areg} offset:{4096*s+512}")
            if k == 0 and first_vm:
                A("s_waitcnt vmcnt(0)")
            for s in range(s0, s1):
                A(f"s_waitcnt lgkmcnt({2*(s1-1-s)})")
                mfma(acc, F + 4 * s, X + 4 * s, None if s == 0 else acc)
            s0 = s1

    def bf16_round_pair(pk, lo, hi, a, b):
        A(f"v_cvt_pk_bf16_f32 v{pk}, v{a}, v{b}")
        A(f"v_lshlrev_b32 v{lo}, 16, v{pk}")
        A(f"v_and_b32 v{hi}, 0xffff0000, v{pk}")

    DPPM = "row_mask:0xf bank_mask:0xf"
    BT = X

    def zero_bt():
        for i in range(32):
            A(f"v_mov_b32 v{BT+i}, 0")

    def bt_reads():
        rd = [f"s_mov_b64 exec, {M_N2}"]
        for t in range(8):
            rd.append(f"ds_read_b128 v[{BT+4*t}:{BT+4*t+3}], v{aBR}")
            rd.append("s_lshl_b64 exec, exec, 2" if t < 7 else "s_mov_b64 exec, -1")
        return rd

    def rd3(half):
        for t in range(8):
            r = F + 4 * t + 2 * half
            A(f"ds_read_b64_tr_b16 v[{r}:{r+1}], v{a3+(t&3)} offset:{4*P3*half + 128*(t>>2)}")

    def mm3():
        for t in range(8):
            A(f"s_waitcnt lgkmcnt({7-t})")
            mfma(ACC, F + 4 * t, BT + 4 * t, None if t == 0 else ACC)

    def red4(r):
        A(f"""
        v_permlane32_swap_b32 v{r}, v{r+2}
        v_permlane32_swap_b32 v{r+1}, v{r+3}
        v_add_f32 v{r}, v{r}, v{r+2}
        v_add_f32 v{r+1}, v{r+1}, v{r+3}
        v_permlane16_swap_b32 v{r}, v{r+1}
        v_add_f32 v{r}, v{r}, v{r+1}
        """)

    A("s_cmp_gt_u32 s3, 4")
    A("s_cbranch_scc1 L_F")

    oQP, oQG, aQsW, aQsR, aK = 11, 12, 13, 14, 15
    aPsW, aMsW, aPlo, aPhi, aMsR = 19, 20, 21, 22, 23
    oOP, oML, oOPG, oMLG, aOsW, oPX = 26, 27, 28, 29, 30, 31
    T16, FLG = "s77", "s[98:99]"
    SBG, SSPL = "s73", "s75"
    SC = "s76"
    A(f"""
    v_add_u32 v{aW}, {RA}, v{aW}
    s_lshr_b32 s55, {CB1}, 2
    s_lshl_b32 s55, s55, 12
    s_lshl_b32 s56, {RB1}, 10
    s_add_u32 s55, s55, s56
    s_and_b32 s56, {CB1}, 3
    s_lshl_b32 s56, s56, 8
    s_add_u32 s55, s55, s56
    s_lshl_b32 s56, {SW}, 6
    s_add_u32 s55, s55, s56
    v_and_b32 v5, 1, v0
    v_lshlrev_b32 v5, 16, v5
    v_lshl_add_u32 v5, v{vQ}, 4, v5
    v_add_u32 v{oQP}, s55, v5
    """)
    MQ = M_N2
    if "q" in cst:
        A(f"""
        s_lshl_b32 s55, s2, 9
        s_lshl_b32 s56, {SW}, 7
        s_add_u32 s55, s55, s56
        v_lshlrev_b32 v5, 4, v0
        v_add_u32 v{oQP}, s55, v5
        """)
        MQ = "0xff"
    stamp(1)
    gemv64(aW, ACC, 0, spl1, first_vm=True)
    arrive(FA)
    tag4(ACC + 4, ACC)
    A(f"s_mov_b64 exec, {MQ}")
    if qfrac:
        A(f"s_lshr_b32 s55, s2, 3")
        A(f"s_and_b32 s55, s55, {qfrac-1}")
        A(f"s_cselect_b64 exec, 0, exec")
    A(f"buffer_store_dwordx4 v[{ACC+4}:{ACC+7}], v{oQP}, {WS}, 0 offen sc1")
    A("s_mov_b64 exec, -1")
    stamp(2)
    common2(RB, OS)
    bg(SBG, "s55")
    A(f"""
    s_lshr_b32 {SSPL}, s2, 3
    s_mov_b32 {SC}, {f32(LOG2E)}
    """)
    A(f"""
    s_lshl_b32 s55, {SW}, 13
    s_add_u32 s55, s55, {RB}
    v_xor_b32 v5, v{vQ}, v{vN}
    v_lshlrev_b32 v5, 4, v5
    v_lshl_add_u32 v5, v{vN}, 8, v5
    v_add_u32 v{aK}, s55, v5
    v_xor_b32 v{aK+1}, 64, v{aK}
    v_xor_b32 v{aK+2}, 128, v{aK}
    v_xor_b32 v{aK+3}, 192, v{aK}
    v_add_u32 v{aV0}, {RC}, v{aV0}
    v_xor_b32 v{aV1}, 32, v{aV0}
    """)
    A(f"""
    s_lshl_b32 s55, {SBG}, 2
    s_add_u32 s55, s55, {SW}
    s_lshl_b32 s55, s55, 12
    v_lshlrev_b32 v5, 4, v0
    v_add_u32 v{oQG}, s55, v5
    """)
    A(f"""
    s_mul_i32 s55, {SW}, {2*PITCH}
    s_add_u32 s55, s55, {QS}
    v_lshrrev_b32 v5, 5, v0
    v_mul_u32_u24 v5, {PITCH}, v5
    v_and_b32 v6, 31, v0
    v_lshl_add_u32 v5, v6, 3, v5
    v_add_u32 v{aQsW}, s55, v5
    v_and_b32 v6, 7, v0
    v_mul_u32_u24 v7, {PITCH}, v6
    v_lshl_add_u32 v8, v{vQ}, 4, v7
    v_add_u32 v{aQsR}, {QS}, v8
    v_add_u32 v8, {PS}, v8
    v_mov_b32 v9, {ZERO}
    v_cndmask_b32 v{aPlo}, v8, v9, {M_HI8}
    v_cndmask_b32 v{aPhi}, v9, v8, {M_HI8}
    v_lshlrev_b32 v9, 4, v6
    v_add_u32 v{aMsR}, {MS}, v9
    s_lshl_b32 s55, {SW}, 2
    v_add_u32 v{aMsW}, s55, v{aMsR}
    s_lshl_b32 s55, {SW}, 6
    s_add_u32 s55, s55, {PS}
    v_and_b32 v9, 8, v0
    v_lshlrev_b32 v9, 2, v9
    v_lshl_add_u32 v9, v{vQ}, 3, v9
    v_add3_u32 v{aPsW}, v7, v9, s55
    """)
    A(f"""
    s_lshl_b32 s55, {SBG}, 17
    s_lshl_b32 s56, {SW}, 12
    s_add_u32 s55, s55, s56
    s_lshl_b32 s56, {SSPL}, 7
    s_add_u32 s55, s55, s56
    s_add_u32 s55, s55, {OP}
    v_lshlrev_b32 v9, 1, v9
    v_lshl_add_u32 v9, v6, 14, v9
    v_add_u32 v{oOP}, s55, v9
    s_lshl_b32 s55, {SBG}, 12
    s_lshl_b32 s56, {SSPL}, 4
    s_add_u32 s55, s55, s56
    s_add_u32 s55, s55, {ML}
    v_lshlrev_b32 v9, 9, v6
    v_add_u32 v{oML}, s55, v9
    """)
    A(f"""
    s_lshl_b32 s55, {SJ}, 12
    s_and_b32 s58, {SW}, 1
    s_lshl_b32 s59, s58, 6
    s_add_u32 s55, s55, s59
    s_add_u32 s55, s55, {OP}
    v_lshrrev_b32 v5, 2, v0
    v_and_b32 v6, 3, v0
    v_lshlrev_b32 v7, 4, v6
    v_lshl_add_u32 v8, v5, 7, v7
    v_add_u32 v{oOPG}, s55, v8
    s_lshr_b32 s57, {SJ}, 2
    s_lshl_b32 s57, s57, 9
    s_add_u32 s57, s57, {ML}
    v_and_b32 v8, 1, v0
    v_lshlrev_b32 v8, 8, v8
    v_lshl_add_u32 v8, v5, 4, v8
    v_add_u32 v{oMLG}, s57, v8
    s_and_b32 s56, s2, 4
    s_lshl_b32 s56, s56, 4
    s_cmp_ge_u32 {SW}, 2
    s_cbranch_scc1 L_a2
    s_lshl_b32 s58, s58, 3
    s_add_u32 s56, s56, s58
    s_add_u32 s56, s56, {OS}
    v_lshl_add_u32 v8, v{vQ}, 1, v7
    v_add_u32 v{aOsW}, s56, v8
    s_lshl_b32 s55, s2, 7
    s_add_u32 s55, s55, s59
    s_add_u32 s55, s55, {PX}
    v_lshl_add_u32 v8, v{vQ}, 2, v7
    v_add_u32 v{oPX}, s55, v8
    s_branch L_a3
    L_a2:
    s_xor_b32 s56, s56, {OS+64}
    v_and_b32 v8, 12, v0
    v_lshlrev_b32 v8, 2, v8
    v_lshl_add_u32 v8, v6, 1, v8
    v_bfe_u32 v7, v0, 4, 1
    v_lshl_add_u32 v8, v7, 3, v8
    v_add_u32 v{aOsW}, s56, v8
    s_xor_b32 s55, s2, 4
    s_lshl_b32 s55, s55, 7
    s_add_u32 s55, s55, {PX}
    v_and_b32 v8, 31, v0
    v_lshlrev_b32 v8, 2, v8
    v_add_u32 v{oPX}, s55, v8
    L_a3:
    s_and_b32 {T16}, s48, 0xffff
    """)
    if "o" in pre:
        A(f"buffer_load_dword v138, v{oOP}, {WS}, 0 offen")
        A(f"buffer_load_dword v139, v{oML}, {WS}, 0 offen")
    ONES = 132
    A(f"""
    v_mov_b32 v{ONES}, 0x3f803f80
    v_mov_b32 v{ONES+1}, 0x3f803f80
    v_mov_b32 v{ONES+2}, 0x3f803f80
    v_mov_b32 v{ONES+3}, 0x3f803f80
    s_lshl_b32 s55, {SW}, 1
    s_lshl_b32 s78, 3, s55
    s_mov_b32 s79, 0
    """)

    if "o" in cst:
        A(f"""
        s_lshl_b32 s55, s2, 12
        s_lshl_b32 s56, {SW}, 10
        s_add_u32 s55, s55, s56
        s_add_u32 s55, s55, {OP}
        v_lshlrev_b32 v5, 4, v0
        v_add_u32 v{oOP}, s55, v5
        s_lshl_b32 s55, s2, 7
        s_add_u32 s55, s55, {ML}
        v_add_u32 v{oML}, s55, v5
        s_cmp_eq_u32 {SW}, 0
        s_cselect_b32 s78, 0xff, 0
        """)

    def kfrags():
        if rot:
            wait_prog(16)
        else:
            A(f"s_lshl_b32 s77, {SW}, 1")
            A("s_add_u32 s77, s77, 10")
            wait_prog("s77")
        for t in range(2):
            for s in range(4):
                r = F + 16 * t + 4 * s
                A(f"ds_read_b128 v[{r}:{r+3}], v{aK+s} offset:{4096*t}")
        arrive(FB)

    G = X
    kfirst = gq >= 16
    if gq:
        wait_prog(gq)
    if kfirst:
        kfrags()
    id_load()
    gather([(G + 4 * r, oQG, 1024 * r) for r in range(4)], fpol, hop="q")
    A("s_waitcnt vmcnt(0)")
    id_check(FLG)
    A(f"""
    v_pk_add_f32 v[{G}:{G+1}], v[{G}:{G+1}], v[{G+4}:{G+5}]
    v_pk_add_f32 v[{G+2}:{G+3}], v[{G+2}:{G+3}], v[{G+6}:{G+7}]
    v_pk_add_f32 v[{G+8}:{G+9}], v[{G+8}:{G+9}], v[{G+12}:{G+13}]
    v_pk_add_f32 v[{G+10}:{G+11}], v[{G+10}:{G+11}], v[{G+14}:{G+15}]
    v_pk_add_f32 v[{G}:{G+1}], v[{G}:{G+1}], v[{G+8}:{G+9}]
    v_pk_add_f32 v[{G+2}:{G+3}], v[{G+2}:{G+3}], v[{G+10}:{G+11}]
    v_cvt_pk_bf16_f32 v6, v{G}, v{G+1}
    v_cvt_pk_bf16_f32 v7, v{G+2}, v{G+3}
    ds_write_b64 v{aQsW}, v[6:7]
    """)
    arrive(CQ)
    stamp(3)
    if not kfirst:
        kfrags()
    QF = X + 16
    wait_cnt(CQ, 4, [f"ds_read_b128 v[{QF+4*s}:{QF+4*s+3}], v{aQsR} offset:{64*s}" for s in range(4)])
    for s in range(4):
        for t in range(2):
            mfma(ACC + 4 * t, F + 16 * t + 4 * s, QF + 4 * s, None if s == 0 else ACC + 4 * t)
    S = X
    for j in range(4):
        A(f"v_cndmask_b32 v{S+j}, v{ACC+j}, v{ACC+4+j}, {M_HI8}")
    bf16_round_pair(6, S, S + 1, S, S + 1)
    bf16_round_pair(7, S + 2, S + 3, S + 2, S + 3)
    for j in range(4):
        A(f"v_mul_f32 v{S+j}, {f32(SCALE)}, v{S+j}")
    bf16_round_pair(6, S, S + 1, S, S + 1)
    bf16_round_pair(7, S + 2, S + 3, S + 2, S + 3)
    A(f"""
    v_max3_f32 v6, v{S}, v{S+1}, v{S+2}
    v_max_f32 v6, v6, v{S+3}
    v_max_f32_dpp v6, v6, v6 row_ror:8 {DPPM}
    v_mov_b32 v7, v6
    v_permlane16_swap_b32 v6, v7
    v_max_f32 v6, v6, v7
    v_mov_b32 v7, v6
    v_permlane32_swap_b32 v6, v7
    v_max_f32 v6, v6, v7
    v_mul_f32 v7, {SC}, v6
    """)
    for j in range(4):
        A(f"v_fma_f32 v{S+j}, v{S+j}, {SC}, -v7")
    for j in range(4):
        A(f"v_exp_f32 v{S+j}, v{S+j}")
    A(f"""
    v_cvt_pk_bf16_f32 v8, v{S}, v{S+1}
    v_cvt_pk_bf16_f32 v9, v{S+2}, v{S+3}
    ds_write_b64 v{aPsW}, v[8:9]
    s_mov_b64 exec, 0xff
    ds_write_b32 v{aMsW}, v6
    """)
    arrive(CP)
    stamp(4)
    wait_prog(24)
    for t in range(2):
        for s in range(4):
            r = F + 16 * t + 4 * s
            A(f"ds_read_b64_tr_b16 v[{r}:{r+1}], v{aV0+t} offset:{8192*s}")
            A(f"ds_read_b64_tr_b16 v[{r+2}:{r+3}], v{aV0+t} offset:{8192*s+1024}")
    arrive(FC)
    PL, PH, MSV = X, X + 16, 36
    rd = [f"ds_read_b128 v[{MSV}:{MSV+3}], v{aMsR}"]
    for s in range(4):
        rd.append(f"ds_read_b128 v[{PL+4*s}:{PL+4*s+3}], v{aPlo} offset:{64*s}")
        rd.append(f"ds_read_b128 v[{PH+4*s}:{PH+4*s+3}], v{aPhi} offset:{64*s}")
    wait_cnt(CP, 4, rd)
    LAs = [120, 124, 128, 144]
    fw = ["v_max3_f32 v6, v36, v37, v38", "v_max_f32 v6, v6, v39"]
    for s in range(4):
        fw.append(f"v_sub_f32 v{MSV+s}, v{MSV+s}, v6")
    for s in range(4):
        fw.append(f"v_mul_f32 v{MSV+s}, {SC}, v{MSV+s}")
    for s in range(4):
        fw.append(f"v_exp_f32 v{MSV+s}, v{MSV+s}")
    fw.append(f"v_or_b32 v148, {T[0]}, v6")
    fw.append(f"v_mov_b32 v150, {T[2]}")
    fw.append(f"v_mov_b32 v151, {T[3]}")
    k = 0
    for t in range(2):
        for s in range(4):
            mfma(ACC + 4 * s, F + 16 * t + 4 * s, (PL, PH)[t] + 4 * s, None if t == 0 else ACC + 4 * s)
            for _ in range(2):
                if k < len(fw):
                    A(fw[k]); k += 1
    while k < len(fw):
        A(fw[k]); k += 1
    O = F
    for s in range(4):
        mfma(LAs[s], ONES, PL + 4 * s, None)
        for j in range(4):
            if s == 0:
                A(f"v_mul_f32 v{O+j}, v{MSV}, v{ACC+j}")
            else:
                A(f"v_fmac_f32 v{O+j}, v{MSV+s}, v{ACC+4*s+j}")
    tag4(O + 4, O)
    A(f"v_mul_f32 v7, v{MSV}, v{LAs[0]}")
    for s in range(1, 4):
        A(f"v_fmac_f32 v7, v{MSV+s}, v{LAs[s]}")
    A(f"v_and_or_b32 v149, v7, v{vMK}, {T[1]}")
    pub([(None, f"buffer_store_dwordx4 v[{O+4}:{O+7}], v{oOP}, {WS}, 0 offen"),
         ("s[78:79]", f"buffer_store_dwordx4 v[148:151], v{oML}, {WS}, 0 offen")], "o", FLG)
    stamp(5)
    zero_bt()
    MR, G0, G1 = ACC, ACC + 4, ACC + 8
    A(f"s_cmp_ge_u32 {SW}, 2")
    A("s_cbranch_scc1 L_px")
    if go:
        wait_prog(go)
    gather([(MR, oMLG, 0), (G0, oOPG, 0), (G1, oOPG, 2048)], fpol, hop="o")
    stamp(6)
    A(f"""
    v_max_f32_dpp v6, v{MR}, v{MR} quad_perm:[1,0,3,2] {DPPM}
    v_max_f32_dpp v6, v6, v6 row_ror:4 {DPPM}
    v_max_f32_dpp v6, v6, v6 row_ror:8 {DPPM}
    v_mov_b32 v7, v6
    v_permlane16_swap_b32 v6, v7
    v_max_f32 v6, v6, v7
    v_mov_b32 v7, v6
    v_permlane32_swap_b32 v6, v7
    v_max_f32 v6, v6, v7
    v_sub_f32 v8, v{MR}, v6
    v_mul_f32 v8, {SC}, v8
    v_exp_f32 v8, v8
    v_mul_f32 v6, v8, v{MR+1}
    """)
    lred = [f"v_add_f32_dpp v6, v6, v6 quad_perm:[1,0,3,2] {DPPM}",
            f"v_add_f32_dpp v6, v6, v6 row_ror:4 {DPPM}",
            f"v_add_f32_dpp v6, v6, v6 row_ror:8 {DPPM}",
            "v_mov_b32 v7, v6"]
    for j in range(4):
        A(f"v_mul_f32_dpp v{G0+j}, v8, v{G0+j} quad_perm:[0,0,0,0] {DPPM}")
        if j & 1:
            A(lred[j >> 1])
    for j in range(4):
        A(f"v_fmac_f32_dpp v{G0+j}, v8, v{G1+j} quad_perm:[1,1,1,1] {DPPM}")
        if j & 1:
            A(lred[2 + (j >> 1)])
    A(f"""
    v_permlane32_swap_b32 v{G0}, v{G0+2}
    v_permlane32_swap_b32 v{G0+1}, v{G0+3}
    v_permlane16_swap_b32 v6, v7
    v_add_f32 v{G0}, v{G0}, v{G0+2}
    v_add_f32 v{G0+1}, v{G0+1}, v{G0+3}
    v_add_f32 v6, v6, v7
    v_mov_b32 v7, v6
    v_permlane16_swap_b32 v{G0}, v{G0+1}
    v_permlane32_swap_b32 v6, v7
    v_add_f32 v{G0}, v{G0}, v{G0+1}
    v_add_f32 v6, v6, v7
    v_rcp_f32 v6, v6
    v_add_f32_dpp v{G0}, v{G0}, v{G0} row_ror:4 {DPPM}
    v_add_f32_dpp v{G0}, v{G0}, v{G0} row_ror:8 {DPPM}
    v_mul_f32 v{G0}, v{G0}, v6
    v_cvt_pk_bf16_f32 v7, v{G0}, v{G0}
    ds_write_b16 v{aOsW}, v7
    v_and_b32 v7, 0xffff0000, v7
    v_or_b32 v7, {T16}, v7
    s_mov_b64 exec, {M_N4}
    buffer_store_dword v7, v{oPX}, {WS}, 0 offen sc1
    """)
    arrive(CO)
    A("s_branch L_pxd")
    A("L_px:")
    A(f"s_cmp_eq_u32 {SW}, 3")
    A("s_cbranch_scc1 L_pxd")
    wait_prog(gp)
    stamp(12)
    if not (nog is True or (nog and "p" in nog)):
        A(f"buffer_load_dword v7, v{oPX}, {WS}, 0 offen {ppol}")
        A("s_branch L_px1")
        A("L_px0:")
        budget(16)
        A(f"buffer_load_dword v7, v{oPX}, {WS}, 0 offen sc1")
        A("L_px1:")
        A("s_waitcnt vmcnt(0)")
        A("v_and_b32 v6, 0xffff, v7")
        A(f"v_cmp_ne_u32 vcc, {T16}, v6")
        dstamp()
        if "p" not in once:
            A("s_cbranch_vccnz L_px0")
    A(f"ds_write_b16_d16_hi v{aOsW}, v7")
    stamp(6)
    arrive(CO)
    A("L_pxd:")
    wait_prog(42)
    rd3(0)
    wait_cnt(CO, 5, bt_reads() + [f"ds_read_b32 v9, v{aGS} offset:{GS}"])
    wait_prog(46)
    rd3(1)
    mm3()
    for j in range(4):
        A(f"v_mul_f32 v{ACC+4+j}, v9, v{ACC+j}")
    A(f"ds_write_b128 v{aAS}, v[{ACC+4}:{ACC+7}]")
    arrive(CA)
    stamp(7)
    dump_stamps()
    A("s_endpgm")

    A("L_F:")
    common2(RC, HS)
    A(f"""
    s_cmp_lg_u32 {SW}, 0
    s_cbranch_scc1 L_noid
    s_lshl_b32 s55, {SJ}, 2
    s_add_u32 s55, s55, {IDT}
    v_mov_b32 v5, {SID}
    s_mov_b64 exec, 1
    buffer_store_dword v5, off, {WS}, s55
    s_mov_b64 exec, -1
    L_noid:
    """)
    aWg, aWu, oGU, oGG, aHsW, oFP, oFG, oOut = 11, 12, 13, 14, 16, 17, 22, 23
    SG0, SCB0 = "s69", "s70"
    M_GU, M_GG = "s[72:73]", "s[74:75]"
    for i in range(28):
        A(f"v_mov_b32 v{X+i}, 0")
    A(f"""
    s_mul_i32 s55, {SJ}, 7
    s_lshr_b32 {SCB0}, s55, 5
    s_and_b32 {SG0}, s55, 31
    s_mov_b32 s57, 0x00f000f0
    """)
    for s in range(7):
        A(f"""
        s_add_u32 s56, {SG0}, {s}
        s_cmp_ge_u32 s56, 32
        s_cselect_b32 exec_lo, s57, s62
        s_cselect_b32 exec_hi, s57, s62
        s_and_b32 s56, s56, 31
        s_lshl_b32 s56, s56, 6
        buffer_load_dwordx4 v[{X+4*s}:{X+4*s+3}], v9, s[32:35], s56 offen
        """)
    A(f"""
    s_mov_b64 exec, -1
    v_add_u32 v{aWg}, {RD}, v{aW}
    v_add_u32 v{aWu}, {RA}, v{aW}
    """)
    A(f"""
    s_cmp_ge_u32 {SG0}, 26
    s_cselect_b32 s72, 0x00ff00ff, s62
    s_mov_b32 s73, s72
    s_mul_i32 s55, {SCB0}, {32*9363}
    s_lshr_b32 s55, s55, 16
    s_sub_u32 s55, {SJ}, s55
    s_lshl_b32 s55, s55, 8
    s_mul_i32 s56, {SCB0}, 3072
    s_lshl_b32 s57, {SW}, 6
    s_add_u32 s56, s56, s57
    s_add_u32 s56, s56, {GUP}
    v_mov_b32 v6, s55
    v_mov_b32 v7, 3072
    s_mov_b32 s58, 0xf0f0f0f0
    s_mov_b32 s59, 0xf0f0f0f0
    v_cndmask_b32 v6, v6, v7, s[58:59]
    v_and_b32 v5, 1, v0
    v_mul_u32_u24 v5, {56*3072}, v5
    v_lshl_add_u32 v5, v{vQ}, 4, v5
    v_bfe_u32 v7, v0, 1, 1
    v_mul_u32_u24 v7, 1536, v7
    v_add3_u32 v5, v5, v6, v7
    v_add_u32 v{oGU}, s56, v5
    """)
    if "g" in pre:
        A(f"s_mov_b64 exec, {M_GU}")
        A(f"buffer_load_dword v138, v{oGU}, {WS}, 0 offen")
        A("s_mov_b64 exec, -1")
    A(f"""
    s_lshr_b32 s55, {SJ}, 1
    s_mul_i32 s55, s55, 28
    s_and_b32 s56, {SW}, 1
    s_mul_i32 s57, s56, {56*3072}
    s_add_u32 s57, s57, {GUP}
    v_and_b32 v6, 7, v0
    v_lshl_add_u32 v7, v6, 2, s55
    v_lshrrev_b32 v8, 6, v7
    v_and_b32 v7, 63, v7
    v_lshlrev_b32 v7, 2, v7
    v_lshrrev_b32 v5, 3, v0
    v_lshl_add_u32 v7, v5, 8, v7
    v_mad_u32_u24 v7, v8, v{vMK+0 if False else 34}, v7
    """.replace(f"v_mad_u32_u24 v7, v8, v34, v7", "v_mul_u32_u24 v34, 3072, v8\n    v_add_u32 v7, v7, v34"))
    A(f"""
    v_add_u32 v{oGG}, s57, v7
    v_mul_u32_u24 v7, 37, v8
    v_lshrrev_b32 v7, 8, v7
    v_add_u32 v7, v7, v8
    v_and_b32 v7, 1, v7
    v_add_u32 v7, 5, v7
    v_cmp_lt_u32 {M_GG}, v5, v7
    v_cmp_gt_u32 vcc, 7, v6
    s_and_b64 {M_GG}, {M_GG}, vcc
    s_lshl_b32 s56, s56, 6
    s_add_u32 s56, s56, {HS}
    v_and_b32 v7, 3, v0
    v_lshlrev_b32 v7, 4, v7
    v_bfe_u32 v8, v0, 2, 1
    v_lshl_add_u32 v7, v8, 3, v7
    v_lshl_add_u32 v7, v{vQ}, 1, v7
    v_add_u32 v{aHsW}, s56, v7
    """)
    aFs = 18
    A(f"""
    s_lshr_b32 s55, {SJ}, 7
    s_xor_b32 s55, s55, {SJ}
    s_and_b32 s55, s55, 1
    s_lshl_b32 s55, s55, 2
    s_add_u32 s55, s55, {SW}
    s_lshl_b32 s55, s55, 17
    s_lshr_b32 s56, {SJ}, 1
    s_lshl_b32 s56, s56, 7
    s_add_u32 s55, s55, s56
    s_add_u32 s55, s55, {FP}
    v_lshrrev_b32 v5, 3, v0
    v_lshlrev_b32 v5, 14, v5
    v_and_b32 v6, 7, v0
    v_lshl_add_u32 v5, v6, 4, v5
    v_add_u32 v{oFP}, s55, v5
    s_mov_b64 s[40:41], s[22:23]
    s_mov_b32 s42, 2048
    s_mov_b32 s43, 0x20000
    s_mov_b64 s[44:45], s[24:25]
    s_mov_b32 s46, 4096
    s_mov_b32 s47, 0x20000
    s_lshr_b32 s57, {SJ}, 2
    s_lshl_b32 s55, s57, 14
    s_lshl_b32 s56, {SW}, 12
    s_add_u32 s55, s55, s56
    s_add_u32 s55, s55, {FP}
    v_lshlrev_b32 v5, 4, v0
    v_add_u32 v{oFG}, s55, v5
    v_lshlrev_b32 v5, 2, v6
    v_lshl_add_u32 v{aFs}, v{vQ}, 5, v5
    s_lshr_b32 s55, s57, 3
    s_lshl_b32 s55, s55, 8
    s_and_b32 s56, s57, 1
    s_lshl_b32 s56, s56, 7
    s_add_u32 s55, s55, s56
    s_and_b32 s56, s57, 6
    s_lshl_b32 s56, s56, 2
    s_add_u32 s55, s55, s56
    v_and_b32 v5, 1, v0
    v_lshlrev_b32 v5, 11, v5
    v_lshl_add_u32 v5, v{vQ}, 1, v5
    v_and_b32 v6, 6, v0
    v_lshl_add_u32 v5, v6, 4, v5
    v_add_u32 v{oOut}, s55, v5
    """)
    if "g" in cst:
        A(f"""
        s_lshl_b32 s55, s2, 10
        s_lshl_b32 s56, {SW}, 8
        s_add_u32 s55, s55, s56
        s_add_u32 s55, s55, {GUP}
        v_lshlrev_b32 v5, 4, v0
        v_add_u32 v{oGU}, s55, v5
        s_mov_b32 s72, 0xffff
        s_mov_b32 s73, 0
        """)
    for key, lg in (("f", 6), ("h", 2), ("i", 1), ("j", 3)):
        if key in cst:
            A(f"""
            s_and_b32 s55, {SJ}, 1
            s_lshl_b32 s55, s55, 2
            s_add_u32 s55, s55, {SW}
            s_lshl_b32 s55, s55, 17
            s_lshr_b32 s56, {SJ}, 1
            s_lshl_b32 s56, s56, {4+lg}
            s_add_u32 s55, s55, s56
            s_add_u32 s55, s55, {FP}
            v_lshrrev_b32 v5, {lg}, v0
            v_lshlrev_b32 v5, {11+lg}, v5
            v_and_b32 v6, {(1<<lg)-1}, v0
            v_lshl_add_u32 v5, v6, 4, v5
            v_add_u32 v{oFP}, s55, v5
            """)
    A(f"s_cmp_lt_u32 {SW}, 2")
    A("s_cbranch_scc1 L_nog")
    A(f"""
    s_and_b32 s55, {SW}, 1
    s_lshl_b32 s56, s55, 3
    s_lshl_b32 s55, s55, 11
    v_lshlrev_b32 v5, 5, v0
    buffer_load_dwordx4 v[{F}:{F+3}], v5, s[32:35], s55 offen
    buffer_load_dwordx4 v[{F+4}:{F+7}], v5, s[32:35], s55 offen offset:16
    buffer_load_dwordx4 v[{F+8}:{F+11}], v5, s[40:43], 0 offen
    buffer_load_dwordx4 v[{F+12}:{F+15}], v5, s[40:43], 0 offen offset:16
    v_mov_b32 v9, 0
    s_waitcnt vmcnt(0)
    """)
    for i in range(8):
        A(f"""
        v_lshlrev_b32 v5, 16, v{F+i}
        v_lshlrev_b32 v6, 16, v{F+8+i}
        v_and_b32 v7, 0xffff0000, v{F+i}
        v_and_b32 v8, 0xffff0000, v{F+8+i}
        v_mul_f32 v5, v5, v6
        v_mul_f32 v7, v7, v8
        """)
        bf16_round_pair(6, 5, 7, 5, 7)
        A("v_add_f32 v9, v9, v5")
        A("v_add_f32 v9, v9, v7")
    A(f"""
    v_add_f32_dpp v9, v9, v9 quad_perm:[1,0,3,2] {DPPM}
    v_add_f32_dpp v9, v9, v9 quad_perm:[2,3,0,1] {DPPM}
    v_add_f32_dpp v9, v9, v9 row_ror:4 {DPPM}
    v_add_f32_dpp v9, v9, v9 row_ror:8 {DPPM}
    v_mov_b32 v8, v9
    v_permlane16_swap_b32 v9, v8
    v_add_f32 v9, v9, v8
    v_mov_b32 v8, v9
    v_permlane32_swap_b32 v9, v8
    v_add_f32 v9, v9, v8
    v_cvt_pk_bf16_f32 v9, v9, v9
    v_lshlrev_b32 v9, 16, v9
    v_mul_f32 v9, {f32(-LOG2E)}, v9
    v_exp_f32 v9, v9
    v_add_f32 v9, 1.0, v9
    v_rcp_f32 v9, v9
    v_cvt_pk_bf16_f32 v8, v9, v9
    v_lshlrev_b32 v8, 16, v8
    v_sub_f32 v9, 1.0, v8
    v_cvt_pk_bf16_f32 v9, v9, v9
    v_lshlrev_b32 v9, 16, v9
    v_mov_b32 v5, s56
    ds_write_b64 v5, v[8:9] offset:{GS}
    """)
    arrive(CO)
    A("L_nog:")
    A("s_waitcnt vmcnt(0)")
    stamp(1)
    gemv64(aWg, ACC, 24, spl7)
    stamp(2)
    id_load()
    gemv64(aWu, ACC + 4, 31, spl7)
    for j in range(4):
        A(f"v_cndmask_b32 v{ACC+8+j}, v{ACC+j}, v{ACC+4+j}, {M_B1}")
    tag4(ACC + 8, ACC + 8)
    A("s_waitcnt vmcnt(0)")
    id_check("s[98:99]")
    pub([(M_GU, f"buffer_store_dwordx4 v[{ACC+8}:{ACC+11}], v{oGU}, {WS}, 0 offen")], "g", "s[98:99]")
    stamp(3)
    zero_bt()
    A(f"s_cmp_ge_u32 {SW}, 2")
    A("s_cbranch_scc1 L_noh")
    GG, GU_ = ACC + 12, ACC + 16
    for i in range(8):
        A(f"v_mov_b32 v{GG+i}, 0")
    if gg:
        wait_prog(gg)
    A(f"s_mov_b64 exec, {M_GG}")
    gather([(GG, oGG, 0), (GU_, oGG, 1536)], fpol, hop="g")
    stamp(4)
    A(f"""
    v_permlane32_swap_b32 v{GG}, v{GG+2}
    v_permlane32_swap_b32 v{GG+1}, v{GG+3}
    v_permlane32_swap_b32 v{GU_}, v{GU_+2}
    v_permlane32_swap_b32 v{GU_+1}, v{GU_+3}
    v_add_f32 v{GG}, v{GG}, v{GG+2}
    v_add_f32 v{GG+1}, v{GG+1}, v{GG+3}
    v_add_f32 v{GU_}, v{GU_}, v{GU_+2}
    v_add_f32 v{GU_+1}, v{GU_+1}, v{GU_+3}
    v_permlane16_swap_b32 v{GG}, v{GG+1}
    v_permlane16_swap_b32 v{GU_}, v{GU_+1}
    v_add_f32 v{GG}, v{GG}, v{GG+1}
    v_add_f32 v{GU_}, v{GU_}, v{GU_+1}
    v_add_f32_dpp v{GG}, v{GG}, v{GG} row_ror:8 {DPPM}
    v_add_f32_dpp v{GU_}, v{GU_}, v{GU_} row_ror:8 {DPPM}
    """)
    bf16_round_pair(5, 6, 7, GG, GU_)
    A(f"""
    v_mul_f32 v8, v6, v6
    v_mov_b32 v9, {f32(GC1)}
    v_fmac_f32 v9, {f32(GC2)}, v8
    v_mul_f32 v9, v9, v6
    v_exp_f32 v9, v9
    v_add_f32 v9, 1.0, v9
    v_rcp_f32 v9, v9
    v_mul_f32 v9, v9, v6
    v_cvt_pk_bf16_f32 v9, v9, v9
    v_lshlrev_b32 v9, 16, v9
    v_mul_f32 v9, v9, v7
    v_cvt_pk_bf16_f32 v9, v9, v9
    ds_write_b16 v{aHsW}, v9
    """)
    arrive(CH)
    A("L_noh:")
    wait_prog(50)
    rd3(0)
    wait_cnt(CH, 2, bt_reads())
    stamp(5)
    wait_cnt(CA, 4, [f"ds_read_b128 v[{ACC+4}:{ACC+7}], v{aAS}", f"ds_read_b32 v9, v{aGS} offset:{GS+4}"])
    wait_prog(53)
    rd3(1)
    mm3()
    for j in range(4):
        A(f"v_fmac_f32 v{ACC+4+j}, v9, v{ACC+j}")
    tag4(ACC + 4, ACC + 4)
    if ffrac:
        A(f"s_lshr_b32 s55, s2, 4")
        A(f"s_and_b32 s55, s55, {ffrac-1}")
        A(f"s_cselect_b64 exec, 0, -1")
    A(f"buffer_store_dwordx4 v[{ACC+4}:{ACC+7}], v{oFP}, {WS}, 0 offen sc1")
    A("s_mov_b64 exec, -1")
    stamp(6)
    A(f"s_and_b32 s55, {SJ}, 3")
    A("s_cbranch_scc1 L_fin")
    gather([(G + 4 * i, oFG, 1024 * i) for i in range(4)], "sc1", hop="f")
    A(f"""
    v_pk_add_f32 v[{G}:{G+1}], v[{G}:{G+1}], v[{G+4}:{G+5}]
    v_pk_add_f32 v[{G+2}:{G+3}], v[{G+2}:{G+3}], v[{G+6}:{G+7}]
    v_pk_add_f32 v[{G+8}:{G+9}], v[{G+8}:{G+9}], v[{G+12}:{G+13}]
    v_pk_add_f32 v[{G+10}:{G+11}], v[{G+10}:{G+11}], v[{G+14}:{G+15}]
    v_pk_add_f32 v[{G}:{G+1}], v[{G}:{G+1}], v[{G+8}:{G+9}]
    v_pk_add_f32 v[{G+2}:{G+3}], v[{G+2}:{G+3}], v[{G+10}:{G+11}]
    s_lshl_b32 s55, {SW}, 7
    v_add_u32 v7, s55, v{aFs}
    """)
    red4(G)
    A(f"""
    v_add_f32_dpp v{G}, v{G}, v{G} row_ror:8 {DPPM}
    ds_write_b32 v7, v{G} offset:{FS}
    s_mov_b64 exec, 1
    ds_add_rtn_u32 v5, v{vZ}, v{vONE} offset:{CF}
    s_mov_b64 exec, -1
    ds_read_b32 v{G+4}, v{aFs} offset:{FS}
    ds_read_b32 v{G+5}, v{aFs} offset:{FS+128}
    ds_read_b32 v{G+6}, v{aFs} offset:{FS+256}
    ds_read_b32 v{G+7}, v{aFs} offset:{FS+384}
    s_waitcnt lgkmcnt(0)
    v_readfirstlane_b32 s55, v5
    v_add_f32 v{G+4}, v{G+4}, v{G+5}
    v_add_f32 v{G+6}, v{G+6}, v{G+7}
    v_add_f32 v{G+4}, v{G+4}, v{G+6}
    v_cvt_pk_bf16_f32 v6, v{G+4}, v{G+4}
    s_cmp_lg_u32 s55, 3
    s_cbranch_scc1 L_fin
    s_mov_b32 exec_lo, 0x00ff00ff
    s_mov_b32 exec_hi, 0x00ff00ff
    buffer_store_short v6, v{oOut}, s[44:47], 0 offen
    s_cmp_lg_u32 s2, 0
    s_cbranch_scc1 L_fin
    s_mov_b64 exec, 1
    v_mov_b32 v6, s48
    v_mov_b32 v7, s49
    s_mov_b32 s55, {EPOCH}
    v_mov_b32 v8, s55
    global_store_dwordx2 v8, v[6:7], s[28:29] sc1
    L_fin:
    """)
    A("s_mov_b64 exec, -1")
    stamp(7)
    dump_stamps()
    A("L_end:")
    A("s_endpgm")

    if nost:
        sel = {"q": f"v{oQP},", "o": f"v{oOP},", "m": f"v{oML},", "g": f"v{oGU},", "f": f"v{oFP},"}
        keys = list(sel.values()) if nost is True else [sel[c] for c in nost]
        A.L = [l for l in A.L if not (l.startswith("buffer_store_dwordx4") and "sc1" in l and any(k in l for k in keys))]
    if plain:
        sel = {"q": f"v{oQP},", "o": f"v{oOP},", "m": f"v{oML},", "g": f"v{oGU},", "f": f"v{oFP},"}
        keys = [sel[c] for c in plain]
        A.L = [l.replace(" sc1", "") if (l.startswith("buffer_store_dwordx4") and any(k in l for k in keys)) else l for l in A.L]
    if stpol != "sc1":
        A.L = [l.replace(" sc1", " " + stpol) if l.startswith("buffer_store_dwordx4") else l for l in A.L]
    body, nn = hazard_pass(A.L)
    out = []
    out.append(f"; @launch grid=(256,1,1) block=(576,1,1) lds={LDS_TOTAL}")
    out.append('.amdgcn_target "amdgcn-amd-amdhsa--gfx950"')
    out.append(".text")
    out.append(f".globl {NAME}_kernel")
    out.append(".p2align 8")
    out.append(f".type {NAME}_kernel,@function")
    out.append(f"{NAME}_kernel:")
    out += ["  " + l if not l.endswith(":") else l for l in body]
    out.append(f".fill (16384 + 64 - (. - L_worker)) / 4, 4, 0xbf810000")
    out.append('.section .rodata,"a"')
    out.append(".p2align 6")
    out.append(f".amdhsa_kernel {NAME}_kernel")
    out.append("  .amdhsa_next_free_vgpr 160")
    out.append("  .amdhsa_next_free_sgpr 102")
    out.append("  .amdhsa_accum_offset 160")
    out.append("  .amdhsa_group_segment_fixed_size 0")
    out.append("  .amdhsa_kernarg_size 104")
    out.append("  .amdhsa_user_sgpr_count 2")
    out.append("  .amdhsa_user_sgpr_kernarg_segment_ptr 1")
    out.append("  .amdhsa_system_sgpr_workgroup_id_x 1")
    out.append(".end_amdhsa_kernel")
    return "\n".join(out) + "\n"


if __name__ == "__main__":
    import argparse, ast
    ap = argparse.ArgumentParser()
    ap.add_argument("out")
    ap.add_argument("kw", nargs="*")
    a = ap.parse_args()
    kw = {}
    for s in a.kw:
        k, v = s.split("=", 1)
        try:
            kw[k] = ast.literal_eval(v)
        except Exception:
            kw[k] = v
    open(a.out, "w").write(gen(**kw))
```

```python
import sys, struct
from asmlib import Asm, hazard_pass

NAME = "gated_mix__sliding_block_cached__geglu_ffn__decode"

PROG = 0
CQ, CP, CO, CH, FA, FB, FC, CA, CF = 0x100, 0x104, 0x108, 0x10C, 0x110, 0x114, 0x118, 0x11C, 0x120
FS = 0x1800
ZERO = 0x200
QS, PS, MS, OS, HS, GS, AS = 0x400, 0xD00, 0x1600, 0x1680, 0x1700, 0x1780, 0x2000
PITCH = 288
RA, RC, RD, RB = 0x3000, 0xB000, 0x13000, 0x1A000
P3 = 4224
LDS_TOTAL = RB + 8 * P3
QP, ML, EPOCH, GUP, OP, FP, WS_END = 0, 0x20000, 0x2F000, 0x40000, 0x100000, 0x200000, 0x300000
IDT, PX = 0x2E000, 0x30000
TAGM = 0xFFF


def f32(x):
    return "0x%08x" % struct.unpack("<I", struct.pack("<f", x))[0]


LOG2E = 1.4426950408889634
SCALE = 128 ** -0.5
GC1 = -2.0 * LOG2E * 0.7978845608028654
GC2 = GC1 * 0.044715


def gen(D=16, stamps=False, spl1=(4, 8), spl7=(4, 7), ntflag="nt", gq=16, go=34, gg=44, gp=45, loc='og', ppol='sc1', once='', rpol='sc1', pre='', prepol='', fsm=0, fpol="",
        nog=False, nost=False, rot=1, qmap=0, bgmap=0, D3=0, cst='', stpol='sc1', wsoff=0, half=0, ofrac=0, ostr=0, omask=0, mlin=0, ffrac=0, gfrac=0, plain='', qfrac=0):
    A = Asm()
    d = D // 4
    assert D % 4 == 0
    d3 = (D3 or D) // 4
    assert d3 >= d

    VST = 152

    def stamp(i):
        if stamps:
            if i == 0:
                A(f"v_mov_b32 v{VST}, 0")
            A("s_memrealtime s[96:97]")
            A("s_waitcnt lgkmcnt(0)")
            A(f"v_writelane_b32 v{VST}, s96, {i}")

    def dstamp():
        if stamps:
            A("s_memrealtime s[96:97]")
            A("s_waitcnt lgkmcnt(0)")
            A(f"v_writelane_b32 v{VST}, s96, m0")
            A("s_add_u32 m0, m0, 1")
            A("s_min_u32 m0, m0, 63")

    def dump_stamps():
        if not stamps:
            return
        A("s_mov_b64 exec, -1")
        A("s_add_u32 s28, s28, 0x8000000")
        A("s_addc_u32 s29, s29, 0")
        A("s_mul_i32 s55, s2, 9")
        A("s_add_u32 s55, s55, s3")
        A("s_lshl_b32 s55, s55, 8")
        A("v_lshlrev_b32 v5, 2, v0")
        A("v_add_u32 v5, s55, v5")
        A(f"global_store_dword v5, v{VST}, s[28:29]")

    BUD, SPROG = "s30", "s31"

    def budget(k=1):
        A(f"s_sub_u32 {BUD}, {BUD}, {k}")
        A("s_cbranch_scc1 L_end")

    RB1, CB1 = "s100", "s101"

    def tile1():
        if qmap == 0:
            A(f"s_and_b32 {RB1}, s2, 3")
            A(f"s_lshr_b32 {CB1}, s2, 2")
        else:
            hi, lo = ("0x10000", "0x20001") if qmap == 1 else ("0x10002", "0x20000")
            A(f"""
            s_bfe_u32 {RB1}, s2, {hi}
            s_lshr_b32 s69, s2, 7
            s_lshl1_add_u32 {RB1}, {RB1}, s69
            s_bfe_u32 s69, s2, 0x40003
            s_bfe_u32 {CB1}, s2, {lo}
            s_lshl4_add_u32 {CB1}, {CB1}, s69
            """)

    def bg(dst, t):
        if bgmap == 0:
            A(f"s_and_b32 {dst}, s2, 7")
        else:
            A(f"s_and_b32 {dst}, s2, 1")
            A(f"s_bfe_u32 {t}, s2, 0x20001")
            A(f"s_lshl2_add_u32 {dst}, {dst}, {t}")

    def jidx(dst, t):
        A(f"s_and_b32 {dst}, s2, 7")
        A(f"s_lshl_b32 {dst}, {dst}, 5")
        A(f"s_lshr_b32 {t}, s2, 3")
        A(f"s_add_u32 {dst}, {dst}, {t}")

    stamp(0)
    W8, W7, VK, VV, VO = 10, 14, 18, 22, 24
    vP, vPa, vFr, vFa, vT = 28, 29, 30, 31, 32
    A(f"""
    s_cmp_ge_u32 s2, 256
    s_cbranch_scc1 L_end
    s_load_dwordx2 s[32:33], s[0:1], 24
    s_load_dwordx16 s[4:19], s[0:1], 0
    s_load_dwordx8 s[20:27], s[0:1], 64
    s_load_dwordx2 s[28:29], s[0:1], 96
    v_lshrrev_b32 v1, 6, v0
    v_lshrrev_b32 v34, 3, v0
    v_readfirstlane_b32 s3, v1
    v_and_b32 v35, 7, v0
    v_and_b32 v36, 2, v34
    s_mov_b32 {BUD}, 0x100000
    s_mov_b32 s35, 0x20000
    """)
    tile1()
    A(f"""
    s_cmp_lg_u32 s3, 0
    s_cbranch_scc1 L_worker
    s_setprio 3
    v_xor_b32 v35, v35, v36
    v_lshlrev_b32 v35, 4, v35
    v_xor_b32 v36, 64, v35
    v_lshl_add_u32 v{W8}, v34, 13, v35
    v_lshl_add_u32 v{W8+1}, v34, 13, v36
    v_add_u32 v{W8+1}, {65536-1024}, v{W8+1}
    v_add_u32 v{W8+2}, {2*(65536-1024)}, v{W8}
    v_add_u32 v{W8+3}, {2*(65536-1024)}, v{W8+1}
    s_lshl_b32 s68, {CB1}, 7
    s_lshl_b32 s60, {RB1}, 21
    s_add_u32 s60, s60, s68
    s_mov_b32 s34, {8<<20}
    s_mov_b32 m0, {RA}
    s_waitcnt lgkmcnt(0)
    """)
    srds = [(36, 6, 64 << 20), (40, 8, 64 << 20), (44, 16, 7 << 20), (48, 18, 7 << 20),
            (52, 12, 8 << 20), (56, 20, 7 << 20)]
    NPEEL = min(d, 7)

    def loader_setup():
        A(f"""
        v_lshrrev_b32 v4, 4, v0
        v_and_b32 v5, 15, v0
        v_xor_b32 v6, v5, v4
        v_lshlrev_b32 v6, 4, v6
        v_lshl_add_u32 v{VK}, v4, 8, v6
        v_xor_b32 v{VK+1}, 64, v{VK}
        v_xor_b32 v{VK+2}, 128, v{VK}
        v_xor_b32 v{VK+3}, 192, v{VK}
        v_lshlrev_b32 v6, 1, v4
        v_xor_b32 v6, v5, v6
        v_lshlrev_b32 v6, 4, v6
        v_lshl_add_u32 v{VV}, v4, 8, v6
        v_xor_b32 v{VV+1}, 128, v{VV}
        v_lshlrev_b32 v{VO}, 4, v0
        v_xor_b32 v{VO+1}, {1024+32}, v{VO}
        v_xor_b32 v{VO+2}, {2048+64}, v{VO}
        v_xor_b32 v{VO+3}, {3072+96}, v{VO}
        v_mul_u32_u24 v7, 7168, v34
        v_add_u32 v{W7}, v7, v35
        v_add_u32 v{W7+1}, v7, v36
        v_add_u32 v{W7+1}, {8*7168-1024}, v{W7+1}
        v_add_u32 v{W7+2}, {2*(8*7168-1024)}, v{W7}
        v_add_u32 v{W7+3}, {2*(8*7168-1024)}, v{W7+1}
        v_mov_b32 v{vP}, {NPEEL-d}
        v_lshlrev_b32 v{vPa}, 2, v0
        """)
        jidx("s67", "s68")
        A(f"""
        s_mul_i32 s69, s67, 7
        s_lshr_b32 s63, s69, 5
        s_lshl_b32 s63, s63, 7
        s_and_b32 s69, s69, 31
        s_mul_i32 s69, s69, {32*7168}
        s_add_u32 s63, s63, s69
        s_mov_b32 s64, s63
        s_lshr_b32 s69, s67, 7
        s_xor_b32 s69, s69, s67
        s_and_b32 s69, s69, 1
        s_lshl_b32 s69, s69, 10
        s_and_b32 s65, s67, 127
        s_lshl_b32 s65, s65, 16
        s_add_u32 s65, s65, s69
        s_lshr_b32 s67, s67, 1
        s_mul_i32 s66, s67, {28*2048}
        s_add_u32 s66, s66, s69
        """)
        bg("s67", "s69")
        A(f"""
        s_lshl_b32 s61, s67, 23
        s_lshl_b32 s69, s68, 15
        s_add_u32 s61, s61, s69
        s_add_u32 s61, s61, {28672*256}
        s_mov_b32 s62, s61
        """)
        for r, p, n in srds:
            A(f"s_mov_b64 s[{r}:{r+1}], s[{p}:{p+1}]")
            A(f"s_mov_b32 s{r+2}, {n}")
            A(f"s_mov_b32 s{r+3}, 0x20000")

    def group(srd, vo, soff):
        for t in range(4):
            off = f" offset:{1024*t}" if t else ""
            A(f"buffer_load_dwordx4 v{vo[t]}, s[{srd}:{srd+3}], {soff} offen{off} {ntflag} lds")

    def publish():
        A(f"v_add_u32 v{vP}, 1, v{vP}")
        A(f"ds_max_i32 v{vPa}, v{vP}")

    def tloop(srd, vo, soff, step, ng, base, free=None, skip=0, pitch=4096, wrap=False, dd=None, grow=0):
        dd = dd or d
        if not skip:
            A(f"s_mov_b32 m0, {base}")
        if free is not None:
            A(f"v_mov_b32 v{vFa}, {free}")
        for i in range(grow):
            group(srd, vo, soff)
            A(f"s_add_u32 {soff}, {soff}, {step}")
            A(f"s_add_u32 m0, m0, {pitch}")
        L = A.lab("L_ld")
        A(f"{L}:")
        group(srd, vo, soff)
        if free is not None:
            A(f"ds_read_b32 v{vFr}, v{vFa}")
        A(f"s_add_u32 {soff}, {soff}, {step}")
        if wrap:
            A(f"s_cmp_ge_u32 {soff}, {1024*7168}")
            A(f"s_cselect_b32 s73, {1024*7168-128}, 0")
            A(f"s_sub_u32 {soff}, {soff}, s73")
        A(f"s_add_u32 m0, m0, {pitch}")
        A(f"s_waitcnt vmcnt({4*dd})")
        publish()
        A(f"s_cmp_lg_u32 m0, {base + ng*pitch}")
        A(f"s_cbranch_scc1 {L}")
        if free is not None:
            ok, sp = A.lab("L_fok"), A.lab("L_fsp")
            A("s_waitcnt lgkmcnt(0)")
            A(f"v_readfirstlane_b32 s74, v{vFr}")
            A("s_cmp_ge_u32 s74, 4")
            A(f"s_cbranch_scc1 {ok}")
            A("s_waitcnt vmcnt(0)")
            A(f"v_add_u32 v{vT}, {dd}, v{vP}")
            A(f"ds_max_i32 v{vPa}, v{vT}")
            A(f"{sp}:")
            A(f"ds_read_b32 v{vFr}, v{vFa}")
            A("s_waitcnt lgkmcnt(0)")
            A(f"v_readfirstlane_b32 s74, v{vFr}")
            budget()
            A("s_cmp_lt_u32 s74, 4")
            A(f"s_cbranch_scc1 {sp}")
            A(f"{ok}:")

    w8 = [W8 + t for t in range(4)]
    w7 = [W7 + t for t in range(4)]
    vk = [VK + t for t in range(4)]
    vv = [VV, VV, VV + 1, VV + 1]
    vo = [VO + t for t in range(4)]
    A("L_ld0:")
    group(32, w8, "s60")
    A(f"s_add_u32 s60, s60, {32*8192}")
    A("s_add_u32 m0, m0, 4096")
    A(f"s_cmp_lg_u32 m0, {RA + NPEEL*4096}")
    A("s_cbranch_scc1 L_ld0")
    stamp(1)
    loader_setup()
    A("s_barrier")
    tloop(32, w8, "s60", 32 * 8192, 8, RA, skip=NPEEL)
    stamp(2)
    if not rot:
        tloop(36, vk, "s61", 4096, 8, RB)
        tloop(40, vv, "s62", 4096, 8, RC)
    else:
        A("s_bfe_u32 s67, s2, 0x30003")
        A("s_lshl_b32 s67, s67, 12")
        A("s_mov_b32 s68, s67")
        for srd, vo_, base in ((36, vk, RB), (40, vv, RC)):
            L = A.lab("L_rt")
            A(f"{L}:")
            A(f"s_add_u32 m0, s68, {base}")
            A("s_add_u32 s69, s68, s61")
            group(srd, vo_, "s69")
            A("s_add_u32 s68, s68, 4096")
            A("s_and_b32 s68, s68, 0x7fff")
            A(f"s_waitcnt vmcnt({4*d})")
            publish()
            A("s_cmp_lg_u32 s68, s67")
            A(f"s_cbranch_scc1 {L}")
    stamp(3)
    tloop(44, w7, "s63", 32 * 7168, 7, RD, free=FA, wrap=True)
    tloop(48, w7, "s64", 32 * 7168, 7, RA, free=FB, wrap=True)
    stamp(4)
    tloop(52, vo, "s65", 8192, 8, RB, free=FC, pitch=P3, dd=d3, grow=d3 - d)
    stamp(5)
    tloop(56, vo, "s66", 8192, 7, RC, pitch=P3, dd=d3)
    stamp(6)
    for k in range(d3 - 1, -1, -1):
        A(f"s_waitcnt vmcnt({4*k})")
        publish()
    stamp(7)
    dump_stamps()
    A("s_endpgm")

    vN, vQ, vZ, vMK, vONE = 1, 2, 3, 4, 33
    aW, aV0, aV1 = 10, 24, 25
    X, F, ACC = 40, 72, 104
    T = ["s50", "s51", "s52", "s53"]
    SW = "s54"
    WS = "s[36:39]"
    M_N2, M_N4, M_HI8, M_B1 = "s[60:61]", "s[62:63]", "s[64:65]", "s[66:67]"
    SJ = "s68"
    SID = "s71"
    vID = 137
    A("L_worker:")
    if stamps:
        A("s_mov_b32 m0, 32")
    A(f"""
    s_getpc_b64 s[40:41]
    s_cmp_gt_u32 s3, 2
    s_cbranch_scc1 L_nopf
    v_lshlrev_b32 v1, 7, v0
    v_add_u32 v1, -8192, v1
    global_load_dword v136, v1, s[40:41]
    L_nopf:
    v_and_b32 v0, 63, v0
    v_mov_b32 v4, 0
    v_mov_b32 v5, 0
    v_mov_b32 v6, 0
    v_mov_b32 v7, 0
    v_lshlrev_b32 v2, 4, v0
    ds_write_b128 v2, v[4:7]
    s_lshl_b32 s55, {RB1}, 9
    v_lshrrev_b32 v{vQ}, 4, v0
    v_and_b32 v9, 1, v0
    v_lshlrev_b32 v9, 11, v9
    v_lshl_add_u32 v9, v{vQ}, 4, v9
    s_mov_b32 s34, 4096
    s_mov_b32 s62, 0x000f000f
    s_mov_b32 s63, 0x000f000f
    s_waitcnt lgkmcnt(0)
    s_load_dwordx2 s[48:49], s[28:29], {EPOCH}
    s_mov_b64 s[32:33], s[4:5]
    s_cmp_gt_u32 s3, 4
    s_cbranch_scc1 L_nox
    s_mov_b64 exec, s[62:63]
    """)
    for s in range(8):
        A(f"buffer_load_dwordx4 v[{X+4*s}:{X+4*s+3}], v9, s[32:35], s55 offen offset:{64*s}")
    A(f"""
    s_mov_b64 exec, -1
    L_nox:
    s_barrier
    s_sub_u32 {SW}, s3, 1
    s_and_b32 {SW}, {SW}, 3
    s_mov_b32 {SPROG}, 0
    v_and_b32 v{vN}, 15, v0
    v_mov_b32 v{vZ}, 0
    v_mov_b32 v{vMK}, 0x{0xFFFFFFFF ^ TAGM:x}
    v_mov_b32 v{vONE}, 1
    s_mov_b32 s38, {WS_END}
    s_mov_b32 s39, 0x20000
    s_add_u32 s36, s28, {wsoff}
    s_addc_u32 s37, s29, 0
    v_bfe_u32 v5, v0, 2, 2
    v_lshl_add_u32 v5, v{vQ}, 3, v5
    v_and_b32 v6, 3, v0
    v_lshlrev_b32 v6, 3, v6
    v_bfe_u32 v7, v0, 3, 2
    v_xor_b32 v7, {SW}, v7
    v_lshl_add_u32 v7, v7, 5, v6
    v_lshl_add_u32 v{aW}, v5, 7, v7
    s_lshl_b32 s55, {SW}, 1
    v_bfe_u32 v7, v0, 2, 3
    v_xor_b32 v7, s55, v7
    v_lshl_add_u32 v7, v7, 5, v6
    v_lshl_add_u32 v{aV0}, v5, 8, v7
    s_mov_b32 s60, 0x00030003
    s_mov_b32 s61, 0x00030003
    s_waitcnt lgkmcnt(0)
    s_add_u32 s48, s48, 1
    s_addc_u32 s49, s49, 0
    s_and_b32 s50, s48, {TAGM}
    s_lshr_b32 s55, s48, 12
    s_add_u32 s55, s55, s48
    s_and_b32 s51, s55, {TAGM}
    s_lshr_b64 s[56:57], s[48:49], 24
    s_add_u32 s55, s56, s48
    s_and_b32 s52, s55, {TAGM}
    s_lshr_b32 s55, s49, 4
    s_add_u32 s55, s55, s48
    s_and_b32 s53, s55, {TAGM}
    s_getreg_b32 s55, hwreg(HW_REG_XCC_ID, 0, 4)
    s_lshl4_add_u32 {SID}, s48, s55
    """)
    if half:
        A(f"s_bitcmp1_b32 s2, {half}")
        A(f"s_cselect_b32 s38, s38, 0")
    a3, aBR, aAS, aGS = 140, 153, 154, 155

    def common2(reg3, bsrc):
        A(f"""
        s_mov_b32 s64, 0xff00ff00
        s_mov_b32 s65, 0xff00ff00
        s_mov_b32 s66, 0xcccccccc
        s_mov_b32 s67, 0xcccccccc
        """)
        jidx(SJ, "s55")
        A(f"""
        s_lshl_b32 s55, {SW}, 8
        s_add_u32 s55, s55, {reg3}
        v_mul_u32_u24 v5, {P3}, v{vQ}
        v_bfe_u32 v6, v0, 2, 2
        v_mul_u32_u24 v6, 1056, v6
        v_and_b32 v7, 3, v0
        v_lshl_add_u32 v5, v7, 3, v5
        v_add3_u32 v{a3}, v5, v6, s55
        v_xor_b32 v{a3+1}, 32, v{a3}
        v_xor_b32 v{a3+2}, 64, v{a3}
        v_xor_b32 v{a3+3}, 96, v{a3}
        v_and_b32 v5, 1, v0
        v_lshlrev_b32 v6, 6, v5
        v_lshl_add_u32 v6, v{vQ}, 4, v6
        v_add_u32 v{aBR}, {bsrc}, v6
        v_lshlrev_b32 v{aGS}, 3, v5
        s_lshl_b32 s55, {SW}, 10
        s_add_u32 s55, s55, {AS}
        v_lshlrev_b32 v6, 4, v0
        v_add_u32 v{aAS}, s55, v6
        """)

    def id_load():
        A(f"""
        s_and_b32 s55, s2, 7
        s_lshl_b32 s55, s55, 7
        s_add_u32 s55, s55, {IDT}
        v_and_b32 v5, 31, v0
        v_lshlrev_b32 v5, 2, v5
        buffer_load_dword v{vID}, v5, {WS}, s55 offen
        """)

    def id_check(dst):
        A(f"v_cmp_ne_u32 {dst}, {SID}, v{vID}")

    def pub(stores, key, flag):
        def emit(pol):
            for ex, t in stores:
                if ex is not None:
                    A(f"s_mov_b64 exec, {ex}")
                A(t + pol)
        if key not in loc:
            emit(" sc1")
        else:
            a, b = A.lab("L_pw"), A.lab("L_pd")
            A(f"s_cmp_lg_u64 {flag}, 0")
            A(f"s_cbranch_scc1 {a}")
            emit("")
            stamp(20)
            A(f"s_branch {b}")
            A(f"{a}:")
            emit(" sc1")
            stamp(21)
            A(f"{b}:")
        A("s_mov_b64 exec, -1")

    def wait_prog(thr):
        ok, sp = A.lab("L_pok"), A.lab("L_psp")
        A(f"s_cmp_ge_i32 {SPROG}, {thr}")
        A(f"s_cbranch_scc1 {ok}")
        A(f"{sp}:")
        A(f"ds_read_b32 v5, v{vZ} offset:{PROG}")
        A("s_waitcnt lgkmcnt(0)")
        A(f"v_readfirstlane_b32 {SPROG}, v5")
        budget()
        A(f"s_cmp_lt_i32 {SPROG}, {thr}")
        A(f"s_cbranch_scc1 {sp}")
        A(f"{ok}:")

    def arrive(cnt):
        A("s_mov_b64 exec, 1")
        A(f"ds_add_u32 v{vZ}, v{vONE} offset:{cnt}")
        A("s_mov_b64 exec, -1")

    def wait_cnt(cnt, n, reads):
        sp = A.lab("L_csp")
        A(f"{sp}:")
        A(f"ds_read_b32 v5, v{vZ} offset:{cnt}")
        for r in reads:
            A(r)
        A("s_waitcnt lgkmcnt(0)")
        A("v_readfirstlane_b32 s55, v5")
        budget()
        A(f"s_cmp_lt_u32 s55, {n}")
        A(f"s_cbranch_scc1 {sp}")

    def tag4(dst, src):
        for j in range(4):
            A(f"v_and_or_b32 v{dst+j}, v{src+j}, v{vMK}, {T[j]}")

    MASKS = [80, 82, 84, 86, 88, 90, 92, 94]

    def gather(loads, first, hop=""):
        if nog is True or (nog and hop in nog):
            A("s_mov_b64 exec, -1")
            return
        g, dn = A.lab("L_g"), A.lab("L_gd")
        n = len(loads)

        def ld(dst, vo_, off, pol):
            o = f" offset:{off}" if off else ""
            A(f"buffer_load_dwordx4 v[{dst}:{dst+3}], v{vo_}, {WS}, 0 offen{o} {pol}")

        def chk(i, dst):
            m = MASKS[i]
            for j in range(4):
                A(f"v_xor_b32 v{dst+j}, {T[j]}, v{dst+j}")
            A(f"v_or3_b32 v5, v{dst}, v{dst+1}, v{dst+2}")
            A(f"v_or_b32 v5, v5, v{dst+3}")
            A(f"v_and_b32 v5, {TAGM}, v5")
            A(f"v_cmp_ne_u32 s[{m}:{m+1}], 0, v5")

        def anym():
            if n == 1:
                A(f"s_mov_b64 vcc, s[{MASKS[0]}:{MASKS[0]+1}]")
            for i in range(1, n):
                src = f"s[{MASKS[0]}:{MASKS[0]+1}]" if i == 1 else "vcc"
                A(f"s_or_b64 vcc, {src}, s[{MASKS[i]}:{MASKS[i]+1}]")

        stamp({"q": 10, "o": 12, "g": 10, "f": 12}[hop])
        for dst, vo_, off in loads:
            ld(dst, vo_, off, first)
        for i, (dst, vo_, off) in enumerate(loads):
            A(f"s_waitcnt vmcnt({n-1-i})")
            chk(i, dst)
        anym()
        dstamp()
        stamp({"q": 11, "o": 13, "g": 11, "f": 13}[hop])
        if hop in once:
            A("s_mov_b64 exec, -1")
            return
        A(f"s_cbranch_vccz {dn}")
        A(f"{g}:")
        for i, (dst, vo_, off) in enumerate(loads):
            A(f"s_mov_b64 exec, s[{MASKS[i]}:{MASKS[i]+1}]")
            ld(dst, vo_, off, "sc1")
        for i, (dst, vo_, off) in enumerate(loads):
            A(f"s_mov_b64 exec, s[{MASKS[i]}:{MASKS[i]+1}]")
            A(f"s_waitcnt vmcnt({n-1-i})")
            chk(i, dst)
        anym()
        dstamp()
        budget(16)
        A(f"s_cbranch_vccnz {g}")
        A(f"{dn}:")
        A("s_mov_b64 exec, -1")

    def mfma(dst, a, b, c):
        cs = "0" if c is None else f"v[{c}:{c+3}]"
        A(f"v_mfma_f32_16x16x32_bf16 v[{dst}:{dst+3}], v[{a}:{a+3}], v[{b}:{b+3}], {cs}")

    def gemv64(areg, acc, gbase, splits, first_vm=False):
        s0 = 0
        for k, s1 in enumerate(splits):
            wait_prog(gbase + s1)
            for s in range(s0, s1):
                A(f"ds_read_b64_tr_b16 v[{F+4*s}:{F+4*s+1}], v{areg} offset:{4096*s}")
                A(f"ds_read_b64_tr_b16 v[{F+4*s+2}:{F+4*s+3}], v{areg} offset:{4096*s+512}")
            if k == 0 and first_vm:
                A("s_waitcnt vmcnt(0)")
            for s in range(s0, s1):
                A(f"s_waitcnt lgkmcnt({2*(s1-1-s)})")
                mfma(acc, F + 4 * s, X + 4 * s, None if s == 0 else acc)
            s0 = s1

    def bf16_round_pair(pk, lo, hi, a, b):
        A(f"v_cvt_pk_bf16_f32 v{pk}, v{a}, v{b}")
        A(f"v_lshlrev_b32 v{lo}, 16, v{pk}")
        A(f"v_and_b32 v{hi}, 0xffff0000, v{pk}")

    DPPM = "row_mask:0xf bank_mask:0xf"
    BT = X

    def zero_bt():
        for i in range(32):
            A(f"v_mov_b32 v{BT+i}, 0")

    def bt_reads():
        rd = [f"s_mov_b64 exec, {M_N2}"]
        for t in range(8):
            rd.append(f"ds_read_b128 v[{BT+4*t}:{BT+4*t+3}], v{aBR}")
            rd.append("s_lshl_b64 exec, exec, 2" if t < 7 else "s_mov_b64 exec, -1")
        return rd

    def rd3(half):
        for t in range(8):
            r = F + 4 * t + 2 * half
            A(f"ds_read_b64_tr_b16 v[{r}:{r+1}], v{a3+(t&3)} offset:{4*P3*half + 128*(t>>2)}")

    def mm3():
        for t in range(8):
            A(f"s_waitcnt lgkmcnt({7-t})")
            mfma(ACC, F + 4 * t, BT + 4 * t, None if t == 0 else ACC)

    def red4(r):
        A(f"""
        v_permlane32_swap_b32 v{r}, v{r+2}
        v_permlane32_swap_b32 v{r+1}, v{r+3}
        v_add_f32 v{r}, v{r}, v{r+2}
        v_add_f32 v{r+1}, v{r+1}, v{r+3}
        v_permlane16_swap_b32 v{r}, v{r+1}
        v_add_f32 v{r}, v{r}, v{r+1}
        """)

    A("s_cmp_gt_u32 s3, 4")
    A("s_cbranch_scc1 L_F")

    oQP, oQG, aQsW, aQsR, aK = 11, 12, 13, 14, 15
    aPsW, aMsW, aPlo, aPhi, aMsR = 19, 20, 21, 22, 23
    oOP, oML, oOPG, oMLG, aOsW, oPX = 26, 27, 28, 29, 30, 31
    T16, FLG = "s77", "s[98:99]"
    SBG, SSPL = "s73", "s75"
    SC = "s76"
    A(f"""
    v_add_u32 v{aW}, {RA}, v{aW}
    s_lshr_b32 s55, {CB1}, 2
    s_lshl_b32 s55, s55, 12
    s_lshl_b32 s56, {RB1}, 10
    s_add_u32 s55, s55, s56
    s_and_b32 s56, {CB1}, 3
    s_lshl_b32 s56, s56, 8
    s_add_u32 s55, s55, s56
    s_lshl_b32 s56, {SW}, 6
    s_add_u32 s55, s55, s56
    v_and_b32 v5, 1, v0
    v_lshlrev_b32 v5, 16, v5
    v_lshl_add_u32 v5, v{vQ}, 4, v5
    v_add_u32 v{oQP}, s55, v5
    """)
    MQ = M_N2
    if "q" in cst:
        A(f"""
        s_lshl_b32 s55, s2, 9
        s_lshl_b32 s56, {SW}, 7
        s_add_u32 s55, s55, s56
        v_lshlrev_b32 v5, 4, v0
        v_add_u32 v{oQP}, s55, v5
        """)
        MQ = "0xff"
    stamp(1)
    gemv64(aW, ACC, 0, spl1, first_vm=True)
    arrive(FA)
    tag4(ACC + 4, ACC)
    A(f"s_mov_b64 exec, {MQ}")
    if qfrac:
        A(f"s_lshr_b32 s55, s2, 3")
        A(f"s_and_b32 s55, s55, {qfrac-1}")
        A(f"s_cselect_b64 exec, 0, exec")
    A(f"buffer_store_dwordx4 v[{ACC+4}:{ACC+7}], v{oQP}, {WS}, 0 offen sc1")
    A("s_mov_b64 exec, -1")
    stamp(2)
    common2(RB, OS)
    bg(SBG, "s55")
    A(f"""
    s_lshr_b32 {SSPL}, s2, 3
    s_mov_b32 {SC}, {f32(LOG2E)}
    """)
    A(f"""
    s_lshl_b32 s55, {SW}, 13
    s_add_u32 s55, s55, {RB}
    v_xor_b32 v5, v{vQ}, v{vN}
    v_lshlrev_b32 v5, 4, v5
    v_lshl_add_u32 v5, v{vN}, 8, v5
    v_add_u32 v{aK}, s55, v5
    v_xor_b32 v{aK+1}, 64, v{aK}
    v_xor_b32 v{aK+2}, 128, v{aK}
    v_xor_b32 v{aK+3}, 192, v{aK}
    v_add_u32 v{aV0}, {RC}, v{aV0}
    v_xor_b32 v{aV1}, 32, v{aV0}
    """)
    A(f"""
    s_lshl_b32 s55, {SBG}, 2
    s_add_u32 s55, s55, {SW}
    s_lshl_b32 s55, s55, 12
    v_lshlrev_b32 v5, 4, v0
    v_add_u32 v{oQG}, s55, v5
    """)
    A(f"""
    s_mul_i32 s55, {SW}, {2*PITCH}
    s_add_u32 s55, s55, {QS}
    v_lshrrev_b32 v5, 5, v0
    v_mul_u32_u24 v5, {PITCH}, v5
    v_and_b32 v6, 31, v0
    v_lshl_add_u32 v5, v6, 3, v5
    v_add_u32 v{aQsW}, s55, v5
    v_and_b32 v6, 7, v0
    v_mul_u32_u24 v7, {PITCH}, v6
    v_lshl_add_u32 v8, v{vQ}, 4, v7
    v_add_u32 v{aQsR}, {QS}, v8
    v_add_u32 v8, {PS}, v8
    v_mov_b32 v9, {ZERO}
    v_cndmask_b32 v{aPlo}, v8, v9, {M_HI8}
    v_cndmask_b32 v{aPhi}, v9, v8, {M_HI8}
    v_lshlrev_b32 v9, 4, v6
    v_add_u32 v{aMsR}, {MS}, v9
    s_lshl_b32 s55, {SW}, 2
    v_add_u32 v{aMsW}, s55, v{aMsR}
    s_lshl_b32 s55, {SW}, 6
    s_add_u32 s55, s55, {PS}
    v_and_b32 v9, 8, v0
    v_lshlrev_b32 v9, 2, v9
    v_lshl_add_u32 v9, v{vQ}, 3, v9
    v_add3_u32 v{aPsW}, v7, v9, s55
    """)
    A(f"""
    s_lshl_b32 s55, {SBG}, 17
    s_lshl_b32 s56, {SW}, 12
    s_add_u32 s55, s55, s56
    s_lshl_b32 s56, {SSPL}, 7
    s_add_u32 s55, s55, s56
    s_add_u32 s55, s55, {OP}
    v_lshlrev_b32 v9, 1, v9
    v_lshl_add_u32 v9, v6, 14, v9
    v_add_u32 v{oOP}, s55, v9
    s_lshl_b32 s55, {SBG}, 12
    s_lshl_b32 s56, {SSPL}, 4
    s_add_u32 s55, s55, s56
    s_add_u32 s55, s55, {ML}
    v_lshlrev_b32 v9, 9, v6
    v_add_u32 v{oML}, s55, v9
    """)
    A(f"""
    s_lshl_b32 s55, {SJ}, 12
    s_and_b32 s58, {SW}, 1
    s_lshl_b32 s59, s58, 6
    s_add_u32 s55, s55, s59
    s_add_u32 s55, s55, {OP}
    v_lshrrev_b32 v5, 2, v0
    v_and_b32 v6, 3, v0
    v_lshlrev_b32 v7, 4, v6
    v_lshl_add_u32 v8, v5, 7, v7
    v_add_u32 v{oOPG}, s55, v8
    s_lshr_b32 s57, {SJ}, 2
    s_lshl_b32 s57, s57, 9
    s_add_u32 s57, s57, {ML}
    v_and_b32 v8, 1, v0
    v_lshlrev_b32 v8, 8, v8
    v_lshl_add_u32 v8, v5, 4, v8
    v_add_u32 v{oMLG}, s57, v8
    s_and_b32 s56, s2, 4
    s_lshl_b32 s56, s56, 4
    s_cmp_ge_u32 {SW}, 2
    s_cbranch_scc1 L_a2
    s_lshl_b32 s58, s58, 3
    s_add_u32 s56, s56, s58
    s_add_u32 s56, s56, {OS}
    v_lshl_add_u32 v8, v{vQ}, 1, v7
    v_add_u32 v{aOsW}, s56, v8
    s_lshl_b32 s55, s2, 7
    s_add_u32 s55, s55, s59
    s_add_u32 s55, s55, {PX}
    v_lshl_add_u32 v8, v{vQ}, 2, v7
    v_add_u32 v{oPX}, s55, v8
    s_branch L_a3
    L_a2:
    s_xor_b32 s56, s56, {OS+64}
    v_and_b32 v8, 12, v0
    v_lshlrev_b32 v8, 2, v8
    v_lshl_add_u32 v8, v6, 1, v8
    v_bfe_u32 v7, v0, 4, 1
    v_lshl_add_u32 v8, v7, 3, v8
    v_add_u32 v{aOsW}, s56, v8
    s_xor_b32 s55, s2, 4
    s_lshl_b32 s55, s55, 7
    s_add_u32 s55, s55, {PX}
    v_and_b32 v8, 31, v0
    v_lshlrev_b32 v8, 2, v8
    v_add_u32 v{oPX}, s55, v8
    L_a3:
    s_and_b32 {T16}, s48, 0xffff
    """)
    if "o" in pre:
        A(f"buffer_load_dword v138, v{oOP}, {WS}, 0 offen {prepol}")
        A(f"buffer_load_dword v139, v{oML}, {WS}, 0 offen {prepol}")
    ONES = 132
    A(f"""
    v_mov_b32 v{ONES}, 0x3f803f80
    v_mov_b32 v{ONES+1}, 0x3f803f80
    v_mov_b32 v{ONES+2}, 0x3f803f80
    v_mov_b32 v{ONES+3}, 0x3f803f80
    s_lshl_b32 s55, {SW}, 1
    s_lshl_b32 s78, 3, s55
    s_mov_b32 s79, 0
    """)

    if "o" in cst:
        A(f"""
        s_lshl_b32 s55, s2, 12
        s_lshl_b32 s56, {SW}, 10
        s_add_u32 s55, s55, s56
        s_add_u32 s55, s55, {OP}
        v_lshlrev_b32 v5, 4, v0
        v_add_u32 v{oOP}, s55, v5
        s_lshl_b32 s55, s2, 7
        s_add_u32 s55, s55, {ML}
        v_add_u32 v{oML}, s55, v5
        s_cmp_eq_u32 {SW}, 0
        s_cselect_b32 s78, 0xff, 0
        """)

    def kfrags():
        if rot:
            wait_prog(16)
        else:
            A(f"s_lshl_b32 s77, {SW}, 1")
            A("s_add_u32 s77, s77, 10")
            wait_prog("s77")
        for t in range(2):
            for s in range(4):
                r = F + 16 * t + 4 * s
                A(f"ds_read_b128 v[{r}:{r+3}], v{aK+s} offset:{4096*t}")
        arrive(FB)

    G = X
    kfirst = gq >= 16
    if gq:
        wait_prog(gq)
    if kfirst:
        kfrags()
    id_load()
    gather([(G + 4 * r, oQG, 1024 * r) for r in range(4)], fpol, hop="q")
    A("s_waitcnt vmcnt(0)")
    id_check(FLG)
    A(f"""
    v_pk_add_f32 v[{G}:{G+1}], v[{G}:{G+1}], v[{G+4}:{G+5}]
    v_pk_add_f32 v[{G+2}:{G+3}], v[{G+2}:{G+3}], v[{G+6}:{G+7}]
    v_pk_add_f32 v[{G+8}:{G+9}], v[{G+8}:{G+9}], v[{G+12}:{G+13}]
    v_pk_add_f32 v[{G+10}:{G+11}], v[{G+10}:{G+11}], v[{G+14}:{G+15}]
    v_pk_add_f32 v[{G}:{G+1}], v[{G}:{G+1}], v[{G+8}:{G+9}]
    v_pk_add_f32 v[{G+2}:{G+3}], v[{G+2}:{G+3}], v[{G+10}:{G+11}]
    v_cvt_pk_bf16_f32 v6, v{G}, v{G+1}
    v_cvt_pk_bf16_f32 v7, v{G+2}, v{G+3}
    ds_write_b64 v{aQsW}, v[6:7]
    """)
    arrive(CQ)
    stamp(3)
    if not kfirst:
        kfrags()
    QF = X + 16
    wait_cnt(CQ, 4, [f"ds_read_b128 v[{QF+4*s}:{QF+4*s+3}], v{aQsR} offset:{64*s}" for s in range(4)])
    for s in range(4):
        for t in range(2):
            mfma(ACC + 4 * t, F + 16 * t + 4 * s, QF + 4 * s, None if s == 0 else ACC + 4 * t)
    S = X
    for j in range(4):
        A(f"v_cndmask_b32 v{S+j}, v{ACC+j}, v{ACC+4+j}, {M_HI8}")
    bf16_round_pair(6, S, S + 1, S, S + 1)
    bf16_round_pair(7, S + 2, S + 3, S + 2, S + 3)
    for j in range(4):
        A(f"v_mul_f32 v{S+j}, {f32(SCALE)}, v{S+j}")
    bf16_round_pair(6, S, S + 1, S, S + 1)
    bf16_round_pair(7, S + 2, S + 3, S + 2, S + 3)
    A(f"""
    v_max3_f32 v6, v{S}, v{S+1}, v{S+2}
    v_max_f32 v6, v6, v{S+3}
    v_max_f32_dpp v6, v6, v6 row_ror:8 {DPPM}
    v_mov_b32 v7, v6
    v_permlane16_swap_b32 v6, v7
    v_max_f32 v6, v6, v7
    v_mov_b32 v7, v6
    v_permlane32_swap_b32 v6, v7
    v_max_f32 v6, v6, v7
    v_mul_f32 v7, {SC}, v6
    """)
    for j in range(4):
        A(f"v_fma_f32 v{S+j}, v{S+j}, {SC}, -v7")
    for j in range(4):
        A(f"v_exp_f32 v{S+j}, v{S+j}")
    A(f"""
    v_cvt_pk_bf16_f32 v8, v{S}, v{S+1}
    v_cvt_pk_bf16_f32 v9, v{S+2}, v{S+3}
    ds_write_b64 v{aPsW}, v[8:9]
    s_mov_b64 exec, 0xff
    ds_write_b32 v{aMsW}, v6
    """)
    arrive(CP)
    stamp(4)
    wait_prog(24)
    for t in range(2):
        for s in range(4):
            r = F + 16 * t + 4 * s
            A(f"ds_read_b64_tr_b16 v[{r}:{r+1}], v{aV0+t} offset:{8192*s}")
            A(f"ds_read_b64_tr_b16 v[{r+2}:{r+3}], v{aV0+t} offset:{8192*s+1024}")
    arrive(FC)
    PL, PH, MSV = X, X + 16, 36
    rd = [f"ds_read_b128 v[{MSV}:{MSV+3}], v{aMsR}"]
    for s in range(4):
        rd.append(f"ds_read_b128 v[{PL+4*s}:{PL+4*s+3}], v{aPlo} offset:{64*s}")
        rd.append(f"ds_read_b128 v[{PH+4*s}:{PH+4*s+3}], v{aPhi} offset:{64*s}")
    wait_cnt(CP, 4, rd)
    LAs = [120, 124, 128, 144]
    fw = ["v_max3_f32 v6, v36, v37, v38", "v_max_f32 v6, v6, v39"]
    for s in range(4):
        fw.append(f"v_sub_f32 v{MSV+s}, v{MSV+s}, v6")
    for s in range(4):
        fw.append(f"v_mul_f32 v{MSV+s}, {SC}, v{MSV+s}")
    for s in range(4):
        fw.append(f"v_exp_f32 v{MSV+s}, v{MSV+s}")
    fw.append(f"v_or_b32 v148, {T[0]}, v6")
    fw.append(f"v_mov_b32 v150, {T[2]}")
    fw.append(f"v_mov_b32 v151, {T[3]}")
    k = 0
    for t in range(2):
        for s in range(4):
            mfma(ACC + 4 * s, F + 16 * t + 4 * s, (PL, PH)[t] + 4 * s, None if t == 0 else ACC + 4 * s)
            for _ in range(2):
                if k < len(fw):
                    A(fw[k]); k += 1
    while k < len(fw):
        A(fw[k]); k += 1
    O = F
    for s in range(4):
        mfma(LAs[s], ONES, PL + 4 * s, None)
        for j in range(4):
            if s == 0:
                A(f"v_mul_f32 v{O+j}, v{MSV}, v{ACC+j}")
            else:
                A(f"v_fmac_f32 v{O+j}, v{MSV+s}, v{ACC+4*s+j}")
    tag4(O + 4, O)
    A(f"v_mul_f32 v7, v{MSV}, v{LAs[0]}")
    for s in range(1, 4):
        A(f"v_fmac_f32 v7, v{MSV+s}, v{LAs[s]}")
    A(f"v_and_or_b32 v149, v7, v{vMK}, {T[1]}")
    pub([(None, f"buffer_store_dwordx4 v[{O+4}:{O+7}], v{oOP}, {WS}, 0 offen"),
         ("s[78:79]", f"buffer_store_dwordx4 v[148:151], v{oML}, {WS}, 0 offen")], "o", FLG)
    stamp(5)
    zero_bt()
    MR, G0, G1 = ACC, ACC + 4, ACC + 8
    A(f"s_cmp_ge_u32 {SW}, 2")
    A("s_cbranch_scc1 L_px")
    if go:
        wait_prog(go)
    gather([(MR, oMLG, 0), (G0, oOPG, 0), (G1, oOPG, 2048)], fpol, hop="o")
    stamp(6)
    A(f"""
    v_max_f32_dpp v6, v{MR}, v{MR} quad_perm:[1,0,3,2] {DPPM}
    v_max_f32_dpp v6, v6, v6 row_ror:4 {DPPM}
    v_max_f32_dpp v6, v6, v6 row_ror:8 {DPPM}
    v_mov_b32 v7, v6
    v_permlane16_swap_b32 v6, v7
    v_max_f32 v6, v6, v7
    v_mov_b32 v7, v6
    v_permlane32_swap_b32 v6, v7
    v_max_f32 v6, v6, v7
    v_sub_f32 v8, v{MR}, v6
    v_mul_f32 v8, {SC}, v8
    v_exp_f32 v8, v8
    v_mul_f32 v6, v8, v{MR+1}
    """)
    lred = [f"v_add_f32_dpp v6, v6, v6 quad_perm:[1,0,3,2] {DPPM}",
            f"v_add_f32_dpp v6, v6, v6 row_ror:4 {DPPM}",
            f"v_add_f32_dpp v6, v6, v6 row_ror:8 {DPPM}",
            "v_mov_b32 v7, v6"]
    for j in range(4):
        A(f"v_mul_f32_dpp v{G0+j}, v8, v{G0+j} quad_perm:[0,0,0,0] {DPPM}")
        if j & 1:
            A(lred[j >> 1])
    for j in range(4):
        A(f"v_fmac_f32_dpp v{G0+j}, v8, v{G1+j} quad_perm:[1,1,1,1] {DPPM}")
        if j & 1:
            A(lred[2 + (j >> 1)])
    A(f"""
    v_permlane32_swap_b32 v{G0}, v{G0+2}
    v_permlane32_swap_b32 v{G0+1}, v{G0+3}
    v_permlane16_swap_b32 v6, v7
    v_add_f32 v{G0}, v{G0}, v{G0+2}
    v_add_f32 v{G0+1}, v{G0+1}, v{G0+3}
    v_add_f32 v6, v6, v7
    v_mov_b32 v7, v6
    v_permlane16_swap_b32 v{G0}, v{G0+1}
    v_permlane32_swap_b32 v6, v7
    v_add_f32 v{G0}, v{G0}, v{G0+1}
    v_add_f32 v6, v6, v7
    v_rcp_f32 v6, v6
    v_add_f32_dpp v{G0}, v{G0}, v{G0} row_ror:4 {DPPM}
    v_add_f32_dpp v{G0}, v{G0}, v{G0} row_ror:8 {DPPM}
    v_mul_f32 v{G0}, v{G0}, v6
    v_cvt_pk_bf16_f32 v7, v{G0}, v{G0}
    ds_write_b16 v{aOsW}, v7
    v_and_b32 v7, 0xffff0000, v7
    v_or_b32 v7, {T16}, v7
    s_mov_b64 exec, {M_N4}
    buffer_store_dword v7, v{oPX}, {WS}, 0 offen sc1
    """)
    arrive(CO)
    A("s_branch L_pxd")
    A("L_px:")
    A(f"s_cmp_eq_u32 {SW}, 3")
    A("s_cbranch_scc1 L_pxd")
    wait_prog(gp)
    stamp(12)
    if not (nog is True or (nog and "p" in nog)):
        A(f"buffer_load_dword v7, v{oPX}, {WS}, 0 offen {ppol}")
        A("s_branch L_px1")
        A("L_px0:")
        budget(16)
        A(f"buffer_load_dword v7, v{oPX}, {WS}, 0 offen sc1")
        A("L_px1:")
        A("s_waitcnt vmcnt(0)")
        A("v_and_b32 v6, 0xffff, v7")
        A(f"v_cmp_ne_u32 vcc, {T16}, v6")
        dstamp()
        if "p" not in once:
            A("s_cbranch_vccnz L_px0")
    A(f"ds_write_b16_d16_hi v{aOsW}, v7")
    stamp(6)
    arrive(CO)
    A("L_pxd:")
    wait_prog(42)
    rd3(0)
    wait_cnt(CO, 5, bt_reads() + [f"ds_read_b32 v9, v{aGS} offset:{GS}"])
    wait_prog(46)
    rd3(1)
    mm3()
    for j in range(4):
        A(f"v_mul_f32 v{ACC+4+j}, v9, v{ACC+j}")
    A(f"ds_write_b128 v{aAS}, v[{ACC+4}:{ACC+7}]")
    arrive(CA)
    stamp(7)
    dump_stamps()
    A("s_endpgm")

    A("L_F:")
    common2(RC, HS)
    A(f"""
    s_cmp_lg_u32 {SW}, 0
    s_cbranch_scc1 L_noid
    s_lshl_b32 s55, {SJ}, 2
    s_add_u32 s55, s55, {IDT}
    v_mov_b32 v5, {SID}
    s_mov_b64 exec, 1
    buffer_store_dword v5, off, {WS}, s55
    s_mov_b64 exec, -1
    L_noid:
    """)
    aWg, aWu, oGU, oGG, aHsW, oFP, oFG, oOut = 11, 12, 13, 14, 16, 17, 22, 23
    SG0, SCB0 = "s69", "s70"
    M_GU, M_GG = "s[72:73]", "s[74:75]"
    for i in range(28):
        A(f"v_mov_b32 v{X+i}, 0")
    A(f"""
    s_mul_i32 s55, {SJ}, 7
    s_lshr_b32 {SCB0}, s55, 5
    s_and_b32 {SG0}, s55, 31
    s_mov_b32 s57, 0x00f000f0
    """)
    for s in range(7):
        A(f"""
        s_add_u32 s56, {SG0}, {s}
        s_cmp_ge_u32 s56, 32
        s_cselect_b32 exec_lo, s57, s62
        s_cselect_b32 exec_hi, s57, s62
        s_and_b32 s56, s56, 31
        s_lshl_b32 s56, s56, 6
        buffer_load_dwordx4 v[{X+4*s}:{X+4*s+3}], v9, s[32:35], s56 offen
        """)
    A(f"""
    s_mov_b64 exec, -1
    v_add_u32 v{aWg}, {RD}, v{aW}
    v_add_u32 v{aWu}, {RA}, v{aW}
    """)
    A(f"""
    s_cmp_ge_u32 {SG0}, 26
    s_cselect_b32 s72, 0x00ff00ff, s62
    s_mov_b32 s73, s72
    s_mul_i32 s55, {SCB0}, {32*9363}
    s_lshr_b32 s55, s55, 16
    s_sub_u32 s55, {SJ}, s55
    s_lshl_b32 s55, s55, 8
    s_mul_i32 s56, {SCB0}, 3072
    s_lshl_b32 s57, {SW}, 6
    s_add_u32 s56, s56, s57
    s_add_u32 s56, s56, {GUP}
    v_mov_b32 v6, s55
    v_mov_b32 v7, 3072
    s_mov_b32 s58, 0xf0f0f0f0
    s_mov_b32 s59, 0xf0f0f0f0
    v_cndmask_b32 v6, v6, v7, s[58:59]
    v_and_b32 v5, 1, v0
    v_mul_u32_u24 v5, {56*3072}, v5
    v_lshl_add_u32 v5, v{vQ}, 4, v5
    v_bfe_u32 v7, v0, 1, 1
    v_mul_u32_u24 v7, 1536, v7
    v_add3_u32 v5, v5, v6, v7
    v_add_u32 v{oGU}, s56, v5
    """)
    if "g" in pre:
        A(f"s_mov_b64 exec, {M_GU}")
        A(f"buffer_load_dword v138, v{oGU}, {WS}, 0 offen {prepol}")
        A("s_mov_b64 exec, -1")
    A(f"""
    s_lshr_b32 s55, {SJ}, 1
    s_mul_i32 s55, s55, 28
    s_and_b32 s56, {SW}, 1
    s_mul_i32 s57, s56, {56*3072}
    s_add_u32 s57, s57, {GUP}
    v_and_b32 v6, 7, v0
    v_lshl_add_u32 v7, v6, 2, s55
    v_lshrrev_b32 v8, 6, v7
    v_and_b32 v7, 63, v7
    v_lshlrev_b32 v7, 2, v7
    v_lshrrev_b32 v5, 3, v0
    v_lshl_add_u32 v7, v5, 8, v7
    v_mad_u32_u24 v7, v8, v{vMK+0 if False else 34}, v7
    """.replace(f"v_mad_u32_u24 v7, v8, v34, v7", "v_mul_u32_u24 v34, 3072, v8\n    v_add_u32 v7, v7, v34"))
    A(f"""
    v_add_u32 v{oGG}, s57, v7
    v_mul_u32_u24 v7, 37, v8
    v_lshrrev_b32 v7, 8, v7
    v_add_u32 v7, v7, v8
    v_and_b32 v7, 1, v7
    v_add_u32 v7, 5, v7
    v_cmp_lt_u32 {M_GG}, v5, v7
    v_cmp_gt_u32 vcc, 7, v6
    s_and_b64 {M_GG}, {M_GG}, vcc
    s_lshl_b32 s56, s56, 6
    s_add_u32 s56, s56, {HS}
    v_and_b32 v7, 3, v0
    v_lshlrev_b32 v7, 4, v7
    v_bfe_u32 v8, v0, 2, 1
    v_lshl_add_u32 v7, v8, 3, v7
    v_lshl_add_u32 v7, v{vQ}, 1, v7
    v_add_u32 v{aHsW}, s56, v7
    """)
    aFs = 18
    A(f"""
    s_lshr_b32 s55, {SJ}, 7
    s_xor_b32 s55, s55, {SJ}
    s_and_b32 s55, s55, 1
    s_lshl_b32 s55, s55, 2
    s_add_u32 s55, s55, {SW}
    s_lshl_b32 s55, s55, 17
    s_lshr_b32 s56, {SJ}, 1
    s_lshl_b32 s56, s56, 7
    s_add_u32 s55, s55, s56
    s_add_u32 s55, s55, {FP}
    v_lshrrev_b32 v5, 3, v0
    v_lshlrev_b32 v5, 14, v5
    v_and_b32 v6, 7, v0
    v_lshl_add_u32 v5, v6, 4, v5
    v_add_u32 v{oFP}, s55, v5
    s_mov_b64 s[40:41], s[22:23]
    s_mov_b32 s42, 2048
    s_mov_b32 s43, 0x20000
    s_mov_b64 s[44:45], s[24:25]
    s_mov_b32 s46, 4096
    s_mov_b32 s47, 0x20000
    s_lshr_b32 s57, {SJ}, 2
    s_lshl_b32 s55, s57, 14
    s_lshl_b32 s56, {SW}, 12
    s_add_u32 s55, s55, s56
    s_add_u32 s55, s55, {FP}
    v_lshlrev_b32 v5, 4, v0
    v_add_u32 v{oFG}, s55, v5
    v_lshlrev_b32 v5, 2, v6
    v_lshl_add_u32 v{aFs}, v{vQ}, 5, v5
    s_lshr_b32 s55, s57, 3
    s_lshl_b32 s55, s55, 8
    s_and_b32 s56, s57, 1
    s_lshl_b32 s56, s56, 7
    s_add_u32 s55, s55, s56
    s_and_b32 s56, s57, 6
    s_lshl_b32 s56, s56, 2
    s_add_u32 s55, s55, s56
    v_and_b32 v5, 1, v0
    v_lshlrev_b32 v5, 11, v5
    v_lshl_add_u32 v5, v{vQ}, 1, v5
    v_and_b32 v6, 6, v0
    v_lshl_add_u32 v5, v6, 4, v5
    v_add_u32 v{oOut}, s55, v5
    """)
    if fsm:
        A(f"""
        s_and_b32 s55, {SJ}, 7
        s_lshl_b32 s55, s55, 3
        s_lshl_b32 s56, {SW}, 1
        s_add_u32 s55, s55, s56
        s_lshl_b32 s55, s55, 12
        s_lshr_b32 s56, {SJ}, 3
        s_lshl_b32 s56, s56, 7
        s_add_u32 s55, s55, s56
        s_add_u32 s55, s55, {FP}
        v_bfe_u32 v5, v0, 3, 1
        v_lshlrev_b32 v5, 12, v5
        v_and_b32 v6, 7, v0
        v_lshl_add_u32 v5, v6, 4, v5
        v_add_u32 v{oFP}, s55, v5
        s_lshr_b32 s57, {SJ}, 2
        s_lshl_b32 s55, s57, 12
        s_lshl_b32 s56, {SW}, 10
        s_add_u32 s55, s55, s56
        s_add_u32 s55, s55, {FP}
        v_lshlrev_b32 v5, 4, v0
        v_add_u32 v{oFG}, s55, v5
        """)
    if "g" in cst:
        A(f"""
        s_lshl_b32 s55, s2, 10
        s_lshl_b32 s56, {SW}, 8
        s_add_u32 s55, s55, s56
        s_add_u32 s55, s55, {GUP}
        v_lshlrev_b32 v5, 4, v0
        v_add_u32 v{oGU}, s55, v5
        s_mov_b32 s72, 0xffff
        s_mov_b32 s73, 0
        """)
    for key, lg in (("f", 6), ("h", 2), ("i", 1), ("j", 3)):
        if key in cst:
            A(f"""
            s_and_b32 s55, {SJ}, 1
            s_lshl_b32 s55, s55, 2
            s_add_u32 s55, s55, {SW}
            s_lshl_b32 s55, s55, 17
            s_lshr_b32 s56, {SJ}, 1
            s_lshl_b32 s56, s56, {4+lg}
            s_add_u32 s55, s55, s56
            s_add_u32 s55, s55, {FP}
            v_lshrrev_b32 v5, {lg}, v0
            v_lshlrev_b32 v5, {11+lg}, v5
            v_and_b32 v6, {(1<<lg)-1}, v0
            v_lshl_add_u32 v5, v6, 4, v5
            v_add_u32 v{oFP}, s55, v5
            """)
    A(f"s_cmp_lt_u32 {SW}, 2")
    A("s_cbranch_scc1 L_nog")
    A(f"""
    s_and_b32 s55, {SW}, 1
    s_lshl_b32 s56, s55, 3
    s_lshl_b32 s55, s55, 11
    v_lshlrev_b32 v5, 5, v0
    buffer_load_dwordx4 v[{F}:{F+3}], v5, s[32:35], s55 offen
    buffer_load_dwordx4 v[{F+4}:{F+7}], v5, s[32:35], s55 offen offset:16
    buffer_load_dwordx4 v[{F+8}:{F+11}], v5, s[40:43], 0 offen
    buffer_load_dwordx4 v[{F+12}:{F+15}], v5, s[40:43], 0 offen offset:16
    v_mov_b32 v9, 0
    s_waitcnt vmcnt(0)
    """)
    for i in range(8):
        A(f"""
        v_lshlrev_b32 v5, 16, v{F+i}
        v_lshlrev_b32 v6, 16, v{F+8+i}
        v_and_b32 v7, 0xffff0000, v{F+i}
        v_and_b32 v8, 0xffff0000, v{F+8+i}
        v_mul_f32 v5, v5, v6
        v_mul_f32 v7, v7, v8
        """)
        bf16_round_pair(6, 5, 7, 5, 7)
        A("v_add_f32 v9, v9, v5")
        A("v_add_f32 v9, v9, v7")
    A(f"""
    v_add_f32_dpp v9, v9, v9 quad_perm:[1,0,3,2] {DPPM}
    v_add_f32_dpp v9, v9, v9 quad_perm:[2,3,0,1] {DPPM}
    v_add_f32_dpp v9, v9, v9 row_ror:4 {DPPM}
    v_add_f32_dpp v9, v9, v9 row_ror:8 {DPPM}
    v_mov_b32 v8, v9
    v_permlane16_swap_b32 v9, v8
    v_add_f32 v9, v9, v8
    v_mov_b32 v8, v9
    v_permlane32_swap_b32 v9, v8
    v_add_f32 v9, v9, v8
    v_cvt_pk_bf16_f32 v9, v9, v9
    v_lshlrev_b32 v9, 16, v9
    v_mul_f32 v9, {f32(-LOG2E)}, v9
    v_exp_f32 v9, v9
    v_add_f32 v9, 1.0, v9
    v_rcp_f32 v9, v9
    v_cvt_pk_bf16_f32 v8, v9, v9
    v_lshlrev_b32 v8, 16, v8
    v_sub_f32 v9, 1.0, v8
    v_cvt_pk_bf16_f32 v9, v9, v9
    v_lshlrev_b32 v9, 16, v9
    v_mov_b32 v5, s56
    ds_write_b64 v5, v[8:9] offset:{GS}
    """)
    arrive(CO)
    A("L_nog:")
    A("s_waitcnt vmcnt(0)")
    stamp(1)
    gemv64(aWg, ACC, 24, spl7)
    stamp(2)
    id_load()
    gemv64(aWu, ACC + 4, 31, spl7)
    for j in range(4):
        A(f"v_cndmask_b32 v{ACC+8+j}, v{ACC+j}, v{ACC+4+j}, {M_B1}")
    tag4(ACC + 8, ACC + 8)
    A("s_waitcnt vmcnt(0)")
    id_check("s[98:99]")
    pub([(M_GU, f"buffer_store_dwordx4 v[{ACC+8}:{ACC+11}], v{oGU}, {WS}, 0 offen")], "g", "s[98:99]")
    stamp(3)
    zero_bt()
    A(f"s_cmp_ge_u32 {SW}, 2")
    A("s_cbranch_scc1 L_noh")
    GG, GU_ = ACC + 12, ACC + 16
    for i in range(8):
        A(f"v_mov_b32 v{GG+i}, 0")
    if gg:
        wait_prog(gg)
    A(f"s_mov_b64 exec, {M_GG}")
    gather([(GG, oGG, 0), (GU_, oGG, 1536)], fpol, hop="g")
    stamp(4)
    A(f"""
    v_permlane32_swap_b32 v{GG}, v{GG+2}
    v_permlane32_swap_b32 v{GG+1}, v{GG+3}
    v_permlane32_swap_b32 v{GU_}, v{GU_+2}
    v_permlane32_swap_b32 v{GU_+1}, v{GU_+3}
    v_add_f32 v{GG}, v{GG}, v{GG+2}
    v_add_f32 v{GG+1}, v{GG+1}, v{GG+3}
    v_add_f32 v{GU_}, v{GU_}, v{GU_+2}
    v_add_f32 v{GU_+1}, v{GU_+1}, v{GU_+3}
    v_permlane16_swap_b32 v{GG}, v{GG+1}
    v_permlane16_swap_b32 v{GU_}, v{GU_+1}
    v_add_f32 v{GG}, v{GG}, v{GG+1}
    v_add_f32 v{GU_}, v{GU_}, v{GU_+1}
    v_add_f32_dpp v{GG}, v{GG}, v{GG} row_ror:8 {DPPM}
    v_add_f32_dpp v{GU_}, v{GU_}, v{GU_} row_ror:8 {DPPM}
    """)
    bf16_round_pair(5, 6, 7, GG, GU_)
    A(f"""
    v_mul_f32 v8, v6, v6
    v_mov_b32 v9, {f32(GC1)}
    v_fmac_f32 v9, {f32(GC2)}, v8
    v_mul_f32 v9, v9, v6
    v_exp_f32 v9, v9
    v_add_f32 v9, 1.0, v9
    v_rcp_f32 v9, v9
    v_mul_f32 v9, v9, v6
    v_cvt_pk_bf16_f32 v9, v9, v9
    v_lshlrev_b32 v9, 16, v9
    v_mul_f32 v9, v9, v7
    v_cvt_pk_bf16_f32 v9, v9, v9
    ds_write_b16 v{aHsW}, v9
    """)
    arrive(CH)
    A("L_noh:")
    wait_prog(50)
    rd3(0)
    wait_cnt(CH, 2, bt_reads())
    stamp(5)
    wait_cnt(CA, 4, [f"ds_read_b128 v[{ACC+4}:{ACC+7}], v{aAS}", f"ds_read_b32 v9, v{aGS} offset:{GS+4}"])
    wait_prog(53)
    rd3(1)
    mm3()
    for j in range(4):
        A(f"v_fmac_f32 v{ACC+4+j}, v9, v{ACC+j}")
    tag4(ACC + 4, ACC + 4)
    if fsm:
        A("s_mov_b64 exec, 0xffff")
    if ffrac:
        A(f"s_lshr_b32 s55, s2, 4")
        A(f"s_and_b32 s55, s55, {ffrac-1}")
        A(f"s_cselect_b64 exec, 0, -1")
    A(f"buffer_store_dwordx4 v[{ACC+4}:{ACC+7}], v{oFP}, {WS}, 0 offen sc1")
    A("s_mov_b64 exec, -1")
    stamp(6)
    A(f"s_and_b32 s55, {SJ}, 3")
    A("s_cbranch_scc1 L_fin")
    gather([(G + 4 * i, oFG, 1024 * i) for i in range(1 if fsm else 4)], "sc1", hop="f")
    A(f"""
    v_pk_add_f32 v[{G}:{G+1}], v[{G}:{G+1}], v[{G+4}:{G+5}]
    v_pk_add_f32 v[{G+2}:{G+3}], v[{G+2}:{G+3}], v[{G+6}:{G+7}]
    v_pk_add_f32 v[{G+8}:{G+9}], v[{G+8}:{G+9}], v[{G+12}:{G+13}]
    v_pk_add_f32 v[{G+10}:{G+11}], v[{G+10}:{G+11}], v[{G+14}:{G+15}]
    v_pk_add_f32 v[{G}:{G+1}], v[{G}:{G+1}], v[{G+8}:{G+9}]
    v_pk_add_f32 v[{G+2}:{G+3}], v[{G+2}:{G+3}], v[{G+10}:{G+11}]
    s_lshl_b32 s55, {SW}, 7
    v_add_u32 v7, s55, v{aFs}
    """)
    red4(G)
    A(f"""
    v_add_f32_dpp v{G}, v{G}, v{G} row_ror:8 {DPPM}
    ds_write_b32 v7, v{G} offset:{FS}
    s_mov_b64 exec, 1
    ds_add_rtn_u32 v5, v{vZ}, v{vONE} offset:{CF}
    s_mov_b64 exec, -1
    ds_read_b32 v{G+4}, v{aFs} offset:{FS}
    ds_read_b32 v{G+5}, v{aFs} offset:{FS+128}
    ds_read_b32 v{G+6}, v{aFs} offset:{FS+256}
    ds_read_b32 v{G+7}, v{aFs} offset:{FS+384}
    s_waitcnt lgkmcnt(0)
    v_readfirstlane_b32 s55, v5
    v_add_f32 v{G+4}, v{G+4}, v{G+5}
    v_add_f32 v{G+6}, v{G+6}, v{G+7}
    v_add_f32 v{G+4}, v{G+4}, v{G+6}
    v_cvt_pk_bf16_f32 v6, v{G+4}, v{G+4}
    s_cmp_lg_u32 s55, 3
    s_cbranch_scc1 L_fin
    s_mov_b32 exec_lo, 0x00ff00ff
    s_mov_b32 exec_hi, 0x00ff00ff
    buffer_store_short v6, v{oOut}, s[44:47], 0 offen
    s_cmp_lg_u32 s2, 0
    s_cbranch_scc1 L_fin
    s_mov_b64 exec, 1
    v_mov_b32 v6, s48
    v_mov_b32 v7, s49
    s_mov_b32 s55, {EPOCH}
    v_mov_b32 v8, s55
    global_store_dwordx2 v8, v[6:7], s[28:29] sc1
    L_fin:
    """)
    A("s_mov_b64 exec, -1")
    stamp(7)
    dump_stamps()
    A("L_end:")
    A("s_endpgm")

    if nost:
        sel = {"q": f"v{oQP},", "o": f"v{oOP},", "m": f"v{oML},", "g": f"v{oGU},", "f": f"v{oFP},"}
        keys = list(sel.values()) if nost is True else [sel[c] for c in nost]
        A.L = [l for l in A.L if not (l.startswith("buffer_store_dwordx4") and "sc1" in l and any(k in l for k in keys))]
    if plain:
        sel = {"q": f"v{oQP},", "o": f"v{oOP},", "m": f"v{oML},", "g": f"v{oGU},", "f": f"v{oFP},"}
        keys = [sel[c] for c in plain]
        A.L = [l.replace(" sc1", "") if (l.startswith("buffer_store_dwordx4") and any(k in l for k in keys)) else l for l in A.L]
    if stpol != "sc1":
        A.L = [l.replace(" sc1", " " + stpol) if l.startswith("buffer_store_dwordx4") else l for l in A.L]
    body, nn = hazard_pass(A.L)
    out = []
    out.append(f"; @launch grid=(256,1,1) block=(576,1,1) lds={LDS_TOTAL}")
    out.append('.amdgcn_target "amdgcn-amd-amdhsa--gfx950"')
    out.append(".text")
    out.append(f".globl {NAME}_kernel")
    out.append(".p2align 8")
    out.append(f".type {NAME}_kernel,@function")
    out.append(f"{NAME}_kernel:")
    out += ["  " + l if not l.endswith(":") else l for l in body]
    out.append(f".fill (16384 + 64 - (. - L_worker)) / 4, 4, 0xbf810000")
    out.append('.section .rodata,"a"')
    out.append(".p2align 6")
    out.append(f".amdhsa_kernel {NAME}_kernel")
    out.append("  .amdhsa_next_free_vgpr 160")
    out.append("  .amdhsa_next_free_sgpr 102")
    out.append("  .amdhsa_accum_offset 160")
    out.append("  .amdhsa_group_segment_fixed_size 0")
    out.append("  .amdhsa_kernarg_size 104")
    out.append("  .amdhsa_user_sgpr_count 2")
    out.append("  .amdhsa_user_sgpr_kernarg_segment_ptr 1")
    out.append("  .amdhsa_system_sgpr_workgroup_id_x 1")
    out.append(".end_amdhsa_kernel")
    return "\n".join(out) + "\n"


if __name__ == "__main__":
    import argparse, ast
    ap = argparse.ArgumentParser()
    ap.add_argument("out")
    ap.add_argument("kw", nargs="*")
    a = ap.parse_args()
    kw = {}
    for s in a.kw:
        k, v = s.split("=", 1)
        try:
            kw[k] = ast.literal_eval(v)
        except Exception:
            kw[k] = v
    open(a.out, "w").write(gen(**kw))
```

```python
import sys, struct
from asmlib import Asm, hazard_pass

NAME = "gated_mix__sliding_block_cached__geglu_ffn__decode"

PROG = 0
CQ, CP, CO, CH, FA, FB, FC, CA, CF = 0x100, 0x104, 0x108, 0x10C, 0x110, 0x114, 0x118, 0x11C, 0x120
ZERO = 0x200
HS, OS, QS, PS, MS, GS, AS = 0x400, 0x600, 0x800, 0x1100, 0x1A00, 0x1A80, 0x2000
PITCH = 288
RA, RC, RD, RB = 0x3000, 0xB000, 0x13000, 0x1A000
LDS_TOTAL = RB + 8 * 4096
QP, ML, EPOCH, GUP, OP, FP, WS_END = 0, 0x20000, 0x2F000, 0x40000, 0x100000, 0x200000, 0x300000
IDT, PX, PHB = 0x2E000, 0x30000, 0x38000
FLO, FLG_ = 0x2E800, 0x2EC00
WS_END = FP + 0x40000
TAGM = 0xFFF


def f32(x):
    return "0x%08x" % struct.unpack("<I", struct.pack("<f", x))[0]


LOG2E = 1.4426950408889634
SCALE = 128 ** -0.5
GC1 = -2.0 * LOG2E * 0.7978845608028654
GC2 = GC1 * 0.044715


def gen(lgrow=0, lat=0, gh=(49,48), lret='f', ffpol='nt', fpre=0, b3=3, pg={}, ccl=0, dly=0, pipe={}, pthr=32, wb=0, wbm=31, outpol='', unb=None, xo='', xkb=9, xcls=1, cbx=0, burst=0, nost2='', qn=4, sym=1, pxe=0, pf=2, win=None, wk=1, D=16, stamps=False, spl1=(4, 8), spl7=(4, 7), ntflag="nt", gq=16, go=34, gg=44, gp=45, loc='ogf', ppol='sc1', once='', rpol='sc1', rinv=0, pre='', prepol='', Dhi=0, D3hi=0, hibit=2, opol=None, gpol=None, hint='', go0=26, gg0=38, fsm=0, fpol="",
        nog=False, nost=False, rot=1, qmap=0, bgmap=0, D3=0, cst='', stpol='sc1', wsoff=0, half=0, ofrac=0, ostr=0, omask=0, mlin=0, ffrac=0, gfrac=0, plain='', qfrac=0):
    A = Asm()
    d = D // 4
    assert D % 4 == 0
    d3 = (D3 or D) // 4
    assert d3 >= d

    VST = 152

    def stamp(i):
        if stamps:
            if i == 0:
                A(f"v_mov_b32 v{VST}, 0")
            A("s_memrealtime s[96:97]")
            A("s_waitcnt lgkmcnt(0)")
            A(f"v_writelane_b32 v{VST}, s96, {i}")

    def dstamp():
        if stamps:
            A("s_memrealtime s[96:97]")
            A("s_waitcnt lgkmcnt(0)")
            A(f"v_writelane_b32 v{VST}, s96, m0")
            A("s_add_u32 m0, m0, 1")
            A("s_min_u32 m0, m0, 63")

    def dump_stamps():
        if not stamps:
            return
        A("s_mov_b64 exec, -1")
        A("s_add_u32 s28, s28, 0x8000000")
        A("s_addc_u32 s29, s29, 0")
        A("s_mul_i32 s55, s2, 9")
        A("s_add_u32 s55, s55, s3")
        A("s_lshl_b32 s55, s55, 8")
        A("v_lshlrev_b32 v5, 2, v0")
        A("v_add_u32 v5, s55, v5")
        A(f"global_store_dword v5, v{VST}, s[28:29]")

    BUD, SPROG = "s30", "s31"

    def budget(k=1):
        A(f"s_sub_u32 {BUD}, {BUD}, {k}")
        A("s_cbranch_scc1 L_end")

    RB1, CB1 = "s100", "s101"

    def xf(v, old, new, t=5):
        m = (1 << xkb) - 1
        A(f"v_subrev_u32 v{v}, {old}, v{v}")
        A(f"v_and_b32 v{t}, {m}, v{v}")
        A(f"v_lshrrev_b32 v{v}, {xkb}, v{v}")
        A(f"v_lshl_add_u32 v{v}, v{v}, 10, v{t}")
        A(f"v_add_u32 v{v}, {new + (xcls << xkb)}, v{v}")

    def tile1():
        if qmap == 0:
            A(f"s_and_b32 {RB1}, s2, 3")
            A(f"s_lshr_b32 {CB1}, s2, 2")
        else:
            hi, lo = ("0x10000", "0x20001") if qmap == 1 else ("0x10002", "0x20000")
            A(f"""
            s_bfe_u32 {RB1}, s2, {hi}
            s_lshr_b32 s69, s2, 7
            s_lshl1_add_u32 {RB1}, {RB1}, s69
            s_bfe_u32 s69, s2, 0x40003
            s_bfe_u32 {CB1}, s2, {lo}
            s_lshl4_add_u32 {CB1}, {CB1}, s69
            """)

    def bg(dst, t):
        if bgmap == 0:
            A(f"s_and_b32 {dst}, s2, 7")
        else:
            A(f"s_and_b32 {dst}, s2, 1")
            A(f"s_bfe_u32 {t}, s2, 0x20001")
            A(f"s_lshl2_add_u32 {dst}, {dst}, {t}")

    def jidx(dst, t):
        A(f"s_and_b32 {dst}, s2, 7")
        A(f"s_lshl_b32 {dst}, {dst}, 5")
        A(f"s_lshr_b32 {t}, s2, 3")
        A(f"s_add_u32 {dst}, {dst}, {t}")

    stamp(0)
    W8, W7, VK, VV, VO = 10, 14, 18, 22, 24
    vP, vPa, vFr, vFa, vT = 28, 29, 30, 31, 32
    A(f"""
    s_cmp_ge_u32 s2, 256
    s_cbranch_scc1 L_end
    s_load_dwordx2 s[32:33], s[0:1], 24
    s_load_dwordx16 s[4:19], s[0:1], 0
    s_load_dwordx8 s[20:27], s[0:1], 64
    s_load_dwordx2 s[28:29], s[0:1], 96
    v_lshrrev_b32 v1, 6, v0
    v_lshrrev_b32 v34, 3, v0
    v_readfirstlane_b32 s3, v1
    v_and_b32 v35, 7, v0
    v_and_b32 v36, 2, v34
    s_mov_b32 {BUD}, 0x100000
    s_mov_b32 s35, 0x20000
    """)
    tile1()
    A(f"""
    s_cmp_lg_u32 s3, 0
    s_cbranch_scc1 L_worker
    s_setprio 3
    v_xor_b32 v35, v35, v36
    v_lshlrev_b32 v35, 4, v35
    v_xor_b32 v36, 64, v35
    v_lshl_add_u32 v{W8}, v34, 13, v35
    v_lshl_add_u32 v{W8+1}, v34, 13, v36
    v_add_u32 v{W8+1}, {65536-1024}, v{W8+1}
    v_add_u32 v{W8+2}, {2*(65536-1024)}, v{W8}
    v_add_u32 v{W8+3}, {2*(65536-1024)}, v{W8+1}
    s_lshl_b32 s68, {CB1}, 7
    s_lshl_b32 s60, {RB1}, 21
    s_add_u32 s60, s60, s68
    s_mov_b32 s34, {8<<20}
    s_mov_b32 m0, {RA}
    s_waitcnt lgkmcnt(0)
    """)
    srds = [(36, 6, 64 << 20), (40, 8, 64 << 20), (44, 16, 7 << 20), (48, 18, 7 << 20),
            (52, 12, 8 << 20), (56, 20, 7 << 20)]
    NPEEL = burst or min(d, 7)

    UNB = ""
    if unb:
        tb0 = sum(((u[0] + 8) & 15) << (4 * c) for c, u in enumerate(unb))
        tb1 = sum(u[1] << (4 * c) for c, u in enumerate(unb))
        UNB = f"""s_and_b32 s70, s68, 3
        s_lshl_b32 s70, s70, 2
        s_lshr_b32 s71, {tb0}, s70
        s_and_b32 s71, s71, 15
        s_sub_u32 s71, s71, 8
        s_lshr_b32 s75, {tb1}, s70
        s_and_b32 s75, s75, 15
        s_sub_u32 s76, 7, s75
        s_lshl_b32 s75, s75, 12
        s_add_u32 s75, s75, {RA}
        s_mul_i32 s69, s67, 7
        s_add_u32 s69, s69, s71
        s_lshr_b32 s64, s69, 5
        s_lshl_b32 s64, s64, 7
        s_and_b32 s69, s69, 31
        s_mul_i32 s69, s69, {32*7168}
        s_add_u32 s64, s64, s69"""

    def loader_setup():
        A(f"""
        v_lshrrev_b32 v4, 4, v0
        v_and_b32 v5, 15, v0
        v_xor_b32 v6, v5, v4
        v_lshlrev_b32 v6, 4, v6
        v_lshl_add_u32 v{VK}, v4, 8, v6
        v_xor_b32 v{VK+1}, 64, v{VK}
        v_xor_b32 v{VK+2}, 128, v{VK}
        v_xor_b32 v{VK+3}, 192, v{VK}
        v_lshlrev_b32 v6, 1, v4
        v_xor_b32 v6, v5, v6
        v_lshlrev_b32 v6, 4, v6
        v_lshl_add_u32 v{VV}, v4, 8, v6
        v_xor_b32 v{VV+1}, 128, v{VV}
        v_lshl_add_u32 v{VO}, v4, 11, v6
        v_add_u32 v{VO+1}, 7168, v{VO}
        v_xor_b32 v{VO+3}, 128, v{VO}
        v_add_u32 v{VO+2}, {2*7168}, v{VO+3}
        v_add_u32 v{VO+3}, {3*7168}, v{VO+3}
        v_mul_u32_u24 v7, 7168, v34
        v_add_u32 v{W7}, v7, v35
        v_add_u32 v{W7+1}, v7, v36
        v_add_u32 v{W7+1}, {8*7168-1024}, v{W7+1}
        v_add_u32 v{W7+2}, {2*(8*7168-1024)}, v{W7}
        v_add_u32 v{W7+3}, {2*(8*7168-1024)}, v{W7+1}
        v_mov_b32 v{vP}, {min(NPEEL-d, 0)}
        v_lshlrev_b32 v{vPa}, 2, v0
        """)
        jidx("s67", "s68")
        A(f"""
        s_mul_i32 s69, s67, 7
        s_lshr_b32 s63, s69, 5
        s_lshl_b32 s63, s63, 7
        s_and_b32 s69, s69, 31
        s_mul_i32 s69, s69, {32*7168}
        s_add_u32 s63, s63, s69
        s_mov_b32 s64, s63
        {UNB}
        s_and_b32 s69, s68, 7
        s_xor_b32 s69, s69, {cbx}
        s_lshl_b32 s69, s69, 8
        s_lshr_b32 s67, s67, 3
        s_mul_i32 s66, s67, {112*2048}
        s_add_u32 s66, s66, s69
        s_and_b32 s65, s2, 3
        s_lshl_b32 s65, s65, 3
        s_and_b32 s67, s2, 4
        s_add_u32 s65, s65, s67
        s_lshr_b32 s67, s2, 6
        s_add_u32 s65, s65, s67
        s_lshl_b32 s65, s65, 18
        s_add_u32 s65, s65, s69
        """)
        if b3:
            A(f"""
            s_and_b32 s69, s2, 7
            s_xor_b32 s69, s69, {cbx}
            s_lshl_b32 s69, s69, 8
            s_mul_i32 s66, s68, {112*2048}
            s_add_u32 s66, s66, s69
            s_lshl_b32 s65, s68, 18
            s_add_u32 s65, s65, s69
            """)
        bg("s67", "s69")
        A(f"""
        s_lshl_b32 s61, s67, 23
        s_lshl_b32 s69, s68, 15
        s_add_u32 s61, s61, s69
        s_add_u32 s61, s61, {28672*256}
        s_mov_b32 s62, s61
        """)
        for r, p, n in srds:
            A(f"s_mov_b64 s[{r}:{r+1}], s[{p}:{p+1}]")
            A(f"s_mov_b32 s{r+2}, {n}")
            A(f"s_mov_b32 s{r+3}, 0x20000")

    def group(srd, vo, soff):
        for t in range(4):
            off = f" offset:{1024*t}" if t else ""
            A(f"buffer_load_dwordx4 v{vo[t]}, s[{srd}:{srd+3}], {soff} offen{off} {ntflag} lds")

    def publish():
        A(f"v_add_u32 v{vP}, 1, v{vP}")
        A(f"ds_max_i32 v{vPa}, v{vP}")

    def tloop(srd, vo, soff, step, ng, base, free=None, skip=0, pitch=4096, wrap=False, dd=None, grow=0):
        dd = dd or d
        if not skip:
            A(f"s_mov_b32 m0, {base}")
        if free is not None:
            A(f"v_mov_b32 v{vFa}, {free}")
        for i in range(grow):
            group(srd, vo, soff)
            A(f"s_add_u32 {soff}, {soff}, {step}")
            A(f"s_add_u32 m0, m0, {pitch}")
        L = A.lab("L_ld")
        A(f"{L}:")
        group(srd, vo, soff)
        if free is not None:
            A(f"ds_read_b32 v{vFr}, v{vFa}")
        A(f"s_add_u32 {soff}, {soff}, {step}")
        if wrap:
            A(f"s_cmp_ge_u32 {soff}, {1024*7168}")
            A(f"s_cselect_b32 s73, {1024*7168-128}, 0")
            A(f"s_sub_u32 {soff}, {soff}, s73")
        A(f"s_add_u32 m0, m0, {pitch}")
        A(f"s_waitcnt vmcnt({4*dd})")
        publish()
        A(f"s_cmp_lg_u32 m0, {base + ng*pitch if isinstance(ng, int) else ng}")
        A(f"s_cbranch_scc1 {L}")
        if free is not None:
            ok, sp = A.lab("L_fok"), A.lab("L_fsp")
            A("s_waitcnt lgkmcnt(0)")
            A(f"v_readfirstlane_b32 s74, v{vFr}")
            A("s_cmp_ge_u32 s74, 4")
            A(f"s_cbranch_scc1 {ok}")
            A("s_waitcnt vmcnt(0)")
            A(f"v_add_u32 v{vT}, {dd}, v{vP}")
            A(f"ds_max_i32 v{vPa}, v{vT}")
            A(f"{sp}:")
            A(f"ds_read_b32 v{vFr}, v{vFa}")
            A("s_waitcnt lgkmcnt(0)")
            A(f"v_readfirstlane_b32 s74, v{vFr}")
            budget()
            A("s_cmp_lt_u32 s74, 4")
            A(f"s_cbranch_scc1 {sp}")
            A(f"{ok}:")

    w8 = [W8 + t for t in range(4)]
    w7 = [W7 + t for t in range(4)]
    vk = [VK + t for t in range(4)]
    vv = [VV, VV, VV + 1, VV + 1]
    vo = [VO + t for t in range(4)]
    A("L_ld0:")
    group(32, w8, "s60")
    A(f"s_add_u32 s60, s60, {32*8192}")
    A("s_add_u32 m0, m0, 4096")
    A(f"s_cmp_lg_u32 m0, {RA + NPEEL*4096}")
    A("s_cbranch_scc1 L_ld0")
    stamp(1)
    loader_setup()
    A("s_barrier")
    def wbl2():
        L = A.lab("L_wb")
        A(f"s_lshr_b32 s67, s2, 3")
        A(f"s_and_b32 s67, s67, {wbm}")
        A(f"s_cbranch_scc1 {L}")
        A("buffer_wbl2 sc1")
        A(f"{L}:")

    def stream(dx, d3x):
        if burst:
            for j in range(burst - 1, dx - 1, -1):
                A(f"s_waitcnt vmcnt({4*j})")
                publish()
            if burst < 8:
                tloop(32, w8, "s60", 32 * 8192, 8, RA, skip=NPEEL, dd=dx, grow=max(dx - burst, 0))
        else:
            tloop(32, w8, "s60", 32 * 8192, 8, RA, skip=NPEEL, dd=d if lgrow else dx, grow=0 if lgrow else dx - d)
        stamp(2)
        if not rot:
            tloop(36, vk, "s61", 4096, 8, RB, dd=dx)
            tloop(40, vv, "s62", 4096, 8, RC, dd=dx)
        else:
            A("s_bfe_u32 s67, s2, 0x30003")
            A("s_lshl_b32 s67, s67, 12")
            A("s_mov_b32 s68, s67")
            for srd, vo_, base in ((36, vk, RB), (40, vv, RC)):
                L = A.lab("L_rt")
                dxx = d if (lgrow == 2 and srd == 36) else dx
                if (lgrow == 1 and srd == 36) or (lgrow == 2 and srd == 40):
                    for _ in range(dx - d):
                        A(f"s_add_u32 m0, s68, {base}")
                        A("s_add_u32 s69, s68, s61")
                        group(srd, vo_, "s69")
                        A("s_add_u32 s68, s68, 4096")
                        A("s_and_b32 s68, s68, 0x7fff")
                A(f"{L}:")
                A(f"s_add_u32 m0, s68, {base}")
                A("s_add_u32 s69, s68, s61")
                group(srd, vo_, "s69")
                A("s_add_u32 s68, s68, 4096")
                A("s_and_b32 s68, s68, 0x7fff")
                A(f"s_waitcnt vmcnt({4*dxx})")
                publish()
                A("s_cmp_lg_u32 s68, s67")
                A(f"s_cbranch_scc1 {L}")
        stamp(3)
        tloop(44, w7, "s63", 32 * 7168, 7, RD, free=FA, wrap=True, dd=dx)
        if unb:
            A(f"v_add_u32 v{vP}, s76, v{vP}")
        tloop(48, w7, "s64", 32 * 7168, "s75" if unb else 7, RA, free=FB, wrap=True, dd=dx)
        stamp(4)
        tloop(52, vo, "s65", 32768, 8, RB, free=FC, dd=d3x, grow=d3x - dx)
        stamp(5)
        tloop(56, vo, "s66", 32768, 7, RC, dd=d3x)
        stamp(6)
        if wb == 2:
            wbl2()
        for k in range(d3x - 1, -1, -1):
            A(f"s_waitcnt vmcnt({4*k})")
            publish()
        stamp(7)
        if wb == 1:
            wbl2()
        if stamps:
            A("s_getreg_b32 s96, hwreg(HW_REG_HW_ID)")
            A(f"v_writelane_b32 v{VST}, s96, 31")
        dump_stamps()
        A("s_endpgm")


    if win:
        uniq = []
        for w_ in win:
            if w_ not in uniq:
                uniq.append(w_)
        A("s_bfe_u32 s67, s2, 0x20003")
        A(f"s_cmp_eq_u32 s67, {wk}")
        A("s_cselect_b32 s67, 2, 0")
        A(f"s_bfe_u32 s68, s2, 0x1000{hibit}")
        A("s_add_u32 s67, s67, s68")
        for i in range(1, 4):
            if win[i] != win[0]:
                A(f"s_cmp_eq_u32 s67, {i}")
                A(f"s_cbranch_scc1 L_win{uniq.index(win[i])}")
        for i, w_ in enumerate(uniq):
            A(f"L_win{i}:")
            stream(w_[0] // 4, w_[1] // 4)
    else:
        if Dhi:
            A(f"s_bitcmp1_b32 s2, {hibit}")
            A("s_cbranch_scc1 L_hi")
        stream(d, d3)
        if Dhi:
            A("L_hi:")
            stream(Dhi // 4, max(Dhi, D3hi) // 4)

    vN, vQ, vZ, vMK, vONE = 1, 2, 3, 4, 33
    aW, aV0, aV1 = 10, 24, 25
    X, F, ACC = 40, 72, 104
    T = ["s50", "s51", "s52", "s53"]
    SW = "s54"
    WS = "s[36:39]"
    M_N2, M_N4, M_HI8, M_B1 = "s[60:61]", "s[62:63]", "s[64:65]", "s[66:67]"
    SJ = "s68"
    SID = "s71"
    vID = 137
    if pf == 0:
        PFCODE = """s_cmp_gt_u32 s3, 2
        s_cbranch_scc1 L_nopf
        v_lshlrev_b32 v1, 7, v0
        v_add_u32 v1, -8192, v1
        global_load_dword v136, v1, s[40:41]"""
    elif pf == 1:
        PFCODE = f"""s_cmp_gt_u32 s3, 3
        s_cbranch_scc1 L_nopf
        s_sub_u32 s40, s40, L_worker+{8 if stamps else 4}-{NAME}_kernel
        s_subb_u32 s41, s41, 0
        v_lshlrev_b32 v1, 7, v0
        v_add_u32 v1, -8192, v1
        global_load_dword v136, v1, s[40:41]"""
    elif pf == 2:
        PFCODE = "s_nop 0"
    A("L_worker:")
    if dly:
        A("s_memrealtime s[94:95]")
    if stamps:
        A("s_mov_b32 m0, 32")
    A(f"""
    s_getpc_b64 s[40:41]
    {PFCODE}
    L_nopf:
    v_and_b32 v0, 63, v0
    v_mov_b32 v4, 0
    v_mov_b32 v5, 0
    v_mov_b32 v6, 0
    v_mov_b32 v7, 0
    v_lshlrev_b32 v2, 4, v0
    ds_write_b128 v2, v[4:7]
    ds_write_b128 v2, v[4:7] offset:1024
    s_lshl_b32 s55, {RB1}, 9
    v_lshrrev_b32 v{vQ}, 4, v0
    v_and_b32 v9, 1, v0
    v_lshlrev_b32 v9, 11, v9
    v_lshl_add_u32 v9, v{vQ}, 4, v9
    s_mov_b32 s34, 4096
    s_mov_b32 s62, 0x000f000f
    s_mov_b32 s63, 0x000f000f
    s_waitcnt lgkmcnt(0)
    s_load_dwordx2 s[48:49], s[28:29], {EPOCH}
    s_mov_b64 s[32:33], s[4:5]
    s_cmp_gt_u32 s3, 4
    s_cbranch_scc1 L_nox
    s_mov_b64 exec, s[62:63]
    """)
    for s in range(8):
        A(f"buffer_load_dwordx4 v[{X+4*s}:{X+4*s+3}], v9, s[32:35], s55 offen offset:{64*s}")
    A(f"""
    s_mov_b64 exec, -1
    L_nox:
    s_barrier
    s_sub_u32 {SW}, s3, 1
    s_and_b32 {SW}, {SW}, 3
    s_mov_b32 {SPROG}, 0
    v_and_b32 v{vN}, 15, v0
    v_mov_b32 v{vZ}, 0
    v_mov_b32 v{vMK}, 0x{0xFFFFFFFF ^ TAGM:x}
    v_mov_b32 v{vONE}, 1
    s_mov_b32 s38, {0x1000000 if xo else WS_END}
    s_mov_b32 s39, 0x20000
    s_add_u32 s36, s28, {wsoff}
    s_addc_u32 s37, s29, 0
    v_bfe_u32 v5, v0, 2, 2
    v_lshl_add_u32 v5, v{vQ}, 3, v5
    v_and_b32 v6, 3, v0
    v_lshlrev_b32 v6, 3, v6
    v_bfe_u32 v7, v0, 3, 2
    v_xor_b32 v7, {SW}, v7
    v_lshl_add_u32 v7, v7, 5, v6
    v_lshl_add_u32 v{aW}, v5, 7, v7
    s_lshl_b32 s55, {SW}, 1
    v_bfe_u32 v7, v0, 2, 3
    v_xor_b32 v7, s55, v7
    v_lshl_add_u32 v7, v7, 5, v6
    v_lshl_add_u32 v{aV0}, v5, 8, v7
    s_mov_b32 s60, 0x00030003
    s_mov_b32 s61, 0x00030003
    s_waitcnt lgkmcnt(0)
    s_add_u32 s48, s48, 1
    s_addc_u32 s49, s49, 0
    s_and_b32 s50, s48, {TAGM}
    s_lshr_b32 s55, s48, 12
    s_add_u32 s55, s55, s48
    s_and_b32 s51, s55, {TAGM}
    s_lshr_b64 s[56:57], s[48:49], 24
    s_add_u32 s55, s56, s48
    s_and_b32 s52, s55, {TAGM}
    s_lshr_b32 s55, s49, 4
    s_add_u32 s55, s55, s48
    s_and_b32 s53, s55, {TAGM}
    s_getreg_b32 s55, hwreg(HW_REG_XCC_ID, 0, 4)
    s_lshl4_add_u32 {SID}, s48, s55
    """)
    if half:
        A(f"s_bitcmp1_b32 s2, {half}")
        A(f"s_cselect_b32 s38, s38, 0")
    a3, aBR, aAS, aGS = 140, 153, 154, 155
    aL16, oFP2, vGC = 156, 157, 158

    def common2(reg3, bsrc, part):
        A(f"""
        s_mov_b32 s64, 0xff00ff00
        s_mov_b32 s65, 0xff00ff00
        s_mov_b32 s66, 0xcccccccc
        s_mov_b32 s67, 0xcccccccc
        s_mov_b64 s[44:45], s[24:25]
        s_mov_b32 s46, 4096
        s_mov_b32 s47, 0x20000
        """)
        jidx(SJ, "s55")
        A(f"""
        v_add_u32 v{a3}, {reg3}, v{aV0}
        v_xor_b32 v{a3+1}, 32, v{a3}
        v_and_b32 v5, 1, v0
        v_lshlrev_b32 v6, 8, v5
        v_lshl_add_u32 v6, v{vQ}, 4, v6
        v_add_u32 v{aBR}, {bsrc}, v6
        v_lshlrev_b32 v{aGS}, 3, v5
        """)
        if not sym:
            A(f"""
            s_lshl_b32 s55, {SW}, 10
            s_add_u32 s55, s55, {AS}
            v_lshlrev_b32 v6, 4, v0
            v_add_u32 v{aAS}, s55, v6
            """)
        else:
            A(f"""
            s_lshl_b32 s55, {SW}, 8
            s_add_u32 s55, s55, {AS + 1024 * part}
            v_and_b32 v6, 3, v0
            v_lshlrev_b32 v6, 6, v6
            v_lshl_add_u32 v6, v{vQ}, 4, v6
            v_add_u32 v{aAS}, s55, v6
            v_lshlrev_b32 v{aL16}, 4, v0
            s_and_b32 s55, {"s2" if b3 >= 2 else SJ}, 7
            s_lshl_b32 s55, s55, 15
            s_lshr_b32 s56, {"s2" if b3 >= 2 else SJ}, 3
            s_lshl_b32 s56, s56, 7
            s_add_u32 s55, s55, s56
            s_add_u32 s55, s55, {FP}
            v_lshrrev_b32 v5, 3, v0
            v_lshlrev_b32 v5, 12, v5
            v_and_b32 v6, 7, v0
            v_lshl_add_u32 v5, v6, 4, v5
            v_add_u32 v{oFP2}, s55, v5
            """)

    def id_load():
        A(f"""
        s_and_b32 s55, s2, 7
        s_lshl_b32 s55, s55, 7
        s_add_u32 s55, s55, {IDT}
        v_and_b32 v5, 31, v0
        v_lshlrev_b32 v5, 2, v5
        buffer_load_dword v{vID}, v5, {WS}, s55 offen
        """)

    def id_check(dst):
        A(f"v_cmp_ne_u32 {dst}, {SID}, v{vID}")

    def pub(stores, key, flag):
        def emit(pol):
            for ex, t in stores:
                if ex is not None:
                    A(f"s_mov_b64 exec, {ex}")
                A(t + pol)
        if key not in loc:
            emit(" sc1")
        else:
            a, b = A.lab("L_pw"), A.lab("L_pd")
            A(f"s_cmp_lg_u64 {flag}, 0")
            A(f"s_cbranch_scc1 {a}")
            emit("")
            stamp(20)
            A(f"s_branch {b}")
            A(f"{a}:")
            emit(" sc1")
            stamp(21)
            A(f"{b}:")
        A("s_mov_b64 exec, -1")

    def hint_store(soff):
        A("s_mov_b64 exec, 1")
        A(f"v_mov_b32 v5, s48")
        A(f"buffer_store_byte v5, off, {WS}, {soff}")
        A("s_mov_b64 exec, -1")

    def hint_wait(soff, nd, flag, thr):
        sp, ok = A.lab("L_hsp"), A.lab("L_hok")
        A("s_and_b32 s56, s48, 0xff")
        A("s_mul_i32 s56, s56, 0x01010101")
        A("s_mov_b32 s57, s56")
        A(f"{sp}:")
        A(f"s_load_dwordx{nd} s[80:{80+nd-1}], s[28:29], {soff} glc")
        A(f"ds_read_b32 v5, v{vZ} offset:{PROG}")
        A("s_waitcnt lgkmcnt(0)")
        A(f"v_readfirstlane_b32 {SPROG}, v5")
        for i in range(0, nd, 2):
            A(f"s_xor_b64 s[{80+i}:{81+i}], s[{80+i}:{81+i}], s[56:57]")
        k = nd
        while k > 2:
            k //= 2
            for i in range(0, k, 2):
                A(f"s_or_b64 s[{80+i}:{81+i}], s[{80+i}:{81+i}], s[{80+k+i}:{81+k+i}]")
        A(f"s_cbranch_scc0 {ok}")
        budget()
        A(f"s_cmp_lt_i32 {SPROG}, {thr}")
        A(f"s_cbranch_scc1 {sp}")
        A(f"{ok}:")

    def wait_prog(thr):
        ok, sp = A.lab("L_pok"), A.lab("L_psp")
        if isinstance(thr, list):
            A("s_bfe_u32 s59, s2, 0x20003")
            A("s_cmp_eq_u32 s59, 1")
            A(f"s_cselect_b32 s59, {thr[1]}, {thr[0]}")
            thr = "s59"
        if isinstance(thr, tuple):
            A(f"s_bitcmp1_b32 s2, {hibit}")
            A(f"s_cselect_b32 s59, {thr[1]}, {thr[0]}")
            thr = "s59"
        A(f"s_cmp_ge_i32 {SPROG}, {thr}")
        A(f"s_cbranch_scc1 {ok}")
        A(f"{sp}:")
        A(f"ds_read_b32 v5, v{vZ} offset:{PROG}")
        A("s_waitcnt lgkmcnt(0)")
        A(f"v_readfirstlane_b32 {SPROG}, v5")
        budget()
        A(f"s_cmp_lt_i32 {SPROG}, {thr}")
        A(f"s_cbranch_scc1 {sp}")
        A(f"{ok}:")

    def arrive(cnt):
        A("s_mov_b64 exec, 1")
        A(f"ds_add_u32 v{vZ}, v{vONE} offset:{cnt}")
        A("s_mov_b64 exec, -1")

    def wait_cnt(cnt, n, reads):
        sp = A.lab("L_csp")
        A(f"{sp}:")
        A(f"ds_read_b32 v5, v{vZ} offset:{cnt}")
        for r in reads:
            A(r)
        A("s_waitcnt lgkmcnt(0)")
        A("v_readfirstlane_b32 s55, v5")
        budget()
        A(f"s_cmp_lt_u32 s55, {n}")
        A(f"s_cbranch_scc1 {sp}")

    def tag4(dst, src):
        for j in range(4):
            A(f"v_and_or_b32 v{dst+j}, v{src+j}, v{vMK}, {T[j]}")

    MASKS = [80, 82, 84, 86, 88, 90, 92, 94]

    def gather(loads, first, hop="", ex=None, rawoff=0, flag=None):
        if nog is True or (nog and hop in nog):
            A("s_mov_b64 exec, -1")
            return
        g, dn = A.lab("L_g"), A.lab("L_gd")
        n = len(loads)

        def ld(dst, vo_, off, pol):
            o = f" offset:{off}" if off else ""
            A(f"buffer_load_dwordx4 v[{dst}:{dst+3}], v{vo_}, {WS}, 0 offen{o} {pol}")

        K = pipe.get(hop, 0)
        raw = (lambda dst: dst + rawoff) if K else (lambda dst: dst)
        ld0 = ld
        ld = lambda dst, vo_, off, pol: ld0(raw(dst), vo_, off, pol)

        def chk(i, dst):
            m = MASKS[i]
            for j in range(4):
                A(f"v_xor_b32 v{dst+j}, {T[j]}, v{raw(dst)+j}")
            A(f"v_or3_b32 v5, v{dst}, v{dst+1}, v{dst+2}")
            A(f"v_or_b32 v5, v5, v{dst+3}")
            A(f"v_and_b32 v5, {TAGM}, v5")
            A(f"v_cmp_ne_u32 s[{m}:{m+1}], 0, v5")

        def anym():
            if n == 1:
                A(f"s_mov_b64 vcc, s[{MASKS[0]}:{MASKS[0]+1}]")
            for i in range(1, n):
                src = f"s[{MASKS[0]}:{MASKS[0]+1}]" if i == 1 else "vcc"
                A(f"s_or_b64 vcc, {src}, s[{MASKS[i]}:{MASKS[i]+1}]")

        stamp({"q": 10, "o": 12, "g": 10, "f": 12}[hop])
        for i, (dst, vo_, off) in enumerate(loads):
            if ex and (i == 0 or ex[i] != ex[i-1]):
                A(f"s_mov_b64 exec, {ex[i]}")
            ld(dst, vo_, off, first)
        for i, (dst, vo_, off) in enumerate(loads):
            if ex and ex[i] != ex[i-1]:
                A(f"s_mov_b64 exec, {ex[i]}")
            A(f"s_waitcnt vmcnt({n-1-i})")
            chk(i, dst)
        anym()
        dstamp()
        stamp({"q": 11, "o": 13, "g": 11, "f": 13}[hop])
        if hop in once:
            A("s_mov_b64 exec, -1")
            return
        A(f"s_cbranch_vccz {dn}")
        A(f"{g}:")
        if hop in "og" and rinv:
            A("buffer_inv sc0")
        def reissue(pol):
            for i, (dst, vo_, off) in enumerate(loads):
                A(f"s_mov_b64 exec, s[{MASKS[i]}:{MASKS[i]+1}]")
                ld(dst, vo_, off, pol)
        if flag is None or hop not in lret:
            reissue("sc1")
        else:
            a_, b_ = A.lab("L_ra"), A.lab("L_rb")
            A(f"s_cmp_lg_u64 {flag}, 0")
            A(f"s_cbranch_scc1 {a_}")
            reissue("nt")
            A(f"s_branch {b_}")
            A(f"{a_}:")
            reissue("sc1")
            A(f"{b_}:")
        if K:
            few = A.lab("L_few")
            A(f"s_bcnt1_i32_b64 s55, s[{MASKS[0]}:{MASKS[0]+1}]")
            for i in range(1, n):
                A(f"s_bcnt1_i32_b64 s56, s[{MASKS[i]}:{MASKS[i]+1}]")
                A("s_add_u32 s55, s55, s56")
            A(f"s_cmp_le_u32 s55, {pthr}")
            A(f"s_cbranch_scc1 {few}")
            A("s_waitcnt vmcnt(0)")
            A(f"{few}:")
            A(f"s_waitcnt vmcnt({n*(K-1)})")
        for i, (dst, vo_, off) in enumerate(loads):
            A(f"s_mov_b64 exec, s[{MASKS[i]}:{MASKS[i]+1}]")
            if not K:
                A(f"s_waitcnt vmcnt({n-1-i})")
            chk(i, dst)
        anym()
        if not K:
            dstamp()
        budget(16)
        A(f"s_cbranch_vccnz {g}")
        A(f"{dn}:")
        A("s_mov_b64 exec, -1")

    def gatherP(loads, raws, first, retry, hop, ex=None, chkf=None, flag=None):
        K, M = pg[hop]
        n = len(loads)
        top, dn = A.lab("L_q"), A.lab("L_qd")

        def issue(pol):
            for i, (dst, vo_, off) in enumerate(loads):
                A(f"s_mov_b64 exec, s[{MASKS[i]}:{MASKS[i]+1}]")
                o = f" offset:{off}" if off else ""
                A(f"buffer_load_dwordx4 v[{raws[i]}:{raws[i]+3}], v{vo_}, {WS}, 0 offen{o} {pol}")

        def chk():
            for i, (dst, vo_, off) in enumerate(loads):
                m = MASKS[i]
                A(f"s_mov_b64 exec, s[{m}:{m+1}]")
                if chkf:
                    chkf(raws[i])
                else:
                    for j in range(4):
                        A(f"v_xor_b32 v{dst+j}, {T[j]}, v{raws[i]+j}")
                    A(f"v_or3_b32 v5, v{dst}, v{dst+1}, v{dst+2}")
                    A(f"v_or_b32 v5, v5, v{dst+3}")
                    A(f"v_and_b32 v5, {TAGM}, v5")
                A(f"v_cmp_ne_u32 s[{m}:{m+1}], 0, v5")
            if n == 1:
                A(f"s_cmp_eq_u64 s[{MASKS[0]}:{MASKS[0]+1}], 0")
                A(f"s_cbranch_scc1 {dn}")
            else:
                for i in range(1, n):
                    src = f"s[{MASKS[0]}:{MASKS[0]+1}]" if i == 1 else "vcc"
                    A(f"s_or_b64 vcc, {src}, s[{MASKS[i]}:{MASKS[i]+1}]")
                A(f"s_cbranch_scc0 {dn}")

        stamp({"o": 12, "g": 10, "p": 12}[hop])
        for i in range(n):
            A(f"s_mov_b64 s[{MASKS[i]}:{MASKS[i]+1}], {ex[i] if ex else -1}")
            A(f"v_not_b32 v{raws[i]}, {T[0]}")
        issue(first)
        lp = A.lab("L_ql")
        A(f"{top}:")
        A(f"s_mov_b32 s55, {M}")
        A(f"{lp}:")
        chk()
        A("s_sub_u32 s55, s55, 1")
        A(f"s_cbranch_scc0 {lp}")
        A(f"s_waitcnt vmcnt({n*(K-1)})")
        chk()
        budget(16)
        dstamp()
        if flag is None:
            issue(retry)
            A(f"s_branch {top}")
        else:
            rm = A.lab("L_qr")
            A(f"s_cmp_lg_u64 {flag}, 0")
            A(f"s_cbranch_scc1 {rm}")
            issue(retry)
            A(f"s_branch {top}")
            A(f"{rm}:")
            issue("sc1")
            A(f"s_branch {top}")
        A(f"{dn}:")
        A("s_mov_b64 exec, -1")

    def mfma(dst, a, b, c):
        cs = "0" if c is None else f"v[{c}:{c+3}]"
        A(f"v_mfma_f32_16x16x32_bf16 v[{dst}:{dst+3}], v[{a}:{a+3}], v[{b}:{b+3}], {cs}")

    def gemv64(areg, acc, gbase, splits, first_vm=False):
        s0 = 0
        for k, s1 in enumerate(splits):
            wait_prog(gbase + s1)
            for s in range(s0, s1):
                A(f"ds_read_b64_tr_b16 v[{F+4*s}:{F+4*s+1}], v{areg} offset:{4096*s}")
                A(f"ds_read_b64_tr_b16 v[{F+4*s+2}:{F+4*s+3}], v{areg} offset:{4096*s+512}")
            if k == 0 and first_vm:
                A("s_waitcnt vmcnt(0)")
            for s in range(s0, s1):
                A(f"s_waitcnt lgkmcnt({2*(s1-1-s)})")
                mfma(acc, F + 4 * s, X + 4 * s, None if s == 0 else acc)
            s0 = s1

    def bf16_round_pair(pk, lo, hi, a, b):
        A(f"v_cvt_pk_bf16_f32 v{pk}, v{a}, v{b}")
        A(f"v_lshlrev_b32 v{lo}, 16, v{pk}")
        A(f"v_and_b32 v{hi}, 0xffff0000, v{pk}")

    DPPM = "row_mask:0xf bank_mask:0xf"
    BT = X

    def bt_reads():
        return [f"ds_read_b128 v[{BT+4*s}:{BT+4*s+3}], v{aBR} offset:{64*s}" for s in range(4)]

    def rd3(ss):
        for s in ss:
            for t in range(2):
                r = F + 16 * t + 4 * s
                A(f"ds_read_b64_tr_b16 v[{r}:{r+1}], v{a3+t} offset:{8192*s}")
                A(f"ds_read_b64_tr_b16 v[{r+2}:{r+3}], v{a3+t} offset:{8192*s+1024}")

    def mm3(ss):
        for s in ss:
            for t in range(2):
                mfma(ACC + 4 * t, F + 16 * t + 4 * s, BT + 4 * s, None if s == 0 else ACC + 4 * t)

    def sel3():
        for j in range(4):
            A(f"v_cndmask_b32 v{ACC+j}, v{ACC+j}, v{ACC+4+j}, {M_B1}")

    def red4(r):
        A(f"""
        v_permlane32_swap_b32 v{r}, v{r+2}
        v_permlane32_swap_b32 v{r+1}, v{r+3}
        v_add_f32 v{r}, v{r}, v{r+2}
        v_add_f32 v{r+1}, v{r+1}, v{r+3}
        v_permlane16_swap_b32 v{r}, v{r+1}
        v_add_f32 v{r}, v{r}, v{r+1}
        """)

    T16 = "s77"

    def pxg(voff, alds, ldsoff, ex, gate, cnt, hop):
        R = ACC + 4
        l0, l1 = A.lab("L_px0"), A.lab("L_px1")
        A("s_mov_b32 s58, 0x07060302")
        wait_prog(gate)
        stamp(12 if hop == "p" else 14)
        if ex:
            A(f"s_mov_b32 exec_hi, {ex}")
        if not (nog is True or (nog and hop in nog)):
            A(f"buffer_load_dwordx4 v[{R}:{R+3}], v{voff}, {WS}, 0 offen {ppol}")
            A(f"s_branch {l1}")
            A(f"{l0}:")
            budget(16)
            A("s_mov_b64 exec, vcc")
            A(f"buffer_load_dwordx4 v[{R}:{R+3}], v{voff}, {WS}, 0 offen sc1")
            A(f"{l1}:")
            A("s_waitcnt vmcnt(0)")
            A(f"v_xor_b32 v6, v{R}, v{R+1}")
            A(f"v_xor_b32 v7, v{R+2}, v{R+3}")
            A(f"v_xor_b32 v8, v{R}, v{R+2}")
            A(f"v_or3_b32 v6, v6, v7, v8")
            A(f"v_xor_b32 v7, {T16}, v{R}")
            A(f"v_or_b32 v6, v6, v7")
            A("v_and_b32 v6, 0xffff, v6")
            A(f"v_cmp_ne_u32 vcc, 0, v6")
            dstamp()
            if hop not in once:
                A(f"s_cbranch_vccnz {l0}")
            A("s_mov_b64 exec, -1")
            if ex:
                A(f"s_mov_b32 exec_hi, {ex}")
        A(f"v_perm_b32 v6, v{R+1}, v{R}, s58")
        A(f"v_perm_b32 v7, v{R+3}, v{R+2}, s58")
        A(f"ds_write_b64 v{alds}, v[6:7] offset:{ldsoff}")
        stamp(6)
        arrive(cnt)

    A("s_cmp_gt_u32 s3, 4")
    A("s_cbranch_scc1 L_F")

    oQP, oQG, aQsW, aQsR, aK = 11, 12, 13, 14, 15
    aPsW, aMsW, aPlo, aPhi, aMsR = 19, 20, 21, 22, 23
    oOP, oML, oOPG, oMLG, aOsW, oPX = 26, 27, 28, 29, 30, 31
    T16, FLG = "s77", "s[98:99]"
    SBG, SSPL = "s73", "s75"
    SC = "s76"
    A(f"""
    v_add_u32 v{aW}, {RA}, v{aW}
    s_lshr_b32 s55, {CB1}, 2
    s_lshl_b32 s55, s55, 12
    s_lshl_b32 s56, {RB1}, 10
    s_add_u32 s55, s55, s56
    s_and_b32 s56, {CB1}, 3
    s_lshl_b32 s56, s56, 8
    s_add_u32 s55, s55, s56
    s_lshl_b32 s56, {SW}, 6
    s_add_u32 s55, s55, s56
    v_and_b32 v5, 1, v0
    v_lshlrev_b32 v5, 16, v5
    v_lshl_add_u32 v5, v{vQ}, 4, v5
    v_add_u32 v{oQP}, s55, v5
    """)
    MQ = M_N2
    if "q" in cst:
        A(f"""
        s_lshl_b32 s55, s2, 9
        s_lshl_b32 s56, {SW}, 7
        s_add_u32 s55, s55, s56
        v_lshlrev_b32 v5, 4, v0
        v_add_u32 v{oQP}, s55, v5
        """)
        MQ = "0xff"
    stamp(1)
    gemv64(aW, ACC, 0, spl1, first_vm=True)
    arrive(FA)
    tag4(ACC + 4, ACC)
    A(f"s_mov_b64 exec, {MQ}")
    if qfrac:
        A(f"s_lshr_b32 s55, s2, 3")
        A(f"s_and_b32 s55, s55, {qfrac-1}")
        A(f"s_cselect_b64 exec, 0, exec")
    A(f"buffer_store_dwordx4 v[{ACC+4}:{ACC+7}], v{oQP}, {WS}, 0 offen sc1")
    A("s_mov_b64 exec, -1")
    stamp(2)
    common2(RB, OS, 0)
    bg(SBG, "s55")
    A(f"""
    s_lshr_b32 {SSPL}, s2, 3
    s_mov_b32 {SC}, {f32(LOG2E)}
    """)
    A(f"""
    s_lshl_b32 s55, {SW}, 13
    s_add_u32 s55, s55, {RB}
    v_xor_b32 v5, v{vQ}, v{vN}
    v_lshlrev_b32 v5, 4, v5
    v_lshl_add_u32 v5, v{vN}, 8, v5
    v_add_u32 v{aK}, s55, v5
    v_xor_b32 v{aK+1}, 64, v{aK}
    v_xor_b32 v{aK+2}, 128, v{aK}
    v_xor_b32 v{aK+3}, 192, v{aK}
    v_add_u32 v{aV0}, {RC}, v{aV0}
    v_xor_b32 v{aV1}, 32, v{aV0}
    """)
    A(f"""
    s_lshl_b32 s55, {SBG}, 2
    s_add_u32 s55, s55, {SW}
    s_lshl_b32 s55, s55, 12
    v_lshlrev_b32 v5, 4, v0
    v_add_u32 v{oQG}, s55, v5
    """)
    A(f"""
    s_mul_i32 s55, {SW}, {2*PITCH}
    s_add_u32 s55, s55, {QS}
    v_lshrrev_b32 v5, 5, v0
    v_mul_u32_u24 v5, {PITCH}, v5
    v_and_b32 v6, 31, v0
    v_lshl_add_u32 v5, v6, 3, v5
    v_add_u32 v{aQsW}, s55, v5
    v_and_b32 v6, 7, v0
    v_mul_u32_u24 v7, {PITCH}, v6
    v_lshl_add_u32 v8, v{vQ}, 4, v7
    v_add_u32 v{aQsR}, {QS}, v8
    v_add_u32 v8, {PS}, v8
    v_mov_b32 v9, {ZERO}
    v_cndmask_b32 v{aPlo}, v8, v9, {M_HI8}
    v_cndmask_b32 v{aPhi}, v9, v8, {M_HI8}
    v_lshlrev_b32 v9, 4, v6
    v_add_u32 v{aMsR}, {MS}, v9
    s_lshl_b32 s55, {SW}, 2
    v_add_u32 v{aMsW}, s55, v{aMsR}
    s_lshl_b32 s55, {SW}, 6
    s_add_u32 s55, s55, {PS}
    v_and_b32 v9, 8, v0
    v_lshlrev_b32 v9, 2, v9
    v_lshl_add_u32 v9, v{vQ}, 3, v9
    v_add3_u32 v{aPsW}, v7, v9, s55
    """)
    A(f"""
    s_lshl_b32 s55, {SBG}, 17
    s_lshl_b32 s56, {SW}, 12
    s_add_u32 s55, s55, s56
    s_lshl_b32 s56, {SSPL}, 7
    s_add_u32 s55, s55, s56
    s_add_u32 s55, s55, {OP}
    v_lshlrev_b32 v9, 1, v9
    v_lshl_add_u32 v9, v6, 14, v9
    v_add_u32 v{oOP}, s55, v9
    s_lshl_b32 s55, {SBG}, 12
    s_lshl_b32 s56, {SSPL}, 4
    s_add_u32 s55, s55, s56
    s_add_u32 s55, s55, {ML}
    v_lshlrev_b32 v9, 9, v6
    v_add_u32 v{oML}, s55, v9
    """)
    A(f"""
    s_lshl_b32 s55, {SJ}, 12
    s_and_b32 s58, {SW}, 1
    s_lshl_b32 s59, s58, 6
    s_add_u32 s55, s55, s59
    s_add_u32 s55, s55, {OP}
    v_lshrrev_b32 v5, 2, v0
    v_and_b32 v6, 3, v0
    v_lshlrev_b32 v7, 4, v6
    v_lshl_add_u32 v8, v5, 7, v7
    v_add_u32 v{oOPG}, s55, v8
    s_lshr_b32 s57, {SJ}, 2
    s_lshl_b32 s57, s57, 9
    s_add_u32 s57, s57, {ML}
    v_and_b32 v8, 1, v0
    v_lshlrev_b32 v8, 8, v8
    v_lshl_add_u32 v8, v5, 4, v8
    v_add_u32 v{oMLG}, s57, v8
    s_cmp_ge_u32 {SW}, 2
    s_cbranch_scc1 L_a2
    s_bfe_u32 s55, {SJ}, 0x50002
    s_lshl_b32 s55, s55, 10
    s_and_b32 s56, s2, 4
    s_lshl_b32 s56, s56, 7
    s_add_u32 s55, s55, s56
    s_and_b32 s56, {SJ}, 3
    s_lshl_b32 s56, s56, 7
    s_add_u32 s55, s55, s56
    s_add_u32 s55, s55, s59
    s_add_u32 s55, s55, {PX}
    v_lshl_add_u32 v8, v{vQ}, 2, v7
    v_add_u32 v{oPX}, s55, v8
    s_branch L_a3
    L_a2:
    s_lshl_b32 s55, {SSPL}, 10
    s_add_u32 s55, s55, {PX}
    v_lshlrev_b32 v8, 4, v0
    v_add_u32 v{oPX}, s55, v8
    v_lshlrev_b32 v{aOsW}, 3, v0
    L_a3:
    s_and_b32 {T16}, s48, 0xffff
    """)
    oOPG2 = 159
    if "o" in xo:
        A(f"v_add_u32 v{oOPG2}, 2048, v{oOPG}")
        for v_ in (oOP, oOPG, oOPG2):
            xf(v_, OP, 0x400000)
        for v_ in (oML, oMLG):
            xf(v_, ML, 0x800000)
    if "p" in xo:
        xf(oPX, PX, 0x880000)
    if "O" in cst:
        A(f"""
        s_xor_b32 s55, {SJ}, 1
        s_lshl_b32 s55, s55, 12
        s_lshl_b32 s56, {SW}, 10
        s_add_u32 s55, s55, s56
        s_add_u32 s55, s55, {OP}
        v_lshlrev_b32 v5, 4, v0
        v_add_u32 v{oOP}, s55, v5
        """)
    if "P" in cst:
        A(f"""
        s_xor_b32 s55, {SJ}, 1
        s_lshl_b32 s55, s55, 12
        s_lshl_b32 s56, {SW}, 10
        s_add_u32 s55, s55, s56
        s_add_u32 s55, s55, {OP}
        v_lshlrev_b32 v5, 6, v{vN}
        v_lshl_add_u32 v5, v{vQ}, 4, v5
        v_add_u32 v{oOP}, s55, v5
        """)
    if "M" in cst:
        A(f"v_mov_b32 v{oMLG}, v{oOPG}")
    if "o" in pre:
        A(f"buffer_load_dword v138, v{oOP}, {WS}, 0 offen {prepol}")
        A(f"buffer_load_dword v139, v{oML}, {WS}, 0 offen {prepol}")
    ONES = 132
    A(f"""
    v_mov_b32 v{ONES}, 0x3f803f80
    v_mov_b32 v{ONES+1}, 0x3f803f80
    v_mov_b32 v{ONES+2}, 0x3f803f80
    v_mov_b32 v{ONES+3}, 0x3f803f80
    s_lshl_b32 s55, {SW}, 1
    s_lshl_b32 s78, 3, s55
    s_mov_b32 s79, 0
    """)

    if "o" in cst:
        A(f"""
        s_lshl_b32 s55, s2, 12
        s_lshl_b32 s56, {SW}, 10
        s_add_u32 s55, s55, s56
        s_add_u32 s55, s55, {OP}
        v_lshlrev_b32 v5, 4, v0
        v_add_u32 v{oOP}, s55, v5
        s_lshl_b32 s55, s2, 7
        s_add_u32 s55, s55, {ML}
        v_add_u32 v{oML}, s55, v5
        s_cmp_eq_u32 {SW}, 0
        s_cselect_b32 s78, 0xff, 0
        """)

    def kfrags():
        if rot:
            wait_prog(16)
        else:
            A(f"s_lshl_b32 s77, {SW}, 1")
            A("s_add_u32 s77, s77, 10")
            wait_prog("s77")
        for t in range(2):
            for s in range(4):
                r = F + 16 * t + 4 * s
                A(f"ds_read_b128 v[{r}:{r+3}], v{aK+s} offset:{4096*t}")
        arrive(FB)

    G = X
    kfirst = (min(gq) if isinstance(gq, tuple) else gq) >= 16
    if kfirst:
        kfrags()
    if gq:
        wait_prog(gq)
    id_load()
    gather([(G + 4 * r, oQG, 1024 * (r % 4)) for r in range(qn)], fpol, hop="q")
    A("s_waitcnt vmcnt(0)")
    id_check(FLG)
    A(f"""
    v_pk_add_f32 v[{G}:{G+1}], v[{G}:{G+1}], v[{G+4}:{G+5}]
    v_pk_add_f32 v[{G+2}:{G+3}], v[{G+2}:{G+3}], v[{G+6}:{G+7}]
    v_pk_add_f32 v[{G+8}:{G+9}], v[{G+8}:{G+9}], v[{G+12}:{G+13}]
    v_pk_add_f32 v[{G+10}:{G+11}], v[{G+10}:{G+11}], v[{G+14}:{G+15}]
    v_pk_add_f32 v[{G}:{G+1}], v[{G}:{G+1}], v[{G+8}:{G+9}]
    v_pk_add_f32 v[{G+2}:{G+3}], v[{G+2}:{G+3}], v[{G+10}:{G+11}]
    v_cvt_pk_bf16_f32 v6, v{G}, v{G+1}
    v_cvt_pk_bf16_f32 v7, v{G+2}, v{G+3}
    ds_write_b64 v{aQsW}, v[6:7]
    """)
    arrive(CQ)
    stamp(3)
    if not kfirst:
        kfrags()
    QF = X + 16
    wait_cnt(CQ, 4, [f"ds_read_b128 v[{QF+4*s}:{QF+4*s+3}], v{aQsR} offset:{64*s}" for s in range(4)])
    for s in range(4):
        for t in range(2):
            mfma(ACC + 4 * t, F + 16 * t + 4 * s, QF + 4 * s, None if s == 0 else ACC + 4 * t)
    S = X
    for j in range(4):
        A(f"v_cndmask_b32 v{S+j}, v{ACC+j}, v{ACC+4+j}, {M_HI8}")
    bf16_round_pair(6, S, S + 1, S, S + 1)
    bf16_round_pair(7, S + 2, S + 3, S + 2, S + 3)
    for j in range(4):
        A(f"v_mul_f32 v{S+j}, {f32(SCALE)}, v{S+j}")
    bf16_round_pair(6, S, S + 1, S, S + 1)
    bf16_round_pair(7, S + 2, S + 3, S + 2, S + 3)
    A(f"""
    v_max3_f32 v6, v{S}, v{S+1}, v{S+2}
    v_max_f32 v6, v6, v{S+3}
    v_max_f32_dpp v6, v6, v6 row_ror:8 {DPPM}
    v_mov_b32 v7, v6
    v_permlane16_swap_b32 v6, v7
    v_max_f32 v6, v6, v7
    v_mov_b32 v7, v6
    v_permlane32_swap_b32 v6, v7
    v_max_f32 v6, v6, v7
    v_mul_f32 v7, {SC}, v6
    """)
    for j in range(4):
        A(f"v_fma_f32 v{S+j}, v{S+j}, {SC}, -v7")
    for j in range(4):
        A(f"v_exp_f32 v{S+j}, v{S+j}")
    A(f"""
    v_cvt_pk_bf16_f32 v8, v{S}, v{S+1}
    v_cvt_pk_bf16_f32 v9, v{S+2}, v{S+3}
    ds_write_b64 v{aPsW}, v[8:9]
    s_mov_b64 exec, 0xff
    ds_write_b32 v{aMsW}, v6
    """)
    arrive(CP)
    stamp(4)
    wait_prog(24)
    for t in range(2):
        for s in range(4):
            r = F + 16 * t + 4 * s
            A(f"ds_read_b64_tr_b16 v[{r}:{r+1}], v{aV0+t} offset:{8192*s}")
            A(f"ds_read_b64_tr_b16 v[{r+2}:{r+3}], v{aV0+t} offset:{8192*s+1024}")
    arrive(FC)
    PL, PH, MSV = X, X + 16, 36
    rd = [f"ds_read_b128 v[{MSV}:{MSV+3}], v{aMsR}"]
    for s in range(4):
        rd.append(f"ds_read_b128 v[{PL+4*s}:{PL+4*s+3}], v{aPlo} offset:{64*s}")
        rd.append(f"ds_read_b128 v[{PH+4*s}:{PH+4*s+3}], v{aPhi} offset:{64*s}")
    wait_cnt(CP, 4, rd)
    LAs = [120, 124, 128, 144]
    fw = ["v_max3_f32 v6, v36, v37, v38", "v_max_f32 v6, v6, v39"]
    for s in range(4):
        fw.append(f"v_sub_f32 v{MSV+s}, v{MSV+s}, v6")
    for s in range(4):
        fw.append(f"v_mul_f32 v{MSV+s}, {SC}, v{MSV+s}")
    for s in range(4):
        fw.append(f"v_exp_f32 v{MSV+s}, v{MSV+s}")
    fw.append(f"v_or_b32 v148, {T[0]}, v6")
    fw.append(f"v_mov_b32 v150, {T[2]}")
    fw.append(f"v_mov_b32 v151, {T[3]}")
    k = 0
    for t in range(2):
        for s in range(4):
            mfma(ACC + 4 * s, F + 16 * t + 4 * s, (PL, PH)[t] + 4 * s, None if t == 0 else ACC + 4 * s)
            for _ in range(2):
                if k < len(fw):
                    A(fw[k]); k += 1
    while k < len(fw):
        A(fw[k]); k += 1
    O = F
    for s in range(4):
        mfma(LAs[s], ONES, PL + 4 * s, None)
        for j in range(4):
            if s == 0:
                A(f"v_mul_f32 v{O+j}, v{MSV}, v{ACC+j}")
            else:
                A(f"v_fmac_f32 v{O+j}, v{MSV+s}, v{ACC+4*s+j}")
    tag4(O + 4, O)
    A(f"v_mul_f32 v7, v{MSV}, v{LAs[0]}")
    for s in range(1, 4):
        A(f"v_fmac_f32 v7, v{MSV+s}, v{LAs[s]}")
    A(f"v_and_or_b32 v149, v7, v{vMK}, {T[1]}")
    pub([(None, f"buffer_store_dwordx4 v[{O+4}:{O+7}], v{oOP}, {WS}, 0 offen"),
         ("s[78:79]", f"buffer_store_dwordx4 v[148:151], v{oML}, {WS}, 0 offen")], "o", FLG)
    if "o" in hint:
        A(f"""
        s_and_b32 s55, s2, 7
        s_lshl_b32 s55, s55, 7
        s_add_u32 s55, s55, {FLO}
        s_lshl_b32 s56, {SW}, 5
        s_add_u32 s56, s56, s55
        s_add_u32 s56, s56, {SSPL}
        """)
        hint_store("s56")
    stamp(5)
    MR, G0, G1 = ACC, ACC + 4, ACC + 8
    A(f"s_cmp_ge_u32 {SW}, 2")
    A("s_cbranch_scc1 L_px")
    if "o" in hint:
        A(f"s_and_b32 s56, {SJ}, 3")
        A("s_lshl_b32 s56, s56, 5")
        A("s_add_u32 s55, s55, s56")
        wait_prog(go0)
        hint_wait("s55", 8, FLG, go)
    elif go:
        wait_prog(go)
    if "o" in pg:
        gatherP([(MR, oMLG, 0), (G0, oOPG, 0), (G1, oOPG, 2048)], [120, 124, 128], opol, rpol, "o", flag=FLG)
    else:
        gather([(MR, oMLG, 0), (G0, oOPG, 0), (G1, oOPG2, 0) if "o" in xo else (G1, oOPG, 2048)], fpol if opol is None else opol, hop="o", flag=FLG)
    stamp(6)
    A(f"""
    v_max_f32_dpp v6, v{MR}, v{MR} quad_perm:[1,0,3,2] {DPPM}
    v_max_f32_dpp v6, v6, v6 row_ror:4 {DPPM}
    v_max_f32_dpp v6, v6, v6 row_ror:8 {DPPM}
    v_mov_b32 v7, v6
    v_permlane16_swap_b32 v6, v7
    v_max_f32 v6, v6, v7
    v_mov_b32 v7, v6
    v_permlane32_swap_b32 v6, v7
    v_max_f32 v6, v6, v7
    v_sub_f32 v8, v{MR}, v6
    v_mul_f32 v8, {SC}, v8
    v_exp_f32 v8, v8
    v_mul_f32 v6, v8, v{MR+1}
    """)
    lred = [f"v_add_f32_dpp v6, v6, v6 quad_perm:[1,0,3,2] {DPPM}",
            f"v_add_f32_dpp v6, v6, v6 row_ror:4 {DPPM}",
            f"v_add_f32_dpp v6, v6, v6 row_ror:8 {DPPM}",
            "v_mov_b32 v7, v6"]
    for j in range(4):
        A(f"v_mul_f32_dpp v{G0+j}, v8, v{G0+j} quad_perm:[0,0,0,0] {DPPM}")
        if j & 1:
            A(lred[j >> 1])
    for j in range(4):
        A(f"v_fmac_f32_dpp v{G0+j}, v8, v{G1+j} quad_perm:[1,1,1,1] {DPPM}")
        if j & 1:
            A(lred[2 + (j >> 1)])
    A(f"""
    v_permlane32_swap_b32 v{G0}, v{G0+2}
    v_permlane32_swap_b32 v{G0+1}, v{G0+3}
    v_permlane16_swap_b32 v6, v7
    v_add_f32 v{G0}, v{G0}, v{G0+2}
    v_add_f32 v{G0+1}, v{G0+1}, v{G0+3}
    v_add_f32 v6, v6, v7
    v_mov_b32 v7, v6
    v_permlane16_swap_b32 v{G0}, v{G0+1}
    v_permlane32_swap_b32 v6, v7
    v_add_f32 v{G0}, v{G0}, v{G0+1}
    v_add_f32 v6, v6, v7
    v_rcp_f32 v6, v6
    v_add_f32_dpp v{G0}, v{G0}, v{G0} row_ror:4 {DPPM}
    v_add_f32_dpp v{G0}, v{G0}, v{G0} row_ror:8 {DPPM}
    v_mul_f32 v{G0}, v{G0}, v6
    v_cvt_pk_bf16_f32 v7, v{G0}, v{G0}
    v_and_b32 v7, 0xffff0000, v7
    v_or_b32 v7, {T16}, v7
    """)
    if pxe:
        A(f"""
        v_and_b32 v8, 0xffffffc0, v{oPX}
        v_lshl_add_u32 v8, v0, 2, v8
        s_mov_b64 exec, 0xffff
        buffer_store_dword v7, v8, {WS}, 0 offen sc1
        s_mov_b64 exec, -1
        """)
    else:
        A(f"""
        s_mov_b64 exec, {M_N4}
        buffer_store_dword v7, v{oPX}, {WS}, 0 offen sc1
        s_mov_b64 exec, -1
        """)
    stamp(14)
    A("s_branch L_pxd")
    A("L_px:")
    A(f"s_cmp_eq_u32 {SW}, 3")
    A("s_cbranch_scc1 L_pxd")
    pxg(oPX, aOsW, OS, None, gp, CO, "p")
    A("L_pxd:")
    wait_prog(46)
    rd3(range(4))
    wait_cnt(CO, 3, bt_reads() + [f"ds_read_b32 v9, v{aGS} offset:{GS}"])
    mm3(range(4))
    if sym:
        A("v_mov_b32 v{vGC}, v9".replace("{vGC}", str(vGC)))
        A("s_branch L_comb")
    else:
        sel3()
        for j in range(4):
            A(f"v_mul_f32 v{ACC+j}, v9, v{ACC+j}")
        A(f"ds_write_b128 v{aAS}, v[{ACC}:{ACC+3}]")
        arrive(CA)
        stamp(7)
        dump_stamps()
        A("s_endpgm")

    A("L_F:")
    common2(RC, HS, 1)
    if "c" in pre:
        WS0 = WS
        if "k" in pre:
            A("s_mov_b64 s[40:41], s[6:7]")
            A(f"s_mov_b32 s42, {64<<20}")
            A("s_mov_b32 s43, 0x20000")
            WS = "s[40:43]"
        A(f"""
        s_lshl_b32 s55, {SJ}, 12
        s_lshl_b32 s56, {SW}, 10
        s_add_u32 s55, s55, s56
        s_add_u32 s55, s55, {OP}
        v_lshlrev_b32 v5, 4, v0
        buffer_load_dwordx4 v[144:147], v5, {WS}, s55 offen {prepol}
        s_mul_i32 s55, {SJ}, 672
        s_and_b32 s56, {SW}, 1
        s_mul_i32 s56, s56, {56*3072}
        s_add_u32 s55, s55, s56
        s_add_u32 s55, s55, {GUP}
        s_lshl_b32 s56, {SJ}, 7
        s_add_u32 s56, s56, {ML}
        s_cmp_lt_u32 {SW}, 2
        s_cselect_b32 s55, s55, s56
        s_cselect_b32 exec_lo, -1, 0xff
        s_cselect_b32 exec_hi, 0x3ff, 0
        buffer_load_dwordx4 v[148:151], v5, {WS}, s55 offen {prepol}
        s_mov_b64 exec, -1
        """)
        WS = WS0
    A(f"""
    s_cmp_lg_u32 {SW}, 0
    s_cbranch_scc1 L_noid
    s_lshl_b32 s55, {SJ}, 2
    s_add_u32 s55, s55, {IDT}
    v_mov_b32 v5, {SID}
    s_mov_b64 exec, 1
    buffer_store_dword v5, off, {WS}, s55
    s_mov_b64 exec, -1
    L_noid:
    """)
    aWg, aWu, oGU, oGG, aHsW, oFP, oFG, oOut = 11, 12, 13, 14, 16, 17, 22, 23
    SG0, SCB0 = "s69", "s70"
    M_GU, M_GG = "s[72:73]", ["s[74:75]", "s[76:77]"]
    for i in range(28):
        A(f"v_mov_b32 v{X+i}, 0")
    A(f"""
    s_mul_i32 s55, {SJ}, 7
    s_lshr_b32 {SCB0}, s55, 5
    s_and_b32 {SG0}, s55, 31
    s_mov_b32 s57, 0x00f000f0
    """)
    for s in range(7):
        A(f"""
        s_add_u32 s56, {SG0}, {s}
        s_cmp_ge_u32 s56, 32
        s_cselect_b32 exec_lo, s57, s62
        s_cselect_b32 exec_hi, s57, s62
        s_and_b32 s56, s56, 31
        s_lshl_b32 s56, s56, 6
        buffer_load_dwordx4 v[{X+4*s}:{X+4*s+3}], v9, s[32:35], s56 offen
        """)
    A(f"""
    s_mov_b64 exec, -1
    v_add_u32 v{aWg}, {RD}, v{aW}
    v_add_u32 v{aWu}, {RA}, v{aW}
    """)
    A(f"""
    s_cmp_ge_u32 {SG0}, 26
    s_cselect_b32 s72, 0x00ff00ff, s62
    s_mov_b32 s73, s72
    s_mul_i32 s55, {SCB0}, {32*9363}
    s_lshr_b32 s55, s55, 16
    s_sub_u32 s55, {SJ}, s55
    s_lshl_b32 s55, s55, 7
    s_lshl2_add_u32 s56, {SCB0}, {SW}
    s_lshl_b32 s56, s56, 11
    s_add_u32 s56, s56, {GUP}
    v_mov_b32 v6, s55
    v_mov_b32 v7, 8192
    s_mov_b32 s58, 0xf0f0f0f0
    s_mov_b32 s59, 0xf0f0f0f0
    v_cndmask_b32 v6, v6, v7, s[58:59]
    v_and_b32 v5, 1, v0
    v_lshlrev_b32 v5, 6, v5
    v_lshl_add_u32 v5, v{vQ}, 4, v5
    v_bfe_u32 v7, v0, 1, 1
    v_lshlrev_b32 v7, 10, v7
    v_add3_u32 v5, v5, v6, v7
    v_add_u32 v{oGU}, s56, v5
    """)
    oPH = oGG + 1
    SK = "s74"
    A(f"""
    s_lshr_b32 {SK}, s2, 3
    s_and_b32 {T16}, s48, 0xffff
    s_and_b32 s55, s2, 7
    s_mul_i32 s55, s55, 28
    s_add_u32 s55, s55, {SK}
    s_lshl_b32 s56, s55, 11
    s_add_u32 s56, s56, {GUP}
    v_add_u32 v{oGG}, s56, v{aL16}
    s_movk_i32 s79, 0xff
    s_bitcmp1_b32 s2, 5
    s_cselect_b32 s79, 0xffff, s79
    s_mov_b32 s78, -1
    s_mul_i32 s56, {SK}, 7
    s_cmp_eq_u32 {SW}, 0
    s_cselect_b32 s55, s55, s56
    s_cselect_b64 vcc, -1, 0
    s_lshl_b32 s55, s55, 7
    s_add_u32 s55, s55, {PHB}
    v_and_b32 v6, 7, v0
    v_lshlrev_b32 v6, 4, v6
    v_lshl_add_u32 v6, v{vQ}, 2, v6
    v_cndmask_b32 v6, v{aL16}, v6, vcc
    v_add_u32 v{oPH}, s55, v6
    v_bfe_u32 v6, v0, 2, 1
    v_lshlrev_b32 v6, 8, v6
    v_lshrrev_b32 v7, 3, v0
    v_lshl_add_u32 v6, v7, 5, v6
    v_and_b32 v7, 3, v0
    v_lshl_add_u32 v{aHsW}, v7, 3, v6
    """)
    A(f"""
    s_mov_b64 s[40:41], s[22:23]
    s_mov_b32 s42, 2048
    s_mov_b32 s43, 0x20000
    s_lshr_b32 s57, {SJ}, 2
    s_lshl_b32 s55, s57, 12
    s_add_u32 s55, s55, {FP}
    v_add_u32 v{oFG}, s55, v{aL16}
    s_xor_b32 s57, s57, {8*cbx}
    s_lshl_b32 s55, s57, 5
    v_bfe_u32 v5, v0, 2, 1
    v_lshlrev_b32 v5, 11, v5
    v_lshl_add_u32 v5, v{vQ}, 1, v5
    v_and_b32 v6, 3, v0
    v_lshl_add_u32 v5, v6, 3, v5
    v_add_u32 v{oOut}, s55, v5
    """)
    A(f"s_cmp_lt_u32 {SW}, 2")
    A("s_cbranch_scc1 L_nog")
    A(f"""
    s_and_b32 s55, {SW}, 1
    s_lshl_b32 s56, s55, 3
    s_lshl_b32 s55, s55, 11
    v_lshlrev_b32 v5, 5, v0
    buffer_load_dwordx4 v[{F}:{F+3}], v5, s[32:35], s55 offen
    buffer_load_dwordx4 v[{F+4}:{F+7}], v5, s[32:35], s55 offen offset:16
    buffer_load_dwordx4 v[{F+8}:{F+11}], v5, s[40:43], 0 offen
    buffer_load_dwordx4 v[{F+12}:{F+15}], v5, s[40:43], 0 offen offset:16
    v_mov_b32 v9, 0
    s_waitcnt vmcnt(0)
    """)
    for i in range(8):
        A(f"""
        v_lshlrev_b32 v5, 16, v{F+i}
        v_lshlrev_b32 v6, 16, v{F+8+i}
        v_and_b32 v7, 0xffff0000, v{F+i}
        v_and_b32 v8, 0xffff0000, v{F+8+i}
        v_mul_f32 v5, v5, v6
        v_mul_f32 v7, v7, v8
        """)
        bf16_round_pair(6, 5, 7, 5, 7)
        A("v_add_f32 v9, v9, v5")
        A("v_add_f32 v9, v9, v7")
    A(f"""
    v_add_f32_dpp v9, v9, v9 quad_perm:[1,0,3,2] {DPPM}
    v_add_f32_dpp v9, v9, v9 quad_perm:[2,3,0,1] {DPPM}
    v_add_f32_dpp v9, v9, v9 row_ror:4 {DPPM}
    v_add_f32_dpp v9, v9, v9 row_ror:8 {DPPM}
    v_mov_b32 v8, v9
    v_permlane16_swap_b32 v9, v8
    v_add_f32 v9, v9, v8
    v_mov_b32 v8, v9
    v_permlane32_swap_b32 v9, v8
    v_add_f32 v9, v9, v8
    v_cvt_pk_bf16_f32 v9, v9, v9
    v_lshlrev_b32 v9, 16, v9
    v_mul_f32 v9, {f32(-LOG2E)}, v9
    v_exp_f32 v9, v9
    v_add_f32 v9, 1.0, v9
    v_rcp_f32 v9, v9
    v_cvt_pk_bf16_f32 v8, v9, v9
    v_lshlrev_b32 v8, 16, v8
    v_sub_f32 v9, 1.0, v8
    v_cvt_pk_bf16_f32 v9, v9, v9
    v_lshlrev_b32 v9, 16, v9
    v_mov_b32 v5, s56
    ds_write_b64 v5, v[8:9] offset:{GS}
    """)
    arrive(CO)
    arrive(CH)
    def fprefetch():
        L = A.lab("L_fp")
        A(f"s_and_b32 s55, {SJ}, 3")
        A(f"s_or_b32 s55, s55, {SW}")
        A(f"s_cbranch_scc1 {L}")
        A("s_mov_b32 exec_lo, 0x01010101")
        A("s_mov_b32 exec_hi, 0x01010101")
        for i in range(4):
            A(f"buffer_load_dword v138, v{oFG}, {WS}, 0 offen offset:{1024*i} {prepol}")
        A("s_mov_b64 exec, -1")
        A(f"{L}:")
    A("L_nog:")
    if fpre == 1:
        fprefetch()
    if dly:
        A("s_mov_b32 s70, s94")
    A("s_waitcnt vmcnt(0)")
    stamp(1)
    gemv64(aWg, ACC, 24, spl7)
    stamp(2)
    id_load()
    gemv64(aWu, ACC + 4, 31, spl7)
    for j in range(4):
        A(f"v_cndmask_b32 v{ACC+8+j}, v{ACC+j}, v{ACC+4+j}, {M_B1}")
    tag4(ACC + 8, ACC + 8)
    A("s_waitcnt vmcnt(0)")
    id_check("s[98:99]")
    pub([(M_GU, f"buffer_store_dwordx4 v[{ACC+8}:{ACC+11}], v{oGU}, {WS}, 0 offen")], "g", "s[98:99]")
    if "g" in hint:
        A(f"""
        s_lshl_b32 s56, {SJ}, 2
        s_add_u32 s56, s56, {SW}
        s_add_u32 s56, s56, {FLG_}
        """)
        hint_store("s56")
    stamp(3)
    if fpre == 2:
        fprefetch()
    R4 = [ACC + 12, ACC + 16]
    A(f"s_cmp_lg_u32 {SW}, 0")
    A("s_cbranch_scc1 L_ph")
    A(f"s_cmp_ge_u32 {SK}, 28")
    A("s_cbranch_scc1 L_phd")
    for i in range(8):
        A(f"v_mov_b32 v{R4[0]+i}, 0")
    if gg:
        wait_prog(gg)
    gather([(R4[0], oGG, 0), (R4[1], oGG, 1024)], fpol if gpol is None else gpol, hop="g", ex=["s[78:79]", "s[78:79]"], flag="s[98:99]")
    stamp(4)
    for r in R4:
        A(f"v_permlane32_swap_b32 v{r}, v{r+2}")
        A(f"v_permlane32_swap_b32 v{r+1}, v{r+3}")
    for r in R4:
        A(f"v_add_f32 v{r}, v{r}, v{r+2}")
        A(f"v_add_f32 v{r+1}, v{r+1}, v{r+3}")
    for r in R4:
        A(f"v_permlane16_swap_b32 v{r}, v{r+1}")
    for r in R4:
        A(f"v_add_f32 v{r}, v{r}, v{r+1}")
    for r in R4:
        A(f"v_add_f32_dpp v{r}, v{r}, v{r} row_ror:8 {DPPM}")
    bf16_round_pair(5, 6, 7, R4[0], R4[1])
    A(f"""
    v_mul_f32 v8, v6, v6
    v_mov_b32 v9, {f32(GC1)}
    v_fmac_f32 v9, {f32(GC2)}, v8
    v_mul_f32 v9, v9, v6
    v_exp_f32 v9, v9
    v_add_f32 v9, 1.0, v9
    v_rcp_f32 v9, v9
    v_mul_f32 v9, v9, v6
    v_cvt_pk_bf16_f32 v9, v9, v9
    v_lshlrev_b32 v9, 16, v9
    v_mul_f32 v9, v9, v7
    v_cvt_pk_bf16_f32 v9, v9, v9
    v_and_b32 v9, 0xffff0000, v9
    v_or_b32 v9, {T16}, v9
    s_mov_b32 exec_lo, 0x00ff00ff
    s_mov_b32 exec_hi, 0x00ff00ff
    buffer_store_dword v9, v{oPH}, {WS}, 0 offen sc1
    s_mov_b64 exec, -1
    """)
    stamp(5)
    A("s_branch L_phd")
    A("L_ph:")
    if lat:
        A(f"s_cmp_lt_u32 {SW}, 2")
        A("s_cbranch_scc1 L_lat2")
        A(f"v_readfirstlane_b32 s55, v{oGG}")
        wait_prog(lat)
        A(f"s_cmp_eq_u32 {SW}, 2")
        A("s_cbranch_scc1 L_lat1")
        dstamp()
        for i in range(4):
            A(f"s_load_dwordx16 s[80:95], s[28:29], s55 glc")
            A("s_waitcnt lgkmcnt(0)")
            dstamp()
            A("s_add_u32 s55, s55, 128")
        A("s_branch L_lat2")
        A("L_lat1:")
        dstamp()
        for i in range(4):
            A(f"buffer_load_dwordx4 v[{ACC+12}:{ACC+15}], v{oGG}, {WS}, 0 offen nt")
            A("s_waitcnt vmcnt(0)")
            dstamp()
        A("L_lat2:")
    A(f"s_cmp_lg_u32 {SW}, 1")
    A("s_cbranch_scc1 L_phd")
    pxg(oPH, aHsW, HS, "0xffffff", gh, CH, "h")
    A("L_phd:")
    wait_prog(52)
    rd3([0, 1, 2])
    wait_prog(53)
    rd3([3])
    wait_cnt(CH, 3, bt_reads() + [f"ds_read_b32 v{vGC}, v{aGS} offset:{GS+4}"])
    mm3([0, 1, 2])
    if not sym:
        wait_cnt(CA, 4, [f"ds_read_b128 v[{ACC+8}:{ACC+11}], v{aAS}", f"ds_read_b32 v9, v{aGS} offset:{GS+4}"])
        mm3([3])
        sel3()
        for j in range(4):
            A(f"v_fmac_f32 v{ACC+8+j}, v9, v{ACC+j}")
        tag4(ACC + 8, ACC + 8)
        A(f"s_mov_b64 exec, {M_N4}")
        A(f"buffer_store_dwordx4 v[{ACC+8}:{ACC+11}], v{oFP}, {WS}, 0 offen sc1")
        A("s_mov_b64 exec, -1")
        stamp(6)
        A(f"s_and_b32 s55, {SJ}, 3")
        A(f"s_or_b32 s55, s55, {SW}")
        A("s_cbranch_scc1 L_fin")
    else:
        mm3([3])
        A("L_comb:")
        sel3()
        for j in range(4):
            A(f"v_mul_f32 v{ACC+j}, v{vGC}, v{ACC+j}")
        A(f"""
        s_mov_b64 exec, {M_N4}
        ds_write_b128 v{aAS}, v[{ACC}:{ACC+3}]
        s_mov_b64 exec, 1
        ds_add_rtn_u32 v5, v{vZ}, v{vONE} offset:{CA}
        s_mov_b64 exec, -1
        ds_read_b128 v[{ACC+8}:{ACC+11}], v{aL16} offset:{AS}
        ds_read_b128 v[{ACC+12}:{ACC+15}], v{aL16} offset:{AS+1024}
        s_waitcnt lgkmcnt(2)
        v_readfirstlane_b32 s55, v5
        s_cmp_lg_u32 s55, 7
        s_cbranch_scc1 L_nlast
        s_waitcnt lgkmcnt(0)
        v_pk_add_f32 v[{ACC+8}:{ACC+9}], v[{ACC+8}:{ACC+9}], v[{ACC+12}:{ACC+13}]
        v_pk_add_f32 v[{ACC+10}:{ACC+11}], v[{ACC+10}:{ACC+11}], v[{ACC+14}:{ACC+15}]
        """)
        tag4(ACC + 8, ACC + 8)
        pub([(None, f"buffer_store_dwordx4 v[{ACC+8}:{ACC+11}], v{oFP2}, {WS}, 0 offen")], "f", "s[98:99]")
        stamp(8)
        A("L_nlast:")
        stamp(9)
        A(f"s_and_b32 s55, {SJ}, 3")
        if ccl:
            A(f"s_xor_b32 s55, s55, {ccl}")
        A(f"s_sub_u32 s56, s3, 5")
        A(f"s_or_b32 s55, s55, s56")
        A("s_cbranch_scc1 L_fin")
        if dly:
            A("L_dly:")
            A("s_memrealtime s[96:97]")
            A("s_waitcnt lgkmcnt(0)")
            A("s_sub_u32 s55, s96, s70")
            A(f"s_cmp_lt_u32 s55, {dly}")
            A("s_cbranch_scc1 L_dly")
    gather([(G + 4 * i, oFG, 1024 * i) for i in range(4)], ffpol, hop="f", rawoff=32, flag="s[98:99]")
    A(f"""
    v_pk_add_f32 v[{G}:{G+1}], v[{G}:{G+1}], v[{G+4}:{G+5}]
    v_pk_add_f32 v[{G+2}:{G+3}], v[{G+2}:{G+3}], v[{G+6}:{G+7}]
    v_pk_add_f32 v[{G+8}:{G+9}], v[{G+8}:{G+9}], v[{G+12}:{G+13}]
    v_pk_add_f32 v[{G+10}:{G+11}], v[{G+10}:{G+11}], v[{G+14}:{G+15}]
    v_pk_add_f32 v[{G}:{G+1}], v[{G}:{G+1}], v[{G+8}:{G+9}]
    v_pk_add_f32 v[{G+2}:{G+3}], v[{G+2}:{G+3}], v[{G+10}:{G+11}]
    """)
    red4(G)
    A(f"""
    v_add_f32_dpp v{G}, v{G}, v{G} row_ror:8 {DPPM}
    s_mov_b32 exec_lo, 0x00ff00ff
    s_mov_b32 exec_hi, 0x00ff00ff
    v_cvt_pk_bf16_f32 v6, v{G}, v{G}
    buffer_store_short v6, v{oOut}, s[44:47], 0 offen {outpol}
    s_cmp_lg_u32 s2, {8*ccl}
    s_cbranch_scc1 L_fin
    s_mov_b64 exec, 1
    v_mov_b32 v6, s48
    v_mov_b32 v7, s49
    s_mov_b32 s55, {EPOCH}
    v_mov_b32 v8, s55
    global_store_dwordx2 v8, v[6:7], s[28:29] sc1
    L_fin:
    """)
    A("s_mov_b64 exec, -1")
    stamp(7)
    dump_stamps()
    A("L_end:")
    A("s_endpgm")

    if nost:
        sel = {"q": f"v{oQP},", "o": f"v{oOP},", "m": f"v{oML},", "g": f"v{oGU},", "f": f"v{oFP},"}
        keys = list(sel.values()) if nost is True else [sel[c] for c in nost]
        A.L = [l for l in A.L if not (l.startswith("buffer_store_dwordx4") and "sc1" in l and any(k in l for k in keys))]
    if nost2:
        sel = {"q": f"v{oQP},", "o": f"v{oOP},", "m": f"v{oML},", "g": f"v{oGU},", "f": f"v{oFP2},"}
        keys = [sel[c] for c in nost2]
        A.L = [l for l in A.L if not (l.startswith("buffer_store_dwordx4") and any(k in l for k in keys))]
    if plain:
        sel = {"q": f"v{oQP},", "o": f"v{oOP},", "m": f"v{oML},", "g": f"v{oGU},", "f": f"v{oFP},"}
        keys = [sel[c] for c in plain]
        A.L = [l.replace(" sc1", "") if (l.startswith("buffer_store_dwordx4") and any(k in l for k in keys)) else l for l in A.L]
    if stpol != "sc1":
        A.L = [l.replace(" sc1", " " + stpol) if l.startswith("buffer_store_dwordx4") else l for l in A.L]
    body, nn = hazard_pass(A.L)
    out = []
    out.append(f"; @launch grid=(256,1,1) block=(576,1,1) lds={LDS_TOTAL}")
    out.append('.amdgcn_target "amdgcn-amd-amdhsa--gfx950"')
    out.append(".text")
    out.append(f".globl {NAME}_kernel")
    out.append(".p2align 8")
    out.append(f".type {NAME}_kernel,@function")
    out.append(f"{NAME}_kernel:")
    out += ["  " + l if not l.endswith(":") else l for l in body]
    if pf == 0:
        out.append(f".fill (16384 + 64 - (. - L_worker)) / 4, 4, 0xbf810000")
    elif pf == 1:
        out.append(f".fill (24576 + 64 - (. - {NAME}_kernel)) / 4, 4, 0xbf810000")
    out.append('.section .rodata,"a"')
    out.append(".p2align 6")
    out.append(f".amdhsa_kernel {NAME}_kernel")
    out.append("  .amdhsa_next_free_vgpr 160")
    out.append("  .amdhsa_next_free_sgpr 102")
    out.append("  .amdhsa_accum_offset 160")
    out.append("  .amdhsa_group_segment_fixed_size 0")
    out.append("  .amdhsa_kernarg_size 104")
    out.append("  .amdhsa_user_sgpr_count 2")
    out.append("  .amdhsa_user_sgpr_kernarg_segment_ptr 1")
    out.append("  .amdhsa_system_sgpr_workgroup_id_x 1")
    out.append(".end_amdhsa_kernel")
    return "\n".join(out) + "\n"


if __name__ == "__main__":
    import argparse, ast
    ap = argparse.ArgumentParser()
    ap.add_argument("out")
    ap.add_argument("kw", nargs="*")
    a = ap.parse_args()
    kw = {}
    for s in a.kw:
        k, v = s.split("=", 1)
        try:
            kw[k] = ast.literal_eval(v)
        except Exception:
            kw[k] = v
    open(a.out, "w").write(gen(**kw))
```

```python
import sys, struct
from asmlib import Asm, hazard_pass

NAME = "gated_mix__sliding_block_cached__geglu_ffn__decode"

PROG = 0
CQ, CP, CO, CH, FA, FB, FC, CA, CF = 0x100, 0x104, 0x108, 0x10C, 0x110, 0x114, 0x118, 0x11C, 0x120
ZERO = 0x200
HS, OS, QS, PS, MS, GS, AS = 0x400, 0x600, 0x800, 0x1100, 0x1A00, 0x1A80, 0x2000
PITCH = 288
RA, RC, RD, RB = 0x3000, 0xB000, 0x13000, 0x1A000
LDS_TOTAL = RB + 8 * 4096
QP, ML, EPOCH, GUP, OP, FP, WS_END = 0, 0x20000, 0x2F000, 0x40000, 0x100000, 0x200000, 0x300000
IDT, PX, PHB = 0x2E000, 0x30000, 0x38000
FLO, FLG_ = 0x2E800, 0x2EC00
WS_END = FP + 0x40000
TAGM = 0xFFF


def f32(x):
    return "0x%08x" % struct.unpack("<I", struct.pack("<f", x))[0]


LOG2E = 1.4426950408889634
SCALE = 128 ** -0.5
GC1 = -2.0 * LOG2E * 0.7978845608028654
GC2 = GC1 * 0.044715


def gen(noat=0, lpol={}, sched=None, ad='', thr=(0, 24, 30), dds=(3, 4, 5, 6), lst=0, kvr=0, rsel='0x30003', kvs=0, tl='', tlw=8, lgrow=0, lat=0, gh=(49,48), lret='f', ffpol='nt', fpre=0, b3=3, pg={}, ccl=0, dly=0, pipe={}, pthr=32, wb=0, wbm=31, outpol='', unb=None, xo='', xkb=9, xcls=1, cbx=0, burst=0, nost2='', qn=4, sym=1, pxe=0, pf=2, win=None, wk=1, D=16, stamps=False, spl1=(4, 8), spl7=(4, 7), ntflag="nt", gq=16, go=34, gg=44, gp=45, loc='ogf', ppol='sc1', once='', rpol='sc1', rinv=0, pre='', prepol='', Dhi=0, D3hi=0, hibit=2, opol=None, gpol=None, hint='', go0=26, gg0=38, fsm=0, fpol="",
        nog=False, nost=False, rot=1, qmap=0, bgmap=0, D3=0, cst='', stpol='sc1', wsoff=0, half=0, ofrac=0, ostr=0, omask=0, mlin=0, ffrac=0, gfrac=0, plain='', qfrac=0):
    A = Asm()
    d = D // 4
    assert D % 4 == 0
    d3 = (D3 or D) // 4
    assert d3 >= d

    VST = 152

    def stamp(i):
        if stamps:
            if i == 0:
                A(f"v_mov_b32 v{VST}, 0")
            A("s_memrealtime s[96:97]")
            A("s_waitcnt lgkmcnt(0)")
            A(f"v_writelane_b32 v{VST}, s96, {i}")

    def dstamp():
        if stamps:
            A("s_memrealtime s[96:97]")
            A("s_waitcnt lgkmcnt(0)")
            A(f"v_writelane_b32 v{VST}, s96, m0")
            A("s_add_u32 m0, m0, 1")
            A("s_min_u32 m0, m0, 63")

    def dump_stamps():
        if not stamps:
            return
        A("s_mov_b64 exec, -1")
        A("s_add_u32 s28, s28, 0x8000000")
        A("s_addc_u32 s29, s29, 0")
        A("s_mul_i32 s55, s2, 9")
        A("s_add_u32 s55, s55, s3")
        A("s_lshl_b32 s55, s55, 8")
        A("v_lshlrev_b32 v5, 2, v0")
        A("v_add_u32 v5, s55, v5")
        A(f"global_store_dword v5, v{VST}, s[28:29]")

    BUD, SPROG = "s30", "s31"

    def budget(k=1):
        A(f"s_sub_u32 {BUD}, {BUD}, {k}")
        A("s_cbranch_scc1 L_end")

    RB1, CB1 = "s100", "s101"

    def xf(v, old, new, t=5):
        m = (1 << xkb) - 1
        A(f"v_subrev_u32 v{v}, {old}, v{v}")
        A(f"v_and_b32 v{t}, {m}, v{v}")
        A(f"v_lshrrev_b32 v{v}, {xkb}, v{v}")
        A(f"v_lshl_add_u32 v{v}, v{v}, 10, v{t}")
        A(f"v_add_u32 v{v}, {new + (xcls << xkb)}, v{v}")

    def tile1():
        if qmap == 0:
            A(f"s_and_b32 {RB1}, s2, 3")
            A(f"s_lshr_b32 {CB1}, s2, 2")
        else:
            hi, lo = ("0x10000", "0x20001") if qmap == 1 else ("0x10002", "0x20000")
            A(f"""
            s_bfe_u32 {RB1}, s2, {hi}
            s_lshr_b32 s69, s2, 7
            s_lshl1_add_u32 {RB1}, {RB1}, s69
            s_bfe_u32 s69, s2, 0x40003
            s_bfe_u32 {CB1}, s2, {lo}
            s_lshl4_add_u32 {CB1}, {CB1}, s69
            """)

    def bg(dst, t):
        if bgmap == 0:
            A(f"s_and_b32 {dst}, s2, 7")
        else:
            A(f"s_and_b32 {dst}, s2, 1")
            A(f"s_bfe_u32 {t}, s2, 0x20001")
            A(f"s_lshl2_add_u32 {dst}, {dst}, {t}")

    def jidx(dst, t):
        A(f"s_and_b32 {dst}, s2, 7")
        A(f"s_lshl_b32 {dst}, {dst}, 5")
        A(f"s_lshr_b32 {t}, s2, 3")
        A(f"s_add_u32 {dst}, {dst}, {t}")

    stamp(0)
    W8, W7, VK, VV, VO = 10, 14, 18, 22, 24
    vP, vPa, vFr, vFa, vT = 28, 29, 30, 31, 32
    A(f"""
    s_cmp_ge_u32 s2, 256
    s_cbranch_scc1 L_end
    s_load_dwordx2 s[32:33], s[0:1], 24
    s_load_dwordx16 s[4:19], s[0:1], 0
    s_load_dwordx8 s[20:27], s[0:1], 64
    s_load_dwordx2 s[28:29], s[0:1], 96
    v_lshrrev_b32 v1, 6, v0
    v_lshrrev_b32 v34, 3, v0
    v_readfirstlane_b32 s3, v1
    v_and_b32 v35, 7, v0
    v_and_b32 v36, 2, v34
    s_mov_b32 {BUD}, 0x100000
    s_mov_b32 s35, 0x20000
    """)
    tile1()
    A(f"""
    s_cmp_lg_u32 s3, 0
    s_cbranch_scc1 L_worker
    s_setprio 3
    v_xor_b32 v35, v35, v36
    v_lshlrev_b32 v35, 4, v35
    v_xor_b32 v36, 64, v35
    v_lshl_add_u32 v{W8}, v34, 13, v35
    v_lshl_add_u32 v{W8+1}, v34, 13, v36
    v_add_u32 v{W8+1}, {65536-1024}, v{W8+1}
    v_add_u32 v{W8+2}, {2*(65536-1024)}, v{W8}
    v_add_u32 v{W8+3}, {2*(65536-1024)}, v{W8+1}
    s_lshl_b32 s68, {CB1}, 7
    s_lshl_b32 s60, {RB1}, 21
    s_add_u32 s60, s60, s68
    s_mov_b32 s34, {8<<20}
    s_mov_b32 m0, {RA}
    s_waitcnt lgkmcnt(0)
    """)
    srds = [(36, 6, 64 << 20), (40, 8, 64 << 20), (44, 16, 7 << 20), (48, 18, 7 << 20),
            (52, 12, 8 << 20), (56, 20, 7 << 20)]
    NPEEL = burst or min(d, 7)

    UNB = ""
    if unb:
        tb0 = sum(((u[0] + 8) & 15) << (4 * c) for c, u in enumerate(unb))
        tb1 = sum(u[1] << (4 * c) for c, u in enumerate(unb))
        UNB = f"""s_and_b32 s70, s68, 3
        s_lshl_b32 s70, s70, 2
        s_lshr_b32 s71, {tb0}, s70
        s_and_b32 s71, s71, 15
        s_sub_u32 s71, s71, 8
        s_lshr_b32 s75, {tb1}, s70
        s_and_b32 s75, s75, 15
        s_sub_u32 s76, 7, s75
        s_lshl_b32 s75, s75, 12
        s_add_u32 s75, s75, {RA}
        s_mul_i32 s69, s67, 7
        s_add_u32 s69, s69, s71
        s_lshr_b32 s64, s69, 5
        s_lshl_b32 s64, s64, 7
        s_and_b32 s69, s69, 31
        s_mul_i32 s69, s69, {32*7168}
        s_add_u32 s64, s64, s69"""

    def loader_setup():
        A(f"""
        v_lshrrev_b32 v4, 4, v0
        v_and_b32 v5, 15, v0
        v_xor_b32 v6, v5, v4
        v_lshlrev_b32 v6, 4, v6
        v_lshl_add_u32 v{VK}, v4, 8, v6
        v_xor_b32 v{VK+1}, 64, v{VK}
        v_xor_b32 v{VK+2}, 128, v{VK}
        v_xor_b32 v{VK+3}, 192, v{VK}
        v_lshlrev_b32 v6, 1, v4
        v_xor_b32 v6, v5, v6
        v_lshlrev_b32 v6, 4, v6
        v_lshl_add_u32 v{VV}, v4, 8, v6
        v_xor_b32 v{VV+1}, 128, v{VV}
        v_lshl_add_u32 v{VO}, v4, 11, v6
        v_add_u32 v{VO+1}, 7168, v{VO}
        v_xor_b32 v{VO+3}, 128, v{VO}
        v_add_u32 v{VO+2}, {2*7168}, v{VO+3}
        v_add_u32 v{VO+3}, {3*7168}, v{VO+3}
        v_mul_u32_u24 v7, 7168, v34
        v_add_u32 v{W7}, v7, v35
        v_add_u32 v{W7+1}, v7, v36
        v_add_u32 v{W7+1}, {8*7168-1024}, v{W7+1}
        v_add_u32 v{W7+2}, {2*(8*7168-1024)}, v{W7}
        v_add_u32 v{W7+3}, {2*(8*7168-1024)}, v{W7+1}
        v_mov_b32 v{vP}, {min(NPEEL-d, 0)}
        v_lshlrev_b32 v{vPa}, 2, v0
        """)
        if kvs:
            if kvs == 8:
                A(f"v_lshrrev_b32 v6, 5, v0")
                A(f"v_mul_u32_u24 v6, {4096-512}, v6")
            elif kvs == 16:
                A(f"v_mul_u32_u24 v6, {2048-256}, v4")
            else:
                A("v_mov_b32 v6, 0")
            A(f"v_mov_b32 v39, v{VV+1}")
            A(f"v_mov_b32 v38, v{VV+1}")
            A(f"v_mov_b32 v{VV+1}, v{VV}")
            for t, (rk, rv) in enumerate(zip(vk, vv)):
                if t:
                    A(f"v_add_u32 v6, {8192-1024}, v6")
                A(f"v_add_u32 v{rk}, v6, v{rk}")
                A(f"v_add_u32 v{rv}, v6, v{rv}")
        jidx("s67", "s68")
        A(f"""
        s_mul_i32 s69, s67, 7
        s_lshr_b32 s63, s69, 5
        s_lshl_b32 s63, s63, 7
        s_and_b32 s69, s69, 31
        s_mul_i32 s69, s69, {32*7168}
        s_add_u32 s63, s63, s69
        s_mov_b32 s64, s63
        {UNB}
        s_and_b32 s69, s68, 7
        s_xor_b32 s69, s69, {cbx}
        s_lshl_b32 s69, s69, 8
        s_lshr_b32 s67, s67, 3
        s_mul_i32 s66, s67, {112*2048}
        s_add_u32 s66, s66, s69
        s_and_b32 s65, s2, 3
        s_lshl_b32 s65, s65, 3
        s_and_b32 s67, s2, 4
        s_add_u32 s65, s65, s67
        s_lshr_b32 s67, s2, 6
        s_add_u32 s65, s65, s67
        s_lshl_b32 s65, s65, 18
        s_add_u32 s65, s65, s69
        """)
        if b3:
            A(f"""
            s_and_b32 s69, s2, 7
            s_xor_b32 s69, s69, {cbx}
            s_lshl_b32 s69, s69, 8
            s_mul_i32 s66, s68, {112*2048}
            s_add_u32 s66, s66, s69
            s_lshl_b32 s65, s68, 18
            s_add_u32 s65, s65, s69
            """)
        bg("s67", "s69")
        A(f"""
        s_lshl_b32 s61, s67, 23
        s_lshl_b32 s69, s68, 15
        s_add_u32 s61, s61, s69
        s_add_u32 s61, s61, {28672*256}
        s_mov_b32 s62, s61
        """)
        for r, p, n in srds:
            A(f"s_mov_b64 s[{r}:{r+1}], s[{p}:{p+1}]")
            A(f"s_mov_b32 s{r+2}, {n}")
            A(f"s_mov_b32 s{r+3}, 0x20000")

    def group(srd, vo, soff):
        for t in range(4):
            off = f" offset:{1024*t}" if t else ""
            A(f"buffer_load_dwordx4 v{vo[t]}, s[{srd}:{srd+3}], {soff} offen{off} {ntflag} lds")

    def lstamp():
        if sched or ad:
            lstamp0()

    def lstamp0():
        A("s_waitcnt lgkmcnt(0)")
        A("s_mov_b64 exec, s[94:95]")
        A(f"v_mov_b32 v{VST}, s98")
        A("s_mov_b64 exec, -1")
        A("s_memrealtime s[98:99]")
        A("s_lshl_b64 s[94:95], s[94:95], 1")

    def publish():
        if lst:
            lstamp0()
        if ad or sched:
            A(f"v_add_u32 v{vI}, 1, v{vI}")
            A(f"v_mad_i32_i24 v{vP}, s78, v{vM}, v{vI}")
        else:
            A(f"v_add_u32 v{vP}, 1, v{vP}")
        A(f"ds_max_i32 v{vPa}, v{vP}")

    vRet, vOne, vCa, vI, vM = 40, 41, 42, 43, 44
    adst = {"on": False, "n": 0}

    def wwait(dd):
        if not adst["on"]:
            A(f"s_waitcnt vmcnt({4*dd})")
            return
        lo, l1, l3, lp = A.lab("L_wl"), A.lab("L_w1"), A.lab("L_w3"), A.lab("L_wp")
        ddt = sum(x << (4 * i) for i, x in enumerate(dds))
        A(f"""
        v_readfirstlane_b32 s75, v{vRet}
        s_xor_b32 s75, s75, s79
        s_cmp_lt_u32 s75, 32
        s_cselect_b32 s75, s75, {thr[0]}
        s_lshl_b32 s75, s75, 1
        s_lshr_b64 s[76:77], s[80:81], s75
        s_and_b32 s76, s76, 3
        s_lshl_b32 s75, s76, 2
        s_lshr_b32 s75, {ddt}, s75
        s_and_b32 s75, s75, 15
        s_sub_u32 s78, 0, s75
        s_bitcmp0_b32 s76, 1
        s_cbranch_scc1 {lo}
        s_bitcmp1_b32 s76, 0
        s_cbranch_scc1 {l3}
        s_waitcnt vmcnt({4*dds[2]})
        {l3}:
        s_waitcnt vmcnt({4*dds[3]})
        s_branch {lp}
        {lo}:
        s_bitcmp1_b32 s76, 0
        s_cbranch_scc1 {l1}
        s_waitcnt vmcnt({4*dds[0]})
        {l1}:
        s_waitcnt vmcnt({4*dds[1]})
        {lp}:
        """)

    def checkpoint(c):
        if c not in ad:
            return
        if not adst["on"]:
            tab = 0
            for r in range(32):
                tab |= sum(r >= t for t in thr) << (2 * r)
            A(f"""
            s_waitcnt lgkmcnt(0)
            s_add_u32 s79, s82, 1
            s_lshl_b32 s79, s79, 8
            v_not_b32 v{vRet}, s79
            s_mov_b32 s80, 0x{tab & 0xffffffff:x}
            s_mov_b32 s81, 0x{tab >> 32:x}
            """)
            adst["on"] = True
        A("s_mov_b64 exec, 1")
        if noat == 0:
            A(f"global_atomic_add v{vRet}, v{vCa}, v{vOne}, s[28:29] offset:{4*adst['n']} sc0")
        elif noat == 2:
            A(f"global_load_dword v{vRet}, v{vCa}, s[28:29] offset:{4*adst['n']} nt")
        A("s_mov_b64 exec, -1")
        adst["n"] += 1

    sst = {"i": NPEEL, "dd": d}

    def tloop(srd, vo, soff, step, ng, base, free=None, skip=0, pitch=4096, wrap=False, dd=None, grow=0):
        if not sched:
            return tloop0(srd, vo, soff, step, ng, base, free, skip, pitch, wrap, dd, grow)
        a = sst["i"] - skip
        cuts = sorted(c - a for c in sched if sst["i"] < c < a + ng) + [ng]
        for c in cuts:
            if sst["i"] in sched:
                sst["dd"] = sched[sst["i"]]
                A(f"s_mov_b32 s78, {-sst['dd']}")
            tloop0(srd, vo, soff, step, c, base, free if c == ng else None, sst["i"] - a, pitch, wrap, sst["dd"], 0)
            sst["i"] = a + c

    def tloop0(srd, vo, soff, step, ng, base, free=None, skip=0, pitch=4096, wrap=False, dd=None, grow=0):
        dd = dd or d
        if not skip:
            A(f"s_mov_b32 m0, {base}")
        if free is not None:
            A(f"v_mov_b32 v{vFa}, {free}")
        for i in range(grow):
            group(srd, vo, soff)
            A(f"s_add_u32 {soff}, {soff}, {step}")
            A(f"s_add_u32 m0, m0, {pitch}")
        L = A.lab("L_ld")
        A(f"{L}:")
        group(srd, vo, soff)
        if free is not None:
            A(f"ds_read_b32 v{vFr}, v{vFa}")
        A(f"s_add_u32 {soff}, {soff}, {step}")
        if wrap:
            A(f"s_cmp_ge_u32 {soff}, {1024*7168}")
            A(f"s_cselect_b32 s73, {1024*7168-128}, 0")
            A(f"s_sub_u32 {soff}, {soff}, s73")
        A(f"s_add_u32 m0, m0, {pitch}")
        wwait(dd)
        publish()
        A(f"s_cmp_lg_u32 m0, {base + ng*pitch if isinstance(ng, int) else ng}")
        A(f"s_cbranch_scc1 {L}")
        if free is not None:
            ok, sp = A.lab("L_fok"), A.lab("L_fsp")
            A("s_waitcnt lgkmcnt(0)")
            A(f"v_readfirstlane_b32 s74, v{vFr}")
            A("s_cmp_ge_u32 s74, 4")
            A(f"s_cbranch_scc1 {ok}")
            A("s_waitcnt vmcnt(0)")
            if ad or sched:
                A(f"ds_max_i32 v{vPa}, v{vI}")
            else:
                A(f"v_add_u32 v{vT}, {dd}, v{vP}")
                A(f"ds_max_i32 v{vPa}, v{vT}")
            A(f"{sp}:")
            A(f"ds_read_b32 v{vFr}, v{vFa}")
            A("s_waitcnt lgkmcnt(0)")
            A(f"v_readfirstlane_b32 s74, v{vFr}")
            budget()
            A("s_cmp_lt_u32 s74, 4")
            A(f"s_cbranch_scc1 {sp}")
            A(f"{ok}:")

    w8 = [W8 + t for t in range(4)]
    w7 = [W7 + t for t in range(4)]
    vk = [VK + t for t in range(4)]
    vv = [VV, VV + 1, 38, 39] if kvs else [VV, VV, VV + 1, VV + 1]
    vo = [VO + t for t in range(4)]
    A("L_ld0:")
    group(32, w8, "s60")
    A(f"s_add_u32 s60, s60, {32*8192}")
    A("s_add_u32 m0, m0, 4096")
    A(f"s_cmp_lg_u32 m0, {RA + NPEEL*4096}")
    A("s_cbranch_scc1 L_ld0")
    stamp(1)
    if ad:
        A(f"s_load_dword s82, s[28:29], {EPOCH}")
    loader_setup()
    if ad or sched:
        assert NPEEL == d and not Dhi and not D3 and not win
        A(f"""
        s_and_b32 s75, s2, 7
        s_lshl_b32 s75, s75, 7
        s_add_u32 s75, s75, {FLO}
        v_mov_b32 v{vCa}, s75
        v_mov_b32 v{vOne}, 1
        v_mov_b32 v{vI}, {NPEEL}
        v_mov_b32 v{vM}, 1
        v_writelane_b32 v{vM}, 0, 1
        s_mov_b32 s78, {-d}
        """)
    if lst:
        A("s_mov_b64 s[94:95], 0x100")
        A("s_mov_b32 s98, 0")
    A("s_barrier")
    def wbl2():
        L = A.lab("L_wb")
        A(f"s_lshr_b32 s67, s2, 3")
        A(f"s_and_b32 s67, s67, {wbm}")
        A(f"s_cbranch_scc1 {L}")
        A("buffer_wbl2 sc1")
        A(f"{L}:")

    def stream(dx, d3x, stamp0=stamp):
        def stamp(i):
            if lst != 2 or i == 7:
                stamp0(i)
        if burst:
            for j in range(burst - 1, dx - 1, -1):
                A(f"s_waitcnt vmcnt({4*j})")
                publish()
            if burst < 8:
                tloop(32, w8, "s60", 32 * 8192, 8, RA, skip=NPEEL, dd=dx, grow=max(dx - burst, 0))
        else:
            tloop(32, w8, "s60", 32 * 8192, 8, RA, skip=NPEEL, dd=d if lgrow else dx, grow=0 if lgrow else dx - d)
        stamp(2)
        if kvs and not kvr:
            checkpoint("K")
            if "k" in ad:
                tloop(36, vk, "s61", 4096 // kvs, 4, RB, dd=dx)
                checkpoint("k")
                tloop(36, vk, "s61", 4096 // kvs, 8, RB, dd=dx, skip=4)
            else:
                tloop(36, vk, "s61", 4096 // kvs, 8, RB, dd=dx)
            checkpoint("V")
            tloop(40, vv, "s62", 4096 // kvs, 8, RC, dd=dx)
        elif not rot:
            tloop(36, vk, "s61", 4096, 8, RB, dd=dx)
            tloop(40, vv, "s62", 4096, 8, RC, dd=dx)
        else:
            A(f"s_bfe_u32 s67, s2, {rsel}")
            A("s_lshl_b32 s67, s67, 12")
            A("s_mov_b32 s68, s67")
            for srd, vo_, base in ((36, vk, RB), (40, vv, RC)):
                L = A.lab("L_rt")
                checkpoint("K" if srd == 36 else "V")
                dxx = d if (lgrow == 2 and srd == 36) else dx
                if (lgrow == 1 and srd == 36) or (lgrow == 2 and srd == 40):
                    for _ in range(dx - d):
                        A(f"s_add_u32 m0, s68, {base}")
                        A("s_add_u32 s69, s68, s61")
                        group(srd, vo_, "s69")
                        A("s_add_u32 s68, s68, 4096")
                        A("s_and_b32 s68, s68, 0x7fff")
                A(f"{L}:")
                A(f"s_add_u32 m0, s68, {base}")
                if kvs:
                    A(f"s_lshr_b32 s69, s68, {kvs.bit_length()-1}")
                    A("s_add_u32 s69, s69, s61")
                else:
                    A("s_add_u32 s69, s68, s61")
                group(srd, vo_, "s69")
                A("s_add_u32 s68, s68, 4096")
                A("s_and_b32 s68, s68, 0x7fff")
                wwait(dxx)
                publish()
                A("s_cmp_lg_u32 s68, s67")
                A(f"s_cbranch_scc1 {L}")
        stamp(3)
        checkpoint("G")
        tloop(44, w7, "s63", 32 * 7168, 7, RD, free=FA, wrap=True, dd=dx)
        checkpoint("U")
        if unb:
            A(f"v_add_u32 v{vP}, s76, v{vP}")
        tloop(48, w7, "s64", 32 * 7168, "s75" if unb else 7, RA, free=FB, wrap=True, dd=dx)
        stamp(4)
        checkpoint("O")
        tloop(52, vo, "s65", 32768, 8, RB, free=FC, dd=d3x, grow=d3x - dx)
        stamp(5)
        checkpoint("D")
        tloop(56, vo, "s66", 32768, 7, RC, dd=d3x)
        stamp(6)
        if wb == 2:
            wbl2()
        for k in range((max(dds) if ad else sst["dd"] if sched else d3x) - 1, -1, -1):
            A(f"s_waitcnt vmcnt({4*k})")
            if lst:
                lstamp()
            if ad or sched:
                A(f"v_mov_b32 v{vP}, {53-k}")
                A(f"ds_max_i32 v{vPa}, v{vP}")
            else:
                publish()
        if ad and stamps:
            A(f"v_writelane_b32 v{VST}, s76, 30")
        stamp(7)
        if wb == 1:
            wbl2()
        if lst:
            A("s_mov_b64 exec, s[94:95]")
            A(f"v_mov_b32 v{VST}, s98")
            A("s_mov_b64 exec, -1")
        if stamps and not lst:
            A("s_getreg_b32 s96, hwreg(HW_REG_HW_ID)")
            A(f"v_writelane_b32 v{VST}, s96, 31")
        dump_stamps()
        A("s_endpgm")


    if win:
        uniq = []
        for w_ in win:
            if w_ not in uniq:
                uniq.append(w_)
        A("s_bfe_u32 s67, s2, 0x20003")
        A(f"s_cmp_eq_u32 s67, {wk}")
        A("s_cselect_b32 s67, 2, 0")
        A(f"s_bfe_u32 s68, s2, 0x1000{hibit}")
        A("s_add_u32 s67, s67, s68")
        for i in range(1, 4):
            if win[i] != win[0]:
                A(f"s_cmp_eq_u32 s67, {i}")
                A(f"s_cbranch_scc1 L_win{uniq.index(win[i])}")
        for i, w_ in enumerate(uniq):
            A(f"L_win{i}:")
            stream(w_[0] // 4, w_[1] // 4)
    else:
        if Dhi:
            A(f"s_bitcmp1_b32 s2, {hibit}")
            A("s_cbranch_scc1 L_hi")
        stream(d, d3)
        if Dhi:
            A("L_hi:")
            stream(Dhi // 4, max(Dhi, D3hi) // 4)

    vN, vQ, vZ, vMK, vONE = 1, 2, 3, 4, 33
    aW, aV0, aV1 = 10, 24, 25
    X, F, ACC = 40, 72, 104
    T = ["s50", "s51", "s52", "s53"]
    SW = "s54"
    WS = "s[36:39]"
    M_N2, M_N4, M_HI8, M_B1 = "s[60:61]", "s[62:63]", "s[64:65]", "s[66:67]"
    SJ = "s68"
    SID = "s71"
    vID = 137
    if pf == 0:
        PFCODE = """s_cmp_gt_u32 s3, 2
        s_cbranch_scc1 L_nopf
        v_lshlrev_b32 v1, 7, v0
        v_add_u32 v1, -8192, v1
        global_load_dword v136, v1, s[40:41]"""
    elif pf == 1:
        PFCODE = f"""s_cmp_gt_u32 s3, 3
        s_cbranch_scc1 L_nopf
        s_sub_u32 s40, s40, L_worker+{8 if stamps else 4}-{NAME}_kernel
        s_subb_u32 s41, s41, 0
        v_lshlrev_b32 v1, 7, v0
        v_add_u32 v1, -8192, v1
        global_load_dword v136, v1, s[40:41]"""
    elif pf == 2:
        PFCODE = "s_nop 0"
    A("L_worker:")
    if dly:
        A("s_memrealtime s[94:95]")
    if stamps:
        A("s_mov_b32 m0, 32")
    A(f"""
    s_getpc_b64 s[40:41]
    {PFCODE}
    L_nopf:
    v_and_b32 v0, 63, v0
    v_mov_b32 v4, 0
    v_mov_b32 v5, 0
    v_mov_b32 v6, 0
    v_mov_b32 v7, 0
    v_lshlrev_b32 v2, 4, v0
    ds_write_b128 v2, v[4:7]
    ds_write_b128 v2, v[4:7] offset:1024
    s_lshl_b32 s55, {RB1}, 9
    v_lshrrev_b32 v{vQ}, 4, v0
    v_and_b32 v9, 1, v0
    v_lshlrev_b32 v9, 11, v9
    v_lshl_add_u32 v9, v{vQ}, 4, v9
    s_mov_b32 s34, 4096
    s_mov_b32 s62, 0x000f000f
    s_mov_b32 s63, 0x000f000f
    s_waitcnt lgkmcnt(0)
    s_load_dwordx2 s[48:49], s[28:29], {EPOCH}
    s_mov_b64 s[32:33], s[4:5]
    s_cmp_gt_u32 s3, 4
    s_cbranch_scc1 L_nox
    s_mov_b64 exec, s[62:63]
    """)
    for s in range(8):
        A(f"buffer_load_dwordx4 v[{X+4*s}:{X+4*s+3}], v9, s[32:35], s55 offen offset:{64*s}")
    if tl:
        A("s_branch L_nox2")
        A("L_nox:")
        A(f"s_cmp_lg_u32 s3, {tlw}")
        A("s_cbranch_scc1 L_nox2")
        A(f"""
        s_and_b32 s55, s2, 7
        s_lshr_b32 s56, s2, 3
        s_lshl_b32 s57, s55, 23
        s_lshl_b32 s58, s56, 15
        s_add_u32 s57, s57, s58
        s_add_u32 s57, s57, {28672*256}
        v_mov_b32 v10, s57
        s_mov_b64 exec, 1
        """)
        if 'k' in tl:
            A("global_load_dword v138, v10, s[6:7]")
            A("global_load_dword v139, v10, s[8:9]")
        A(f"""
        s_mov_b64 exec, -1
        s_lshl_b32 s57, s55, 5
        s_add_u32 s57, s57, s56
        s_mul_i32 s57, s57, 7
        v_add_u32 v10, s57, v0
        v_lshrrev_b32 v11, 5, v10
        v_lshlrev_b32 v11, 7, v11
        v_and_b32 v10, 31, v10
        v_mul_u32_u24 v10, {32*7168}, v10
        v_add_u32 v10, v10, v11
        s_mov_b64 exec, {0x7f if 'G' in tl else 0x41}
        """)
        if 'g' in tl.lower():
            A("global_load_dword v138, v10, s[16:17]")
            A("global_load_dword v139, v10, s[18:19]")
        A(f"""
        s_mov_b64 exec, -1
        s_xor_b32 s55, s55, {cbx}
        s_lshl_b32 s55, s55, 8
        s_lshl_b32 s57, s56, 18
        s_add_u32 s57, s57, s55
        v_lshlrev_b32 v11, 15, v0
        v_add_u32 v10, s57, v11
        s_mul_i32 s57, s56, {112*2048}
        s_add_u32 s57, s57, s55
        v_add_u32 v11, s57, v11
        s_mov_b64 exec, {0x55 if 'O' in tl else 0x41}
        """)
        if 'o' in tl.lower():
            A("global_load_dword v138, v10, s[12:13]")
            A("global_load_dword v139, v11, s[20:21]")
        A("L_nox2:")
        A("s_mov_b64 exec, -1")
    else:
        A("s_mov_b64 exec, -1")
        A("L_nox:")
    A(f"""
    s_barrier
    s_sub_u32 {SW}, s3, 1
    s_and_b32 {SW}, {SW}, 3
    s_mov_b32 {SPROG}, 0
    v_and_b32 v{vN}, 15, v0
    v_mov_b32 v{vZ}, 0
    v_mov_b32 v{vMK}, 0x{0xFFFFFFFF ^ TAGM:x}
    v_mov_b32 v{vONE}, 1
    s_mov_b32 s38, {0x1000000 if xo else WS_END}
    s_mov_b32 s39, 0x20000
    s_add_u32 s36, s28, {wsoff}
    s_addc_u32 s37, s29, 0
    v_bfe_u32 v5, v0, 2, 2
    v_lshl_add_u32 v5, v{vQ}, 3, v5
    v_and_b32 v6, 3, v0
    v_lshlrev_b32 v6, 3, v6
    v_bfe_u32 v7, v0, 3, 2
    v_xor_b32 v7, {SW}, v7
    v_lshl_add_u32 v7, v7, 5, v6
    v_lshl_add_u32 v{aW}, v5, 7, v7
    s_lshl_b32 s55, {SW}, 1
    v_bfe_u32 v7, v0, 2, 3
    v_xor_b32 v7, s55, v7
    v_lshl_add_u32 v7, v7, 5, v6
    v_lshl_add_u32 v{aV0}, v5, 8, v7
    s_mov_b32 s60, 0x00030003
    s_mov_b32 s61, 0x00030003
    s_waitcnt lgkmcnt(0)
    s_add_u32 s48, s48, 1
    s_addc_u32 s49, s49, 0
    s_and_b32 s50, s48, {TAGM}
    s_lshr_b32 s55, s48, 12
    s_add_u32 s55, s55, s48
    s_and_b32 s51, s55, {TAGM}
    s_lshr_b64 s[56:57], s[48:49], 24
    s_add_u32 s55, s56, s48
    s_and_b32 s52, s55, {TAGM}
    s_lshr_b32 s55, s49, 4
    s_add_u32 s55, s55, s48
    s_and_b32 s53, s55, {TAGM}
    s_getreg_b32 s55, hwreg(HW_REG_XCC_ID, 0, 4)
    s_lshl4_add_u32 {SID}, s48, s55
    """)
    if half:
        A(f"s_bitcmp1_b32 s2, {half}")
        A(f"s_cselect_b32 s38, s38, 0")
    a3, aBR, aAS, aGS = 140, 153, 154, 155
    aL16, oFP2, vGC = 156, 157, 158

    def common2(reg3, bsrc, part):
        A(f"""
        s_mov_b32 s64, 0xff00ff00
        s_mov_b32 s65, 0xff00ff00
        s_mov_b32 s66, 0xcccccccc
        s_mov_b32 s67, 0xcccccccc
        s_mov_b64 s[44:45], s[24:25]
        s_mov_b32 s46, 4096
        s_mov_b32 s47, 0x20000
        """)
        jidx(SJ, "s55")
        A(f"""
        v_add_u32 v{a3}, {reg3}, v{aV0}
        v_xor_b32 v{a3+1}, 32, v{a3}
        v_and_b32 v5, 1, v0
        v_lshlrev_b32 v6, 8, v5
        v_lshl_add_u32 v6, v{vQ}, 4, v6
        v_add_u32 v{aBR}, {bsrc}, v6
        v_lshlrev_b32 v{aGS}, 3, v5
        """)
        if not sym:
            A(f"""
            s_lshl_b32 s55, {SW}, 10
            s_add_u32 s55, s55, {AS}
            v_lshlrev_b32 v6, 4, v0
            v_add_u32 v{aAS}, s55, v6
            """)
        else:
            A(f"""
            s_lshl_b32 s55, {SW}, 8
            s_add_u32 s55, s55, {AS + 1024 * part}
            v_and_b32 v6, 3, v0
            v_lshlrev_b32 v6, 6, v6
            v_lshl_add_u32 v6, v{vQ}, 4, v6
            v_add_u32 v{aAS}, s55, v6
            v_lshlrev_b32 v{aL16}, 4, v0
            s_and_b32 s55, {"s2" if b3 >= 2 else SJ}, 7
            s_lshl_b32 s55, s55, 15
            s_lshr_b32 s56, {"s2" if b3 >= 2 else SJ}, 3
            s_lshl_b32 s56, s56, 7
            s_add_u32 s55, s55, s56
            s_add_u32 s55, s55, {FP}
            v_lshrrev_b32 v5, 3, v0
            v_lshlrev_b32 v5, 12, v5
            v_and_b32 v6, 7, v0
            v_lshl_add_u32 v5, v6, 4, v5
            v_add_u32 v{oFP2}, s55, v5
            """)

    def id_load():
        A(f"""
        s_and_b32 s55, s2, 7
        s_lshl_b32 s55, s55, 7
        s_add_u32 s55, s55, {IDT}
        v_and_b32 v5, 31, v0
        v_lshlrev_b32 v5, 2, v5
        buffer_load_dword v{vID}, v5, {WS}, s55 offen
        """)

    def id_check(dst):
        A(f"v_cmp_ne_u32 {dst}, {SID}, v{vID}")

    def pub(stores, key, flag):
        def emit(pol):
            for ex, t in stores:
                if ex is not None:
                    A(f"s_mov_b64 exec, {ex}")
                A(t + pol)
        if key not in loc:
            emit(" sc1")
        else:
            a, b = A.lab("L_pw"), A.lab("L_pd")
            A(f"s_cmp_lg_u64 {flag}, 0")
            A(f"s_cbranch_scc1 {a}")
            emit(" " + lpol[key] if key in lpol else "")
            stamp(20)
            A(f"s_branch {b}")
            A(f"{a}:")
            emit(" sc1")
            stamp(21)
            A(f"{b}:")
        A("s_mov_b64 exec, -1")

    def hint_store(soff):
        A("s_mov_b64 exec, 1")
        A(f"v_mov_b32 v5, s48")
        A(f"buffer_store_byte v5, off, {WS}, {soff}")
        A("s_mov_b64 exec, -1")

    def hint_wait(soff, nd, flag, thr):
        sp, ok = A.lab("L_hsp"), A.lab("L_hok")
        A("s_and_b32 s56, s48, 0xff")
        A("s_mul_i32 s56, s56, 0x01010101")
        A("s_mov_b32 s57, s56")
        A(f"{sp}:")
        A(f"s_load_dwordx{nd} s[80:{80+nd-1}], s[28:29], {soff} glc")
        A(f"ds_read_b32 v5, v{vZ} offset:{PROG}")
        A("s_waitcnt lgkmcnt(0)")
        A(f"v_readfirstlane_b32 {SPROG}, v5")
        for i in range(0, nd, 2):
            A(f"s_xor_b64 s[{80+i}:{81+i}], s[{80+i}:{81+i}], s[56:57]")
        k = nd
        while k > 2:
            k //= 2
            for i in range(0, k, 2):
                A(f"s_or_b64 s[{80+i}:{81+i}], s[{80+i}:{81+i}], s[{80+k+i}:{81+k+i}]")
        A(f"s_cbranch_scc0 {ok}")
        budget()
        A(f"s_cmp_lt_i32 {SPROG}, {thr}")
        A(f"s_cbranch_scc1 {sp}")
        A(f"{ok}:")

    def wait_prog(thr):
        if isinstance(thr, str) and thr[0] == "i":
            return wait_cnt(4, int(thr[1:]), [])
        ok, sp = A.lab("L_pok"), A.lab("L_psp")
        if isinstance(thr, list):
            A("s_bfe_u32 s59, s2, 0x20003")
            A("s_cmp_eq_u32 s59, 1")
            A(f"s_cselect_b32 s59, {thr[1]}, {thr[0]}")
            thr = "s59"
        if isinstance(thr, tuple):
            A(f"s_bitcmp1_b32 s2, {hibit}")
            A(f"s_cselect_b32 s59, {thr[1]}, {thr[0]}")
            thr = "s59"
        A(f"s_cmp_ge_i32 {SPROG}, {thr}")
        A(f"s_cbranch_scc1 {ok}")
        A(f"{sp}:")
        A(f"ds_read_b32 v5, v{vZ} offset:{PROG}")
        A("s_waitcnt lgkmcnt(0)")
        A(f"v_readfirstlane_b32 {SPROG}, v5")
        budget()
        A(f"s_cmp_lt_i32 {SPROG}, {thr}")
        A(f"s_cbranch_scc1 {sp}")
        A(f"{ok}:")

    def arrive(cnt):
        A("s_mov_b64 exec, 1")
        A(f"ds_add_u32 v{vZ}, v{vONE} offset:{cnt}")
        A("s_mov_b64 exec, -1")

    def wait_cnt(cnt, n, reads):
        sp = A.lab("L_csp")
        A(f"{sp}:")
        A(f"ds_read_b32 v5, v{vZ} offset:{cnt}")
        for r in reads:
            A(r)
        A("s_waitcnt lgkmcnt(0)")
        A("v_readfirstlane_b32 s55, v5")
        budget()
        A(f"s_cmp_lt_u32 s55, {n}")
        A(f"s_cbranch_scc1 {sp}")

    def tag4(dst, src):
        for j in range(4):
            A(f"v_and_or_b32 v{dst+j}, v{src+j}, v{vMK}, {T[j]}")

    MASKS = [80, 82, 84, 86, 88, 90, 92, 94]

    def gather(loads, first, hop="", ex=None, rawoff=0, flag=None):
        if nog is True or (nog and hop in nog):
            A("s_mov_b64 exec, -1")
            return
        g, dn = A.lab("L_g"), A.lab("L_gd")
        n = len(loads)

        def ld(dst, vo_, off, pol):
            o = f" offset:{off}" if off else ""
            A(f"buffer_load_dwordx4 v[{dst}:{dst+3}], v{vo_}, {WS}, 0 offen{o} {pol}")

        K = pipe.get(hop, 0)
        raw = (lambda dst: dst + rawoff) if K else (lambda dst: dst)
        ld0 = ld
        ld = lambda dst, vo_, off, pol: ld0(raw(dst), vo_, off, pol)

        def chk(i, dst):
            m = MASKS[i]
            for j in range(4):
                A(f"v_xor_b32 v{dst+j}, {T[j]}, v{raw(dst)+j}")
            A(f"v_or3_b32 v5, v{dst}, v{dst+1}, v{dst+2}")
            A(f"v_or_b32 v5, v5, v{dst+3}")
            A(f"v_and_b32 v5, {TAGM}, v5")
            A(f"v_cmp_ne_u32 s[{m}:{m+1}], 0, v5")

        def anym():
            if n == 1:
                A(f"s_mov_b64 vcc, s[{MASKS[0]}:{MASKS[0]+1}]")
            for i in range(1, n):
                src = f"s[{MASKS[0]}:{MASKS[0]+1}]" if i == 1 else "vcc"
                A(f"s_or_b64 vcc, {src}, s[{MASKS[i]}:{MASKS[i]+1}]")

        stamp({"q": 10, "o": 12, "g": 10, "f": 12}[hop])
        for i, (dst, vo_, off) in enumerate(loads):
            if ex and (i == 0 or ex[i] != ex[i-1]):
                A(f"s_mov_b64 exec, {ex[i]}")
            ld(dst, vo_, off, first)
        for i, (dst, vo_, off) in enumerate(loads):
            if ex and ex[i] != ex[i-1]:
                A(f"s_mov_b64 exec, {ex[i]}")
            A(f"s_waitcnt vmcnt({n-1-i})")
            chk(i, dst)
        anym()
        dstamp()
        stamp({"q": 11, "o": 13, "g": 11, "f": 13}[hop])
        if hop in once:
            A("s_mov_b64 exec, -1")
            return
        A(f"s_cbranch_vccz {dn}")
        A(f"{g}:")
        if hop in "og" and rinv:
            A("buffer_inv sc0")
        def reissue(pol):
            for i, (dst, vo_, off) in enumerate(loads):
                A(f"s_mov_b64 exec, s[{MASKS[i]}:{MASKS[i]+1}]")
                ld(dst, vo_, off, pol)
        if flag is None or hop not in lret:
            reissue("sc1")
        else:
            a_, b_ = A.lab("L_ra"), A.lab("L_rb")
            A(f"s_cmp_lg_u64 {flag}, 0")
            A(f"s_cbranch_scc1 {a_}")
            reissue("nt")
            A(f"s_branch {b_}")
            A(f"{a_}:")
            reissue("sc1")
            A(f"{b_}:")
        if K:
            few = A.lab("L_few")
            A(f"s_bcnt1_i32_b64 s55, s[{MASKS[0]}:{MASKS[0]+1}]")
            for i in range(1, n):
                A(f"s_bcnt1_i32_b64 s56, s[{MASKS[i]}:{MASKS[i]+1}]")
                A("s_add_u32 s55, s55, s56")
            A(f"s_cmp_le_u32 s55, {pthr}")
            A(f"s_cbranch_scc1 {few}")
            A("s_waitcnt vmcnt(0)")
            A(f"{few}:")
            A(f"s_waitcnt vmcnt({n*(K-1)})")
        for i, (dst, vo_, off) in enumerate(loads):
            A(f"s_mov_b64 exec, s[{MASKS[i]}:{MASKS[i]+1}]")
            if not K:
                A(f"s_waitcnt vmcnt({n-1-i})")
            chk(i, dst)
        anym()
        if not K:
            dstamp()
        budget(16)
        A(f"s_cbranch_vccnz {g}")
        A(f"{dn}:")
        A("s_mov_b64 exec, -1")

    def gatherP(loads, raws, first, retry, hop, ex=None, chkf=None, flag=None):
        K, M = pg[hop]
        n = len(loads)
        top, dn = A.lab("L_q"), A.lab("L_qd")

        def issue(pol):
            for i, (dst, vo_, off) in enumerate(loads):
                A(f"s_mov_b64 exec, s[{MASKS[i]}:{MASKS[i]+1}]")
                o = f" offset:{off}" if off else ""
                A(f"buffer_load_dwordx4 v[{raws[i]}:{raws[i]+3}], v{vo_}, {WS}, 0 offen{o} {pol}")

        def chk():
            for i, (dst, vo_, off) in enumerate(loads):
                m = MASKS[i]
                A(f"s_mov_b64 exec, s[{m}:{m+1}]")
                if chkf:
                    chkf(raws[i])
                else:
                    for j in range(4):
                        A(f"v_xor_b32 v{dst+j}, {T[j]}, v{raws[i]+j}")
                    A(f"v_or3_b32 v5, v{dst}, v{dst+1}, v{dst+2}")
                    A(f"v_or_b32 v5, v5, v{dst+3}")
                    A(f"v_and_b32 v5, {TAGM}, v5")
                A(f"v_cmp_ne_u32 s[{m}:{m+1}], 0, v5")
            if n == 1:
                A(f"s_cmp_eq_u64 s[{MASKS[0]}:{MASKS[0]+1}], 0")
                A(f"s_cbranch_scc1 {dn}")
            else:
                for i in range(1, n):
                    src = f"s[{MASKS[0]}:{MASKS[0]+1}]" if i == 1 else "vcc"
                    A(f"s_or_b64 vcc, {src}, s[{MASKS[i]}:{MASKS[i]+1}]")
                A(f"s_cbranch_scc0 {dn}")

        stamp({"o": 12, "g": 10, "p": 12}[hop])
        for i in range(n):
            A(f"s_mov_b64 s[{MASKS[i]}:{MASKS[i]+1}], {ex[i] if ex else -1}")
            A(f"v_not_b32 v{raws[i]}, {T[0]}")
        issue(first)
        lp = A.lab("L_ql")
        A(f"{top}:")
        A(f"s_mov_b32 s55, {M}")
        A(f"{lp}:")
        chk()
        A("s_sub_u32 s55, s55, 1")
        A(f"s_cbranch_scc0 {lp}")
        A(f"s_waitcnt vmcnt({n*(K-1)})")
        chk()
        budget(16)
        dstamp()
        if flag is None:
            issue(retry)
            A(f"s_branch {top}")
        else:
            rm = A.lab("L_qr")
            A(f"s_cmp_lg_u64 {flag}, 0")
            A(f"s_cbranch_scc1 {rm}")
            issue(retry)
            A(f"s_branch {top}")
            A(f"{rm}:")
            issue("sc1")
            A(f"s_branch {top}")
        A(f"{dn}:")
        A("s_mov_b64 exec, -1")

    def mfma(dst, a, b, c):
        cs = "0" if c is None else f"v[{c}:{c+3}]"
        A(f"v_mfma_f32_16x16x32_bf16 v[{dst}:{dst+3}], v[{a}:{a+3}], v[{b}:{b+3}], {cs}")

    def gemv64(areg, acc, gbase, splits, first_vm=False):
        s0 = 0
        for k, s1 in enumerate(splits):
            wait_prog(gbase + s1)
            for s in range(s0, s1):
                A(f"ds_read_b64_tr_b16 v[{F+4*s}:{F+4*s+1}], v{areg} offset:{4096*s}")
                A(f"ds_read_b64_tr_b16 v[{F+4*s+2}:{F+4*s+3}], v{areg} offset:{4096*s+512}")
            if k == 0 and first_vm:
                A("s_waitcnt vmcnt(0)")
            for s in range(s0, s1):
                A(f"s_waitcnt lgkmcnt({2*(s1-1-s)})")
                mfma(acc, F + 4 * s, X + 4 * s, None if s == 0 else acc)
            s0 = s1

    def bf16_round_pair(pk, lo, hi, a, b):
        A(f"v_cvt_pk_bf16_f32 v{pk}, v{a}, v{b}")
        A(f"v_lshlrev_b32 v{lo}, 16, v{pk}")
        A(f"v_and_b32 v{hi}, 0xffff0000, v{pk}")

    DPPM = "row_mask:0xf bank_mask:0xf"
    BT = X

    def bt_reads():
        return [f"ds_read_b128 v[{BT+4*s}:{BT+4*s+3}], v{aBR} offset:{64*s}" for s in range(4)]

    def rd3(ss):
        for s in ss:
            for t in range(2):
                r = F + 16 * t + 4 * s
                A(f"ds_read_b64_tr_b16 v[{r}:{r+1}], v{a3+t} offset:{8192*s}")
                A(f"ds_read_b64_tr_b16 v[{r+2}:{r+3}], v{a3+t} offset:{8192*s+1024}")

    def mm3(ss):
        for s in ss:
            for t in range(2):
                mfma(ACC + 4 * t, F + 16 * t + 4 * s, BT + 4 * s, None if s == 0 else ACC + 4 * t)

    def sel3():
        for j in range(4):
            A(f"v_cndmask_b32 v{ACC+j}, v{ACC+j}, v{ACC+4+j}, {M_B1}")

    def red4(r):
        A(f"""
        v_permlane32_swap_b32 v{r}, v{r+2}
        v_permlane32_swap_b32 v{r+1}, v{r+3}
        v_add_f32 v{r}, v{r}, v{r+2}
        v_add_f32 v{r+1}, v{r+1}, v{r+3}
        v_permlane16_swap_b32 v{r}, v{r+1}
        v_add_f32 v{r}, v{r}, v{r+1}
        """)

    T16 = "s77"

    def pxg(voff, alds, ldsoff, ex, gate, cnt, hop):
        R = ACC + 4
        l0, l1 = A.lab("L_px0"), A.lab("L_px1")
        A("s_mov_b32 s58, 0x07060302")
        wait_prog(gate)
        stamp(12 if hop == "p" else 14)
        if ex:
            A(f"s_mov_b32 exec_hi, {ex}")
        if not (nog is True or (nog and hop in nog)):
            A(f"buffer_load_dwordx4 v[{R}:{R+3}], v{voff}, {WS}, 0 offen {ppol}")
            A(f"s_branch {l1}")
            A(f"{l0}:")
            budget(16)
            A("s_mov_b64 exec, vcc")
            A(f"buffer_load_dwordx4 v[{R}:{R+3}], v{voff}, {WS}, 0 offen sc1")
            A(f"{l1}:")
            A("s_waitcnt vmcnt(0)")
            A(f"v_xor_b32 v6, v{R}, v{R+1}")
            A(f"v_xor_b32 v7, v{R+2}, v{R+3}")
            A(f"v_xor_b32 v8, v{R}, v{R+2}")
            A(f"v_or3_b32 v6, v6, v7, v8")
            A(f"v_xor_b32 v7, {T16}, v{R}")
            A(f"v_or_b32 v6, v6, v7")
            A("v_and_b32 v6, 0xffff, v6")
            A(f"v_cmp_ne_u32 vcc, 0, v6")
            dstamp()
            if hop not in once:
                A(f"s_cbranch_vccnz {l0}")
            A("s_mov_b64 exec, -1")
            if ex:
                A(f"s_mov_b32 exec_hi, {ex}")
        A(f"v_perm_b32 v6, v{R+1}, v{R}, s58")
        A(f"v_perm_b32 v7, v{R+3}, v{R+2}, s58")
        A(f"ds_write_b64 v{alds}, v[6:7] offset:{ldsoff}")
        stamp(6)
        arrive(cnt)

    A("s_cmp_gt_u32 s3, 4")
    A("s_cbranch_scc1 L_F")

    oQP, oQG, aQsW, aQsR, aK = 11, 12, 13, 14, 15
    aPsW, aMsW, aPlo, aPhi, aMsR = 19, 20, 21, 22, 23
    oOP, oML, oOPG, oMLG, aOsW, oPX = 26, 27, 28, 29, 30, 31
    T16, FLG = "s77", "s[98:99]"
    SBG, SSPL = "s73", "s75"
    SC = "s76"
    A(f"""
    v_add_u32 v{aW}, {RA}, v{aW}
    s_lshr_b32 s55, {CB1}, 2
    s_lshl_b32 s55, s55, 12
    s_lshl_b32 s56, {RB1}, 10
    s_add_u32 s55, s55, s56
    s_and_b32 s56, {CB1}, 3
    s_lshl_b32 s56, s56, 8
    s_add_u32 s55, s55, s56
    s_lshl_b32 s56, {SW}, 6
    s_add_u32 s55, s55, s56
    v_and_b32 v5, 1, v0
    v_lshlrev_b32 v5, 16, v5
    v_lshl_add_u32 v5, v{vQ}, 4, v5
    v_add_u32 v{oQP}, s55, v5
    """)
    MQ = M_N2
    if "q" in cst:
        A(f"""
        s_lshl_b32 s55, s2, 9
        s_lshl_b32 s56, {SW}, 7
        s_add_u32 s55, s55, s56
        v_lshlrev_b32 v5, 4, v0
        v_add_u32 v{oQP}, s55, v5
        """)
        MQ = "0xff"
    stamp(1)
    gemv64(aW, ACC, 0, spl1, first_vm=True)
    arrive(FA)
    tag4(ACC + 4, ACC)
    A(f"s_mov_b64 exec, {MQ}")
    if qfrac:
        A(f"s_lshr_b32 s55, s2, 3")
        A(f"s_and_b32 s55, s55, {qfrac-1}")
        A(f"s_cselect_b64 exec, 0, exec")
    A(f"buffer_store_dwordx4 v[{ACC+4}:{ACC+7}], v{oQP}, {WS}, 0 offen sc1")
    A("s_mov_b64 exec, -1")
    stamp(2)
    common2(RB, OS, 0)
    bg(SBG, "s55")
    A(f"""
    s_lshr_b32 {SSPL}, s2, 3
    s_mov_b32 {SC}, {f32(LOG2E)}
    """)
    A(f"""
    s_lshl_b32 s55, {SW}, 13
    s_add_u32 s55, s55, {RB}
    v_xor_b32 v5, v{vQ}, v{vN}
    v_lshlrev_b32 v5, 4, v5
    v_lshl_add_u32 v5, v{vN}, 8, v5
    v_add_u32 v{aK}, s55, v5
    v_xor_b32 v{aK+1}, 64, v{aK}
    v_xor_b32 v{aK+2}, 128, v{aK}
    v_xor_b32 v{aK+3}, 192, v{aK}
    v_add_u32 v{aV0}, {RC}, v{aV0}
    v_xor_b32 v{aV1}, 32, v{aV0}
    """)
    A(f"""
    s_lshl_b32 s55, {SBG}, 2
    s_add_u32 s55, s55, {SW}
    s_lshl_b32 s55, s55, 12
    v_lshlrev_b32 v5, 4, v0
    v_add_u32 v{oQG}, s55, v5
    """)
    A(f"""
    s_mul_i32 s55, {SW}, {2*PITCH}
    s_add_u32 s55, s55, {QS}
    v_lshrrev_b32 v5, 5, v0
    v_mul_u32_u24 v5, {PITCH}, v5
    v_and_b32 v6, 31, v0
    v_lshl_add_u32 v5, v6, 3, v5
    v_add_u32 v{aQsW}, s55, v5
    v_and_b32 v6, 7, v0
    v_mul_u32_u24 v7, {PITCH}, v6
    v_lshl_add_u32 v8, v{vQ}, 4, v7
    v_add_u32 v{aQsR}, {QS}, v8
    v_add_u32 v8, {PS}, v8
    v_mov_b32 v9, {ZERO}
    v_cndmask_b32 v{aPlo}, v8, v9, {M_HI8}
    v_cndmask_b32 v{aPhi}, v9, v8, {M_HI8}
    v_lshlrev_b32 v9, 4, v6
    v_add_u32 v{aMsR}, {MS}, v9
    s_lshl_b32 s55, {SW}, 2
    v_add_u32 v{aMsW}, s55, v{aMsR}
    s_lshl_b32 s55, {SW}, 6
    s_add_u32 s55, s55, {PS}
    v_and_b32 v9, 8, v0
    v_lshlrev_b32 v9, 2, v9
    v_lshl_add_u32 v9, v{vQ}, 3, v9
    v_add3_u32 v{aPsW}, v7, v9, s55
    """)
    A(f"""
    s_lshl_b32 s55, {SBG}, 17
    s_lshl_b32 s56, {SW}, 12
    s_add_u32 s55, s55, s56
    s_lshl_b32 s56, {SSPL}, 7
    s_add_u32 s55, s55, s56
    s_add_u32 s55, s55, {OP}
    v_lshlrev_b32 v9, 1, v9
    v_lshl_add_u32 v9, v6, 14, v9
    v_add_u32 v{oOP}, s55, v9
    s_lshl_b32 s55, {SBG}, 12
    s_lshl_b32 s56, {SSPL}, 4
    s_add_u32 s55, s55, s56
    s_add_u32 s55, s55, {ML}
    v_lshlrev_b32 v9, 9, v6
    v_add_u32 v{oML}, s55, v9
    """)
    A(f"""
    s_lshl_b32 s55, {SJ}, 12
    s_and_b32 s58, {SW}, 1
    s_lshl_b32 s59, s58, 6
    s_add_u32 s55, s55, s59
    s_add_u32 s55, s55, {OP}
    v_lshrrev_b32 v5, 2, v0
    v_and_b32 v6, 3, v0
    v_lshlrev_b32 v7, 4, v6
    v_lshl_add_u32 v8, v5, 7, v7
    v_add_u32 v{oOPG}, s55, v8
    s_lshr_b32 s57, {SJ}, 2
    s_lshl_b32 s57, s57, 9
    s_add_u32 s57, s57, {ML}
    v_and_b32 v8, 1, v0
    v_lshlrev_b32 v8, 8, v8
    v_lshl_add_u32 v8, v5, 4, v8
    v_add_u32 v{oMLG}, s57, v8
    s_cmp_ge_u32 {SW}, 2
    s_cbranch_scc1 L_a2
    s_bfe_u32 s55, {SJ}, 0x50002
    s_lshl_b32 s55, s55, 10
    s_and_b32 s56, s2, 4
    s_lshl_b32 s56, s56, 7
    s_add_u32 s55, s55, s56
    s_and_b32 s56, {SJ}, 3
    s_lshl_b32 s56, s56, 7
    s_add_u32 s55, s55, s56
    s_add_u32 s55, s55, s59
    s_add_u32 s55, s55, {PX}
    v_lshl_add_u32 v8, v{vQ}, 2, v7
    v_add_u32 v{oPX}, s55, v8
    s_branch L_a3
    L_a2:
    s_lshl_b32 s55, {SSPL}, 10
    s_add_u32 s55, s55, {PX}
    v_lshlrev_b32 v8, 4, v0
    v_add_u32 v{oPX}, s55, v8
    v_lshlrev_b32 v{aOsW}, 3, v0
    L_a3:
    s_and_b32 {T16}, s48, 0xffff
    """)
    oOPG2 = 159
    if "o" in xo:
        A(f"v_add_u32 v{oOPG2}, 2048, v{oOPG}")
        for v_ in (oOP, oOPG, oOPG2):
            xf(v_, OP, 0x400000)
        for v_ in (oML, oMLG):
            xf(v_, ML, 0x800000)
    if "p" in xo:
        xf(oPX, PX, 0x880000)
    if "O" in cst:
        A(f"""
        s_xor_b32 s55, {SJ}, 1
        s_lshl_b32 s55, s55, 12
        s_lshl_b32 s56, {SW}, 10
        s_add_u32 s55, s55, s56
        s_add_u32 s55, s55, {OP}
        v_lshlrev_b32 v5, 4, v0
        v_add_u32 v{oOP}, s55, v5
        """)
    if "P" in cst:
        A(f"""
        s_xor_b32 s55, {SJ}, 1
        s_lshl_b32 s55, s55, 12
        s_lshl_b32 s56, {SW}, 10
        s_add_u32 s55, s55, s56
        s_add_u32 s55, s55, {OP}
        v_lshlrev_b32 v5, 6, v{vN}
        v_lshl_add_u32 v5, v{vQ}, 4, v5
        v_add_u32 v{oOP}, s55, v5
        """)
    if "M" in cst:
        A(f"v_mov_b32 v{oMLG}, v{oOPG}")
    if "o" in pre:
        A(f"buffer_load_dword v138, v{oOP}, {WS}, 0 offen {prepol}")
        A(f"buffer_load_dword v139, v{oML}, {WS}, 0 offen {prepol}")
    ONES = 132
    A(f"""
    v_mov_b32 v{ONES}, 0x3f803f80
    v_mov_b32 v{ONES+1}, 0x3f803f80
    v_mov_b32 v{ONES+2}, 0x3f803f80
    v_mov_b32 v{ONES+3}, 0x3f803f80
    s_lshl_b32 s55, {SW}, 1
    s_lshl_b32 s78, 3, s55
    s_mov_b32 s79, 0
    """)

    if "o" in cst:
        A(f"""
        s_lshl_b32 s55, s2, 12
        s_lshl_b32 s56, {SW}, 10
        s_add_u32 s55, s55, s56
        s_add_u32 s55, s55, {OP}
        v_lshlrev_b32 v5, 4, v0
        v_add_u32 v{oOP}, s55, v5
        s_lshl_b32 s55, s2, 7
        s_add_u32 s55, s55, {ML}
        v_add_u32 v{oML}, s55, v5
        s_cmp_eq_u32 {SW}, 0
        s_cselect_b32 s78, 0xff, 0
        """)

    def kfrags():
        if rot:
            wait_prog(16)
        else:
            A(f"s_lshl_b32 s77, {SW}, 1")
            A("s_add_u32 s77, s77, 10")
            wait_prog("s77")
        for t in range(2):
            for s in range(4):
                r = F + 16 * t + 4 * s
                A(f"ds_read_b128 v[{r}:{r+3}], v{aK+s} offset:{4096*t}")
        arrive(FB)

    G = X
    kfirst = (min(gq) if isinstance(gq, tuple) else gq) >= 16
    if kfirst:
        kfrags()
    if gq:
        wait_prog(gq)
    id_load()
    gather([(G + 4 * r, oQG, 1024 * (r % 4)) for r in range(qn)], fpol, hop="q")
    A("s_waitcnt vmcnt(0)")
    id_check(FLG)
    A(f"""
    v_pk_add_f32 v[{G}:{G+1}], v[{G}:{G+1}], v[{G+4}:{G+5}]
    v_pk_add_f32 v[{G+2}:{G+3}], v[{G+2}:{G+3}], v[{G+6}:{G+7}]
    v_pk_add_f32 v[{G+8}:{G+9}], v[{G+8}:{G+9}], v[{G+12}:{G+13}]
    v_pk_add_f32 v[{G+10}:{G+11}], v[{G+10}:{G+11}], v[{G+14}:{G+15}]
    v_pk_add_f32 v[{G}:{G+1}], v[{G}:{G+1}], v[{G+8}:{G+9}]
    v_pk_add_f32 v[{G+2}:{G+3}], v[{G+2}:{G+3}], v[{G+10}:{G+11}]
    v_cvt_pk_bf16_f32 v6, v{G}, v{G+1}
    v_cvt_pk_bf16_f32 v7, v{G+2}, v{G+3}
    ds_write_b64 v{aQsW}, v[6:7]
    """)
    arrive(CQ)
    stamp(3)
    if not kfirst:
        kfrags()
    QF = X + 16
    wait_cnt(CQ, 4, [f"ds_read_b128 v[{QF+4*s}:{QF+4*s+3}], v{aQsR} offset:{64*s}" for s in range(4)])
    for s in range(4):
        for t in range(2):
            mfma(ACC + 4 * t, F + 16 * t + 4 * s, QF + 4 * s, None if s == 0 else ACC + 4 * t)
    S = X
    for j in range(4):
        A(f"v_cndmask_b32 v{S+j}, v{ACC+j}, v{ACC+4+j}, {M_HI8}")
    bf16_round_pair(6, S, S + 1, S, S + 1)
    bf16_round_pair(7, S + 2, S + 3, S + 2, S + 3)
    for j in range(4):
        A(f"v_mul_f32 v{S+j}, {f32(SCALE)}, v{S+j}")
    bf16_round_pair(6, S, S + 1, S, S + 1)
    bf16_round_pair(7, S + 2, S + 3, S + 2, S + 3)
    A(f"""
    v_max3_f32 v6, v{S}, v{S+1}, v{S+2}
    v_max_f32 v6, v6, v{S+3}
    v_max_f32_dpp v6, v6, v6 row_ror:8 {DPPM}
    v_mov_b32 v7, v6
    v_permlane16_swap_b32 v6, v7
    v_max_f32 v6, v6, v7
    v_mov_b32 v7, v6
    v_permlane32_swap_b32 v6, v7
    v_max_f32 v6, v6, v7
    v_mul_f32 v7, {SC}, v6
    """)
    for j in range(4):
        A(f"v_fma_f32 v{S+j}, v{S+j}, {SC}, -v7")
    for j in range(4):
        A(f"v_exp_f32 v{S+j}, v{S+j}")
    A(f"""
    v_cvt_pk_bf16_f32 v8, v{S}, v{S+1}
    v_cvt_pk_bf16_f32 v9, v{S+2}, v{S+3}
    ds_write_b64 v{aPsW}, v[8:9]
    s_mov_b64 exec, 0xff
    ds_write_b32 v{aMsW}, v6
    """)
    arrive(CP)
    stamp(4)
    wait_prog(24)
    for t in range(2):
        for s in range(4):
            r = F + 16 * t + 4 * s
            A(f"ds_read_b64_tr_b16 v[{r}:{r+1}], v{aV0+t} offset:{8192*s}")
            A(f"ds_read_b64_tr_b16 v[{r+2}:{r+3}], v{aV0+t} offset:{8192*s+1024}")
    arrive(FC)
    PL, PH, MSV = X, X + 16, 36
    rd = [f"ds_read_b128 v[{MSV}:{MSV+3}], v{aMsR}"]
    for s in range(4):
        rd.append(f"ds_read_b128 v[{PL+4*s}:{PL+4*s+3}], v{aPlo} offset:{64*s}")
        rd.append(f"ds_read_b128 v[{PH+4*s}:{PH+4*s+3}], v{aPhi} offset:{64*s}")
    wait_cnt(CP, 4, rd)
    LAs = [120, 124, 128, 144]
    fw = ["v_max3_f32 v6, v36, v37, v38", "v_max_f32 v6, v6, v39"]
    for s in range(4):
        fw.append(f"v_sub_f32 v{MSV+s}, v{MSV+s}, v6")
    for s in range(4):
        fw.append(f"v_mul_f32 v{MSV+s}, {SC}, v{MSV+s}")
    for s in range(4):
        fw.append(f"v_exp_f32 v{MSV+s}, v{MSV+s}")
    fw.append(f"v_or_b32 v148, {T[0]}, v6")
    fw.append(f"v_mov_b32 v150, {T[2]}")
    fw.append(f"v_mov_b32 v151, {T[3]}")
    k = 0
    for t in range(2):
        for s in range(4):
            mfma(ACC + 4 * s, F + 16 * t + 4 * s, (PL, PH)[t] + 4 * s, None if t == 0 else ACC + 4 * s)
            for _ in range(2):
                if k < len(fw):
                    A(fw[k]); k += 1
    while k < len(fw):
        A(fw[k]); k += 1
    O = F
    for s in range(4):
        mfma(LAs[s], ONES, PL + 4 * s, None)
        for j in range(4):
            if s == 0:
                A(f"v_mul_f32 v{O+j}, v{MSV}, v{ACC+j}")
            else:
                A(f"v_fmac_f32 v{O+j}, v{MSV+s}, v{ACC+4*s+j}")
    tag4(O + 4, O)
    A(f"v_mul_f32 v7, v{MSV}, v{LAs[0]}")
    for s in range(1, 4):
        A(f"v_fmac_f32 v7, v{MSV+s}, v{LAs[s]}")
    A(f"v_and_or_b32 v149, v7, v{vMK}, {T[1]}")
    pub([(None, f"buffer_store_dwordx4 v[{O+4}:{O+7}], v{oOP}, {WS}, 0 offen"),
         ("s[78:79]", f"buffer_store_dwordx4 v[148:151], v{oML}, {WS}, 0 offen")], "o", FLG)
    if "o" in hint:
        A(f"""
        s_and_b32 s55, s2, 7
        s_lshl_b32 s55, s55, 7
        s_add_u32 s55, s55, {FLO}
        s_lshl_b32 s56, {SW}, 5
        s_add_u32 s56, s56, s55
        s_add_u32 s56, s56, {SSPL}
        """)
        hint_store("s56")
    stamp(5)
    MR, G0, G1 = ACC, ACC + 4, ACC + 8
    A(f"s_cmp_ge_u32 {SW}, 2")
    A("s_cbranch_scc1 L_px")
    if "o" in hint:
        A(f"s_and_b32 s56, {SJ}, 3")
        A("s_lshl_b32 s56, s56, 5")
        A("s_add_u32 s55, s55, s56")
        wait_prog(go0)
        hint_wait("s55", 8, FLG, go)
    elif go:
        wait_prog(go)
    if "o" in pg:
        gatherP([(MR, oMLG, 0), (G0, oOPG, 0), (G1, oOPG, 2048)], [120, 124, 128], opol, rpol, "o", flag=FLG)
    else:
        gather([(MR, oMLG, 0), (G0, oOPG, 0), (G1, oOPG2, 0) if "o" in xo else (G1, oOPG, 2048)], fpol if opol is None else opol, hop="o", flag=FLG)
    stamp(6)
    A(f"""
    v_max_f32_dpp v6, v{MR}, v{MR} quad_perm:[1,0,3,2] {DPPM}
    v_max_f32_dpp v6, v6, v6 row_ror:4 {DPPM}
    v_max_f32_dpp v6, v6, v6 row_ror:8 {DPPM}
    v_mov_b32 v7, v6
    v_permlane16_swap_b32 v6, v7
    v_max_f32 v6, v6, v7
    v_mov_b32 v7, v6
    v_permlane32_swap_b32 v6, v7
    v_max_f32 v6, v6, v7
    v_sub_f32 v8, v{MR}, v6
    v_mul_f32 v8, {SC}, v8
    v_exp_f32 v8, v8
    v_mul_f32 v6, v8, v{MR+1}
    """)
    lred = [f"v_add_f32_dpp v6, v6, v6 quad_perm:[1,0,3,2] {DPPM}",
            f"v_add_f32_dpp v6, v6, v6 row_ror:4 {DPPM}",
            f"v_add_f32_dpp v6, v6, v6 row_ror:8 {DPPM}",
            "v_mov_b32 v7, v6"]
    for j in range(4):
        A(f"v_mul_f32_dpp v{G0+j}, v8, v{G0+j} quad_perm:[0,0,0,0] {DPPM}")
        if j & 1:
            A(lred[j >> 1])
    for j in range(4):
        A(f"v_fmac_f32_dpp v{G0+j}, v8, v{G1+j} quad_perm:[1,1,1,1] {DPPM}")
        if j & 1:
            A(lred[2 + (j >> 1)])
    A(f"""
    v_permlane32_swap_b32 v{G0}, v{G0+2}
    v_permlane32_swap_b32 v{G0+1}, v{G0+3}
    v_permlane16_swap_b32 v6, v7
    v_add_f32 v{G0}, v{G0}, v{G0+2}
    v_add_f32 v{G0+1}, v{G0+1}, v{G0+3}
    v_add_f32 v6, v6, v7
    v_mov_b32 v7, v6
    v_permlane16_swap_b32 v{G0}, v{G0+1}
    v_permlane32_swap_b32 v6, v7
    v_add_f32 v{G0}, v{G0}, v{G0+1}
    v_add_f32 v6, v6, v7
    v_rcp_f32 v6, v6
    v_add_f32_dpp v{G0}, v{G0}, v{G0} row_ror:4 {DPPM}
    v_add_f32_dpp v{G0}, v{G0}, v{G0} row_ror:8 {DPPM}
    v_mul_f32 v{G0}, v{G0}, v6
    v_cvt_pk_bf16_f32 v7, v{G0}, v{G0}
    v_and_b32 v7, 0xffff0000, v7
    v_or_b32 v7, {T16}, v7
    """)
    if pxe:
        A(f"""
        v_and_b32 v8, 0xffffffc0, v{oPX}
        v_lshl_add_u32 v8, v0, 2, v8
        s_mov_b64 exec, 0xffff
        buffer_store_dword v7, v8, {WS}, 0 offen sc1
        s_mov_b64 exec, -1
        """)
    else:
        A(f"""
        s_mov_b64 exec, {M_N4}
        buffer_store_dword v7, v{oPX}, {WS}, 0 offen sc1
        s_mov_b64 exec, -1
        """)
    stamp(14)
    A("s_branch L_pxd")
    A("L_px:")
    A(f"s_cmp_eq_u32 {SW}, 3")
    A("s_cbranch_scc1 L_pxd")
    pxg(oPX, aOsW, OS, None, gp, CO, "p")
    A("L_pxd:")
    wait_prog(46)
    rd3(range(4))
    wait_cnt(CO, 3, bt_reads() + [f"ds_read_b32 v9, v{aGS} offset:{GS}"])
    mm3(range(4))
    if sym:
        A("v_mov_b32 v{vGC}, v9".replace("{vGC}", str(vGC)))
        A("s_branch L_comb")
    else:
        sel3()
        for j in range(4):
            A(f"v_mul_f32 v{ACC+j}, v9, v{ACC+j}")
        A(f"ds_write_b128 v{aAS}, v[{ACC}:{ACC+3}]")
        arrive(CA)
        stamp(7)
        dump_stamps()
        A("s_endpgm")

    A("L_F:")
    ADINIT = ""
    if ad:
        ADINIT = f"""s_cmp_lt_u32 s2, 8
        s_cselect_b32 exec_lo, 0xff, 0
        s_lshl_b32 s55, s2, 7
        s_add_u32 s55, s55, {FLO}
        s_lshl_b32 s56, s48, 8
        v_mov_b32 v5, s56
        v_lshlrev_b32 v6, 2, v0
        buffer_store_dword v5, v6, {WS}, s55 offen"""
    common2(RC, HS, 1)
    if "c" in pre:
        WS0 = WS
        if "k" in pre:
            A("s_mov_b64 s[40:41], s[6:7]")
            A(f"s_mov_b32 s42, {64<<20}")
            A("s_mov_b32 s43, 0x20000")
            WS = "s[40:43]"
        A(f"""
        s_lshl_b32 s55, {SJ}, 12
        s_lshl_b32 s56, {SW}, 10
        s_add_u32 s55, s55, s56
        s_add_u32 s55, s55, {OP}
        v_lshlrev_b32 v5, 4, v0
        buffer_load_dwordx4 v[144:147], v5, {WS}, s55 offen {prepol}
        s_mul_i32 s55, {SJ}, 672
        s_and_b32 s56, {SW}, 1
        s_mul_i32 s56, s56, {56*3072}
        s_add_u32 s55, s55, s56
        s_add_u32 s55, s55, {GUP}
        s_lshl_b32 s56, {SJ}, 7
        s_add_u32 s56, s56, {ML}
        s_cmp_lt_u32 {SW}, 2
        s_cselect_b32 s55, s55, s56
        s_cselect_b32 exec_lo, -1, 0xff
        s_cselect_b32 exec_hi, 0x3ff, 0
        buffer_load_dwordx4 v[148:151], v5, {WS}, s55 offen {prepol}
        s_mov_b64 exec, -1
        """)
        WS = WS0
    A(f"""
    s_cmp_lg_u32 {SW}, 0
    s_cbranch_scc1 L_noid
    s_lshl_b32 s55, {SJ}, 2
    s_add_u32 s55, s55, {IDT}
    v_mov_b32 v5, {SID}
    s_mov_b64 exec, 1
    buffer_store_dword v5, off, {WS}, s55
    {ADINIT}
    s_mov_b64 exec, -1
    L_noid:
    """)
    aWg, aWu, oGU, oGG, aHsW, oFP, oFG, oOut = 11, 12, 13, 14, 16, 17, 22, 23
    SG0, SCB0 = "s69", "s70"
    M_GU, M_GG = "s[72:73]", ["s[74:75]", "s[76:77]"]
    for i in range(28):
        A(f"v_mov_b32 v{X+i}, 0")
    A(f"""
    s_mul_i32 s55, {SJ}, 7
    s_lshr_b32 {SCB0}, s55, 5
    s_and_b32 {SG0}, s55, 31
    s_mov_b32 s57, 0x00f000f0
    """)
    for s in range(7):
        A(f"""
        s_add_u32 s56, {SG0}, {s}
        s_cmp_ge_u32 s56, 32
        s_cselect_b32 exec_lo, s57, s62
        s_cselect_b32 exec_hi, s57, s62
        s_and_b32 s56, s56, 31
        s_lshl_b32 s56, s56, 6
        buffer_load_dwordx4 v[{X+4*s}:{X+4*s+3}], v9, s[32:35], s56 offen
        """)
    A(f"""
    s_mov_b64 exec, -1
    v_add_u32 v{aWg}, {RD}, v{aW}
    v_add_u32 v{aWu}, {RA}, v{aW}
    """)
    A(f"""
    s_cmp_ge_u32 {SG0}, 26
    s_cselect_b32 s72, 0x00ff00ff, s62
    s_mov_b32 s73, s72
    s_mul_i32 s55, {SCB0}, {32*9363}
    s_lshr_b32 s55, s55, 16
    s_sub_u32 s55, {SJ}, s55
    s_lshl_b32 s55, s55, 7
    s_lshl2_add_u32 s56, {SCB0}, {SW}
    s_lshl_b32 s56, s56, 11
    s_add_u32 s56, s56, {GUP}
    v_mov_b32 v6, s55
    v_mov_b32 v7, 8192
    s_mov_b32 s58, 0xf0f0f0f0
    s_mov_b32 s59, 0xf0f0f0f0
    v_cndmask_b32 v6, v6, v7, s[58:59]
    v_and_b32 v5, 1, v0
    v_lshlrev_b32 v5, 6, v5
    v_lshl_add_u32 v5, v{vQ}, 4, v5
    v_bfe_u32 v7, v0, 1, 1
    v_lshlrev_b32 v7, 10, v7
    v_add3_u32 v5, v5, v6, v7
    v_add_u32 v{oGU}, s56, v5
    """)
    oPH = oGG + 1
    SK = "s74"
    A(f"""
    s_lshr_b32 {SK}, s2, 3
    s_and_b32 {T16}, s48, 0xffff
    s_and_b32 s55, s2, 7
    s_mul_i32 s55, s55, 28
    s_add_u32 s55, s55, {SK}
    s_lshl_b32 s56, s55, 11
    s_add_u32 s56, s56, {GUP}
    v_add_u32 v{oGG}, s56, v{aL16}
    s_movk_i32 s79, 0xff
    s_bitcmp1_b32 s2, 5
    s_cselect_b32 s79, 0xffff, s79
    s_mov_b32 s78, -1
    s_mul_i32 s56, {SK}, 7
    s_cmp_eq_u32 {SW}, 0
    s_cselect_b32 s55, s55, s56
    s_cselect_b64 vcc, -1, 0
    s_lshl_b32 s55, s55, 7
    s_add_u32 s55, s55, {PHB}
    v_and_b32 v6, 7, v0
    v_lshlrev_b32 v6, 4, v6
    v_lshl_add_u32 v6, v{vQ}, 2, v6
    v_cndmask_b32 v6, v{aL16}, v6, vcc
    v_add_u32 v{oPH}, s55, v6
    v_bfe_u32 v6, v0, 2, 1
    v_lshlrev_b32 v6, 8, v6
    v_lshrrev_b32 v7, 3, v0
    v_lshl_add_u32 v6, v7, 5, v6
    v_and_b32 v7, 3, v0
    v_lshl_add_u32 v{aHsW}, v7, 3, v6
    """)
    A(f"""
    s_mov_b64 s[40:41], s[22:23]
    s_mov_b32 s42, 2048
    s_mov_b32 s43, 0x20000
    s_lshr_b32 s57, {SJ}, 2
    s_lshl_b32 s55, s57, 12
    s_add_u32 s55, s55, {FP}
    v_add_u32 v{oFG}, s55, v{aL16}
    s_xor_b32 s57, s57, {8*cbx}
    s_lshl_b32 s55, s57, 5
    v_bfe_u32 v5, v0, 2, 1
    v_lshlrev_b32 v5, 11, v5
    v_lshl_add_u32 v5, v{vQ}, 1, v5
    v_and_b32 v6, 3, v0
    v_lshl_add_u32 v5, v6, 3, v5
    v_add_u32 v{oOut}, s55, v5
    """)
    A(f"s_cmp_lt_u32 {SW}, 2")
    A("s_cbranch_scc1 L_nog")
    A(f"""
    s_and_b32 s55, {SW}, 1
    s_lshl_b32 s56, s55, 3
    s_lshl_b32 s55, s55, 11
    v_lshlrev_b32 v5, 5, v0
    buffer_load_dwordx4 v[{F}:{F+3}], v5, s[32:35], s55 offen
    buffer_load_dwordx4 v[{F+4}:{F+7}], v5, s[32:35], s55 offen offset:16
    buffer_load_dwordx4 v[{F+8}:{F+11}], v5, s[40:43], 0 offen
    buffer_load_dwordx4 v[{F+12}:{F+15}], v5, s[40:43], 0 offen offset:16
    v_mov_b32 v9, 0
    s_waitcnt vmcnt(0)
    """)
    for i in range(8):
        A(f"""
        v_lshlrev_b32 v5, 16, v{F+i}
        v_lshlrev_b32 v6, 16, v{F+8+i}
        v_and_b32 v7, 0xffff0000, v{F+i}
        v_and_b32 v8, 0xffff0000, v{F+8+i}
        v_mul_f32 v5, v5, v6
        v_mul_f32 v7, v7, v8
        """)
        bf16_round_pair(6, 5, 7, 5, 7)
        A("v_add_f32 v9, v9, v5")
        A("v_add_f32 v9, v9, v7")
    A(f"""
    v_add_f32_dpp v9, v9, v9 quad_perm:[1,0,3,2] {DPPM}
    v_add_f32_dpp v9, v9, v9 quad_perm:[2,3,0,1] {DPPM}
    v_add_f32_dpp v9, v9, v9 row_ror:4 {DPPM}
    v_add_f32_dpp v9, v9, v9 row_ror:8 {DPPM}
    v_mov_b32 v8, v9
    v_permlane16_swap_b32 v9, v8
    v_add_f32 v9, v9, v8
    v_mov_b32 v8, v9
    v_permlane32_swap_b32 v9, v8
    v_add_f32 v9, v9, v8
    v_cvt_pk_bf16_f32 v9, v9, v9
    v_lshlrev_b32 v9, 16, v9
    v_mul_f32 v9, {f32(-LOG2E)}, v9
    v_exp_f32 v9, v9
    v_add_f32 v9, 1.0, v9
    v_rcp_f32 v9, v9
    v_cvt_pk_bf16_f32 v8, v9, v9
    v_lshlrev_b32 v8, 16, v8
    v_sub_f32 v9, 1.0, v8
    v_cvt_pk_bf16_f32 v9, v9, v9
    v_lshlrev_b32 v9, 16, v9
    v_mov_b32 v5, s56
    ds_write_b64 v5, v[8:9] offset:{GS}
    """)
    arrive(CO)
    arrive(CH)
    def fprefetch():
        L = A.lab("L_fp")
        A(f"s_and_b32 s55, {SJ}, 3")
        A(f"s_or_b32 s55, s55, {SW}")
        A(f"s_cbranch_scc1 {L}")
        A("s_mov_b32 exec_lo, 0x01010101")
        A("s_mov_b32 exec_hi, 0x01010101")
        for i in range(4):
            A(f"buffer_load_dword v138, v{oFG}, {WS}, 0 offen offset:{1024*i} {prepol}")
        A("s_mov_b64 exec, -1")
        A(f"{L}:")
    A("L_nog:")
    if fpre == 1:
        fprefetch()
    if dly:
        A("s_mov_b32 s70, s94")
    A("s_waitcnt vmcnt(0)")
    stamp(1)
    gemv64(aWg, ACC, 24, spl7)
    stamp(2)
    id_load()
    gemv64(aWu, ACC + 4, 31, spl7)
    for j in range(4):
        A(f"v_cndmask_b32 v{ACC+8+j}, v{ACC+j}, v{ACC+4+j}, {M_B1}")
    tag4(ACC + 8, ACC + 8)
    A("s_waitcnt vmcnt(0)")
    id_check("s[98:99]")
    pub([(M_GU, f"buffer_store_dwordx4 v[{ACC+8}:{ACC+11}], v{oGU}, {WS}, 0 offen")], "g", "s[98:99]")
    if "g" in hint:
        A(f"""
        s_lshl_b32 s56, {SJ}, 2
        s_add_u32 s56, s56, {SW}
        s_add_u32 s56, s56, {FLG_}
        """)
        hint_store("s56")
    stamp(3)
    if fpre == 2:
        fprefetch()
    R4 = [ACC + 12, ACC + 16]
    A(f"s_cmp_lg_u32 {SW}, 0")
    A("s_cbranch_scc1 L_ph")
    A(f"s_cmp_ge_u32 {SK}, 28")
    A("s_cbranch_scc1 L_phd")
    for i in range(8):
        A(f"v_mov_b32 v{R4[0]+i}, 0")
    if gg:
        wait_prog(gg)
    gather([(R4[0], oGG, 0), (R4[1], oGG, 1024)], fpol if gpol is None else gpol, hop="g", ex=["s[78:79]", "s[78:79]"], flag="s[98:99]")
    stamp(4)
    for r in R4:
        A(f"v_permlane32_swap_b32 v{r}, v{r+2}")
        A(f"v_permlane32_swap_b32 v{r+1}, v{r+3}")
    for r in R4:
        A(f"v_add_f32 v{r}, v{r}, v{r+2}")
        A(f"v_add_f32 v{r+1}, v{r+1}, v{r+3}")
    for r in R4:
        A(f"v_permlane16_swap_b32 v{r}, v{r+1}")
    for r in R4:
        A(f"v_add_f32 v{r}, v{r}, v{r+1}")
    for r in R4:
        A(f"v_add_f32_dpp v{r}, v{r}, v{r} row_ror:8 {DPPM}")
    bf16_round_pair(5, 6, 7, R4[0], R4[1])
    A(f"""
    v_mul_f32 v8, v6, v6
    v_mov_b32 v9, {f32(GC1)}
    v_fmac_f32 v9, {f32(GC2)}, v8
    v_mul_f32 v9, v9, v6
    v_exp_f32 v9, v9
    v_add_f32 v9, 1.0, v9
    v_rcp_f32 v9, v9
    v_mul_f32 v9, v9, v6
    v_cvt_pk_bf16_f32 v9, v9, v9
    v_lshlrev_b32 v9, 16, v9
    v_mul_f32 v9, v9, v7
    v_cvt_pk_bf16_f32 v9, v9, v9
    v_and_b32 v9, 0xffff0000, v9
    v_or_b32 v9, {T16}, v9
    s_mov_b32 exec_lo, 0x00ff00ff
    s_mov_b32 exec_hi, 0x00ff00ff
    buffer_store_dword v9, v{oPH}, {WS}, 0 offen sc1
    s_mov_b64 exec, -1
    """)
    stamp(5)
    A("s_branch L_phd")
    A("L_ph:")
    if lat:
        A(f"s_cmp_lt_u32 {SW}, 2")
        A("s_cbranch_scc1 L_lat2")
        A(f"v_readfirstlane_b32 s55, v{oGG}")
        wait_prog(lat)
        A(f"s_cmp_eq_u32 {SW}, 2")
        A("s_cbranch_scc1 L_lat1")
        dstamp()
        for i in range(4):
            A(f"s_load_dwordx16 s[80:95], s[28:29], s55 glc")
            A("s_waitcnt lgkmcnt(0)")
            dstamp()
            A("s_add_u32 s55, s55, 128")
        A("s_branch L_lat2")
        A("L_lat1:")
        dstamp()
        for i in range(4):
            A(f"buffer_load_dwordx4 v[{ACC+12}:{ACC+15}], v{oGG}, {WS}, 0 offen nt")
            A("s_waitcnt vmcnt(0)")
            dstamp()
        A("L_lat2:")
    A(f"s_cmp_lg_u32 {SW}, 1")
    A("s_cbranch_scc1 L_phd")
    pxg(oPH, aHsW, HS, "0xffffff", gh, CH, "h")
    A("L_phd:")
    wait_prog(52)
    rd3([0, 1, 2])
    wait_prog(53)
    rd3([3])
    wait_cnt(CH, 3, bt_reads() + [f"ds_read_b32 v{vGC}, v{aGS} offset:{GS+4}"])
    mm3([0, 1, 2])
    if not sym:
        wait_cnt(CA, 4, [f"ds_read_b128 v[{ACC+8}:{ACC+11}], v{aAS}", f"ds_read_b32 v9, v{aGS} offset:{GS+4}"])
        mm3([3])
        sel3()
        for j in range(4):
            A(f"v_fmac_f32 v{ACC+8+j}, v9, v{ACC+j}")
        tag4(ACC + 8, ACC + 8)
        A(f"s_mov_b64 exec, {M_N4}")
        A(f"buffer_store_dwordx4 v[{ACC+8}:{ACC+11}], v{oFP}, {WS}, 0 offen sc1")
        A("s_mov_b64 exec, -1")
        stamp(6)
        A(f"s_and_b32 s55, {SJ}, 3")
        A(f"s_or_b32 s55, s55, {SW}")
        A("s_cbranch_scc1 L_fin")
    else:
        mm3([3])
        A("L_comb:")
        sel3()
        for j in range(4):
            A(f"v_mul_f32 v{ACC+j}, v{vGC}, v{ACC+j}")
        A(f"""
        s_mov_b64 exec, {M_N4}
        ds_write_b128 v{aAS}, v[{ACC}:{ACC+3}]
        s_mov_b64 exec, 1
        ds_add_rtn_u32 v5, v{vZ}, v{vONE} offset:{CA}
        s_mov_b64 exec, -1
        ds_read_b128 v[{ACC+8}:{ACC+11}], v{aL16} offset:{AS}
        ds_read_b128 v[{ACC+12}:{ACC+15}], v{aL16} offset:{AS+1024}
        s_waitcnt lgkmcnt(2)
        v_readfirstlane_b32 s55, v5
        s_cmp_lg_u32 s55, 7
        s_cbranch_scc1 L_nlast
        s_waitcnt lgkmcnt(0)
        v_pk_add_f32 v[{ACC+8}:{ACC+9}], v[{ACC+8}:{ACC+9}], v[{ACC+12}:{ACC+13}]
        v_pk_add_f32 v[{ACC+10}:{ACC+11}], v[{ACC+10}:{ACC+11}], v[{ACC+14}:{ACC+15}]
        """)
        tag4(ACC + 8, ACC + 8)
        pub([(None, f"buffer_store_dwordx4 v[{ACC+8}:{ACC+11}], v{oFP2}, {WS}, 0 offen")], "f", "s[98:99]")
        stamp(8)
        A("L_nlast:")
        stamp(9)
        A(f"s_and_b32 s55, {SJ}, 3")
        if ccl:
            A(f"s_xor_b32 s55, s55, {ccl}")
        A(f"s_sub_u32 s56, s3, 5")
        A(f"s_or_b32 s55, s55, s56")
        A("s_cbranch_scc1 L_fin")
        if dly:
            A("L_dly:")
            A("s_memrealtime s[96:97]")
            A("s_waitcnt lgkmcnt(0)")
            A("s_sub_u32 s55, s96, s70")
            A(f"s_cmp_lt_u32 s55, {dly}")
            A("s_cbranch_scc1 L_dly")
    gather([(G + 4 * i, oFG, 1024 * i) for i in range(4)], ffpol, hop="f", rawoff=32, flag="s[98:99]")
    A(f"""
    v_pk_add_f32 v[{G}:{G+1}], v[{G}:{G+1}], v[{G+4}:{G+5}]
    v_pk_add_f32 v[{G+2}:{G+3}], v[{G+2}:{G+3}], v[{G+6}:{G+7}]
    v_pk_add_f32 v[{G+8}:{G+9}], v[{G+8}:{G+9}], v[{G+12}:{G+13}]
    v_pk_add_f32 v[{G+10}:{G+11}], v[{G+10}:{G+11}], v[{G+14}:{G+15}]
    v_pk_add_f32 v[{G}:{G+1}], v[{G}:{G+1}], v[{G+8}:{G+9}]
    v_pk_add_f32 v[{G+2}:{G+3}], v[{G+2}:{G+3}], v[{G+10}:{G+11}]
    """)
    red4(G)
    A(f"""
    v_add_f32_dpp v{G}, v{G}, v{G} row_ror:8 {DPPM}
    s_mov_b32 exec_lo, 0x00ff00ff
    s_mov_b32 exec_hi, 0x00ff00ff
    v_cvt_pk_bf16_f32 v6, v{G}, v{G}
    buffer_store_short v6, v{oOut}, s[44:47], 0 offen {outpol}
    s_cmp_lg_u32 s2, {8*ccl}
    s_cbranch_scc1 L_fin
    s_mov_b64 exec, 1
    v_mov_b32 v6, s48
    v_mov_b32 v7, s49
    s_mov_b32 s55, {EPOCH}
    v_mov_b32 v8, s55
    global_store_dwordx2 v8, v[6:7], s[28:29] sc1
    L_fin:
    """)
    A("s_mov_b64 exec, -1")
    stamp(7)
    dump_stamps()
    A("L_end:")
    A("s_endpgm")

    if nost:
        sel = {"q": f"v{oQP},", "o": f"v{oOP},", "m": f"v{oML},", "g": f"v{oGU},", "f": f"v{oFP},"}
        keys = list(sel.values()) if nost is True else [sel[c] for c in nost]
        A.L = [l for l in A.L if not (l.startswith("buffer_store_dwordx4") and "sc1" in l and any(k in l for k in keys))]
    if nost2:
        sel = {"q": f"v{oQP},", "o": f"v{oOP},", "m": f"v{oML},", "g": f"v{oGU},", "f": f"v{oFP2},"}
        keys = [sel[c] for c in nost2]
        A.L = [l for l in A.L if not (l.startswith("buffer_store_dwordx4") and any(k in l for k in keys))]
    if plain:
        sel = {"q": f"v{oQP},", "o": f"v{oOP},", "m": f"v{oML},", "g": f"v{oGU},", "f": f"v{oFP},"}
        keys = [sel[c] for c in plain]
        A.L = [l.replace(" sc1", "") if (l.startswith("buffer_store_dwordx4") and any(k in l for k in keys)) else l for l in A.L]
    if stpol != "sc1":
        A.L = [l.replace(" sc1", " " + stpol) if l.startswith("buffer_store_dwordx4") else l for l in A.L]
    body, nn = hazard_pass(A.L)
    out = []
    out.append(f"; @launch grid=(256,1,1) block=(576,1,1) lds={LDS_TOTAL}")
    out.append('.amdgcn_target "amdgcn-amd-amdhsa--gfx950"')
    out.append(".text")
    out.append(f".globl {NAME}_kernel")
    out.append(".p2align 8")
    out.append(f".type {NAME}_kernel,@function")
    out.append(f"{NAME}_kernel:")
    out += ["  " + l if not l.endswith(":") else l for l in body]
    if pf == 0:
        out.append(f".fill (16384 + 64 - (. - L_worker)) / 4, 4, 0xbf810000")
    elif pf == 1:
        out.append(f".fill (24576 + 64 - (. - {NAME}_kernel)) / 4, 4, 0xbf810000")
    out.append('.section .rodata,"a"')
    out.append(".p2align 6")
    out.append(f".amdhsa_kernel {NAME}_kernel")
    out.append("  .amdhsa_next_free_vgpr 160")
    out.append("  .amdhsa_next_free_sgpr 102")
    out.append("  .amdhsa_accum_offset 160")
    out.append("  .amdhsa_group_segment_fixed_size 0")
    out.append("  .amdhsa_kernarg_size 104")
    out.append("  .amdhsa_user_sgpr_count 2")
    out.append("  .amdhsa_user_sgpr_kernarg_segment_ptr 1")
    out.append("  .amdhsa_system_sgpr_workgroup_id_x 1")
    out.append(".end_amdhsa_kernel")
    return "\n".join(out) + "\n"


if __name__ == "__main__":
    import argparse, ast
    ap = argparse.ArgumentParser()
    ap.add_argument("out")
    ap.add_argument("kw", nargs="*")
    a = ap.parse_args()
    kw = {}
    for s in a.kw:
        k, v = s.split("=", 1)
        try:
            kw[k] = ast.literal_eval(v)
        except Exception:
            kw[k] = v
    open(a.out, "w").write(gen(**kw))
```

```python
import sys, struct
from asmlib import Asm, hazard_pass

NAME = "gated_mix__sliding_block_cached__geglu_ffn__decode"

PROG = 0
CQ, CP, CO, CH, FA, FB, FC, CA, CF = 0x100, 0x104, 0x108, 0x10C, 0x110, 0x114, 0x118, 0x11C, 0x120
ZERO = 0x200
HS, OS, QS, PS, MS, GS, AS = 0x400, 0x600, 0x800, 0x1100, 0x1A00, 0x1A80, 0x2000
PITCH = 288
RA, RC, RD, RB = 0x3000, 0xB000, 0x13000, 0x1A000
LDS_TOTAL = RB + 8 * 4096
QP, ML, EPOCH, GUP, OP, FP, WS_END = 0, 0x20000, 0x2F000, 0x40000, 0x100000, 0x200000, 0x300000
IDT, PX, PHB = 0x2E000, 0x30000, 0x38000
FLO, FLG_ = 0x2E800, 0x2EC00
WS_END = FP + 0x40000
TAGM = 0xFFF


def f32(x):
    return "0x%08x" % struct.unpack("<I", struct.pack("<f", x))[0]


LOG2E = 1.4426950408889634
SCALE = 128 ** -0.5
GC1 = -2.0 * LOG2E * 0.7978845608028654
GC2 = GC1 * 0.044715


def gen(xl=0, nox='', dg=0, nar=0, npol='nt', pgw=0, dyn=0, apol='', dmax=12, sp=0, pre2='', noat=0, lpol={}, sched=None, ad='', thr=(0, 24, 30), dds=(3, 4, 5, 6), lst=0, kvr=0, rsel='0x30003', kvs=0, tl='', tlw=8, lgrow=0, lat=0, gh=(49,48), lret='f', ffpol='nt', fpre=0, b3=3, pg={}, ccl=0, dly=0, pipe={}, pthr=32, wb=0, wbm=31, outpol='', unb=None, xo='', xkb=9, xcls=1, cbx=0, burst=0, nost2='', qn=4, sym=1, pxe=0, pf=2, win=None, wk=1, D=16, stamps=False, spl1=(4, 8), spl7=(4, 7), ntflag="nt", gq=16, go=34, gg=44, gp=45, loc='ogf', ppol='sc1', once='', rpol='sc1', rinv=0, pre='', prepol='', Dhi=0, D3hi=0, hibit=2, opol=None, gpol=None, hint='', go0=26, gg0=38, fsm=0, fpol="",
        nog=False, nost=False, rot=1, qmap=0, bgmap=0, D3=0, cst='', stpol='sc1', wsoff=0, half=0, ofrac=0, ostr=0, omask=0, mlin=0, ffrac=0, gfrac=0, plain='', qfrac=0):
    A = Asm()
    d = D // 4
    assert D % 4 == 0
    d3 = (D3 or D) // 4
    assert d3 >= d

    VST = 152
    XS = LDS_TOTAL

    def stamp(i):
        if stamps:
            if i == 0:
                A(f"v_mov_b32 v{VST}, 0")
            A("s_memrealtime s[96:97]")
            A("s_waitcnt lgkmcnt(0)")
            A(f"v_writelane_b32 v{VST}, s96, {i}")

    def dstamp():
        if stamps:
            A("s_memrealtime s[96:97]")
            A("s_waitcnt lgkmcnt(0)")
            A(f"v_writelane_b32 v{VST}, s96, m0")
            A("s_add_u32 m0, m0, 1")
            A("s_min_u32 m0, m0, 63")

    def dump_stamps():
        if not stamps:
            return
        A("s_mov_b64 exec, -1")
        A("s_add_u32 s28, s28, 0x8000000")
        A("s_addc_u32 s29, s29, 0")
        A("s_mul_i32 s55, s2, 9")
        A("s_add_u32 s55, s55, s3")
        A("s_lshl_b32 s55, s55, 8")
        A("v_lshlrev_b32 v5, 2, v0")
        A("v_add_u32 v5, s55, v5")
        A(f"global_store_dword v5, v{VST}, s[28:29]")

    BUD, SPROG = "s30", "s31"

    def budget(k=1):
        A(f"s_sub_u32 {BUD}, {BUD}, {k}")
        A("s_cbranch_scc1 L_end")

    RB1, CB1 = "s100", "s101"

    def xf(v, old, new, t=5):
        m = (1 << xkb) - 1
        A(f"v_subrev_u32 v{v}, {old}, v{v}")
        A(f"v_and_b32 v{t}, {m}, v{v}")
        A(f"v_lshrrev_b32 v{v}, {xkb}, v{v}")
        A(f"v_lshl_add_u32 v{v}, v{v}, 10, v{t}")
        A(f"v_add_u32 v{v}, {new + (xcls << xkb)}, v{v}")

    def tile1():
        if qmap == 0:
            A(f"s_and_b32 {RB1}, s2, 3")
            A(f"s_lshr_b32 {CB1}, s2, 2")
        else:
            hi, lo = ("0x10000", "0x20001") if qmap == 1 else ("0x10002", "0x20000")
            A(f"""
            s_bfe_u32 {RB1}, s2, {hi}
            s_lshr_b32 s69, s2, 7
            s_lshl1_add_u32 {RB1}, {RB1}, s69
            s_bfe_u32 s69, s2, 0x40003
            s_bfe_u32 {CB1}, s2, {lo}
            s_lshl4_add_u32 {CB1}, {CB1}, s69
            """)

    def bg(dst, t):
        if bgmap == 0:
            A(f"s_and_b32 {dst}, s2, 7")
        else:
            A(f"s_and_b32 {dst}, s2, 1")
            A(f"s_bfe_u32 {t}, s2, 0x20001")
            A(f"s_lshl2_add_u32 {dst}, {dst}, {t}")

    def jidx(dst, t):
        A(f"s_and_b32 {dst}, s2, 7")
        A(f"s_lshl_b32 {dst}, {dst}, 5")
        A(f"s_lshr_b32 {t}, s2, 3")
        A(f"s_add_u32 {dst}, {dst}, {t}")

    stamp(0)
    W8, W7, VK, VV, VO = 10, 14, 18, 22, 24
    vP, vPa, vFr, vFa, vT = 28, 29, 30, 31, 32
    A(f"""
    s_cmp_ge_u32 s2, 256
    s_cbranch_scc1 L_end
    s_load_dwordx2 s[32:33], s[0:1], 24
    s_load_dwordx16 s[4:19], s[0:1], 0
    s_load_dwordx8 s[20:27], s[0:1], 64
    s_load_dwordx2 s[28:29], s[0:1], 96
    v_lshrrev_b32 v1, 6, v0
    v_lshrrev_b32 v34, 3, v0
    v_readfirstlane_b32 s3, v1
    v_and_b32 v35, 7, v0
    v_and_b32 v36, 2, v34
    s_mov_b32 {BUD}, 0x100000
    s_mov_b32 s35, 0x20000
    """)
    tile1()
    A(f"""
    s_cmp_lg_u32 s3, 0
    s_cbranch_scc1 L_worker
    s_setprio 3
    v_xor_b32 v35, v35, v36
    v_lshlrev_b32 v35, 4, v35
    v_xor_b32 v36, 64, v35
    v_lshl_add_u32 v{W8}, v34, 13, v35
    v_lshl_add_u32 v{W8+1}, v34, 13, v36
    v_add_u32 v{W8+1}, {65536-1024}, v{W8+1}
    v_add_u32 v{W8+2}, {2*(65536-1024)}, v{W8}
    v_add_u32 v{W8+3}, {2*(65536-1024)}, v{W8+1}
    s_lshl_b32 s68, {CB1}, 7
    s_lshl_b32 s60, {RB1}, 21
    s_add_u32 s60, s60, s68
    s_mov_b32 s34, {8<<20}
    s_mov_b32 m0, {RA}
    s_waitcnt lgkmcnt(0)
    """)
    srds = [(36, 6, 64 << 20), (40, 8, 64 << 20), (44, 16, 7 << 20), (48, 18, 7 << 20),
            (52, 12, 8 << 20), (56, 20, 7 << 20)]
    NPEEL = burst or min(d, 7)

    UNB = ""
    if unb:
        tb0 = sum(((u[0] + 8) & 15) << (4 * c) for c, u in enumerate(unb))
        tb1 = sum(u[1] << (4 * c) for c, u in enumerate(unb))
        UNB = f"""s_and_b32 s70, s68, 3
        s_lshl_b32 s70, s70, 2
        s_lshr_b32 s71, {tb0}, s70
        s_and_b32 s71, s71, 15
        s_sub_u32 s71, s71, 8
        s_lshr_b32 s75, {tb1}, s70
        s_and_b32 s75, s75, 15
        s_sub_u32 s76, 7, s75
        s_lshl_b32 s75, s75, 12
        s_add_u32 s75, s75, {RA}
        s_mul_i32 s69, s67, 7
        s_add_u32 s69, s69, s71
        s_lshr_b32 s64, s69, 5
        s_lshl_b32 s64, s64, 7
        s_and_b32 s69, s69, 31
        s_mul_i32 s69, s69, {32*7168}
        s_add_u32 s64, s64, s69"""

    def loader_setup():
        A(f"""
        v_lshrrev_b32 v4, 4, v0
        v_and_b32 v5, 15, v0
        v_xor_b32 v6, v5, v4
        v_lshlrev_b32 v6, 4, v6
        v_lshl_add_u32 v{VK}, v4, 8, v6
        v_xor_b32 v{VK+1}, 64, v{VK}
        v_xor_b32 v{VK+2}, 128, v{VK}
        v_xor_b32 v{VK+3}, 192, v{VK}
        v_lshlrev_b32 v6, 1, v4
        v_xor_b32 v6, v5, v6
        v_lshlrev_b32 v6, 4, v6
        v_lshl_add_u32 v{VV}, v4, 8, v6
        v_xor_b32 v{VV+1}, 128, v{VV}
        v_lshl_add_u32 v{VO}, v4, 11, v6
        v_add_u32 v{VO+1}, 7168, v{VO}
        v_xor_b32 v{VO+3}, 128, v{VO}
        v_add_u32 v{VO+2}, {2*7168}, v{VO+3}
        v_add_u32 v{VO+3}, {3*7168}, v{VO+3}
        v_mul_u32_u24 v7, 7168, v34
        v_add_u32 v{W7}, v7, v35
        v_add_u32 v{W7+1}, v7, v36
        v_add_u32 v{W7+1}, {8*7168-1024}, v{W7+1}
        v_add_u32 v{W7+2}, {2*(8*7168-1024)}, v{W7}
        v_add_u32 v{W7+3}, {2*(8*7168-1024)}, v{W7+1}
        v_mov_b32 v{vP}, {min(NPEEL-d, 0)}
        v_lshlrev_b32 v{vPa}, 2, v0
        """)
        if kvs:
            if kvs == 8:
                A(f"v_lshrrev_b32 v6, 5, v0")
                A(f"v_mul_u32_u24 v6, {4096-512}, v6")
            elif kvs == 16:
                A(f"v_mul_u32_u24 v6, {2048-256}, v4")
            else:
                A("v_mov_b32 v6, 0")
            A(f"v_mov_b32 v39, v{VV+1}")
            A(f"v_mov_b32 v38, v{VV+1}")
            A(f"v_mov_b32 v{VV+1}, v{VV}")
            for t, (rk, rv) in enumerate(zip(vk, vv)):
                if t:
                    A(f"v_add_u32 v6, {8192-1024}, v6")
                A(f"v_add_u32 v{rk}, v6, v{rk}")
                A(f"v_add_u32 v{rv}, v6, v{rv}")
        jidx("s67", "s68")
        A(f"""
        s_mul_i32 s69, s67, 7
        s_lshr_b32 s63, s69, 5
        s_lshl_b32 s63, s63, 7
        s_and_b32 s69, s69, 31
        s_mul_i32 s69, s69, {32*7168}
        s_add_u32 s63, s63, s69
        s_mov_b32 s64, s63
        {UNB}
        s_and_b32 s69, s68, 7
        s_xor_b32 s69, s69, {cbx}
        s_lshl_b32 s69, s69, 8
        s_lshr_b32 s67, s67, 3
        s_mul_i32 s66, s67, {112*2048}
        s_add_u32 s66, s66, s69
        s_and_b32 s65, s2, 3
        s_lshl_b32 s65, s65, 3
        s_and_b32 s67, s2, 4
        s_add_u32 s65, s65, s67
        s_lshr_b32 s67, s2, 6
        s_add_u32 s65, s65, s67
        s_lshl_b32 s65, s65, 18
        s_add_u32 s65, s65, s69
        """)
        if b3:
            A(f"""
            s_and_b32 s69, s2, 7
            s_xor_b32 s69, s69, {cbx}
            s_lshl_b32 s69, s69, 8
            s_mul_i32 s66, s68, {(128 if sp else 112)*2048}
            s_add_u32 s66, s66, s69
            s_lshl_b32 s65, s68, 18
            s_add_u32 s65, s65, s69
            """)
        if nar:
            A(f"""
            v_lshrrev_b32 v6, 1, v0
            v_mul_u32_u24 v6, 7168, v6
            v_and_b32 v7, 1, v0
            v_lshl_add_u32 v{W7}, v7, 4, v6
            v_add_u32 v{W7+1}, {32*7168-1024}, v{W7}
            v_add_u32 v{W7+2}, {2*(32*7168-1024)}, v{W7}
            v_add_u32 v{W7+3}, {3*(32*7168-1024)}, v{W7}
            s_and_b32 s63, s2, 7
            s_mul_i32 s63, s63, 28
            s_add_u32 s63, s63, s68
            s_lshl_b32 s63, s63, 5
            s_mov_b32 s64, s63
            s_mul_i32 s66, s68, 5
            s_sub_u32 s70, s68, 28
            s_mul_i32 s70, s70, 21
            s_add_u32 s70, s70, 140
            s_cmp_ge_u32 s68, 28
            s_cselect_b32 s66, s70, s66
            s_lshl_b32 s66, s66, 15
            s_add_u32 s66, s66, s69
            """)
        if dg:
            jidx("s67", "s70")
            A(f"""
            s_and_b32 s70, s67, -2
            s_mul_i32 s70, s70, 7
            s_lshr_b32 s63, s70, 5
            s_lshl_b32 s63, s63, 7
            s_and_b32 s70, s70, 31
            s_mul_i32 s70, s70, {32*7168}
            s_add_u32 s63, s63, s70
            """)
        bg("s67", "s69")
        A(f"""
        s_lshl_b32 s61, s67, 23
        s_lshl_b32 s69, s68, 15
        s_add_u32 s61, s61, s69
        s_add_u32 s61, s61, {28672*256}
        s_mov_b32 s62, s61
        """)
        for r, p, n in srds:
            if dg and r == 48:
                continue
            if dg and r == 44:
                A("s_bitcmp1_b32 s2, 3")
                A("s_cselect_b64 s[44:45], s[18:19], s[16:17]")
            else:
                A(f"s_mov_b64 s[{r}:{r+1}], s[{p}:{p+1}]")
            A(f"s_mov_b32 s{r+2}, {n}")
            A(f"s_mov_b32 s{r+3}, 0x20000")

    def group(srd, vo, soff):
        for t in range(4):
            off = f" offset:{1024*t}" if t else ""
            A(f"buffer_load_dwordx4 v{vo[t]}, s[{srd}:{srd+3}], {soff} offen{off} {ntflag} lds")

    def lstamp():
        if sched or ad:
            lstamp0()

    def lstamp0():
        A("s_waitcnt lgkmcnt(0)")
        A("s_mov_b64 exec, s[94:95]")
        A(f"v_mov_b32 v{VST}, s98")
        A("s_mov_b64 exec, -1")
        A("s_memrealtime s[98:99]")
        A("s_lshl_b64 s[94:95], s[94:95], 1")

    def publish():
        if lst:
            lstamp0()
        if ad or sched:
            A(f"v_add_u32 v{vI}, 1, v{vI}")
            A(f"v_mad_i32_i24 v{vP}, s78, v{vM}, v{vI}")
        else:
            A(f"v_add_u32 v{vP}, 1, v{vP}")
        A(f"ds_max_i32 v{vPa}, v{vP}")

    vRet, vOne, vCa, vI, vM = 40, 41, 42, 43, 44
    adst = {"on": False, "n": 0}

    def wwait(dd):
        if not adst["on"]:
            A(f"s_waitcnt vmcnt({4*dd})")
            return
        lo, l1, l3, lp = A.lab("L_wl"), A.lab("L_w1"), A.lab("L_w3"), A.lab("L_wp")
        ddt = sum(x << (4 * i) for i, x in enumerate(dds))
        A(f"""
        v_readfirstlane_b32 s75, v{vRet}
        s_xor_b32 s75, s75, s79
        s_cmp_lt_u32 s75, 32
        s_cselect_b32 s75, s75, {thr[0]}
        s_lshl_b32 s75, s75, 1
        s_lshr_b64 s[76:77], s[80:81], s75
        s_and_b32 s76, s76, 3
        s_lshl_b32 s75, s76, 2
        s_lshr_b32 s75, {ddt}, s75
        s_and_b32 s75, s75, 15
        s_sub_u32 s78, 0, s75
        s_bitcmp0_b32 s76, 1
        s_cbranch_scc1 {lo}
        s_bitcmp1_b32 s76, 0
        s_cbranch_scc1 {l3}
        s_waitcnt vmcnt({4*dds[2]})
        {l3}:
        s_waitcnt vmcnt({4*dds[3]})
        s_branch {lp}
        {lo}:
        s_bitcmp1_b32 s76, 0
        s_cbranch_scc1 {l1}
        s_waitcnt vmcnt({4*dds[0]})
        {l1}:
        s_waitcnt vmcnt({4*dds[1]})
        {lp}:
        """)

    def checkpoint(c):
        if c not in ad:
            return
        if not adst["on"]:
            tab = 0
            for r in range(32):
                tab |= sum(r >= t for t in thr) << (2 * r)
            A(f"""
            s_waitcnt lgkmcnt(0)
            s_add_u32 s79, s82, 1
            s_lshl_b32 s79, s79, 8
            v_not_b32 v{vRet}, s79
            s_mov_b32 s80, 0x{tab & 0xffffffff:x}
            s_mov_b32 s81, 0x{tab >> 32:x}
            """)
            adst["on"] = True
        A("s_mov_b64 exec, 1")
        if noat == 0:
            A(f"global_atomic_add v{vRet}, v{vCa}, v{vOne}, s[28:29] offset:{4*adst['n']} sc0")
        elif noat == 2:
            A(f"global_load_dword v{vRet}, v{vCa}, s[28:29] offset:{4*adst['n']} nt")
        A("s_mov_b64 exec, -1")
        adst["n"] += 1

    sst = {"i": NPEEL, "dd": d}

    def tloop(srd, vo, soff, step, ng, base, free=None, skip=0, pitch=4096, wrap=False, dd=None, grow=0):
        if not sched:
            return tloop0(srd, vo, soff, step, ng, base, free, skip, pitch, wrap, dd, grow)
        a = sst["i"] - skip
        cuts = sorted(c - a for c in sched if sst["i"] < c < a + ng) + [ng]
        for c in cuts:
            if sst["i"] in sched:
                sst["dd"] = sched[sst["i"]]
                A(f"s_mov_b32 s78, {-sst['dd']}")
            tloop0(srd, vo, soff, step, c, base, free if c == ng else None, sst["i"] - a, pitch, wrap, sst["dd"], 0)
            sst["i"] = a + c

    def tloop0(srd, vo, soff, step, ng, base, free=None, skip=0, pitch=4096, wrap=False, dd=None, grow=0):
        dd = dd or d
        if not skip:
            A(f"s_mov_b32 m0, {base}")
        if free is not None:
            A(f"v_mov_b32 v{vFa}, {free}")
        for i in range(grow):
            group(srd, vo, soff)
            A(f"s_add_u32 {soff}, {soff}, {step}")
            A(f"s_add_u32 m0, m0, {pitch}")
        L = A.lab("L_ld")
        A(f"{L}:")
        group(srd, vo, soff)
        if free is not None:
            A(f"ds_read_b32 v{vFr}, v{vFa}")
        A(f"s_add_u32 {soff}, {soff}, {step}")
        if wrap:
            A(f"s_cmp_ge_u32 {soff}, {1024*7168}")
            A(f"s_cselect_b32 s73, {1024*7168-128}, 0")
            A(f"s_sub_u32 {soff}, {soff}, s73")
        A(f"s_add_u32 m0, m0, {pitch}")
        wwait(dd)
        publish()
        A(f"s_cmp_lg_u32 m0, {base + ng*pitch if isinstance(ng, int) else ng}")
        A(f"s_cbranch_scc1 {L}")
        if free is not None:
            ok, sp = A.lab("L_fok"), A.lab("L_fsp")
            A("s_waitcnt lgkmcnt(0)")
            A(f"v_readfirstlane_b32 s74, v{vFr}")
            A("s_cmp_ge_u32 s74, 4")
            A(f"s_cbranch_scc1 {ok}")
            A("s_waitcnt vmcnt(0)")
            if ad or sched:
                A(f"ds_max_i32 v{vPa}, v{vI}")
            else:
                A(f"v_add_u32 v{vT}, {dd}, v{vP}")
                A(f"ds_max_i32 v{vPa}, v{vT}")
            A(f"{sp}:")
            A(f"ds_read_b32 v{vFr}, v{vFa}")
            A("s_waitcnt lgkmcnt(0)")
            A(f"v_readfirstlane_b32 s74, v{vFr}")
            budget()
            A("s_cmp_lt_u32 s74, 4")
            A(f"s_cbranch_scc1 {sp}")
            A(f"{ok}:")

    w8 = [W8 + t for t in range(4)]
    w7 = [W7 + t for t in range(4)]
    vk = [VK + t for t in range(4)]
    vv = [VV, VV + 1, 38, 39] if kvs else [VV, VV, VV + 1, VV + 1]
    vo = [VO + t for t in range(4)]
    A("L_ld0:")
    group(32, w8, "s60")
    A(f"s_add_u32 s60, s60, {32*8192}")
    A("s_add_u32 m0, m0, 4096")
    A(f"s_cmp_lg_u32 m0, {RA + NPEEL*4096}")
    A("s_cbranch_scc1 L_ld0")
    if xl == 1:
        A(f"""
        s_mov_b64 s[36:37], s[4:5]
        s_mov_b32 s38, 4096
        s_mov_b32 s39, 0x20000
        v_lshlrev_b32 v4, 4, v0
        s_mov_b32 m0, {XS}
        """)
        for t in range(4):
            A(f"buffer_load_dwordx4 v4, s[36:39], 0 offen{' offset:%d' % (1024*t) if t else ''} lds")
        A(f"s_mov_b32 m0, {RA + NPEEL*4096}")
    stamp(1)
    if ad:
        A(f"s_load_dword s82, s[28:29], {EPOCH}")
    loader_setup()
    if ad or sched:
        assert NPEEL == d and not Dhi and not D3 and not win
        A(f"""
        s_and_b32 s75, s2, 7
        s_lshl_b32 s75, s75, 7
        s_add_u32 s75, s75, {FLO}
        v_mov_b32 v{vCa}, s75
        v_mov_b32 v{vOne}, 1
        v_mov_b32 v{vI}, {NPEEL}
        v_mov_b32 v{vM}, 1
        v_writelane_b32 v{vM}, 0, 1
        s_mov_b32 s78, {-d}
        """)
    if lst:
        A("s_mov_b64 s[94:95], 0x100")
        A("s_mov_b32 s98, 0")
    A("s_barrier")
    def wbl2():
        L = A.lab("L_wb")
        A(f"s_lshr_b32 s67, s2, 3")
        A(f"s_and_b32 s67, s67, {wbm}")
        A(f"s_cbranch_scc1 {L}")
        A("buffer_wbl2 sc1")
        A(f"{L}:")

    def stream(dx, d3x, stamp0=stamp):
        def stamp(i):
            if lst != 2 or i == 7:
                stamp0(i)
        if burst:
            for j in range(burst - 1, dx - 1, -1):
                A(f"s_waitcnt vmcnt({4*j})")
                publish()
            if burst < 8:
                tloop(32, w8, "s60", 32 * 8192, 8, RA, skip=NPEEL, dd=dx, grow=max(dx - burst, 0))
        else:
            tloop(32, w8, "s60", 32 * 8192, 8, RA, skip=NPEEL, dd=d if lgrow else dx, grow=0 if lgrow else dx - d)
        stamp(2)
        if kvs and not kvr:
            checkpoint("K")
            if "k" in ad:
                tloop(36, vk, "s61", 4096 // kvs, 4, RB, dd=dx)
                checkpoint("k")
                tloop(36, vk, "s61", 4096 // kvs, 8, RB, dd=dx, skip=4)
            else:
                tloop(36, vk, "s61", 4096 // kvs, 8, RB, dd=dx)
            checkpoint("V")
            tloop(40, vv, "s62", 4096 // kvs, 8, RC, dd=dx)
        elif not rot:
            tloop(36, vk, "s61", 4096, 8, RB, dd=dx)
            tloop(40, vv, "s62", 4096, 8, RC, dd=dx)
        else:
            A(f"s_bfe_u32 s67, s2, {rsel}")
            A("s_lshl_b32 s67, s67, 12")
            A("s_mov_b32 s68, s67")
            for srd, vo_, base in ((36, vk, RB), (40, vv, RC)):
                L = A.lab("L_rt")
                checkpoint("K" if srd == 36 else "V")
                dxx = d if (lgrow == 2 and srd == 36) else dx
                if sched:
                    if sst["i"] in sched:
                        sst["dd"] = sched[sst["i"]]
                        A(f"s_mov_b32 s78, {-sst['dd']}")
                    dxx = sst["dd"]
                    sst["i"] += 8
                if (lgrow == 1 and srd == 36) or (lgrow == 2 and srd == 40):
                    for _ in range(dx - d):
                        A(f"s_add_u32 m0, s68, {base}")
                        A("s_add_u32 s69, s68, s61")
                        group(srd, vo_, "s69")
                        A("s_add_u32 s68, s68, 4096")
                        A("s_and_b32 s68, s68, 0x7fff")
                A(f"{L}:")
                A(f"s_add_u32 m0, s68, {base}")
                if kvs:
                    A(f"s_lshr_b32 s69, s68, {kvs.bit_length()-1}")
                    A("s_add_u32 s69, s69, s61")
                else:
                    A("s_add_u32 s69, s68, s61")
                group(srd, vo_, "s69")
                A("s_add_u32 s68, s68, 4096")
                A("s_and_b32 s68, s68, 0x7fff")
                wwait(dxx)
                publish()
                A("s_cmp_lg_u32 s68, s67")
                A(f"s_cbranch_scc1 {L}")
        stamp(3)
        checkpoint("G")
        if nar:
            nonlocal ntflag
            sv = ntflag
            A("s_cmp_ge_u32 s2, 224")
            A("s_cbranch_scc1 L_nsp")
            ntflag = npol
            tloop(44, w7, "s63", 128 * 7168, 8, RD - 4096, free=FA, dd=dx)
            tloop(48, w7, "s64", 128 * 7168, 8, RA, free=FB, dd=dx)
            ntflag = sv
            stamp(4)
            tloop(52, vo, "s65", 32768, 8, RB, free=FC, dd=dx)
            stamp(5)
            tloop(56, vo, "s66", 32768, 5, RC, dd=dx)
            A("s_branch L_nsd")
            A("L_nsp:")
            tloop(56, vo, "s66", 32768, 8, RD - 4096, free=FA, dd=dx)
            tloop(56, vo, "s66", 32768, 8, RA, free=FB, dd=dx)
            stamp(4)
            tloop(52, vo, "s65", 32768, 8, RB, free=FC, dd=dx)
            stamp(5)
            tloop(56, vo, "s66", 32768, 5, RC, dd=dx)
            A("L_nsd:")
            stamp(6)
            for k in range(dx - 1, -1, -1):
                A(f"s_waitcnt vmcnt({4*k})")
                publish()
            stamp(7)
            dump_stamps()
            A("s_endpgm")
            return
        tloop(44, w7, "s63", 32 * 7168, 7, RD, free=FA, wrap=True, dd=dx)
        checkpoint("U")
        if unb:
            A(f"v_add_u32 v{vP}, s76, v{vP}")
        tloop(44 if dg else 48, w7, "s63" if dg else "s64", 32 * 7168, "s75" if unb else 7, RA, free=FB, wrap=True, dd=dx)
        stamp(4)
        checkpoint("O")
        if dyn:
            Lc = dx + 1
            CL = [46 + i for i in range(Lc)]
            A("s_and_b32 s75, s2, 7")
            A("s_lshl_b32 s75, s75, 12")
            A("v_mov_b32 v45, s75")
            A("v_mov_b32 v44, 1")
            A("s_and_b32 s76, s2, 7")
            A("s_lshl_b32 s76, s76, 8")
            def claim(r):
                A("s_mov_b64 exec, 1")
                A(f"global_atomic_add v{r}, v45, v44, s[26:27] sc0 {apol}")
                A("s_mov_b64 exec, -1")
            tloop(52, vo, "s65", 32768, 8 - Lc, RB, free=None, dd=d3x)
            for i in range(Lc):
                group(52, vo, "s65")
                claim(CL[i])
                A("s_add_u32 s65, s65, 32768")
                A("s_add_u32 m0, m0, 4096")
                A(f"s_waitcnt vmcnt({4*dx + min(i + 1, dx)})")
                publish()
            stamp(5)
            A(f"s_mov_b32 m0, {RC}")
            for i in range(dmax):
                r = CL[i % Lc]
                A(f"v_readfirstlane_b32 s75, v{r}")
                A("s_cmp_ge_u32 s75, 224")
                A("s_cbranch_scc1 L_dend")
                A("s_lshl_b32 s75, s75, 15")
                A("s_add_u32 s75, s75, s76")
                group(56, vo, "s75")
                if i + Lc < dmax:
                    claim(r)
                A("s_add_u32 m0, m0, 4096")
                A(f"s_waitcnt vmcnt({4*dx + sum(1 for j in range(i - dx + 1, i + 1) if j + Lc < dmax)})")
            A("L_dend:")
            stamp(6)
            A("s_waitcnt vmcnt(0)")
            A(f"v_mov_b32 v{vP}, 53")
            A(f"ds_max_i32 v{vPa}, v{vP}")
            stamp(7)
            dump_stamps()
            A("s_endpgm")
            return
        tloop(52, vo, "s65", 32768, 8, RB, free=FC, dd=d3x, grow=d3x - dx)
        stamp(5)
        checkpoint("D")
        if sp:
            Lsk = A.lab("L_skd")
            A("s_cmp_ge_u32 s2, 224")
            A(f"s_cbranch_scc1 {Lsk}")
        tloop(56, vo, "s66", 32768, 8 if sp else 7, RC, dd=d3x)
        if sp:
            A(f"{Lsk}:")
        stamp(6)
        if wb == 2:
            wbl2()
        for k in range((max(dds) if ad else sst["dd"] if sched else d3x) - 1, -1, -1):
            A(f"s_waitcnt vmcnt({4*k})")
            if lst:
                lstamp()
            if ad or sched:
                A(f"v_mov_b32 v{vP}, {53-k}")
                A(f"ds_max_i32 v{vPa}, v{vP}")
            elif sp and k == 0:
                A(f"v_mov_b32 v{vP}, 54")
                A(f"ds_max_i32 v{vPa}, v{vP}")
            else:
                publish()
        if ad and stamps:
            A(f"v_writelane_b32 v{VST}, s76, 30")
        stamp(7)
        if wb == 1:
            wbl2()
        if lst:
            A("s_mov_b64 exec, s[94:95]")
            A(f"v_mov_b32 v{VST}, s98")
            A("s_mov_b64 exec, -1")
        if stamps and not lst:
            A("s_getreg_b32 s96, hwreg(HW_REG_HW_ID)")
            A(f"v_writelane_b32 v{VST}, s96, 31")
        dump_stamps()
        A("s_endpgm")


    if win:
        uniq = []
        for w_ in win:
            if w_ not in uniq:
                uniq.append(w_)
        A("s_bfe_u32 s67, s2, 0x20003")
        A(f"s_cmp_eq_u32 s67, {wk}")
        A("s_cselect_b32 s67, 2, 0")
        A(f"s_bfe_u32 s68, s2, 0x1000{hibit}")
        A("s_add_u32 s67, s67, s68")
        for i in range(1, 4):
            if win[i] != win[0]:
                A(f"s_cmp_eq_u32 s67, {i}")
                A(f"s_cbranch_scc1 L_win{uniq.index(win[i])}")
        for i, w_ in enumerate(uniq):
            A(f"L_win{i}:")
            stream(w_[0] // 4, w_[1] // 4)
    else:
        if Dhi:
            A(f"s_bitcmp1_b32 s2, {hibit}")
            A("s_cbranch_scc1 L_hi")
        stream(d, d3)
        if Dhi:
            A("L_hi:")
            stream(Dhi // 4, max(Dhi, D3hi) // 4)

    vN, vQ, vZ, vMK, vONE = 1, 2, 3, 4, 33
    aW, aV0, aV1 = 10, 24, 25
    X, F, ACC = 40, 72, 104
    T = ["s50", "s51", "s52", "s53"]
    SW = "s54"
    WS = "s[36:39]"
    M_N2, M_N4, M_HI8, M_B1 = "s[60:61]", "s[62:63]", "s[64:65]", "s[66:67]"
    SJ = "s68"
    SID = "s71"
    vID = 137
    if pf == 0:
        PFCODE = """s_cmp_gt_u32 s3, 2
        s_cbranch_scc1 L_nopf
        v_lshlrev_b32 v1, 7, v0
        v_add_u32 v1, -8192, v1
        global_load_dword v136, v1, s[40:41]"""
    elif pf == 1:
        PFCODE = f"""s_cmp_gt_u32 s3, 3
        s_cbranch_scc1 L_nopf
        s_sub_u32 s40, s40, L_worker+{8 if stamps else 4}-{NAME}_kernel
        s_subb_u32 s41, s41, 0
        v_lshlrev_b32 v1, 7, v0
        v_add_u32 v1, -8192, v1
        global_load_dword v136, v1, s[40:41]"""
    elif pf == 2:
        PFCODE = "s_nop 0"
    A("L_worker:")
    if dly:
        A("s_memrealtime s[94:95]")
    if stamps:
        A("s_mov_b32 m0, 32")
    A(f"""
    s_getpc_b64 s[40:41]
    {PFCODE}
    L_nopf:
    v_and_b32 v0, 63, v0
    v_mov_b32 v4, 0
    v_mov_b32 v5, 0
    v_mov_b32 v6, 0
    v_mov_b32 v7, 0
    v_lshlrev_b32 v2, 4, v0
    ds_write_b128 v2, v[4:7]
    ds_write_b128 v2, v[4:7] offset:1024
    s_lshl_b32 s55, {RB1}, 9
    v_lshrrev_b32 v{vQ}, 4, v0
    v_and_b32 v9, 1, v0
    v_lshlrev_b32 v9, 11, v9
    v_lshl_add_u32 v9, v{vQ}, 4, v9
    s_mov_b32 s34, 4096
    s_mov_b32 s62, 0x000f000f
    s_mov_b32 s63, 0x000f000f
    s_waitcnt lgkmcnt(0)
    s_load_dwordx2 s[48:49], s[28:29], {EPOCH}
    """)
    if xl:
        A(f"s_add_u32 s55, s55, {XS}")
        A("v_add_u32 v34, s55, v9")
        if xl == 2:
            A(f"""
            s_mov_b64 s[32:33], s[4:5]
            s_cmp_gt_u32 s3, 4
            s_cbranch_scc1 L_nox1
            s_lshl_b32 s55, s3, 10
            s_add_u32 m0, s55, {XS - 1024}
            s_sub_u32 s55, s55, 1024
            v_lshlrev_b32 v5, 4, v0
            buffer_load_dwordx4 v5, s[32:35], s55 offen lds
            L_nox1:
            """)
            if stamps:
                A("s_mov_b32 m0, 32")
        A.mute = True
    A(f"""
    s_mov_b64 s[32:33], s[4:5]
    s_cmp_gt_u32 s3, 4
    s_cbranch_scc1 L_nox
    s_mov_b64 exec, s[62:63]
    """)
    for s in range(8):
        A(f"buffer_load_dwordx4 v[{X+4*s}:{X+4*s+3}], v9, s[32:35], s55 offen offset:{64*s}")
    if tl:
        A("s_branch L_nox2")
        A("L_nox:")
        A(f"s_cmp_lg_u32 s3, {tlw}")
        A("s_cbranch_scc1 L_nox2")
        A(f"""
        s_and_b32 s55, s2, 7
        s_lshr_b32 s56, s2, 3
        s_lshl_b32 s57, s55, 23
        s_lshl_b32 s58, s56, 15
        s_add_u32 s57, s57, s58
        s_add_u32 s57, s57, {28672*256}
        v_mov_b32 v10, s57
        s_mov_b64 exec, 1
        """)
        if 'k' in tl:
            A("global_load_dword v138, v10, s[6:7]")
            A("global_load_dword v139, v10, s[8:9]")
        A(f"""
        s_mov_b64 exec, -1
        s_lshl_b32 s57, s55, 5
        s_add_u32 s57, s57, s56
        s_mul_i32 s57, s57, 7
        v_add_u32 v10, s57, v0
        v_lshrrev_b32 v11, 5, v10
        v_lshlrev_b32 v11, 7, v11
        v_and_b32 v10, 31, v10
        v_mul_u32_u24 v10, {32*7168}, v10
        v_add_u32 v10, v10, v11
        s_mov_b64 exec, {0x7f if 'G' in tl else 0x41}
        """)
        if 'g' in tl.lower():
            A("global_load_dword v138, v10, s[16:17]")
            A("global_load_dword v139, v10, s[18:19]")
        A(f"""
        s_mov_b64 exec, -1
        s_xor_b32 s55, s55, {cbx}
        s_lshl_b32 s55, s55, 8
        s_lshl_b32 s57, s56, 18
        s_add_u32 s57, s57, s55
        v_lshlrev_b32 v11, 15, v0
        v_add_u32 v10, s57, v11
        s_mul_i32 s57, s56, {112*2048}
        s_add_u32 s57, s57, s55
        v_add_u32 v11, s57, v11
        s_mov_b64 exec, {0x55 if 'O' in tl else 0x41}
        """)
        if 'o' in tl.lower():
            A("global_load_dword v138, v10, s[12:13]")
            A("global_load_dword v139, v11, s[20:21]")
        A("L_nox2:")
        A("s_mov_b64 exec, -1")
    else:
        A("s_mov_b64 exec, -1")
        A("L_nox:")
    A.mute = False
    A(f"""
    s_barrier
    s_sub_u32 {SW}, s3, 1
    s_and_b32 {SW}, {SW}, 3
    s_mov_b32 {SPROG}, 0
    v_and_b32 v{vN}, 15, v0
    v_mov_b32 v{vZ}, 0
    v_mov_b32 v{vMK}, 0x{0xFFFFFFFF ^ TAGM:x}
    v_mov_b32 v{vONE}, 1
    s_mov_b32 s38, {0x1000000 if xo else WS_END}
    s_mov_b32 s39, 0x20000
    s_add_u32 s36, s28, {wsoff}
    s_addc_u32 s37, s29, 0
    v_bfe_u32 v5, v0, 2, 2
    v_lshl_add_u32 v5, v{vQ}, 3, v5
    v_and_b32 v6, 3, v0
    v_lshlrev_b32 v6, 3, v6
    v_bfe_u32 v7, v0, 3, 2
    v_xor_b32 v7, {SW}, v7
    v_lshl_add_u32 v7, v7, 5, v6
    v_lshl_add_u32 v{aW}, v5, 7, v7
    s_lshl_b32 s55, {SW}, 1
    v_bfe_u32 v7, v0, 2, 3
    v_xor_b32 v7, s55, v7
    v_lshl_add_u32 v7, v7, 5, v6
    v_lshl_add_u32 v{aV0}, v5, 8, v7
    s_mov_b32 s60, 0x00030003
    s_mov_b32 s61, 0x00030003
    s_waitcnt lgkmcnt(0)
    s_add_u32 s48, s48, 1
    s_addc_u32 s49, s49, 0
    s_and_b32 s50, s48, {TAGM}
    s_lshr_b32 s55, s48, 12
    s_add_u32 s55, s55, s48
    s_and_b32 s51, s55, {TAGM}
    s_lshr_b64 s[56:57], s[48:49], 24
    s_add_u32 s55, s56, s48
    s_and_b32 s52, s55, {TAGM}
    s_lshr_b32 s55, s49, 4
    s_add_u32 s55, s55, s48
    s_and_b32 s53, s55, {TAGM}
    s_getreg_b32 s55, hwreg(HW_REG_XCC_ID, 0, 4)
    s_lshl4_add_u32 {SID}, s48, s55
    """)
    if half:
        A(f"s_bitcmp1_b32 s2, {half}")
        A(f"s_cselect_b32 s38, s38, 0")
    a3, aBR, aAS, aGS = 140, 153, 154, 155
    aL16, oFP2, vGC = 156, 157, 158

    def common2(reg3, bsrc, part):
        A(f"""
        s_mov_b32 s64, 0xff00ff00
        s_mov_b32 s65, 0xff00ff00
        s_mov_b32 s66, 0xcccccccc
        s_mov_b32 s67, 0xcccccccc
        s_mov_b64 s[44:45], s[24:25]
        s_mov_b32 s46, 4096
        s_mov_b32 s47, 0x20000
        """)
        jidx(SJ, "s55")
        A(f"""
        v_add_u32 v{a3}, {reg3}, v{aV0}
        v_xor_b32 v{a3+1}, 32, v{a3}
        v_and_b32 v5, 1, v0
        v_lshlrev_b32 v6, 8, v5
        v_lshl_add_u32 v6, v{vQ}, 4, v6
        v_add_u32 v{aBR}, {bsrc}, v6
        v_lshlrev_b32 v{aGS}, 3, v5
        """)
        if not sym:
            A(f"""
            s_lshl_b32 s55, {SW}, 10
            s_add_u32 s55, s55, {AS}
            v_lshlrev_b32 v6, 4, v0
            v_add_u32 v{aAS}, s55, v6
            """)
        else:
            A(f"""
            s_lshl_b32 s55, {SW}, 8
            s_add_u32 s55, s55, {AS + 1024 * part}
            v_and_b32 v6, 3, v0
            v_lshlrev_b32 v6, 6, v6
            v_lshl_add_u32 v6, v{vQ}, 4, v6
            v_add_u32 v{aAS}, s55, v6
            v_lshlrev_b32 v{aL16}, 4, v0
            s_and_b32 s55, {"s2" if b3 >= 2 else SJ}, 7
            s_lshl_b32 s55, s55, 15
            s_lshr_b32 s56, {"s2" if b3 >= 2 else SJ}, 3
            s_lshl_b32 s56, s56, 7
            s_add_u32 s55, s55, s56
            s_add_u32 s55, s55, {FP}
            v_lshrrev_b32 v5, 3, v0
            v_lshlrev_b32 v5, 12, v5
            v_and_b32 v6, 7, v0
            v_lshl_add_u32 v5, v6, 4, v5
            v_add_u32 v{oFP2}, s55, v5
            """)

    def id_load():
        A(f"""
        s_and_b32 s55, s2, 7
        s_lshl_b32 s55, s55, 7
        s_add_u32 s55, s55, {IDT}
        v_and_b32 v5, 31, v0
        v_lshlrev_b32 v5, 2, v5
        buffer_load_dword v{vID}, v5, {WS}, s55 offen
        """)

    def id_check(dst):
        A(f"v_cmp_ne_u32 {dst}, {SID}, v{vID}")

    def pub(stores, key, flag):
        def emit(pol):
            for ex, t in stores:
                if ex is not None:
                    A(f"s_mov_b64 exec, {ex}")
                A(t + pol)
        if key not in loc:
            emit(" sc1")
        else:
            a, b = A.lab("L_pw"), A.lab("L_pd")
            A(f"s_cmp_lg_u64 {flag}, 0")
            A(f"s_cbranch_scc1 {a}")
            emit(" " + lpol[key] if key in lpol else "")
            stamp(20)
            A(f"s_branch {b}")
            A(f"{a}:")
            emit(" sc1")
            stamp(21)
            A(f"{b}:")
        A("s_mov_b64 exec, -1")

    def hint_store(soff):
        A("s_mov_b64 exec, 1")
        A(f"v_mov_b32 v5, s48")
        A(f"buffer_store_byte v5, off, {WS}, {soff}")
        A("s_mov_b64 exec, -1")

    def hint_wait(soff, nd, flag, thr):
        sp, ok = A.lab("L_hsp"), A.lab("L_hok")
        A("s_and_b32 s56, s48, 0xff")
        A("s_mul_i32 s56, s56, 0x01010101")
        A("s_mov_b32 s57, s56")
        A(f"{sp}:")
        A(f"s_load_dwordx{nd} s[80:{80+nd-1}], s[28:29], {soff} glc")
        A(f"ds_read_b32 v5, v{vZ} offset:{PROG}")
        A("s_waitcnt lgkmcnt(0)")
        A(f"v_readfirstlane_b32 {SPROG}, v5")
        for i in range(0, nd, 2):
            A(f"s_xor_b64 s[{80+i}:{81+i}], s[{80+i}:{81+i}], s[56:57]")
        k = nd
        while k > 2:
            k //= 2
            for i in range(0, k, 2):
                A(f"s_or_b64 s[{80+i}:{81+i}], s[{80+i}:{81+i}], s[{80+k+i}:{81+k+i}]")
        A(f"s_cbranch_scc0 {ok}")
        budget()
        A(f"s_cmp_lt_i32 {SPROG}, {thr}")
        A(f"s_cbranch_scc1 {sp}")
        A(f"{ok}:")

    def wait_prog(thr):
        if isinstance(thr, str) and thr[0] == "i":
            return wait_cnt(4, int(thr[1:]), [])
        ok, sp = A.lab("L_pok"), A.lab("L_psp")
        if isinstance(thr, list):
            A("s_bfe_u32 s59, s2, 0x20003")
            A("s_cmp_eq_u32 s59, 1")
            A(f"s_cselect_b32 s59, {thr[1]}, {thr[0]}")
            thr = "s59"
        if isinstance(thr, tuple):
            A(f"s_bitcmp1_b32 s2, {hibit}")
            A(f"s_cselect_b32 s59, {thr[1]}, {thr[0]}")
            thr = "s59"
        A(f"s_cmp_ge_i32 {SPROG}, {thr}")
        A(f"s_cbranch_scc1 {ok}")
        A(f"{sp}:")
        A(f"ds_read_b32 v5, v{vZ} offset:{PROG}")
        A("s_waitcnt lgkmcnt(0)")
        A(f"v_readfirstlane_b32 {SPROG}, v5")
        budget()
        A(f"s_cmp_lt_i32 {SPROG}, {thr}")
        A(f"s_cbranch_scc1 {sp}")
        A(f"{ok}:")

    def arrive(cnt):
        A("s_mov_b64 exec, 1")
        A(f"ds_add_u32 v{vZ}, v{vONE} offset:{cnt}")
        A("s_mov_b64 exec, -1")

    def wait_cnt(cnt, n, reads):
        sp = A.lab("L_csp")
        A(f"{sp}:")
        A(f"ds_read_b32 v5, v{vZ} offset:{cnt}")
        for r in reads:
            A(r)
        A("s_waitcnt lgkmcnt(0)")
        A("v_readfirstlane_b32 s55, v5")
        budget()
        A(f"s_cmp_lt_u32 s55, {n}")
        A(f"s_cbranch_scc1 {sp}")

    def tag4(dst, src):
        for j in range(4):
            A(f"v_and_or_b32 v{dst+j}, v{src+j}, v{vMK}, {T[j]}")

    MASKS = [80, 82, 84, 86, 88, 90, 92, 94]

    def gather(loads, first, hop="", ex=None, rawoff=0, flag=None):
        if nog is True or (nog and hop in nog):
            A("s_mov_b64 exec, -1")
            return
        g, dn = A.lab("L_g"), A.lab("L_gd")
        n = len(loads)

        def ld(dst, vo_, off, pol):
            o = f" offset:{off}" if off else ""
            A(f"buffer_load_dwordx4 v[{dst}:{dst+3}], v{vo_}, {WS}, 0 offen{o} {pol}")

        K = pipe.get(hop, 0)
        raw = (lambda dst: dst + rawoff) if K else (lambda dst: dst)
        ld0 = ld
        ld = lambda dst, vo_, off, pol: ld0(raw(dst), vo_, off, pol)

        def chk(i, dst):
            m = MASKS[i]
            for j in range(4):
                A(f"v_xor_b32 v{dst+j}, {T[j]}, v{raw(dst)+j}")
            A(f"v_or3_b32 v5, v{dst}, v{dst+1}, v{dst+2}")
            A(f"v_or_b32 v5, v5, v{dst+3}")
            A(f"v_and_b32 v5, {TAGM}, v5")
            A(f"v_cmp_ne_u32 s[{m}:{m+1}], 0, v5")

        def anym():
            if n == 1:
                A(f"s_mov_b64 vcc, s[{MASKS[0]}:{MASKS[0]+1}]")
            for i in range(1, n):
                src = f"s[{MASKS[0]}:{MASKS[0]+1}]" if i == 1 else "vcc"
                A(f"s_or_b64 vcc, {src}, s[{MASKS[i]}:{MASKS[i]+1}]")

        stamp({"q": 10, "o": 12, "g": 10, "f": 12}[hop])
        for i, (dst, vo_, off) in enumerate(loads):
            if ex and (i == 0 or ex[i] != ex[i-1]):
                A(f"s_mov_b64 exec, {ex[i]}")
            ld(dst, vo_, off, first)
        for i, (dst, vo_, off) in enumerate(loads):
            if ex and ex[i] != ex[i-1]:
                A(f"s_mov_b64 exec, {ex[i]}")
            A(f"s_waitcnt vmcnt({n-1-i})")
            chk(i, dst)
        anym()
        dstamp()
        stamp({"q": 11, "o": 13, "g": 11, "f": 13}[hop])
        if hop in once:
            A("s_mov_b64 exec, -1")
            return
        A(f"s_cbranch_vccz {dn}")
        A(f"{g}:")
        if hop in "og" and rinv:
            A("buffer_inv sc0")
        def reissue(pol):
            for i, (dst, vo_, off) in enumerate(loads):
                A(f"s_mov_b64 exec, s[{MASKS[i]}:{MASKS[i]+1}]")
                ld(dst, vo_, off, pol)
        if flag is None or hop not in lret:
            reissue("sc1")
        else:
            a_, b_ = A.lab("L_ra"), A.lab("L_rb")
            A(f"s_cmp_lg_u64 {flag}, 0")
            A(f"s_cbranch_scc1 {a_}")
            reissue("nt")
            A(f"s_branch {b_}")
            A(f"{a_}:")
            reissue("sc1")
            A(f"{b_}:")
        if K:
            few = A.lab("L_few")
            A(f"s_bcnt1_i32_b64 s55, s[{MASKS[0]}:{MASKS[0]+1}]")
            for i in range(1, n):
                A(f"s_bcnt1_i32_b64 s56, s[{MASKS[i]}:{MASKS[i]+1}]")
                A("s_add_u32 s55, s55, s56")
            A(f"s_cmp_le_u32 s55, {pthr}")
            A(f"s_cbranch_scc1 {few}")
            A("s_waitcnt vmcnt(0)")
            A(f"{few}:")
            A(f"s_waitcnt vmcnt({n*(K-1)})")
        for i, (dst, vo_, off) in enumerate(loads):
            A(f"s_mov_b64 exec, s[{MASKS[i]}:{MASKS[i]+1}]")
            if not K:
                A(f"s_waitcnt vmcnt({n-1-i})")
            chk(i, dst)
        anym()
        if not K:
            dstamp()
        budget(16)
        A(f"s_cbranch_vccnz {g}")
        A(f"{dn}:")
        A("s_mov_b64 exec, -1")

    def gatherP(loads, raws, first, retry, hop, ex=None, chkf=None, flag=None):
        K, M = pg[hop]
        n = len(loads)
        top, dn = A.lab("L_q"), A.lab("L_qd")

        def issue(pol):
            for i, (dst, vo_, off) in enumerate(loads):
                A(f"s_mov_b64 exec, s[{MASKS[i]}:{MASKS[i]+1}]")
                o = f" offset:{off}" if off else ""
                A(f"buffer_load_dwordx4 v[{raws[i]}:{raws[i]+3}], v{vo_}, {WS}, 0 offen{o} {pol}")

        def chk():
            for i, (dst, vo_, off) in enumerate(loads):
                m = MASKS[i]
                A(f"s_mov_b64 exec, s[{m}:{m+1}]")
                if chkf:
                    chkf(raws[i])
                else:
                    for j in range(4):
                        A(f"v_xor_b32 v{dst+j}, {T[j]}, v{raws[i]+j}")
                    A(f"v_or3_b32 v5, v{dst}, v{dst+1}, v{dst+2}")
                    A(f"v_or_b32 v5, v5, v{dst+3}")
                    A(f"v_and_b32 v5, {TAGM}, v5")
                A(f"v_cmp_ne_u32 s[{m}:{m+1}], 0, v5")
            if n == 1:
                A(f"s_cmp_eq_u64 s[{MASKS[0]}:{MASKS[0]+1}], 0")
                A(f"s_cbranch_scc1 {dn}")
            else:
                for i in range(1, n):
                    src = f"s[{MASKS[0]}:{MASKS[0]+1}]" if i == 1 else "vcc"
                    A(f"s_or_b64 vcc, {src}, s[{MASKS[i]}:{MASKS[i]+1}]")
                A(f"s_cbranch_scc0 {dn}")

        stamp({"o": 12, "g": 10, "p": 12}[hop])
        for i in range(n):
            A(f"s_mov_b64 s[{MASKS[i]}:{MASKS[i]+1}], {ex[i] if ex else -1}")
            A(f"v_not_b32 v{raws[i]}, {T[0]}")
        issue(first)
        lp = A.lab("L_ql")
        A(f"{top}:")
        A(f"s_mov_b32 s55, {M}")
        A(f"{lp}:")
        chk()
        A("s_sub_u32 s55, s55, 1")
        A(f"s_cbranch_scc0 {lp}")
        A(f"s_waitcnt vmcnt({n*(K-1)})")
        chk()
        budget(16)
        dstamp()
        if flag is None:
            issue(retry)
            A(f"s_branch {top}")
        else:
            rm = A.lab("L_qr")
            A(f"s_cmp_lg_u64 {flag}, 0")
            A(f"s_cbranch_scc1 {rm}")
            issue(retry)
            A(f"s_branch {top}")
            A(f"{rm}:")
            issue("sc1")
            A(f"s_branch {top}")
        A(f"{dn}:")
        A("s_mov_b64 exec, -1")

    def mfma(dst, a, b, c):
        cs = "0" if c is None else f"v[{c}:{c+3}]"
        A(f"v_mfma_f32_16x16x32_bf16 v[{dst}:{dst+3}], v[{a}:{a+3}], v[{b}:{b+3}], {cs}")

    def gemv64(areg, acc, gbase, splits, first_vm=False, xr=None, cont=False):
        s0 = 0
        for k, s1 in enumerate(splits):
            if k == 0 and first_vm and xl == 2:
                A("s_waitcnt vmcnt(0)")
                arrive(0x124)
                wait_cnt(0x124, 4, [])
                for s in range(8):
                    A(f"ds_read_b128 v[{X+4*s}:{X+4*s+3}], v34 offset:{64*s}")
            wait_prog(gbase + s1)
            if k == 0 and first_vm and xl == 1:
                for s in range(8):
                    A(f"ds_read_b128 v[{X+4*s}:{X+4*s+3}], v34 offset:{64*s}")
            for s in range(s0, s1):
                A(f"ds_read_b64_tr_b16 v[{F+4*s}:{F+4*s+1}], v{areg} offset:{4096*s}")
                A(f"ds_read_b64_tr_b16 v[{F+4*s+2}:{F+4*s+3}], v{areg} offset:{4096*s+512}")
            if k == 0 and first_vm and not xl:
                A("s_waitcnt vmcnt(0)")
            for s in range(s0, s1):
                A(f"s_waitcnt lgkmcnt({2*(s1-1-s)})")
                mfma(acc, F + 4 * s, xr[s] if xr else X + 4 * s, None if s == 0 and not cont else acc)
            s0 = s1

    def bf16_round_pair(pk, lo, hi, a, b):
        A(f"v_cvt_pk_bf16_f32 v{pk}, v{a}, v{b}")
        A(f"v_lshlrev_b32 v{lo}, 16, v{pk}")
        A(f"v_and_b32 v{hi}, 0xffff0000, v{pk}")

    DPPM = "row_mask:0xf bank_mask:0xf"
    BT = X

    def bt_reads():
        return [f"ds_read_b128 v[{BT+4*s}:{BT+4*s+3}], v{aBR} offset:{64*s}" for s in range(4)]

    def rd3(ss):
        for s in ss:
            for t in range(2):
                r = F + 16 * t + 4 * s
                A(f"ds_read_b64_tr_b16 v[{r}:{r+1}], v{a3+t} offset:{8192*s}")
                A(f"ds_read_b64_tr_b16 v[{r+2}:{r+3}], v{a3+t} offset:{8192*s+1024}")

    def mm3(ss):
        for s in ss:
            for t in range(2):
                mfma(ACC + 4 * t, F + 16 * t + 4 * s, BT + 4 * s, None if s == 0 else ACC + 4 * t)

    def sel3():
        for j in range(4):
            A(f"v_cndmask_b32 v{ACC+j}, v{ACC+j}, v{ACC+4+j}, {M_B1}")

    def red4(r):
        A(f"""
        v_permlane32_swap_b32 v{r}, v{r+2}
        v_permlane32_swap_b32 v{r+1}, v{r+3}
        v_add_f32 v{r}, v{r}, v{r+2}
        v_add_f32 v{r+1}, v{r+1}, v{r+3}
        v_permlane16_swap_b32 v{r}, v{r+1}
        v_add_f32 v{r}, v{r}, v{r+1}
        """)

    T16 = "s77"

    def pxg(voff, alds, ldsoff, ex, gate, cnt, hop):
        R = ACC + 4
        l0, l1 = A.lab("L_px0"), A.lab("L_px1")
        A("s_mov_b32 s58, 0x07060302")
        wait_prog(gate)
        stamp(12 if hop == "p" else 14)
        if ex:
            A(f"s_mov_b32 exec_hi, {ex}")
        if not (nog is True or (nog and hop in nog)):
            A(f"buffer_load_dwordx4 v[{R}:{R+3}], v{voff}, {WS}, 0 offen {ppol}")
            A(f"s_branch {l1}")
            A(f"{l0}:")
            budget(16)
            A("s_mov_b64 exec, vcc")
            A(f"buffer_load_dwordx4 v[{R}:{R+3}], v{voff}, {WS}, 0 offen sc1")
            A(f"{l1}:")
            A("s_waitcnt vmcnt(0)")
            A(f"v_xor_b32 v6, v{R}, v{R+1}")
            A(f"v_xor_b32 v7, v{R+2}, v{R+3}")
            A(f"v_xor_b32 v8, v{R}, v{R+2}")
            A(f"v_or3_b32 v6, v6, v7, v8")
            A(f"v_xor_b32 v7, {T16}, v{R}")
            A(f"v_or_b32 v6, v6, v7")
            A("v_and_b32 v6, 0xffff, v6")
            A(f"v_cmp_ne_u32 vcc, 0, v6")
            dstamp()
            if hop not in once:
                A(f"s_cbranch_vccnz {l0}")
            A("s_mov_b64 exec, -1")
            if ex:
                A(f"s_mov_b32 exec_hi, {ex}")
        A(f"v_perm_b32 v6, v{R+1}, v{R}, s58")
        A(f"v_perm_b32 v7, v{R+3}, v{R+2}, s58")
        A(f"ds_write_b64 v{alds}, v[6:7] offset:{ldsoff}")
        stamp(6)
        arrive(cnt)

    A("s_cmp_gt_u32 s3, 4")
    A("s_cbranch_scc1 L_F")

    oQP, oQG, aQsW, aQsR, aK = 11, 12, 13, 14, 15
    aPsW, aMsW, aPlo, aPhi, aMsR = 19, 20, 21, 22, 23
    oOP, oML, oOPG, oMLG, aOsW, oPX = 26, 27, 28, 29, 30, 31
    T16, FLG = "s77", "s[98:99]"
    SBG, SSPL = "s73", "s75"
    SC = "s76"
    A(f"""
    v_add_u32 v{aW}, {RA}, v{aW}
    s_lshr_b32 s55, {CB1}, 2
    s_lshl_b32 s55, s55, 12
    s_lshl_b32 s56, {RB1}, 10
    s_add_u32 s55, s55, s56
    s_and_b32 s56, {CB1}, 3
    s_lshl_b32 s56, s56, 8
    s_add_u32 s55, s55, s56
    s_lshl_b32 s56, {SW}, 6
    s_add_u32 s55, s55, s56
    v_and_b32 v5, 1, v0
    v_lshlrev_b32 v5, 16, v5
    v_lshl_add_u32 v5, v{vQ}, 4, v5
    v_add_u32 v{oQP}, s55, v5
    """)
    MQ = M_N2
    if "q" in cst:
        A(f"""
        s_lshl_b32 s55, s2, 9
        s_lshl_b32 s56, {SW}, 7
        s_add_u32 s55, s55, s56
        v_lshlrev_b32 v5, 4, v0
        v_add_u32 v{oQP}, s55, v5
        """)
        MQ = "0xff"
    stamp(1)
    gemv64(aW, ACC, 0, spl1, first_vm=True)
    arrive(FA)
    tag4(ACC + 4, ACC)
    A(f"s_mov_b64 exec, {MQ}")
    if qfrac:
        A(f"s_lshr_b32 s55, s2, 3")
        A(f"s_and_b32 s55, s55, {qfrac-1}")
        A(f"s_cselect_b64 exec, 0, exec")
    A(f"buffer_store_dwordx4 v[{ACC+4}:{ACC+7}], v{oQP}, {WS}, 0 offen sc1")
    A("s_mov_b64 exec, -1")
    stamp(2)
    common2(RB, OS, 0)
    bg(SBG, "s55")
    A(f"""
    s_lshr_b32 {SSPL}, s2, 3
    s_mov_b32 {SC}, {f32(LOG2E)}
    """)
    A(f"""
    s_lshl_b32 s55, {SW}, 13
    s_add_u32 s55, s55, {RB}
    v_xor_b32 v5, v{vQ}, v{vN}
    v_lshlrev_b32 v5, 4, v5
    v_lshl_add_u32 v5, v{vN}, 8, v5
    v_add_u32 v{aK}, s55, v5
    v_xor_b32 v{aK+1}, 64, v{aK}
    v_xor_b32 v{aK+2}, 128, v{aK}
    v_xor_b32 v{aK+3}, 192, v{aK}
    v_add_u32 v{aV0}, {RC}, v{aV0}
    v_xor_b32 v{aV1}, 32, v{aV0}
    """)
    A(f"""
    s_lshl_b32 s55, {SBG}, 2
    s_add_u32 s55, s55, {SW}
    s_lshl_b32 s55, s55, 12
    v_lshlrev_b32 v5, 4, v0
    v_add_u32 v{oQG}, s55, v5
    """)
    A(f"""
    s_mul_i32 s55, {SW}, {2*PITCH}
    s_add_u32 s55, s55, {QS}
    v_lshrrev_b32 v5, 5, v0
    v_mul_u32_u24 v5, {PITCH}, v5
    v_and_b32 v6, 31, v0
    v_lshl_add_u32 v5, v6, 3, v5
    v_add_u32 v{aQsW}, s55, v5
    v_and_b32 v6, 7, v0
    v_mul_u32_u24 v7, {PITCH}, v6
    v_lshl_add_u32 v8, v{vQ}, 4, v7
    v_add_u32 v{aQsR}, {QS}, v8
    v_add_u32 v8, {PS}, v8
    v_mov_b32 v9, {ZERO}
    v_cndmask_b32 v{aPlo}, v8, v9, {M_HI8}
    v_cndmask_b32 v{aPhi}, v9, v8, {M_HI8}
    v_lshlrev_b32 v9, 4, v6
    v_add_u32 v{aMsR}, {MS}, v9
    s_lshl_b32 s55, {SW}, 2
    v_add_u32 v{aMsW}, s55, v{aMsR}
    s_lshl_b32 s55, {SW}, 6
    s_add_u32 s55, s55, {PS}
    v_and_b32 v9, 8, v0
    v_lshlrev_b32 v9, 2, v9
    v_lshl_add_u32 v9, v{vQ}, 3, v9
    v_add3_u32 v{aPsW}, v7, v9, s55
    """)
    A(f"""
    s_lshl_b32 s55, {SBG}, 17
    s_lshl_b32 s56, {SW}, 12
    s_add_u32 s55, s55, s56
    s_lshl_b32 s56, {SSPL}, 7
    s_add_u32 s55, s55, s56
    s_add_u32 s55, s55, {OP}
    v_lshlrev_b32 v9, 1, v9
    v_lshl_add_u32 v9, v6, 14, v9
    v_add_u32 v{oOP}, s55, v9
    s_lshl_b32 s55, {SBG}, 12
    s_lshl_b32 s56, {SSPL}, 4
    s_add_u32 s55, s55, s56
    s_add_u32 s55, s55, {ML}
    v_lshlrev_b32 v9, 9, v6
    v_add_u32 v{oML}, s55, v9
    """)
    A(f"""
    s_lshl_b32 s55, {SJ}, 12
    s_and_b32 s58, {SW}, 1
    s_lshl_b32 s59, s58, 6
    s_add_u32 s55, s55, s59
    s_add_u32 s55, s55, {OP}
    v_lshrrev_b32 v5, 2, v0
    v_and_b32 v6, 3, v0
    v_lshlrev_b32 v7, 4, v6
    v_lshl_add_u32 v8, v5, 7, v7
    v_add_u32 v{oOPG}, s55, v8
    s_lshr_b32 s57, {SJ}, 2
    s_lshl_b32 s57, s57, 9
    s_add_u32 s57, s57, {ML}
    v_and_b32 v8, 1, v0
    v_lshlrev_b32 v8, 8, v8
    v_lshl_add_u32 v8, v5, 4, v8
    v_add_u32 v{oMLG}, s57, v8
    s_cmp_ge_u32 {SW}, 2
    s_cbranch_scc1 L_a2
    s_bfe_u32 s55, {SJ}, 0x50002
    s_lshl_b32 s55, s55, 10
    s_and_b32 s56, s2, 4
    s_lshl_b32 s56, s56, 7
    s_add_u32 s55, s55, s56
    s_and_b32 s56, {SJ}, 3
    s_lshl_b32 s56, s56, 7
    s_add_u32 s55, s55, s56
    s_add_u32 s55, s55, s59
    s_add_u32 s55, s55, {PX}
    v_lshl_add_u32 v8, v{vQ}, 2, v7
    v_add_u32 v{oPX}, s55, v8
    s_branch L_a3
    L_a2:
    s_lshl_b32 s55, {SSPL}, 10
    s_add_u32 s55, s55, {PX}
    v_lshlrev_b32 v8, 4, v0
    v_add_u32 v{oPX}, s55, v8
    v_lshlrev_b32 v{aOsW}, 3, v0
    L_a3:
    s_and_b32 {T16}, s48, 0xffff
    """)
    oOPG2 = 159
    if "o" in xo:
        A(f"v_add_u32 v{oOPG2}, 2048, v{oOPG}")
        for v_ in (oOP, oOPG, oOPG2):
            xf(v_, OP, 0x400000)
        for v_ in (oML, oMLG):
            xf(v_, ML, 0x800000)
    if "p" in xo:
        xf(oPX, PX, 0x880000)
    if "O" in cst:
        A(f"""
        s_xor_b32 s55, {SJ}, 1
        s_lshl_b32 s55, s55, 12
        s_lshl_b32 s56, {SW}, 10
        s_add_u32 s55, s55, s56
        s_add_u32 s55, s55, {OP}
        v_lshlrev_b32 v5, 4, v0
        v_add_u32 v{oOP}, s55, v5
        """)
    if "P" in cst:
        A(f"""
        s_xor_b32 s55, {SJ}, 1
        s_lshl_b32 s55, s55, 12
        s_lshl_b32 s56, {SW}, 10
        s_add_u32 s55, s55, s56
        s_add_u32 s55, s55, {OP}
        v_lshlrev_b32 v5, 6, v{vN}
        v_lshl_add_u32 v5, v{vQ}, 4, v5
        v_add_u32 v{oOP}, s55, v5
        """)
    if "M" in cst:
        A(f"v_mov_b32 v{oMLG}, v{oOPG}")
    if "o" in pre:
        A(f"buffer_load_dword v138, v{oOP}, {WS}, 0 offen {prepol}")
        A(f"buffer_load_dword v139, v{oML}, {WS}, 0 offen {prepol}")
    if "o" in pre2:
        L_ = A.lab("L_p2")
        A(f"s_cmp_ge_u32 {SW}, 2")
        A(f"s_cbranch_scc1 {L_}")
        A(f"buffer_load_dword v138, v{oOPG}, {WS}, 0 offen {prepol}")
        A(f"buffer_load_dword v138, v{oOPG}, {WS}, 0 offen offset:2048 {prepol}")
        A(f"buffer_load_dword v138, v{oMLG}, {WS}, 0 offen {prepol}")
        A(f"{L_}:")
    ONES = 132
    A(f"""
    v_mov_b32 v{ONES}, 0x3f803f80
    v_mov_b32 v{ONES+1}, 0x3f803f80
    v_mov_b32 v{ONES+2}, 0x3f803f80
    v_mov_b32 v{ONES+3}, 0x3f803f80
    s_lshl_b32 s55, {SW}, 1
    s_lshl_b32 s78, 3, s55
    s_mov_b32 s79, 0
    """)

    if "o" in cst:
        A(f"""
        s_lshl_b32 s55, s2, 12
        s_lshl_b32 s56, {SW}, 10
        s_add_u32 s55, s55, s56
        s_add_u32 s55, s55, {OP}
        v_lshlrev_b32 v5, 4, v0
        v_add_u32 v{oOP}, s55, v5
        s_lshl_b32 s55, s2, 7
        s_add_u32 s55, s55, {ML}
        v_add_u32 v{oML}, s55, v5
        s_cmp_eq_u32 {SW}, 0
        s_cselect_b32 s78, 0xff, 0
        """)

    def kfrags():
        if rot:
            wait_prog(16)
        else:
            A(f"s_lshl_b32 s77, {SW}, 1")
            A("s_add_u32 s77, s77, 10")
            wait_prog("s77")
        for t in range(2):
            for s in range(4):
                r = F + 16 * t + 4 * s
                A(f"ds_read_b128 v[{r}:{r+3}], v{aK+s} offset:{4096*t}")
        arrive(FB)

    G = X
    kfirst = (min(gq) if isinstance(gq, tuple) else gq) >= 16
    if kfirst:
        kfrags()
    if gq:
        wait_prog(gq)
    id_load()
    gather([(G + 4 * r, oQG, 1024 * (r % 4)) for r in range(qn)], fpol, hop="q")
    A("s_waitcnt vmcnt(0)")
    id_check(FLG)
    A(f"""
    v_pk_add_f32 v[{G}:{G+1}], v[{G}:{G+1}], v[{G+4}:{G+5}]
    v_pk_add_f32 v[{G+2}:{G+3}], v[{G+2}:{G+3}], v[{G+6}:{G+7}]
    v_pk_add_f32 v[{G+8}:{G+9}], v[{G+8}:{G+9}], v[{G+12}:{G+13}]
    v_pk_add_f32 v[{G+10}:{G+11}], v[{G+10}:{G+11}], v[{G+14}:{G+15}]
    v_pk_add_f32 v[{G}:{G+1}], v[{G}:{G+1}], v[{G+8}:{G+9}]
    v_pk_add_f32 v[{G+2}:{G+3}], v[{G+2}:{G+3}], v[{G+10}:{G+11}]
    v_cvt_pk_bf16_f32 v6, v{G}, v{G+1}
    v_cvt_pk_bf16_f32 v7, v{G+2}, v{G+3}
    ds_write_b64 v{aQsW}, v[6:7]
    """)
    arrive(CQ)
    stamp(3)
    if not kfirst:
        kfrags()
    QF = X + 16
    wait_cnt(CQ, 4, [f"ds_read_b128 v[{QF+4*s}:{QF+4*s+3}], v{aQsR} offset:{64*s}" for s in range(4)])
    for s in range(4):
        for t in range(2):
            mfma(ACC + 4 * t, F + 16 * t + 4 * s, QF + 4 * s, None if s == 0 else ACC + 4 * t)
    S = X
    for j in range(4):
        A(f"v_cndmask_b32 v{S+j}, v{ACC+j}, v{ACC+4+j}, {M_HI8}")
    bf16_round_pair(6, S, S + 1, S, S + 1)
    bf16_round_pair(7, S + 2, S + 3, S + 2, S + 3)
    for j in range(4):
        A(f"v_mul_f32 v{S+j}, {f32(SCALE)}, v{S+j}")
    bf16_round_pair(6, S, S + 1, S, S + 1)
    bf16_round_pair(7, S + 2, S + 3, S + 2, S + 3)
    A(f"""
    v_max3_f32 v6, v{S}, v{S+1}, v{S+2}
    v_max_f32 v6, v6, v{S+3}
    v_max_f32_dpp v6, v6, v6 row_ror:8 {DPPM}
    v_mov_b32 v7, v6
    v_permlane16_swap_b32 v6, v7
    v_max_f32 v6, v6, v7
    v_mov_b32 v7, v6
    v_permlane32_swap_b32 v6, v7
    v_max_f32 v6, v6, v7
    v_mul_f32 v7, {SC}, v6
    """)
    for j in range(4):
        A(f"v_fma_f32 v{S+j}, v{S+j}, {SC}, -v7")
    for j in range(4):
        A(f"v_exp_f32 v{S+j}, v{S+j}")
    A(f"""
    v_cvt_pk_bf16_f32 v8, v{S}, v{S+1}
    v_cvt_pk_bf16_f32 v9, v{S+2}, v{S+3}
    ds_write_b64 v{aPsW}, v[8:9]
    s_mov_b64 exec, 0xff
    ds_write_b32 v{aMsW}, v6
    """)
    arrive(CP)
    stamp(4)
    wait_prog(24)
    for t in range(2):
        for s in range(4):
            r = F + 16 * t + 4 * s
            A(f"ds_read_b64_tr_b16 v[{r}:{r+1}], v{aV0+t} offset:{8192*s}")
            A(f"ds_read_b64_tr_b16 v[{r+2}:{r+3}], v{aV0+t} offset:{8192*s+1024}")
    arrive(FC)
    PL, PH, MSV = X, X + 16, 36
    rd = [f"ds_read_b128 v[{MSV}:{MSV+3}], v{aMsR}"]
    for s in range(4):
        rd.append(f"ds_read_b128 v[{PL+4*s}:{PL+4*s+3}], v{aPlo} offset:{64*s}")
        rd.append(f"ds_read_b128 v[{PH+4*s}:{PH+4*s+3}], v{aPhi} offset:{64*s}")
    wait_cnt(CP, 4, rd)
    LAs = [120, 124, 128, 144]
    fw = ["v_max3_f32 v6, v36, v37, v38", "v_max_f32 v6, v6, v39"]
    for s in range(4):
        fw.append(f"v_sub_f32 v{MSV+s}, v{MSV+s}, v6")
    for s in range(4):
        fw.append(f"v_mul_f32 v{MSV+s}, {SC}, v{MSV+s}")
    for s in range(4):
        fw.append(f"v_exp_f32 v{MSV+s}, v{MSV+s}")
    fw.append(f"v_or_b32 v148, {T[0]}, v6")
    fw.append(f"v_mov_b32 v150, {T[2]}")
    fw.append(f"v_mov_b32 v151, {T[3]}")
    k = 0
    for t in range(2):
        for s in range(4):
            mfma(ACC + 4 * s, F + 16 * t + 4 * s, (PL, PH)[t] + 4 * s, None if t == 0 else ACC + 4 * s)
            for _ in range(2):
                if k < len(fw):
                    A(fw[k]); k += 1
    while k < len(fw):
        A(fw[k]); k += 1
    O = F
    for s in range(4):
        mfma(LAs[s], ONES, PL + 4 * s, None)
        for j in range(4):
            if s == 0:
                A(f"v_mul_f32 v{O+j}, v{MSV}, v{ACC+j}")
            else:
                A(f"v_fmac_f32 v{O+j}, v{MSV+s}, v{ACC+4*s+j}")
    tag4(O + 4, O)
    A(f"v_mul_f32 v7, v{MSV}, v{LAs[0]}")
    for s in range(1, 4):
        A(f"v_fmac_f32 v7, v{MSV+s}, v{LAs[s]}")
    A(f"v_and_or_b32 v149, v7, v{vMK}, {T[1]}")
    pub([(None, f"buffer_store_dwordx4 v[{O+4}:{O+7}], v{oOP}, {WS}, 0 offen"),
         ("s[78:79]", f"buffer_store_dwordx4 v[148:151], v{oML}, {WS}, 0 offen")], "o", FLG)
    if "o" in hint:
        A(f"""
        s_and_b32 s55, s2, 7
        s_lshl_b32 s55, s55, 7
        s_add_u32 s55, s55, {FLO}
        s_lshl_b32 s56, {SW}, 5
        s_add_u32 s56, s56, s55
        s_add_u32 s56, s56, {SSPL}
        """)
        hint_store("s56")
    stamp(5)
    MR, G0, G1 = ACC, ACC + 4, ACC + 8
    A(f"s_cmp_ge_u32 {SW}, 2")
    A("s_cbranch_scc1 L_px")
    if "o" in hint:
        A(f"s_and_b32 s56, {SJ}, 3")
        A("s_lshl_b32 s56, s56, 5")
        A("s_add_u32 s55, s55, s56")
        wait_prog(go0)
        hint_wait("s55", 8, FLG, go)
    elif go:
        wait_prog(go)
    if "o" in pg:
        gatherP([(MR, oMLG, 0), (G0, oOPG, 0), (G1, oOPG, 2048)], [120, 124, 128], opol, rpol, "o", flag=FLG)
    else:
        gather([(MR, oMLG, 0), (G0, oOPG, 0), (G1, oOPG2, 0) if "o" in xo else (G1, oOPG, 2048)], fpol if opol is None else opol, hop="o", flag=FLG)
    stamp(6)
    A(f"""
    v_max_f32_dpp v6, v{MR}, v{MR} quad_perm:[1,0,3,2] {DPPM}
    v_max_f32_dpp v6, v6, v6 row_ror:4 {DPPM}
    v_max_f32_dpp v6, v6, v6 row_ror:8 {DPPM}
    v_mov_b32 v7, v6
    v_permlane16_swap_b32 v6, v7
    v_max_f32 v6, v6, v7
    v_mov_b32 v7, v6
    v_permlane32_swap_b32 v6, v7
    v_max_f32 v6, v6, v7
    v_sub_f32 v8, v{MR}, v6
    v_mul_f32 v8, {SC}, v8
    v_exp_f32 v8, v8
    v_mul_f32 v6, v8, v{MR+1}
    """)
    lred = [f"v_add_f32_dpp v6, v6, v6 quad_perm:[1,0,3,2] {DPPM}",
            f"v_add_f32_dpp v6, v6, v6 row_ror:4 {DPPM}",
            f"v_add_f32_dpp v6, v6, v6 row_ror:8 {DPPM}",
            "v_mov_b32 v7, v6"]
    for j in range(4):
        A(f"v_mul_f32_dpp v{G0+j}, v8, v{G0+j} quad_perm:[0,0,0,0] {DPPM}")
        if j & 1:
            A(lred[j >> 1])
    for j in range(4):
        A(f"v_fmac_f32_dpp v{G0+j}, v8, v{G1+j} quad_perm:[1,1,1,1] {DPPM}")
        if j & 1:
            A(lred[2 + (j >> 1)])
    A(f"""
    v_permlane32_swap_b32 v{G0}, v{G0+2}
    v_permlane32_swap_b32 v{G0+1}, v{G0+3}
    v_permlane16_swap_b32 v6, v7
    v_add_f32 v{G0}, v{G0}, v{G0+2}
    v_add_f32 v{G0+1}, v{G0+1}, v{G0+3}
    v_add_f32 v6, v6, v7
    v_mov_b32 v7, v6
    v_permlane16_swap_b32 v{G0}, v{G0+1}
    v_permlane32_swap_b32 v6, v7
    v_add_f32 v{G0}, v{G0}, v{G0+1}
    v_add_f32 v6, v6, v7
    v_rcp_f32 v6, v6
    v_add_f32_dpp v{G0}, v{G0}, v{G0} row_ror:4 {DPPM}
    v_add_f32_dpp v{G0}, v{G0}, v{G0} row_ror:8 {DPPM}
    v_mul_f32 v{G0}, v{G0}, v6
    v_cvt_pk_bf16_f32 v7, v{G0}, v{G0}
    v_and_b32 v7, 0xffff0000, v7
    v_or_b32 v7, {T16}, v7
    """)
    if pxe:
        A(f"""
        v_and_b32 v8, 0xffffffc0, v{oPX}
        v_lshl_add_u32 v8, v0, 2, v8
        s_mov_b64 exec, 0xffff
        buffer_store_dword v7, v8, {WS}, 0 offen sc1
        s_mov_b64 exec, -1
        """)
    else:
        A(f"""
        s_mov_b64 exec, {M_N4}
        buffer_store_dword v7, v{oPX}, {WS}, 0 offen sc1
        s_mov_b64 exec, -1
        """)
    stamp(14)
    A("s_branch L_pxd")
    A("L_px:")
    A(f"s_cmp_eq_u32 {SW}, 3")
    A("s_cbranch_scc1 L_pxd")
    pxg(oPX, aOsW, OS, None, gp, CO, "p")
    A("L_pxd:")
    wait_prog(48 if nar else 46)
    rd3(range(4))
    wait_cnt(CO, 3, bt_reads() + [f"ds_read_b32 v9, v{aGS} offset:{GS}"])
    mm3(range(4))
    if sym:
        A("v_mov_b32 v{vGC}, v9".replace("{vGC}", str(vGC)))
        A("s_branch L_comb")
    else:
        sel3()
        for j in range(4):
            A(f"v_mul_f32 v{ACC+j}, v9, v{ACC+j}")
        A(f"ds_write_b128 v{aAS}, v[{ACC}:{ACC+3}]")
        arrive(CA)
        stamp(7)
        dump_stamps()
        A("s_endpgm")

    A("L_F:")
    ADINIT = ""
    if ad:
        ADINIT = f"""s_cmp_lt_u32 s2, 8
        s_cselect_b32 exec_lo, 0xff, 0
        s_lshl_b32 s55, s2, 7
        s_add_u32 s55, s55, {FLO}
        s_lshl_b32 s56, s48, 8
        v_mov_b32 v5, s56
        v_lshlrev_b32 v6, 2, v0
        buffer_store_dword v5, v6, {WS}, s55 offen"""
    common2(RC, HS, 1)
    if "c" in pre:
        WS0 = WS
        if "k" in pre:
            A("s_mov_b64 s[40:41], s[6:7]")
            A(f"s_mov_b32 s42, {64<<20}")
            A("s_mov_b32 s43, 0x20000")
            WS = "s[40:43]"
        A(f"""
        s_lshl_b32 s55, {SJ}, 12
        s_lshl_b32 s56, {SW}, 10
        s_add_u32 s55, s55, s56
        s_add_u32 s55, s55, {OP}
        v_lshlrev_b32 v5, 4, v0
        buffer_load_dwordx4 v[144:147], v5, {WS}, s55 offen {prepol}
        s_mul_i32 s55, {SJ}, 672
        s_and_b32 s56, {SW}, 1
        s_mul_i32 s56, s56, {56*3072}
        s_add_u32 s55, s55, s56
        s_add_u32 s55, s55, {GUP}
        s_lshl_b32 s56, {SJ}, 7
        s_add_u32 s56, s56, {ML}
        s_cmp_lt_u32 {SW}, 2
        s_cselect_b32 s55, s55, s56
        s_cselect_b32 exec_lo, -1, 0xff
        s_cselect_b32 exec_hi, 0x3ff, 0
        buffer_load_dwordx4 v[148:151], v5, {WS}, s55 offen {prepol}
        s_mov_b64 exec, -1
        """)
        WS = WS0
    A(f"""
    s_cmp_lg_u32 {SW}, 0
    s_cbranch_scc1 L_noid
    s_lshl_b32 s55, {SJ}, 2
    s_add_u32 s55, s55, {IDT}
    v_mov_b32 v5, {SID}
    s_mov_b64 exec, 1
    buffer_store_dword v5, off, {WS}, s55
    {ADINIT}
    s_mov_b64 exec, -1
    L_noid:
    """)
    aWg, aWu, oGU, oGG, aHsW, oFP, oFG, oOut = 11, 12, 13, 14, 16, 17, 22, 23
    SG0, SCB0 = "s69", "s70"
    M_GU, M_GG = "s[72:73]", ["s[74:75]", "s[76:77]"]
    XR = [X + 4 * s for s in range(8)] + [120, 124, 128, 132, 144, 148]
    NX = 14 if dg else 7
    for r in XR[:NX]:
        for i in range(4):
            A(f"v_mov_b32 v{r+i}, 0")
    A(f"""
    s_and_b32 s55, {SJ}, {-2 if dg else -1}
    s_mul_i32 s55, s55, 7
    s_lshr_b32 {SCB0}, s55, 5
    s_and_b32 {SG0}, s55, 31
    s_mov_b32 s57, 0x00f000f0
    """ if dg else f"""
    s_mul_i32 s55, {SJ}, 7
    s_lshr_b32 {SCB0}, s55, 5
    s_and_b32 {SG0}, s55, 31
    s_mov_b32 s57, 0x00f000f0
    """)
    def xfrags():
        A(f"""
        s_lshl_b32 s56, {SG0}, 6
        s_add_u32 s56, s56, {XS}
        v_bfe_u32 v5, v0, 2, 1
        v_lshlrev_b32 v5, 11, v5
        v_sub_u32 v5, v9, v5
        v_add_u32 v34, s56, v5
        s_mov_b32 s57, 0x00f000f0
        """)
        if xl == 1:
            assert spl1[0] >= NPEEL and NPEEL == d
            wait_prog(NPEEL)
        else:
            wait_cnt(0x124, 4, [])
        for s in range(NX):
            A(f"""
            s_cmp_ge_u32 {SG0}, {32 - s}
            s_cselect_b32 exec_lo, s57, s62
            s_cselect_b32 exec_hi, s57, s62
            ds_read_b128 v[{XR[s]}:{XR[s]+3}], v34 offset:{64*s}
            """)
        A("s_mov_b64 exec, -1")
    for s in range(0 if xl else NX):
        A(f"""
        s_add_u32 s56, {SG0}, {s}
        s_cmp_ge_u32 s56, 32
        s_cselect_b32 exec_lo, s57, s62
        s_cselect_b32 exec_hi, s57, s62
        s_and_b32 s56, s56, 31
        s_lshl_b32 s56, s56, 6
        buffer_load_dwordx4 v[{XR[s]}:{XR[s]+3}], v9, s[32:35], s56 offen
        """)
    A(f"""
    s_mov_b64 exec, -1
    v_add_u32 v{aWg}, {RD}, v{aW}
    v_add_u32 v{aWu}, {RA}, v{aW}
    """)
    if dg:
        A(f"""
        s_cmp_ge_u32 {SG0}, 19
        s_cselect_b32 s72, 0x00330033, s60
        s_mov_b32 s73, s72
        s_mul_i32 s55, {SCB0}, {16*9363}
        s_lshr_b32 s55, s55, 16
        s_lshr_b32 s56, {SJ}, 1
        s_sub_u32 s55, s56, s55
        s_lshl_b32 s55, s55, 7
        s_lshl2_add_u32 s56, {SCB0}, {SW}
        s_lshl_b32 s56, s56, 10
        s_and_b32 s57, {SJ}, 1
        s_lshl_b32 s57, s57, 9
        s_add_u32 s56, s56, s57
        s_add_u32 s56, s56, {GUP}
        v_mov_b32 v6, s55
        v_mov_b32 v7, 4096
        s_mov_b32 s58, 0xf0f0f0f0
        s_mov_b32 s59, 0xf0f0f0f0
        v_cndmask_b32 v6, v6, v7, s[58:59]
        v_and_b32 v5, 1, v0
        v_lshlrev_b32 v5, 6, v5
        v_lshl_add_u32 v5, v{vQ}, 4, v5
        v_add3_u32 v{oGU}, v5, v6, s56
        """)
    else: A(f"""
    s_cmp_ge_u32 {SG0}, 26
    s_cselect_b32 s72, 0x00ff00ff, s62
    s_mov_b32 s73, s72
    s_mul_i32 s55, {SCB0}, {32*9363}
    s_lshr_b32 s55, s55, 16
    s_sub_u32 s55, {SJ}, s55
    s_lshl_b32 s55, s55, 7
    s_lshl2_add_u32 s56, {SCB0}, {SW}
    s_lshl_b32 s56, s56, 11
    s_add_u32 s56, s56, {GUP}
    v_mov_b32 v6, s55
    v_mov_b32 v7, 8192
    s_mov_b32 s58, 0xf0f0f0f0
    s_mov_b32 s59, 0xf0f0f0f0
    v_cndmask_b32 v6, v6, v7, s[58:59]
    v_and_b32 v5, 1, v0
    v_lshlrev_b32 v5, 6, v5
    v_lshl_add_u32 v5, v{vQ}, 4, v5
    v_bfe_u32 v7, v0, 1, 1
    v_lshlrev_b32 v7, 10, v7
    v_add3_u32 v5, v5, v6, v7
    v_add_u32 v{oGU}, s56, v5
    """)
    oPH = oGG + 1
    SK = "s74"
    oGG2 = 18
    if dg:
        A(f"""
        s_lshr_b32 {SK}, s2, 3
        s_mul_i32 s55, {SK}, 7
        s_add_u32 s55, s55, {SW}
        s_lshl_b32 s56, s55, 10
        s_add_u32 s56, s56, {GUP}
        v_add_u32 v{oGG}, s56, v{aL16}
        v_add_u32 v{oGG2}, 4096, v{oGG}
        s_lshr_b32 s55, s55, 2
        s_mul_i32 s56, s55, 9363
        s_lshr_b32 s56, s56, 16
        s_mul_i32 s56, s56, 7
        s_sub_u32 s55, s55, s56
        s_mov_b32 s56, 0x00ffffff
        s_cmp_eq_u32 s55, 3
        s_cselect_b32 s78, -1, s56
        s_mov_b32 s79, s78
        s_cmp_eq_u32 s55, 2
        s_cselect_b32 s88, -1, s56
        s_cmp_eq_u32 {SW}, 3
        s_cselect_b32 s88, 0, s88
        s_mov_b32 s89, s88
        v_bfe_u32 v6, v0, 2, 1
        v_lshlrev_b32 v6, 8, v6
        v_lshrrev_b32 v7, 5, v0
        v_lshl_add_u32 v6, v7, 7, v6
        v_and_b32 v7, 3, v0
        v_lshl_add_u32 v6, v7, 3, v6
        v_bfe_u32 v7, v0, 3, 2
        v_lshl_add_u32 v6, v7, 1, v6
        s_lshl_b32 s55, {SW}, 5
        v_add_u32 v{aHsW}, s55, v6
        """)
    elif sp:
        A(f"""
        s_lshr_b32 {SK}, s2, 3
        s_and_b32 {T16}, s48, 0xffff
        s_and_b32 s55, s2, 7
        s_mul_i32 s55, s55, 28
        s_and_b32 s56, {SK}, 3
        s_lshl2_add_u32 s55, s56, s55
        s_add_u32 s55, s55, {SW}
        s_lshl_b32 s56, s55, 11
        s_add_u32 s56, s56, {GUP}
        v_add_u32 v{oGG}, s56, v{aL16}
        v_add_u32 v{oGG2}, {16*2048}, v{oGG}
        s_movk_i32 s79, 0xff
        s_bitcmp1_b32 s2, 3
        s_cselect_b32 s79, 0xffff, s79
        s_mov_b32 s78, -1
        s_cmp_ge_u32 s2, 248
        s_cselect_b64 s[88:89], 0, s[78:79]
        s_cselect_b32 s90, 0x00ff00ff, -1
        s_mov_b32 s91, s90
        s_lshl_b32 s56, {SK}, 3
        s_cmp_ge_u32 s2, 224
        s_cselect_b32 s55, s55, s56
        s_cselect_b64 vcc, -1, 0
        s_lshl_b32 s55, s55, 7
        s_add_u32 s55, s55, {PHB}
        v_and_b32 v6, 7, v0
        v_lshlrev_b32 v6, 4, v6
        v_lshl_add_u32 v6, v{vQ}, 2, v6
        v_and_b32 v7, 8, v0
        v_lshl_add_u32 v6, v7, 8, v6
        v_cndmask_b32 v6, v{aL16}, v6, vcc
        v_add_u32 v{oPH}, s55, v6
        v_bfe_u32 v6, v0, 2, 1
        v_lshlrev_b32 v6, 8, v6
        v_lshrrev_b32 v7, 3, v0
        v_lshl_add_u32 v6, v7, 5, v6
        v_and_b32 v7, 3, v0
        v_lshl_add_u32 v{aHsW}, v7, 3, v6
        """)
    else: A(f"""
    s_lshr_b32 {SK}, s2, 3
    s_and_b32 {T16}, s48, 0xffff
    s_and_b32 s55, s2, 7
    s_mul_i32 s55, s55, 28
    s_add_u32 s55, s55, {SK}
    s_lshl_b32 s56, s55, 11
    s_add_u32 s56, s56, {GUP}
    v_add_u32 v{oGG}, s56, v{aL16}
    s_movk_i32 s79, 0xff
    s_bitcmp1_b32 s2, 5
    s_cselect_b32 s79, 0xffff, s79
    s_mov_b32 s78, -1
    s_mul_i32 s56, {SK}, 7
    s_cmp_eq_u32 {SW}, 0
    s_cselect_b32 s55, s55, s56
    s_cselect_b64 vcc, -1, 0
    s_lshl_b32 s55, s55, 7
    s_add_u32 s55, s55, {PHB}
    v_and_b32 v6, 7, v0
    v_lshlrev_b32 v6, 4, v6
    v_lshl_add_u32 v6, v{vQ}, 2, v6
    v_cndmask_b32 v6, v{aL16}, v6, vcc
    v_add_u32 v{oPH}, s55, v6
    v_bfe_u32 v6, v0, 2, 1
    v_lshlrev_b32 v6, 8, v6
    v_lshrrev_b32 v7, 3, v0
    v_lshl_add_u32 v6, v7, 5, v6
    v_and_b32 v7, 3, v0
    v_lshl_add_u32 v{aHsW}, v7, 3, v6
    """)
    A(f"""
    s_mov_b64 s[40:41], s[22:23]
    s_mov_b32 s42, 2048
    s_mov_b32 s43, 0x20000
    s_lshr_b32 s57, {SJ}, 2
    s_lshl_b32 s55, s57, 12
    s_add_u32 s55, s55, {FP}
    v_add_u32 v{oFG}, s55, v{aL16}
    s_xor_b32 s57, s57, {8*cbx}
    s_lshl_b32 s55, s57, 5
    v_bfe_u32 v5, v0, 2, 1
    v_lshlrev_b32 v5, 11, v5
    v_lshl_add_u32 v5, v{vQ}, 1, v5
    v_and_b32 v6, 3, v0
    v_lshl_add_u32 v5, v6, 3, v5
    v_add_u32 v{oOut}, s55, v5
    """)
    if xl:
        xfrags()
    A(f"s_cmp_lt_u32 {SW}, 2")
    A("s_cbranch_scc1 L_nog")
    if xl:
        A(f"""
        s_and_b32 s55, {SW}, 1
        s_lshl_b32 s56, s55, 3
        s_lshl_b32 s55, s55, 11
        s_add_u32 s55, s55, {XS}
        v_lshlrev_b32 v5, 5, v0
        buffer_load_dwordx4 v[{F+8}:{F+11}], v5, s[40:43], 0 offen
        buffer_load_dwordx4 v[{F+12}:{F+15}], v5, s[40:43], 0 offen offset:16
        v_add_u32 v5, s55, v5
        ds_read_b128 v[{F}:{F+3}], v5
        ds_read_b128 v[{F+4}:{F+7}], v5 offset:16
        v_mov_b32 v9, 0
        s_waitcnt vmcnt(0) lgkmcnt(0)
        """)
    else: A(f"""
    s_and_b32 s55, {SW}, 1
    s_lshl_b32 s56, s55, 3
    s_lshl_b32 s55, s55, 11
    v_lshlrev_b32 v5, 5, v0
    buffer_load_dwordx4 v[{F}:{F+3}], v5, s[32:35], s55 offen
    buffer_load_dwordx4 v[{F+4}:{F+7}], v5, s[32:35], s55 offen offset:16
    buffer_load_dwordx4 v[{F+8}:{F+11}], v5, s[40:43], 0 offen
    buffer_load_dwordx4 v[{F+12}:{F+15}], v5, s[40:43], 0 offen offset:16
    v_mov_b32 v9, 0
    s_waitcnt vmcnt(0)
    """)
    for i in range(8):
        A(f"""
        v_lshlrev_b32 v5, 16, v{F+i}
        v_lshlrev_b32 v6, 16, v{F+8+i}
        v_and_b32 v7, 0xffff0000, v{F+i}
        v_and_b32 v8, 0xffff0000, v{F+8+i}
        v_mul_f32 v5, v5, v6
        v_mul_f32 v7, v7, v8
        """)
        bf16_round_pair(6, 5, 7, 5, 7)
        A("v_add_f32 v9, v9, v5")
        A("v_add_f32 v9, v9, v7")
    A(f"""
    v_add_f32_dpp v9, v9, v9 quad_perm:[1,0,3,2] {DPPM}
    v_add_f32_dpp v9, v9, v9 quad_perm:[2,3,0,1] {DPPM}
    v_add_f32_dpp v9, v9, v9 row_ror:4 {DPPM}
    v_add_f32_dpp v9, v9, v9 row_ror:8 {DPPM}
    v_mov_b32 v8, v9
    v_permlane16_swap_b32 v9, v8
    v_add_f32 v9, v9, v8
    v_mov_b32 v8, v9
    v_permlane32_swap_b32 v9, v8
    v_add_f32 v9, v9, v8
    v_cvt_pk_bf16_f32 v9, v9, v9
    v_lshlrev_b32 v9, 16, v9
    v_mul_f32 v9, {f32(-LOG2E)}, v9
    v_exp_f32 v9, v9
    v_add_f32 v9, 1.0, v9
    v_rcp_f32 v9, v9
    v_cvt_pk_bf16_f32 v8, v9, v9
    v_lshlrev_b32 v8, 16, v8
    v_sub_f32 v9, 1.0, v8
    v_cvt_pk_bf16_f32 v9, v9, v9
    v_lshlrev_b32 v9, 16, v9
    v_mov_b32 v5, s56
    ds_write_b64 v5, v[8:9] offset:{GS}
    """)
    if sp:
        A(f"""
        s_cmp_lt_u32 s2, 224
        s_cbranch_scc1 L_nz
        s_cmp_lg_u32 {SW}, 2
        s_cbranch_scc1 L_nz
        v_mov_b32 v{F}, 0
        v_mov_b32 v{F+1}, 0
        v_mov_b32 v{F+2}, 0
        v_mov_b32 v{F+3}, 0
        v_mov_b32 v5, 4
        ds_write_b128 v{aL16}, v[{F}:{F+3}] offset:{AS+1024}
        s_mov_b64 exec, 1
        ds_add_u32 v{vZ}, v5 offset:{CA}
        s_mov_b64 exec, -1
        L_nz:
        """)
    arrive(CO)
    arrive(CH)
    def fprefetch():
        L = A.lab("L_fp")
        A(f"s_and_b32 s55, {SJ}, 3")
        A(f"s_or_b32 s55, s55, {SW}")
        A(f"s_cbranch_scc1 {L}")
        A("s_mov_b32 exec_lo, 0x01010101")
        A("s_mov_b32 exec_hi, 0x01010101")
        for i in range(4):
            A(f"buffer_load_dword v138, v{oFG}, {WS}, 0 offen offset:{1024*i} {prepol}")
        A("s_mov_b64 exec, -1")
        A(f"{L}:")
    A("L_nog:")
    if fpre == 1:
        fprefetch()
    if dly:
        A("s_mov_b32 s70, s94")
    A("s_waitcnt vmcnt(0)")
    if "g" in pre2:
        L_ = A.lab("L_p2")
        A(f"s_cmp_lg_u32 {SW}, 0")
        A(f"s_cbranch_scc1 {L_}")
        A(f"s_cmp_ge_u32 {SK}, 28")
        A(f"s_cbranch_scc1 {L_}")
        A("s_mov_b64 exec, s[78:79]")
        A(f"buffer_load_dword v138, v{oGG}, {WS}, 0 offen {prepol}")
        A(f"buffer_load_dword v138, v{oGG}, {WS}, 0 offen offset:1024 {prepol}")
        A("s_mov_b64 exec, -1")
        A(f"{L_}:")
    stamp(1)
    gemv64(aWg, ACC, 24, spl7)
    stamp(2)
    id_load()
    if dg:
        gemv64(aWu, ACC, 31, spl7, xr=XR[7:], cont=True)
        tag4(ACC + 8, ACC)
        A(f"s_mov_b64 exec, {M_GU}")
        A(f"buffer_store_dwordx4 v[{ACC+8}:{ACC+11}], v{oGU}, {WS}, 0 offen sc1")
        A("s_mov_b64 exec, -1")
        A("s_waitcnt vmcnt(1)")
        id_check("s[98:99]")
        stamp(3)
        R4 = [ACC + 12, ACC + 16]
        for i in range(8):
            A(f"v_mov_b32 v{R4[0]+i}, 0")
        wait_prog(gh)
        gather([(R4[0], oGG, 0), (R4[1], oGG2, 0)], gpol, hop="g", ex=["s[78:79]", "s[88:89]"])
        stamp(4)
        for r in R4:
            A(f"v_permlane16_swap_b32 v{r}, v{r+2}")
            A(f"v_permlane16_swap_b32 v{r+1}, v{r+3}")
        for r in R4:
            A(f"v_add_f32 v{r}, v{r}, v{r+2}")
            A(f"v_add_f32 v{r+1}, v{r+1}, v{r+3}")
        for r in R4:
            A(f"v_add_f32_dpp v{r}, v{r}, v{r} row_ror:8 {DPPM}")
            A(f"v_add_f32_dpp v{r+1}, v{r+1}, v{r+1} row_ror:8 {DPPM}")
        for r in R4:
            A(f"v_cndmask_b32 v{r}, v{r}, v{r+1}, {M_HI8}")
        A(f"v_permlane32_swap_b32 v{R4[0]}, v{R4[1]}")
        bf16_round_pair(5, 6, 7, R4[0], R4[1])
        A(f"""
        v_mul_f32 v8, v6, v6
        v_mov_b32 v9, {f32(GC1)}
        v_fmac_f32 v9, {f32(GC2)}, v8
        v_mul_f32 v9, v9, v6
        v_exp_f32 v9, v9
        v_add_f32 v9, 1.0, v9
        v_rcp_f32 v9, v9
        v_mul_f32 v9, v9, v6
        v_cvt_pk_bf16_f32 v9, v9, v9
        v_lshlrev_b32 v9, 16, v9
        v_mul_f32 v9, v9, v7
        v_cvt_pk_bf16_f32 v9, v9, v9
        ds_write_b16 v{aHsW}, v9 offset:{HS}
        """)
        stamp(6)
        arrive(CH)
        A.mute = True
    gemv64(aWu, ACC + 4, 33 if nar else 31, spl7)
    for j in range(4):
        A(f"v_cndmask_b32 v{ACC+8+j}, v{ACC+j}, v{ACC+4+j}, {M_B1}")
    tag4(ACC + 8, ACC + 8)
    A("s_waitcnt vmcnt(0)")
    id_check("s[98:99]")
    pub([(M_GU, f"buffer_store_dwordx4 v[{ACC+8}:{ACC+11}], v{oGU}, {WS}, 0 offen")], "g", "s[98:99]")
    if "g" in hint:
        A(f"""
        s_lshl_b32 s56, {SJ}, 2
        s_add_u32 s56, s56, {SW}
        s_add_u32 s56, s56, {FLG_}
        """)
        hint_store("s56")
    stamp(3)
    if fpre == 2:
        fprefetch()
    R4 = [ACC + 12, ACC + 16]
    if sp:
        R4 += [ACC + 20, ACC + 24]
        A("s_cmp_lt_u32 s2, 224")
        A("s_cbranch_scc1 L_ph")
    else:
        A(f"s_cmp_lg_u32 {SW}, 0")
        A("s_cbranch_scc1 L_ph")
        A(f"s_cmp_ge_u32 {SK}, 28")
        A("s_cbranch_scc1 L_phd")
    for i in range(4 * len(R4)):
        A(f"v_mov_b32 v{R4[0]+i}, 0")
    if gg:
        wait_prog(gg)
    if sp:
        gather([(R4[0], oGG, 0), (R4[1], oGG, 1024), (R4[2], oGG2, 0), (R4[3], oGG2, 1024)], fpol if gpol is None else gpol, hop="g",
               ex=["s[78:79]", "s[78:79]", "s[88:89]", "s[88:89]"], flag="s[98:99]")
    elif "g" in pg:
        gatherP([(R4[0], oGG, 0), (R4[1], oGG, 1024)], [ACC + 20, ACC + 24], gpol, "nt", "g", ex=["s[78:79]", "s[78:79]"], flag="s[98:99]")
        A("s_waitcnt vmcnt(0)") if pgw else None
    else:
        gather([(R4[0], oGG, 0), (R4[1], oGG, 1024)], fpol if gpol is None else gpol, hop="g", ex=["s[78:79]", "s[78:79]"], flag="s[98:99]")
    stamp(4)
    for r in R4:
        A(f"v_permlane32_swap_b32 v{r}, v{r+2}")
        A(f"v_permlane32_swap_b32 v{r+1}, v{r+3}")
    for r in R4:
        A(f"v_add_f32 v{r}, v{r}, v{r+2}")
        A(f"v_add_f32 v{r+1}, v{r+1}, v{r+3}")
    for r in R4:
        A(f"v_permlane16_swap_b32 v{r}, v{r+1}")
    for r in R4:
        A(f"v_add_f32 v{r}, v{r}, v{r+1}")
    for r in R4:
        A(f"v_add_f32_dpp v{r}, v{r}, v{r} row_ror:8 {DPPM}")
    if sp:
        A(f"v_cndmask_b32 v{R4[0]}, v{R4[0]}, v{R4[2]}, {M_HI8}")
        A(f"v_cndmask_b32 v{R4[1]}, v{R4[1]}, v{R4[3]}, {M_HI8}")
    bf16_round_pair(5, 6, 7, R4[0], R4[1])
    A(f"""
    v_mul_f32 v8, v6, v6
    v_mov_b32 v9, {f32(GC1)}
    v_fmac_f32 v9, {f32(GC2)}, v8
    v_mul_f32 v9, v9, v6
    v_exp_f32 v9, v9
    v_add_f32 v9, 1.0, v9
    v_rcp_f32 v9, v9
    v_mul_f32 v9, v9, v6
    v_cvt_pk_bf16_f32 v9, v9, v9
    v_lshlrev_b32 v9, 16, v9
    v_mul_f32 v9, v9, v7
    v_cvt_pk_bf16_f32 v9, v9, v9
    v_and_b32 v9, 0xffff0000, v9
    v_or_b32 v9, {T16}, v9
    s_mov_b32 exec_lo, {"s90" if sp else "0x00ff00ff"}
    s_mov_b32 exec_hi, {"s91" if sp else "0x00ff00ff"}
    buffer_store_dword v9, v{oPH}, {WS}, 0 offen sc1
    s_mov_b64 exec, -1
    """)
    stamp(5)
    if sp:
        A(f"s_cmp_lg_u32 {SW}, 0")
        A("s_cbranch_scc1 L_fin")
        wait_cnt(CA, 8, [])
        A("s_branch L_nlast")
    else:
        A("s_branch L_phd")
    A("L_ph:")
    if lat:
        A(f"s_cmp_lt_u32 {SW}, 2")
        A("s_cbranch_scc1 L_lat2")
        A(f"v_readfirstlane_b32 s55, v{oGG}")
        wait_prog(lat)
        A(f"s_cmp_eq_u32 {SW}, 2")
        A("s_cbranch_scc1 L_lat1")
        dstamp()
        for i in range(4):
            A(f"s_load_dwordx16 s[80:95], s[28:29], s55 glc")
            A("s_waitcnt lgkmcnt(0)")
            dstamp()
            A("s_add_u32 s55, s55, 128")
        A("s_branch L_lat2")
        A("L_lat1:")
        dstamp()
        for i in range(4):
            A(f"buffer_load_dwordx4 v[{ACC+12}:{ACC+15}], v{oGG}, {WS}, 0 offen nt")
            A("s_waitcnt vmcnt(0)")
            dstamp()
        A("L_lat2:")
    A(f"s_cmp_lg_u32 {SW}, 1")
    A("s_cbranch_scc1 L_phd")
    pxg(oPH, aHsW, HS, None if sp else "0xffffff", gh, CH, "h")
    A("L_phd:")
    A.mute = False
    wait_prog(52)
    rd3([0, 1, 2])
    wait_prog(54 if sp else 53)
    rd3([3])
    wait_cnt(CH, 6 if dg else 3, bt_reads() + [f"ds_read_b32 v{vGC}, v{aGS} offset:{GS+4}"])
    mm3([0, 1, 2])
    if not sym:
        wait_cnt(CA, 4, [f"ds_read_b128 v[{ACC+8}:{ACC+11}], v{aAS}", f"ds_read_b32 v9, v{aGS} offset:{GS+4}"])
        mm3([3])
        sel3()
        for j in range(4):
            A(f"v_fmac_f32 v{ACC+8+j}, v9, v{ACC+j}")
        tag4(ACC + 8, ACC + 8)
        A(f"s_mov_b64 exec, {M_N4}")
        A(f"buffer_store_dwordx4 v[{ACC+8}:{ACC+11}], v{oFP}, {WS}, 0 offen sc1")
        A("s_mov_b64 exec, -1")
        stamp(6)
        A(f"s_and_b32 s55, {SJ}, 3")
        A(f"s_or_b32 s55, s55, {SW}")
        A("s_cbranch_scc1 L_fin")
    else:
        mm3([3])
        A("L_comb:")
        sel3()
        for j in range(4):
            A(f"v_mul_f32 v{ACC+j}, v{vGC}, v{ACC+j}")
        A(f"""
        s_mov_b64 exec, {M_N4}
        ds_write_b128 v{aAS}, v[{ACC}:{ACC+3}]
        s_mov_b64 exec, 1
        ds_add_rtn_u32 v5, v{vZ}, v{vONE} offset:{CA}
        s_mov_b64 exec, -1
        ds_read_b128 v[{ACC+8}:{ACC+11}], v{aL16} offset:{AS}
        ds_read_b128 v[{ACC+12}:{ACC+15}], v{aL16} offset:{AS+1024}
        s_waitcnt lgkmcnt(2)
        v_readfirstlane_b32 s55, v5
        s_cmp_lg_u32 s55, 7
        s_cbranch_scc1 L_nlast
        s_waitcnt lgkmcnt(0)
        v_pk_add_f32 v[{ACC+8}:{ACC+9}], v[{ACC+8}:{ACC+9}], v[{ACC+12}:{ACC+13}]
        v_pk_add_f32 v[{ACC+10}:{ACC+11}], v[{ACC+10}:{ACC+11}], v[{ACC+14}:{ACC+15}]
        """)
        tag4(ACC + 8, ACC + 8)
        pub([(None, f"buffer_store_dwordx4 v[{ACC+8}:{ACC+11}], v{oFP2}, {WS}, 0 offen")], "f", "s[98:99]")
        stamp(8)
        A("L_nlast:")
        stamp(9)
        A(f"s_and_b32 s55, {SJ}, 3")
        if ccl:
            A(f"s_xor_b32 s55, s55, {ccl}")
        A(f"s_sub_u32 s56, s3, 5")
        A(f"s_or_b32 s55, s55, s56")
        A("s_cbranch_scc1 L_fin")
        if dly:
            A("L_dly:")
            A("s_memrealtime s[96:97]")
            A("s_waitcnt lgkmcnt(0)")
            A("s_sub_u32 s55, s96, s70")
            A(f"s_cmp_lt_u32 s55, {dly}")
            A("s_cbranch_scc1 L_dly")
    gather([(G + 4 * i, oFG, 1024 * i) for i in range(4)], ffpol, hop="f", rawoff=32, flag="s[98:99]")
    A(f"""
    v_pk_add_f32 v[{G}:{G+1}], v[{G}:{G+1}], v[{G+4}:{G+5}]
    v_pk_add_f32 v[{G+2}:{G+3}], v[{G+2}:{G+3}], v[{G+6}:{G+7}]
    v_pk_add_f32 v[{G+8}:{G+9}], v[{G+8}:{G+9}], v[{G+12}:{G+13}]
    v_pk_add_f32 v[{G+10}:{G+11}], v[{G+10}:{G+11}], v[{G+14}:{G+15}]
    v_pk_add_f32 v[{G}:{G+1}], v[{G}:{G+1}], v[{G+8}:{G+9}]
    v_pk_add_f32 v[{G+2}:{G+3}], v[{G+2}:{G+3}], v[{G+10}:{G+11}]
    """)
    red4(G)
    A(f"""
    v_add_f32_dpp v{G}, v{G}, v{G} row_ror:8 {DPPM}
    s_mov_b32 exec_lo, 0x00ff00ff
    s_mov_b32 exec_hi, 0x00ff00ff
    v_cvt_pk_bf16_f32 v6, v{G}, v{G}
    buffer_store_short v6, v{oOut}, s[44:47], 0 offen {outpol}
    s_cmp_lg_u32 s2, {8*ccl}
    s_cbranch_scc1 L_fin
    s_mov_b64 exec, 1
    v_mov_b32 v6, s48
    v_mov_b32 v7, s49
    s_mov_b32 s55, {EPOCH}
    v_mov_b32 v8, s55
    global_store_dwordx2 v8, v[6:7], s[28:29] sc1
    L_fin:
    """)
    A("s_mov_b64 exec, -1")
    stamp(7)
    dump_stamps()
    A("L_end:")
    A("s_endpgm")

    if "A" in nox:
        A.L = [l for l in A.L if not (l.startswith("buffer_load_dwordx4") and "v9, s[32:35], s55" in l)]
    if "F" in nox:
        A.L = [l for l in A.L if not (l.startswith("buffer_load_dwordx4") and "v9, s[32:35], s56" in l)]
    if "G" in nox:
        A.L = [l for l in A.L if not (l.startswith("buffer_load_dwordx4") and ("v5, s[32:35], s55" in l or "v5, s[40:43], 0" in l))]
    if nost:
        sel = {"q": f"v{oQP},", "o": f"v{oOP},", "m": f"v{oML},", "g": f"v{oGU},", "f": f"v{oFP},"}
        keys = list(sel.values()) if nost is True else [sel[c] for c in nost]
        A.L = [l for l in A.L if not (l.startswith("buffer_store_dwordx4") and "sc1" in l and any(k in l for k in keys))]
    if nost2:
        sel = {"q": f"v{oQP},", "o": f"v{oOP},", "m": f"v{oML},", "g": f"v{oGU},", "f": f"v{oFP2},"}
        keys = [sel[c] for c in nost2]
        A.L = [l for l in A.L if not (l.startswith("buffer_store_dwordx4") and any(k in l for k in keys))]
    if plain:
        sel = {"q": f"v{oQP},", "o": f"v{oOP},", "m": f"v{oML},", "g": f"v{oGU},", "f": f"v{oFP},"}
        keys = [sel[c] for c in plain]
        A.L = [l.replace(" sc1", "") if (l.startswith("buffer_store_dwordx4") and any(k in l for k in keys)) else l for l in A.L]
    if stpol != "sc1":
        A.L = [l.replace(" sc1", " " + stpol) if l.startswith("buffer_store_dwordx4") else l for l in A.L]
    body, nn = hazard_pass(A.L)
    out = []
    out.append(f"; @launch grid=(256,1,1) block=(576,1,1) lds={LDS_TOTAL + (4096 if xl else 0)}")
    out.append('.amdgcn_target "amdgcn-amd-amdhsa--gfx950"')
    out.append(".text")
    out.append(f".globl {NAME}_kernel")
    out.append(".p2align 8")
    out.append(f".type {NAME}_kernel,@function")
    out.append(f"{NAME}_kernel:")
    out += ["  " + l if not l.endswith(":") else l for l in body]
    if pf == 0:
        out.append(f".fill (16384 + 64 - (. - L_worker)) / 4, 4, 0xbf810000")
    elif pf == 1:
        out.append(f".fill (24576 + 64 - (. - {NAME}_kernel)) / 4, 4, 0xbf810000")
    out.append('.section .rodata,"a"')
    out.append(".p2align 6")
    out.append(f".amdhsa_kernel {NAME}_kernel")
    out.append("  .amdhsa_next_free_vgpr 160")
    out.append("  .amdhsa_next_free_sgpr 102")
    out.append("  .amdhsa_accum_offset 160")
    out.append("  .amdhsa_group_segment_fixed_size 0")
    out.append("  .amdhsa_kernarg_size 104")
    out.append("  .amdhsa_user_sgpr_count 2")
    out.append("  .amdhsa_user_sgpr_kernarg_segment_ptr 1")
    out.append("  .amdhsa_system_sgpr_workgroup_id_x 1")
    out.append(".end_amdhsa_kernel")
    return "\n".join(out) + "\n"


if __name__ == "__main__":
    import argparse, ast
    ap = argparse.ArgumentParser()
    ap.add_argument("out")
    ap.add_argument("kw", nargs="*")
    a = ap.parse_args()
    kw = {}
    for s in a.kw:
        k, v = s.split("=", 1)
        try:
            kw[k] = ast.literal_eval(v)
        except Exception:
            kw[k] = v
    open(a.out, "w").write(gen(**kw))
```

```python
import sys, struct
from asmlib import Asm, hazard_pass

NAME = "gated_mix__sliding_block_cached__geglu_ffn__decode"

PROG = 0
CQ, CP, CO, CH, FA, FB, FC, CA, CF = 0x100, 0x104, 0x108, 0x10C, 0x110, 0x114, 0x118, 0x11C, 0x120
ZERO = 0x200
HS, OS, QS, PS, MS, GS, AS = 0x400, 0x600, 0x800, 0x1100, 0x1A00, 0x1A80, 0x2000
PITCH = 288
RA, RC, RD, RB = 0x3000, 0xB000, 0x13000, 0x1A000
LDS_TOTAL = RB + 8 * 4096
QP, ML, EPOCH, GUP, OP, FP, WS_END = 0, 0x20000, 0x2F000, 0x40000, 0x100000, 0x200000, 0x300000
IDT, PX, PHB = 0x2E000, 0x30000, 0x38000
FLO, FLG_ = 0x2E800, 0x2EC00
WS_END = FP + 0x40000
TAGM = 0xFFF


def f32(x):
    return "0x%08x" % struct.unpack("<I", struct.pack("<f", x))[0]


LOG2E = 1.4426950408889634
SCALE = 128 ** -0.5
GC1 = -2.0 * LOG2E * 0.7978845608028654
GC2 = GC1 * 0.044715


def gen(real=0, gp2=None, red=None, dz=None, dlead=0, dy=None, dpol='sc1', dmap=0, early=0, xcnt=None, xl=0, nox='', dg=0, nar=0, npol='nt', pgw=0, dyn=0, apol='', dmax=12, sp=0, pre2='', noat=0, lpol={}, sched=None, ad='', thr=(0, 24, 30), dds=(3, 4, 5, 6), lst=0, kvr=0, rsel='0x30003', kvs=0, tl='', tlw=8, lgrow=0, lat=0, gh=(49,48), lret='f', ffpol='nt', fpre=0, b3=3, pg={}, ccl=0, dly=0, pipe={}, pthr=32, wb=0, wbm=31, outpol='', unb=None, xo='', xkb=9, xcls=1, cbx=0, burst=0, nost2='', qn=4, sym=1, pxe=0, pf=2, win=None, wk=1, D=16, stamps=False, spl1=(4, 8), spl7=(4, 7), ntflag="nt", gq=16, go=34, gg=44, gp=45, loc='ogf', ppol='sc1', once='', rpol='sc1', rinv=0, pre='', prepol='', Dhi=0, D3hi=0, hibit=2, opol=None, gpol=None, hint='', go0=26, gg0=38, fsm=0, fpol="",
        nog=False, nost=False, rot=1, qmap=0, bgmap=0, D3=0, cst='', stpol='sc1', wsoff=0, half=0, ofrac=0, ostr=0, omask=0, mlin=0, ffrac=0, gfrac=0, plain='', qfrac=0):
    A = Asm()
    global RA, RC, RD, RB, LDS_TOTAL
    if dz:
        NCF, NBW, NCW, GSW = dz
        if NCF:
            RC, RD, RA, RB = 0x3000, 0xB000, 0x14000, 0x1C000
        LDS_TOTAL = RB + 8 * 4096
        dy = (GSW, NBW, NCW)
        PF1 = 35 + NCF if NCF else 38
        PW0 = PF1 + 7
        PEND = PW0 + NBW + NCW
    d = D // 4
    assert D % 4 == 0
    d3 = (D3 or D) // 4
    assert d3 >= d

    VST = 152
    XS = LDS_TOTAL

    def stamp(i):
        if stamps:
            if i == 0:
                A(f"v_mov_b32 v{VST}, 0")
            A("s_memrealtime s[96:97]")
            A("s_waitcnt lgkmcnt(0)")
            A(f"v_writelane_b32 v{VST}, s96, {i}")

    def dstamp():
        if stamps:
            A("s_memrealtime s[96:97]")
            A("s_waitcnt lgkmcnt(0)")
            A(f"v_writelane_b32 v{VST}, s96, m0")
            A("s_add_u32 m0, m0, 1")
            A("s_min_u32 m0, m0, 63")

    def dump_stamps():
        if not stamps:
            return
        A("s_mov_b64 exec, -1")
        A("s_add_u32 s28, s28, 0x8000000")
        A("s_addc_u32 s29, s29, 0")
        A("s_mul_i32 s55, s2, 9")
        A("s_add_u32 s55, s55, s3")
        A("s_lshl_b32 s55, s55, 8")
        A("v_lshlrev_b32 v5, 2, v0")
        A("v_add_u32 v5, s55, v5")
        A(f"global_store_dword v5, v{VST}, s[28:29]")

    BUD, SPROG = "s30", "s31"

    def budget(k=1):
        A(f"s_sub_u32 {BUD}, {BUD}, {k}")
        A("s_cbranch_scc1 L_end")

    RB1, CB1 = "s100", "s101"

    def xf(v, old, new, t=5):
        m = (1 << xkb) - 1
        A(f"v_subrev_u32 v{v}, {old}, v{v}")
        A(f"v_and_b32 v{t}, {m}, v{v}")
        A(f"v_lshrrev_b32 v{v}, {xkb}, v{v}")
        A(f"v_lshl_add_u32 v{v}, v{v}, 10, v{t}")
        A(f"v_add_u32 v{v}, {new + (xcls << xkb)}, v{v}")

    def tile1():
        if qmap == 0:
            A(f"s_and_b32 {RB1}, s2, 3")
            A(f"s_lshr_b32 {CB1}, s2, 2")
        else:
            hi, lo = ("0x10000", "0x20001") if qmap == 1 else ("0x10002", "0x20000")
            A(f"""
            s_bfe_u32 {RB1}, s2, {hi}
            s_lshr_b32 s69, s2, 7
            s_lshl1_add_u32 {RB1}, {RB1}, s69
            s_bfe_u32 s69, s2, 0x40003
            s_bfe_u32 {CB1}, s2, {lo}
            s_lshl4_add_u32 {CB1}, {CB1}, s69
            """)

    def bg(dst, t):
        if bgmap == 0:
            A(f"s_and_b32 {dst}, s2, 7")
        else:
            A(f"s_and_b32 {dst}, s2, 1")
            A(f"s_bfe_u32 {t}, s2, 0x20001")
            A(f"s_lshl2_add_u32 {dst}, {dst}, {t}")

    def jidx(dst, t):
        A(f"s_and_b32 {dst}, s2, 7")
        A(f"s_lshl_b32 {dst}, {dst}, 5")
        A(f"s_lshr_b32 {t}, s2, 3")
        A(f"s_add_u32 {dst}, {dst}, {t}")

    stamp(0)
    W8, W7, VK, VV, VO = 10, 14, 18, 22, 24
    vP, vPa, vFr, vFa, vT = 28, 29, 30, 31, 32
    A(f"""
    s_cmp_ge_u32 s2, 256
    s_cbranch_scc1 L_end
    s_load_dwordx2 s[32:33], s[0:1], 24
    s_load_dwordx16 s[4:19], s[0:1], 0
    s_load_dwordx8 s[20:27], s[0:1], 64
    s_load_dwordx2 s[28:29], s[0:1], 96
    v_lshrrev_b32 v1, 6, v0
    v_lshrrev_b32 v34, 3, v0
    v_readfirstlane_b32 s3, v1
    v_and_b32 v35, 7, v0
    v_and_b32 v36, 2, v34
    s_mov_b32 {BUD}, 0x100000
    s_mov_b32 s35, 0x20000
    """)
    tile1()
    A(f"""
    s_cmp_lg_u32 s3, 0
    s_cbranch_scc1 L_worker
    s_setprio 3
    v_xor_b32 v35, v35, v36
    v_lshlrev_b32 v35, 4, v35
    v_xor_b32 v36, 64, v35
    v_lshl_add_u32 v{W8}, v34, 13, v35
    v_lshl_add_u32 v{W8+1}, v34, 13, v36
    v_add_u32 v{W8+1}, {65536-1024}, v{W8+1}
    v_add_u32 v{W8+2}, {2*(65536-1024)}, v{W8}
    v_add_u32 v{W8+3}, {2*(65536-1024)}, v{W8+1}
    s_lshl_b32 s68, {CB1}, 7
    s_lshl_b32 s60, {RB1}, 21
    s_add_u32 s60, s60, s68
    s_mov_b32 s34, {8<<20}
    s_mov_b32 m0, {RA}
    s_waitcnt lgkmcnt(0)
    """)
    srds = [(36, 6, 64 << 20), (40, 8, 64 << 20), (44, 16, 7 << 20), (48, 18, 7 << 20),
            (52, 12, 8 << 20), (56, 20, 7 << 20)]
    NPEEL = burst or min(d, 7)

    UNB = ""
    if unb:
        tb0 = sum(((u[0] + 8) & 15) << (4 * c) for c, u in enumerate(unb))
        tb1 = sum(u[1] << (4 * c) for c, u in enumerate(unb))
        UNB = f"""s_and_b32 s70, s68, 3
        s_lshl_b32 s70, s70, 2
        s_lshr_b32 s71, {tb0}, s70
        s_and_b32 s71, s71, 15
        s_sub_u32 s71, s71, 8
        s_lshr_b32 s75, {tb1}, s70
        s_and_b32 s75, s75, 15
        s_sub_u32 s76, 7, s75
        s_lshl_b32 s75, s75, 12
        s_add_u32 s75, s75, {RA}
        s_mul_i32 s69, s67, 7
        s_add_u32 s69, s69, s71
        s_lshr_b32 s64, s69, 5
        s_lshl_b32 s64, s64, 7
        s_and_b32 s69, s69, 31
        s_mul_i32 s69, s69, {32*7168}
        s_add_u32 s64, s64, s69"""

    XCNT = ""
    if xcnt:
        assert sum(xcnt) == 112
        t0 = sum((c - 8) << (4 * i) for i, c in enumerate(xcnt))
        pre_ = [sum(xcnt[:i]) for i in range(8)]
        t1 = sum(v << (8 * i) for i, v in enumerate(pre_))
        XCNT = f"""s_and_b32 s71, s2, 7
        s_lshl_b32 s72, s71, 2
        s_lshr_b32 s75, 0x{t0:x}, s72
        s_and_b32 s75, s75, 15
        s_add_u32 s75, s75, 8
        s_mov_b32 s72, 0x{t1 & 0xffffffff:x}
        s_mov_b32 s73, 0x{t1 >> 32:x}
        s_lshl_b32 s71, s71, 3
        s_lshr_b64 s[72:73], s[72:73], s71
        s_and_b32 s72, s72, 255
        s_lshl_b32 s72, s72, 4
        s_lshr_b32 s70, s2, 4
        s_mul_i32 s70, s70, s75
        s_add_u32 s70, s70, s72
        s_sub_u32 s76, 14, s75
        s_sub_u32 s75, s75, 7
        s_lshl_b32 s75, s75, 12
        s_add_u32 s75, s75, {RA}"""

    CNT = 0x38000
    def dygrp(g, m, t):
        GS_ = dy[0]
        NG = 32 // GS_
        lg = NG.bit_length() - 1
        if dmap == 0:
            A(f"s_lshr_b32 {g}, s2, {3 + GS_.bit_length() - 1}")
            A(f"s_bfe_u32 {m}, s2, 0x{GS_.bit_length() - 1}0003")
        else:
            A(f"s_lshr_b32 {m}, s2, {3 + lg}")
            A(f"s_lshr_b32 {t}, s2, 3")
            A(f"s_add_u32 {g}, {m}, {t}")
            A(f"s_and_b32 {g}, {g}, {NG - 1}")

    CNTF = 0x3A000
    TK = 0x140
    def fgrp(gi, mi, t):
        A(f"""
        s_bfe_u32 {t}, s2, 0x10002
        s_and_b32 {mi}, s2, 1
        s_lshl1_add_u32 {mi}, {t}, {mi}
        s_lshr_b32 {t}, s2, 3
        s_add_u32 {gi}, {t}, {mi}
        s_and_b32 {gi}, {gi}, 3
        s_and_b32 {t}, {t}, 28
        s_add_u32 {gi}, {gi}, {t}
        s_and_b32 {t}, s2, 2
        s_lshl4_add_u32 {gi}, {t}, {gi}
        """)

    def loader_setup():
        A(f"""
        v_lshrrev_b32 v4, 4, v0
        v_and_b32 v5, 15, v0
        v_xor_b32 v6, v5, v4
        v_lshlrev_b32 v6, 4, v6
        v_lshl_add_u32 v{VK}, v4, 8, v6
        v_xor_b32 v{VK+1}, 64, v{VK}
        v_xor_b32 v{VK+2}, 128, v{VK}
        v_xor_b32 v{VK+3}, 192, v{VK}
        v_lshlrev_b32 v6, 1, v4
        v_xor_b32 v6, v5, v6
        v_lshlrev_b32 v6, 4, v6
        v_lshl_add_u32 v{VV}, v4, 8, v6
        v_xor_b32 v{VV+1}, 128, v{VV}
        v_lshl_add_u32 v{VO}, v4, 11, v6
        v_add_u32 v{VO+1}, 7168, v{VO}
        v_xor_b32 v{VO+3}, 128, v{VO}
        v_add_u32 v{VO+2}, {2*7168}, v{VO+3}
        v_add_u32 v{VO+3}, {3*7168}, v{VO+3}
        v_mul_u32_u24 v7, 7168, v34
        v_add_u32 v{W7}, v7, v35
        v_add_u32 v{W7+1}, v7, v36
        v_add_u32 v{W7+1}, {8*7168-1024}, v{W7+1}
        v_add_u32 v{W7+2}, {2*(8*7168-1024)}, v{W7}
        v_add_u32 v{W7+3}, {2*(8*7168-1024)}, v{W7+1}
        v_mov_b32 v{vP}, {min(NPEEL-d, 0)}
        v_lshlrev_b32 v{vPa}, 2, v0
        """)
        if kvs:
            if kvs == 8:
                A(f"v_lshrrev_b32 v6, 5, v0")
                A(f"v_mul_u32_u24 v6, {4096-512}, v6")
            elif kvs == 16:
                A(f"v_mul_u32_u24 v6, {2048-256}, v4")
            else:
                A("v_mov_b32 v6, 0")
            A(f"v_mov_b32 v39, v{VV+1}")
            A(f"v_mov_b32 v38, v{VV+1}")
            A(f"v_mov_b32 v{VV+1}, v{VV}")
            for t, (rk, rv) in enumerate(zip(vk, vv)):
                if t:
                    A(f"v_add_u32 v6, {8192-1024}, v6")
                A(f"v_add_u32 v{rk}, v6, v{rk}")
                A(f"v_add_u32 v{rv}, v6, v{rv}")
        jidx("s67", "s68")
        A(f"""
        s_mul_i32 s69, s67, 7
        s_lshr_b32 s63, s69, 5
        s_lshl_b32 s63, s63, 7
        s_and_b32 s69, s69, 31
        s_mul_i32 s69, s69, {32*7168}
        s_add_u32 s63, s63, s69
        s_mov_b32 s64, s63
        {UNB}
        s_and_b32 s69, s68, 7
        s_xor_b32 s69, s69, {cbx}
        s_lshl_b32 s69, s69, 8
        s_lshr_b32 s67, s67, 3
        s_mul_i32 s66, s67, {112*2048}
        s_add_u32 s66, s66, s69
        s_and_b32 s65, s2, 3
        s_lshl_b32 s65, s65, 3
        s_and_b32 s67, s2, 4
        s_add_u32 s65, s65, s67
        s_lshr_b32 s67, s2, 6
        s_add_u32 s65, s65, s67
        s_lshl_b32 s65, s65, 18
        s_add_u32 s65, s65, s69
        """)
        if b3:
            A(f"""
            s_and_b32 s69, s2, 7
            s_xor_b32 s69, s69, {cbx}
            s_lshl_b32 s69, s69, 8
            s_mul_i32 s66, s68, {(128 if sp else 112)*2048}
            s_add_u32 s66, s66, s69
            s_lshl_b32 s65, s68, 18
            s_add_u32 s65, s65, s69
            """)
        if nar:
            A(f"""
            v_lshrrev_b32 v6, 1, v0
            v_mul_u32_u24 v6, 7168, v6
            v_and_b32 v7, 1, v0
            v_lshl_add_u32 v{W7}, v7, 4, v6
            v_add_u32 v{W7+1}, {32*7168-1024}, v{W7}
            v_add_u32 v{W7+2}, {2*(32*7168-1024)}, v{W7}
            v_add_u32 v{W7+3}, {3*(32*7168-1024)}, v{W7}
            s_and_b32 s63, s2, 7
            s_mul_i32 s63, s63, 28
            s_add_u32 s63, s63, s68
            s_lshl_b32 s63, s63, 5
            s_mov_b32 s64, s63
            s_mul_i32 s66, s68, 5
            s_sub_u32 s70, s68, 28
            s_mul_i32 s70, s70, 21
            s_add_u32 s70, s70, 140
            s_cmp_ge_u32 s68, 28
            s_cselect_b32 s66, s70, s66
            s_lshl_b32 s66, s66, 15
            s_add_u32 s66, s66, s69
            """)
        if dg:
            jidx("s67", "s70")
            A(f"""
            s_and_b32 s70, s67, -2
            s_mul_i32 s70, s70, 7
            {XCNT}
            s_lshr_b32 s63, s70, 5
            s_lshl_b32 s63, s63, 7
            s_and_b32 s70, s70, 31
            s_mul_i32 s70, s70, {32*7168}
            s_add_u32 s63, s63, s70
            """)
        if dz and not NCF:
            A("v_mov_b32 v44, 1")
            A.mute = True
        if dz:
            fgrp("s83", "s84", "s70")
            A(f"""
            s_lshr_b32 s70, s83, 3
            s_mul_i32 s70, s70, 7
            s_and_b32 s71, s83, 3
            s_add_u32 s85, s70, s71
            s_lshl_b32 s85, s85, 7
            s_add_u32 s70, s70, s84
            s_add_u32 s70, s70, 3
            s_lshl_b32 s70, s70, 7
            s_mul_i32 s71, s71, {8*32*7168}
            s_add_u32 s70, s70, s71
            s_cmp_eq_u32 s84, 0
            s_cselect_b32 s63, s85, s70
            s_mul_i32 s64, s84, {3*32*7168}
            s_add_u32 s64, s64, s85
            s_add_u32 s64, s64, {8*32*7168}
            s_add_u32 s85, s85, {20*32*7168}
            s_lshl_b32 s70, s83, 7
            s_add_u32 s70, s70, {CNTF}
            v_mov_b32 v45, s70
            v_mov_b32 v44, 1
            """)
            A.mute = False
            dygrp("s75", "s76", "s77")
            A(f"""
            s_and_b32 s77, s2, 7
            s_lshl_b32 s78, s77, 8
            s_mul_i32 s77, s77, {32 // GSW}
            s_add_u32 s77, s77, s75
            s_lshl_b32 s77, s77, 7
            s_add_u32 s77, s77, {CNT}
            v_mov_b32 v46, s77
            {'v_writelane_b32 v46, s70, 60' if NCF else ''}
            s_mul_i32 s75, s75, {8*GSW}
            s_mul_i32 s76, s76, {NBW}
            s_add_u32 s76, s76, s75
            s_lshl_b32 s65, s76, 15
            s_add_u32 s65, s65, s78
            s_add_u32 s75, s75, {NBW*GSW}
            s_lshl_b32 s75, s75, 15
            s_add_u32 s78, s78, s75
            """)
        bg("s67", "s69")
        A(f"""
        s_lshl_b32 s61, s67, 23
        s_lshl_b32 s69, s68, 15
        s_add_u32 s61, s61, s69
        s_add_u32 s61, s61, {28672*256}
        s_mov_b32 s62, s61
        """)
        for r, p, n in srds:
            if dg and r == 48:
                continue
            if dg and r == 44:
                A("s_bitcmp1_b32 s83, 2" if dz and NCF else "s_bitcmp1_b32 s2, 3")
                A("s_cselect_b64 s[44:45], s[18:19], s[16:17]")
            else:
                A(f"s_mov_b64 s[{r}:{r+1}], s[{p}:{p+1}]")
            A(f"s_mov_b32 s{r+2}, {n}")
            A(f"s_mov_b32 s{r+3}, 0x20000")

    def group(srd, vo, soff):
        for t in range(4):
            off = f" offset:{1024*t}" if t else ""
            A(f"buffer_load_dwordx4 v{vo[t]}, s[{srd}:{srd+3}], {soff} offen{off} {ntflag} lds")

    def lstamp():
        if sched or ad:
            lstamp0()

    def lstamp0():
        A("s_waitcnt lgkmcnt(0)")
        A("s_mov_b64 exec, s[94:95]")
        A(f"v_mov_b32 v{VST}, s98")
        A("s_mov_b64 exec, -1")
        A("s_memrealtime s[98:99]")
        A("s_lshl_b64 s[94:95], s[94:95], 1")

    def publish():
        if lst:
            lstamp0()
        if ad or sched:
            A(f"v_add_u32 v{vI}, 1, v{vI}")
            A(f"v_mad_i32_i24 v{vP}, s78, v{vM}, v{vI}")
        else:
            A(f"v_add_u32 v{vP}, 1, v{vP}")
        A(f"ds_max_i32 v{vPa}, v{vP}")

    vRet, vOne, vCa, vI, vM = 40, 41, 42, 43, 44
    adst = {"on": False, "n": 0}

    def wwait(dd):
        if not adst["on"]:
            A(f"s_waitcnt vmcnt({4*dd})")
            return
        lo, l1, l3, lp = A.lab("L_wl"), A.lab("L_w1"), A.lab("L_w3"), A.lab("L_wp")
        ddt = sum(x << (4 * i) for i, x in enumerate(dds))
        A(f"""
        v_readfirstlane_b32 s75, v{vRet}
        s_xor_b32 s75, s75, s79
        s_cmp_lt_u32 s75, 32
        s_cselect_b32 s75, s75, {thr[0]}
        s_lshl_b32 s75, s75, 1
        s_lshr_b64 s[76:77], s[80:81], s75
        s_and_b32 s76, s76, 3
        s_lshl_b32 s75, s76, 2
        s_lshr_b32 s75, {ddt}, s75
        s_and_b32 s75, s75, 15
        s_sub_u32 s78, 0, s75
        s_bitcmp0_b32 s76, 1
        s_cbranch_scc1 {lo}
        s_bitcmp1_b32 s76, 0
        s_cbranch_scc1 {l3}
        s_waitcnt vmcnt({4*dds[2]})
        {l3}:
        s_waitcnt vmcnt({4*dds[3]})
        s_branch {lp}
        {lo}:
        s_bitcmp1_b32 s76, 0
        s_cbranch_scc1 {l1}
        s_waitcnt vmcnt({4*dds[0]})
        {l1}:
        s_waitcnt vmcnt({4*dds[1]})
        {lp}:
        """)

    def checkpoint(c):
        if c not in ad:
            return
        if not adst["on"]:
            tab = 0
            for r in range(32):
                tab |= sum(r >= t for t in thr) << (2 * r)
            A(f"""
            s_waitcnt lgkmcnt(0)
            s_add_u32 s79, s82, 1
            s_lshl_b32 s79, s79, 8
            v_not_b32 v{vRet}, s79
            s_mov_b32 s80, 0x{tab & 0xffffffff:x}
            s_mov_b32 s81, 0x{tab >> 32:x}
            """)
            adst["on"] = True
        A("s_mov_b64 exec, 1")
        if noat == 0:
            A(f"global_atomic_add v{vRet}, v{vCa}, v{vOne}, s[28:29] offset:{4*adst['n']} sc0")
        elif noat == 2:
            A(f"global_load_dword v{vRet}, v{vCa}, s[28:29] offset:{4*adst['n']} nt")
        A("s_mov_b64 exec, -1")
        adst["n"] += 1

    sst = {"i": NPEEL, "dd": d}

    def tloop(srd, vo, soff, step, ng, base, free=None, skip=0, pitch=4096, wrap=False, dd=None, grow=0):
        if not sched:
            return tloop0(srd, vo, soff, step, ng, base, free, skip, pitch, wrap, dd, grow)
        a = sst["i"] - skip
        cuts = sorted(c - a for c in sched if sst["i"] < c < a + ng) + [ng]
        for c in cuts:
            if sst["i"] in sched:
                sst["dd"] = sched[sst["i"]]
                A(f"s_mov_b32 s78, {-sst['dd']}")
            tloop0(srd, vo, soff, step, c, base, free if c == ng else None, sst["i"] - a, pitch, wrap, sst["dd"], 0)
            sst["i"] = a + c

    def tloop0(srd, vo, soff, step, ng, base, free=None, skip=0, pitch=4096, wrap=False, dd=None, grow=0):
        dd = dd or d
        if not skip:
            A(f"s_mov_b32 m0, {base}")
        if free is not None:
            A(f"v_mov_b32 v{vFa}, {free}")
        for i in range(grow):
            group(srd, vo, soff)
            A(f"s_add_u32 {soff}, {soff}, {step}")
            A(f"s_add_u32 m0, m0, {pitch}")
        L = A.lab("L_ld")
        A(f"{L}:")
        group(srd, vo, soff)
        if free is not None:
            A(f"ds_read_b32 v{vFr}, v{vFa}")
        A(f"s_add_u32 {soff}, {soff}, {step}")
        if wrap:
            A(f"s_cmp_ge_u32 {soff}, {1024*7168}")
            A(f"s_cselect_b32 s73, {1024*7168-128}, 0")
            A(f"s_sub_u32 {soff}, {soff}, s73")
        A(f"s_add_u32 m0, m0, {pitch}")
        wwait(dd)
        publish()
        A(f"s_cmp_lg_u32 m0, {base + ng*pitch if isinstance(ng, int) else ng}")
        A(f"s_cbranch_scc1 {L}")
        if free is not None:
            freechk(dd)

    fcnt = [4]
    def freechk(dd):
        if True:
            ok, sp = A.lab("L_fok"), A.lab("L_fsp")
            A("s_waitcnt lgkmcnt(0)")
            A(f"v_readfirstlane_b32 s74, v{vFr}")
            A(f"s_cmp_ge_u32 s74, {fcnt[0]}")
            A(f"s_cbranch_scc1 {ok}")
            A("s_waitcnt vmcnt(0)")
            if ad or sched:
                A(f"ds_max_i32 v{vPa}, v{vI}")
            else:
                A(f"v_add_u32 v{vT}, {dd}, v{vP}")
                A(f"ds_max_i32 v{vPa}, v{vT}")
            A(f"{sp}:")
            A(f"ds_read_b32 v{vFr}, v{vFa}")
            A("s_waitcnt lgkmcnt(0)")
            A(f"v_readfirstlane_b32 s74, v{vFr}")
            budget()
            A(f"s_cmp_lt_u32 s74, {fcnt[0]}")
            A(f"s_cbranch_scc1 {sp}")
            A(f"{ok}:")

    w8 = [W8 + t for t in range(4)]
    w7 = [W7 + t for t in range(4)]
    vk = [VK + t for t in range(4)]
    vv = [VV, VV + 1, 38, 39] if kvs else [VV, VV, VV + 1, VV + 1]
    vo = [VO + t for t in range(4)]
    A("L_ld0:")
    group(32, w8, "s60")
    A(f"s_add_u32 s60, s60, {32*8192}")
    A("s_add_u32 m0, m0, 4096")
    A(f"s_cmp_lg_u32 m0, {RA + NPEEL*4096}")
    A("s_cbranch_scc1 L_ld0")
    if xl == 1:
        A(f"""
        s_mov_b64 s[36:37], s[4:5]
        s_mov_b32 s38, 4096
        s_mov_b32 s39, 0x20000
        v_lshlrev_b32 v4, 4, v0
        s_mov_b32 m0, {XS}
        """)
        for t in range(4):
            A(f"buffer_load_dwordx4 v4, s[36:39], 0 offen{' offset:%d' % (1024*t) if t else ''} lds")
        A(f"s_mov_b32 m0, {RA + NPEEL*4096}")
    stamp(1)
    if real:
        A(f"s_load_dwordx2 s[80:81], s[28:29], {EPOCH}")
    elif ad or dy:
        A(f"s_load_dword s82, s[28:29], {EPOCH}")
    loader_setup()
    if ad or sched:
        assert NPEEL == d and not Dhi and not D3 and not win
        A(f"""
        s_and_b32 s75, s2, 7
        s_lshl_b32 s75, s75, 7
        s_add_u32 s75, s75, {FLO}
        v_mov_b32 v{vCa}, s75
        v_mov_b32 v{vOne}, 1
        v_mov_b32 v{vI}, {NPEEL}
        v_mov_b32 v{vM}, 1
        v_writelane_b32 v{vM}, 0, 1
        s_mov_b32 s78, {-d}
        """)
    if lst:
        A("s_mov_b64 s[94:95], 0x100")
        A("s_mov_b32 s98, 0")
    A("s_barrier")
    def wbl2():
        L = A.lab("L_wb")
        A(f"s_lshr_b32 s67, s2, 3")
        A(f"s_and_b32 s67, s67, {wbm}")
        A(f"s_cbranch_scc1 {L}")
        A("buffer_wbl2 sc1")
        A(f"{L}:")

    def stream(dx, d3x, stamp0=stamp):
        def stamp(i):
            if lst != 2 or i == 7:
                stamp0(i)
        if burst:
            for j in range(burst - 1, dx - 1, -1):
                A(f"s_waitcnt vmcnt({4*j})")
                publish()
            if burst < 8:
                tloop(32, w8, "s60", 32 * 8192, 8, RA, skip=NPEEL, dd=dx, grow=max(dx - burst, 0))
        else:
            tloop(32, w8, "s60", 32 * 8192, 8, RA, skip=NPEEL, dd=d if lgrow else dx, grow=0 if lgrow else dx - d)
        stamp(2)
        if kvs and not kvr:
            checkpoint("K")
            if "k" in ad:
                tloop(36, vk, "s61", 4096 // kvs, 4, RB, dd=dx)
                checkpoint("k")
                tloop(36, vk, "s61", 4096 // kvs, 8, RB, dd=dx, skip=4)
            else:
                tloop(36, vk, "s61", 4096 // kvs, 8, RB, dd=dx)
            checkpoint("V")
            tloop(40, vv, "s62", 4096 // kvs, 8, RC, dd=dx)
        elif not rot:
            tloop(36, vk, "s61", 4096, 8, RB, dd=dx)
            tloop(40, vv, "s62", 4096, 8, RC, dd=dx)
        else:
            A(f"s_bfe_u32 s67, s2, {rsel}")
            A("s_lshl_b32 s67, s67, 12")
            A("s_mov_b32 s68, s67")
            for srd, vo_, base in ((36, vk, RB), (40, vv, RC)):
                L = A.lab("L_rt")
                checkpoint("K" if srd == 36 else "V")
                dxx = d if (lgrow == 2 and srd == 36) else dx
                if sched:
                    if sst["i"] in sched:
                        sst["dd"] = sched[sst["i"]]
                        A(f"s_mov_b32 s78, {-sst['dd']}")
                    dxx = sst["dd"]
                    sst["i"] += 8
                if (lgrow == 1 and srd == 36) or (lgrow == 2 and srd == 40):
                    for _ in range(dx - d):
                        A(f"s_add_u32 m0, s68, {base}")
                        A("s_add_u32 s69, s68, s61")
                        group(srd, vo_, "s69")
                        A("s_add_u32 s68, s68, 4096")
                        A("s_and_b32 s68, s68, 0x7fff")
                A(f"{L}:")
                A(f"s_add_u32 m0, s68, {base}")
                if kvs:
                    A(f"s_lshr_b32 s69, s68, {kvs.bit_length()-1}")
                    A("s_add_u32 s69, s69, s61")
                else:
                    A("s_add_u32 s69, s68, s61")
                group(srd, vo_, "s69")
                A("s_add_u32 s68, s68, 4096")
                A("s_and_b32 s68, s68, 0x7fff")
                wwait(dxx)
                publish()
                A("s_cmp_lg_u32 s68, s67")
                A(f"s_cbranch_scc1 {L}")
        stamp(3)
        checkpoint("G")
        if nar:
            nonlocal ntflag
            sv = ntflag
            A("s_cmp_ge_u32 s2, 224")
            A("s_cbranch_scc1 L_nsp")
            ntflag = npol
            tloop(44, w7, "s63", 128 * 7168, 8, RD - 4096, free=FA, dd=dx)
            tloop(48, w7, "s64", 128 * 7168, 8, RA, free=FB, dd=dx)
            ntflag = sv
            stamp(4)
            tloop(52, vo, "s65", 32768, 8, RB, free=FC, dd=dx)
            stamp(5)
            tloop(56, vo, "s66", 32768, 5, RC, dd=dx)
            A("s_branch L_nsd")
            A("L_nsp:")
            tloop(56, vo, "s66", 32768, 8, RD - 4096, free=FA, dd=dx)
            tloop(56, vo, "s66", 32768, 8, RA, free=FB, dd=dx)
            stamp(4)
            tloop(52, vo, "s65", 32768, 8, RB, free=FC, dd=dx)
            stamp(5)
            tloop(56, vo, "s66", 32768, 5, RC, dd=dx)
            A("L_nsd:")
            stamp(6)
            for k in range(dx - 1, -1, -1):
                A(f"s_waitcnt vmcnt({4*k})")
                publish()
            stamp(7)
            dump_stamps()
            A("s_endpgm")
            return
        if dz:
            assert dx <= 5
            vC, vT1, vT2 = 47, 48, 49
            if real:
                assert not NCF
                A(f"""
                s_mov_b64 exec, 1
                global_load_dwordx2 v[50:51], v46, s[28:29] sc1
                s_mov_b64 exec, -1
                s_waitcnt lgkmcnt(0)
                s_add_u32 s80, s80, 1
                s_addc_u32 s81, s81, 0
                s_lshl_b32 s79, s80, 8
                s_lshr_b64 s[80:81], s[80:81], 24
                v_not_b32 v{vT2}, s79
                """)
                tloop(44, w7, "s63", 32 * 7168, 7, RD, free=FA, wrap=True, dd=dx)
                A(f"""
                L_cv:
                v_readfirstlane_b32 s75, v50
                v_readfirstlane_b32 s76, v51
                s_xor_b32 s75, s75, s79
                s_lshr_b32 s75, s75, 8
                s_xor_b32 s76, s76, s80
                s_or_b32 s75, s75, s76
                s_cbranch_scc0 L_cok
                s_mov_b64 exec, 1
                global_load_dwordx2 v[50:51], v46, s[28:29] sc1
                s_mov_b64 exec, -1
                s_waitcnt vmcnt(0)
                s_sub_u32 {BUD}, {BUD}, 16
                s_cbranch_scc0 L_cv
                s_endpgm
                """)
                A.mute = True
            A(f"""
            s_mov_b32 exec_lo, 0
            s_mov_b32 exec_hi, 0x30000000
            global_load_dword v{vC}, v46, s[28:29] sc1
            s_mov_b64 exec, -1
            s_waitcnt lgkmcnt(0)
            s_add_u32 s79, s82, 1
            s_lshl_b32 s79, s79, 8
            """)
            if NCF:
                tloop(44, w7, "s63", 32 * 7168, 5, RD, free=FA, dd=dx)
            else:
                tloop(44, w7, "s63", 32 * 7168, 7, RD, free=FA, wrap=True, dd=dx)
            A(f"""
            L_cv:
            v_readlane_b32 s75, v{vC}, 60
            v_readlane_b32 s76, v{vC}, 61
            s_xor_b32 s75, s75, s79
            s_xor_b32 s76, s76, s79
            s_or_b32 s75, s75, s76
            s_cmp_lt_u32 s75, 256
            s_cbranch_scc1 L_cok
            s_mov_b32 exec_lo, 0
            s_mov_b32 exec_hi, 0x30000000
            global_load_dword v{vC}, v46, s[28:29] sc1
            s_mov_b64 exec, -1
            s_waitcnt vmcnt(0)
            s_sub_u32 {BUD}, {BUD}, 16
            s_cbranch_scc0 L_cv
            s_endpgm
            """)
            A.mute = False
            A("L_cok:")
            if not NCF:
                tloop(44, w7, "s63", 32 * 7168, 7, RA, free=FB, wrap=True, dd=dx)
                stamp(4)
                A.mute = True
            A("s_mov_b64 s[86:87], 1")
            A("L_c1:")
            group(44, w7, "s63")
            A(f"""
            s_mov_b64 exec, s[86:87]
            global_atomic_add v{vT1}, v45, v44, s[28:29] sc0 {dpol}
            s_mov_b64 exec, -1
            s_lshl_b32 s86, s86, 1
            s_and_b32 s86, s86, {(1 << NCF) - 1}
            s_add_u32 s63, s63, {32*7168}
            s_add_u32 m0, m0, 4096
            s_cmp_eq_u32 m0, {RD + 8*4096}
            s_cselect_b32 s63, s64, s63
            s_waitcnt vmcnt({4*dx+1})
            """)
            publish()
            A(f"s_cmp_lg_u32 m0, {RD + 11*4096}")
            A("s_cbranch_scc1 L_c1")
            def dynloop(tag, vt, srd, vo_, mul, base, pool, nc, tk, jm):
                A(f"""
                s_mov_b32 s76, 0
                L_d{tag}:
                v_readlane_b32 s75, v{vt}, s76
                s_sub_u32 s75, s75, s79
                s_cmp_ge_u32 s75, {pool}
                s_cbranch_scc1 L_{'x' if real else 'e'}{tag}
                s_mul_i32 s75, s75, {mul}
                s_add_u32 s75, s75, {base}
                """)
                group(srd, vo_, "s75")
                A("s_add_u32 m0, m0, 4096")
                A("s_add_u32 s76, s76, 1")
                A(f"s_cmp_eq_u32 s76, {nc}")
                A(f"s_waitcnt vmcnt({4*dx})")
                A(f"s_cbranch_scc1 L_f{tag}")
                publish()
                A(f"s_branch L_d{tag}")
                if real:
                    A(f"""
                    L_x{tag}:
                    s_cmp_lt_u32 s75, 256
                    s_cbranch_scc1 L_e{tag}
                    s_waitcnt vmcnt(0)
                    s_sub_u32 {BUD}, {BUD}, 16
                    s_cbranch_scc0 L_d{tag}
                    s_endpgm
                    """)
                A(f"L_f{tag}:")
                A(f"v_add_u32 v{vP}, 1, v{vP}")
                A(f"""
                L_e{tag}:
                v_writelane_b32 v{vt}, s76, 7
                s_sub_u32 s76, {nc}, s76
                s_mov_b64 exec, 0xff
                ds_write_b32 v{vPa}, v{vt} offset:{tk}
                s_mov_b64 exec, {jm}
                v_add_u32 v{vP}, s76, v{vP}
                s_mov_b64 exec, -1
                ds_max_i32 v{vPa}, v{vP}
                """)
            dynloop("1", vT1, 44, w7, 32*7168, "s85", 12, NCF, TK, 3)
            if stamps:
                A(f"v_writelane_b32 v{VST}, s76, 29")
            stamp(4)
            A(f"v_mov_b32 v{vFa}, {FB}")
            A(f"ds_read_b32 v{vFr}, v{vFa}")
            freechk(dx)
            A.mute = False
            fcnt[0] = 8 if real else 4
            tloop(56, vo, "s66", 32768, 7, RB, free=FC, dd=dx)
            stamp(5)
            assert NBW == 5 and NCW <= 6
            A(f"""
            s_mov_b32 m0, {RC}
            s_mov_b64 s[86:87], 1
            L_c2:
            s_mov_b64 exec, s[86:87]
            global_atomic_add v{vT2}, v46, v44, s[28:29] sc0 {dpol}
            s_mov_b64 exec, -1
            """)
            group(52, vo, "s65")
            A(f"""
            s_lshl_b32 s86, s86, 1
            s_add_u32 s65, s65, 32768
            s_add_u32 m0, m0, 4096
            s_waitcnt vmcnt({4*dx + (0 if real else 1)})
            """)
            publish()
            A(f"s_cmp_lg_u32 m0, {RC + NBW*4096}")
            A("s_cbranch_scc1 L_c2")
            if NCW == 6:
                A("s_mov_b64 exec, s[86:87]")
                A(f"global_atomic_add v{vT2}, v46, v44, s[28:29] sc0 {dpol}")
                A("s_mov_b64 exec, -1")
            dynloop("2", vT2, 52, vo, 32768, "s78", GSW * (8 - NBW), NCW, TK + 32, 1)
            if stamps:
                A(f"v_writelane_b32 v{VST}, s76, 30")
            stamp(6)
            for k in range(dx - 1, -1, -1):
                A(f"s_waitcnt vmcnt({4*k})")
                publish()
            stamp(7)
            dump_stamps()
            A("s_endpgm")
            return
        tloop(44, w7, "s63", 32 * 7168, 7, RD, free=FA, wrap=True, dd=dx)
        checkpoint("U")
        if unb or xcnt:
            A(f"v_add_u32 v{vP}, s76, v{vP}")
        tloop(44 if dg else 48, w7, "s63" if dg else "s64", 32 * 7168, "s75" if unb or xcnt else 7, RA, free=FB, wrap=True, dd=dx)
        stamp(4)
        checkpoint("O")
        if dy:
            GS_, NB, NC = dy
            NG = 32 // GS_
            POOL = GS_ * (8 - NB)
            Lc = dx + 1
            CL = [46 + i for i in range(NC)]
            dygrp("s75", "s76", "s77")
            A(f"""
            s_and_b32 s77, s2, 7
            s_lshl_b32 s78, s77, 8
            s_mul_i32 s77, s77, {NG}
            s_add_u32 s77, s77, s75
            s_lshl_b32 s77, s77, 7
            s_add_u32 s77, s77, {CNT}
            v_mov_b32 v45, s77
            v_mov_b32 v44, 1
            s_mul_i32 s75, s75, {8*GS_}
            s_mul_i32 s76, s76, {NB}
            s_add_u32 s76, s76, s75
            s_lshl_b32 s65, s76, 15
            s_add_u32 s65, s65, s78
            s_add_u32 s75, s75, {NB*GS_}
            s_lshl_b32 s75, s75, 15
            s_add_u32 s78, s78, s75
            s_waitcnt lgkmcnt(0)
            s_add_u32 s79, s82, 1
            s_lshl_b32 s79, s79, 8
            """)
            first = 45 + NB - Lc - dlead
            assert first >= 38 + 1
            def claim(r):
                A("s_mov_b64 exec, 1")
                A(f"global_atomic_add v{r}, v45, v44, s[28:29] sc0 {dpol}")
                A("s_mov_b64 exec, -1")
            nfix = min(first, 45) - 38
            tloop(56, vo, "s66", 32768, nfix, RB, free=FC, dd=dx)
            stamp(5)
            cl = []
            for i in range(38 + nfix, 45 + NB + NC):
                j = i - (45 + NB)
                if i == 45:
                    A(f"s_mov_b32 m0, {RC}")
                if i == 53:
                    A(f"s_mov_b32 m0, {RD}")
                if j >= 0:
                    A(f"v_readfirstlane_b32 s75, v{CL[j]}")
                    A("s_sub_u32 s75, s75, s79")
                    A(f"s_movk_i32 s76, {NC - j}")
                    A(f"s_cmp_ge_u32 s75, {POOL}")
                    A("s_cbranch_scc1 L_dend")
                    A("s_lshl_b32 s75, s75, 15")
                    A("s_add_u32 s75, s75, s78")
                if i < 45:
                    group(56, vo, "s66")
                    A("s_add_u32 s66, s66, 32768")
                elif j < 0:
                    group(52, vo, "s65")
                    A("s_add_u32 s65, s65, 32768")
                else:
                    group(52, vo, "s75")
                if first <= i < first + NC:
                    claim(CL[i - first]); cl.append(i)
                A("s_add_u32 m0, m0, 4096")
                A(f"s_waitcnt vmcnt({4*dx + sum(1 for c in cl if c >= i - dx + (0 if dlead else 1))})")
                publish()
            A("s_mov_b32 s76, 0")
            A("L_dend:")
            A(f"v_add_u32 v{vP}, s76, v{vP}")
            A(f"ds_max_i32 v{vPa}, v{vP}")
            stamp(6)
            if stamps:
                A(f"v_writelane_b32 v{VST}, s76, 30")
            for k in range(dx - 1, -1, -1):
                A(f"s_waitcnt vmcnt({4*k})")
                publish()
            stamp(7)
            dump_stamps()
            A("s_endpgm")
            return
        if dyn:
            Lc = dx + 1
            CL = [46 + i for i in range(Lc)]
            A("s_and_b32 s75, s2, 7")
            A("s_lshl_b32 s75, s75, 12")
            A("v_mov_b32 v45, s75")
            A("v_mov_b32 v44, 1")
            A("s_and_b32 s76, s2, 7")
            A("s_lshl_b32 s76, s76, 8")
            def claim(r):
                A("s_mov_b64 exec, 1")
                A(f"global_atomic_add v{r}, v45, v44, s[26:27] sc0 {apol}")
                A("s_mov_b64 exec, -1")
            tloop(52, vo, "s65", 32768, 8 - Lc, RB, free=None, dd=d3x)
            for i in range(Lc):
                group(52, vo, "s65")
                claim(CL[i])
                A("s_add_u32 s65, s65, 32768")
                A("s_add_u32 m0, m0, 4096")
                A(f"s_waitcnt vmcnt({4*dx + min(i + 1, dx)})")
                publish()
            stamp(5)
            A(f"s_mov_b32 m0, {RC}")
            for i in range(dmax):
                r = CL[i % Lc]
                A(f"v_readfirstlane_b32 s75, v{r}")
                A("s_cmp_ge_u32 s75, 224")
                A("s_cbranch_scc1 L_dend")
                A("s_lshl_b32 s75, s75, 15")
                A("s_add_u32 s75, s75, s76")
                group(56, vo, "s75")
                if i + Lc < dmax:
                    claim(r)
                A("s_add_u32 m0, m0, 4096")
                A(f"s_waitcnt vmcnt({4*dx + sum(1 for j in range(i - dx + 1, i + 1) if j + Lc < dmax)})")
            A("L_dend:")
            stamp(6)
            A("s_waitcnt vmcnt(0)")
            A(f"v_mov_b32 v{vP}, 53")
            A(f"ds_max_i32 v{vPa}, v{vP}")
            stamp(7)
            dump_stamps()
            A("s_endpgm")
            return
        tloop(52, vo, "s65", 32768, 8, RB, free=FC, dd=d3x, grow=d3x - dx)
        stamp(5)
        checkpoint("D")
        if sp:
            Lsk = A.lab("L_skd")
            A("s_cmp_ge_u32 s2, 224")
            A(f"s_cbranch_scc1 {Lsk}")
        tloop(56, vo, "s66", 32768, 8 if sp else 7, RC, dd=d3x)
        if sp:
            A(f"{Lsk}:")
        stamp(6)
        if wb == 2:
            wbl2()
        for k in range((max(dds) if ad else sst["dd"] if sched else d3x) - 1, -1, -1):
            A(f"s_waitcnt vmcnt({4*k})")
            if lst:
                lstamp()
            if ad or sched:
                A(f"v_mov_b32 v{vP}, {53-k}")
                A(f"ds_max_i32 v{vPa}, v{vP}")
            elif sp and k == 0:
                A(f"v_mov_b32 v{vP}, 54")
                A(f"ds_max_i32 v{vPa}, v{vP}")
            else:
                publish()
        if ad and stamps:
            A(f"v_writelane_b32 v{VST}, s76, 30")
        stamp(7)
        if wb == 1:
            wbl2()
        if lst:
            A("s_mov_b64 exec, s[94:95]")
            A(f"v_mov_b32 v{VST}, s98")
            A("s_mov_b64 exec, -1")
        if stamps and not lst:
            A("s_getreg_b32 s96, hwreg(HW_REG_HW_ID)")
            A(f"v_writelane_b32 v{VST}, s96, 31")
        dump_stamps()
        A("s_endpgm")


    if win:
        uniq = []
        for w_ in win:
            if w_ not in uniq:
                uniq.append(w_)
        A("s_bfe_u32 s67, s2, 0x20003")
        A(f"s_cmp_eq_u32 s67, {wk}")
        A("s_cselect_b32 s67, 2, 0")
        A(f"s_bfe_u32 s68, s2, 0x1000{hibit}")
        A("s_add_u32 s67, s67, s68")
        for i in range(1, 4):
            if win[i] != win[0]:
                A(f"s_cmp_eq_u32 s67, {i}")
                A(f"s_cbranch_scc1 L_win{uniq.index(win[i])}")
        for i, w_ in enumerate(uniq):
            A(f"L_win{i}:")
            stream(w_[0] // 4, w_[1] // 4)
    else:
        if Dhi:
            A(f"s_bitcmp1_b32 s2, {hibit}")
            A("s_cbranch_scc1 L_hi")
        stream(d, d3)
        if Dhi:
            A("L_hi:")
            stream(Dhi // 4, max(Dhi, D3hi) // 4)

    vN, vQ, vZ, vMK, vONE = 1, 2, 3, 4, 33
    aW, aV0, aV1 = 10, 24, 25
    X, F, ACC = 40, 72, 104
    T = ["s50", "s51", "s52", "s53"]
    SW = "s54"
    WS = "s[36:39]"
    M_N2, M_N4, M_HI8, M_B1 = "s[60:61]", "s[62:63]", "s[64:65]", "s[66:67]"
    SJ = "s68"
    SID = "s71"
    vID = 137
    if pf == 0:
        PFCODE = """s_cmp_gt_u32 s3, 2
        s_cbranch_scc1 L_nopf
        v_lshlrev_b32 v1, 7, v0
        v_add_u32 v1, -8192, v1
        global_load_dword v136, v1, s[40:41]"""
    elif pf == 1:
        PFCODE = f"""s_cmp_gt_u32 s3, 3
        s_cbranch_scc1 L_nopf
        s_sub_u32 s40, s40, L_worker+{8 if stamps else 4}-{NAME}_kernel
        s_subb_u32 s41, s41, 0
        v_lshlrev_b32 v1, 7, v0
        v_add_u32 v1, -8192, v1
        global_load_dword v136, v1, s[40:41]"""
    elif pf == 2:
        PFCODE = "s_nop 0"
    A("L_worker:")
    if dly:
        A("s_memrealtime s[94:95]")
    if stamps:
        A("s_mov_b32 m0, 32")
    A(f"""
    s_getpc_b64 s[40:41]
    {PFCODE}
    L_nopf:
    v_and_b32 v0, 63, v0
    v_mov_b32 v4, 0
    v_mov_b32 v5, 0
    v_mov_b32 v6, 0
    v_mov_b32 v7, 0
    v_lshlrev_b32 v2, 4, v0
    ds_write_b128 v2, v[4:7]
    ds_write_b128 v2, v[4:7] offset:1024
    s_lshl_b32 s55, {RB1}, 9
    v_lshrrev_b32 v{vQ}, 4, v0
    v_and_b32 v9, 1, v0
    v_lshlrev_b32 v9, 11, v9
    v_lshl_add_u32 v9, v{vQ}, 4, v9
    s_mov_b32 s34, 4096
    s_mov_b32 s62, 0x000f000f
    s_mov_b32 s63, 0x000f000f
    s_waitcnt lgkmcnt(0)
    s_load_dwordx2 s[48:49], s[28:29], {EPOCH}
    """)
    if xl:
        A(f"s_add_u32 s55, s55, {XS}")
        A("v_add_u32 v34, s55, v9")
        if xl == 2:
            A(f"""
            s_mov_b64 s[32:33], s[4:5]
            s_cmp_gt_u32 s3, 4
            s_cbranch_scc1 L_nox1
            s_lshl_b32 s55, s3, 10
            s_add_u32 m0, s55, {XS - 1024}
            s_sub_u32 s55, s55, 1024
            v_lshlrev_b32 v5, 4, v0
            buffer_load_dwordx4 v5, s[32:35], s55 offen lds
            L_nox1:
            """)
            if stamps:
                A("s_mov_b32 m0, 32")
        A.mute = True
    A(f"""
    s_mov_b64 s[32:33], s[4:5]
    s_cmp_gt_u32 s3, 4
    s_cbranch_scc1 L_nox
    s_mov_b64 exec, s[62:63]
    """)
    for s in range(8):
        A(f"buffer_load_dwordx4 v[{X+4*s}:{X+4*s+3}], v9, s[32:35], s55 offen offset:{64*s}")
    if tl:
        A("s_branch L_nox2")
        A("L_nox:")
        A(f"s_cmp_lg_u32 s3, {tlw}")
        A("s_cbranch_scc1 L_nox2")
        A(f"""
        s_and_b32 s55, s2, 7
        s_lshr_b32 s56, s2, 3
        s_lshl_b32 s57, s55, 23
        s_lshl_b32 s58, s56, 15
        s_add_u32 s57, s57, s58
        s_add_u32 s57, s57, {28672*256}
        v_mov_b32 v10, s57
        s_mov_b64 exec, 1
        """)
        if 'k' in tl:
            A("global_load_dword v138, v10, s[6:7]")
            A("global_load_dword v139, v10, s[8:9]")
        A(f"""
        s_mov_b64 exec, -1
        s_lshl_b32 s57, s55, 5
        s_add_u32 s57, s57, s56
        s_mul_i32 s57, s57, 7
        v_add_u32 v10, s57, v0
        v_lshrrev_b32 v11, 5, v10
        v_lshlrev_b32 v11, 7, v11
        v_and_b32 v10, 31, v10
        v_mul_u32_u24 v10, {32*7168}, v10
        v_add_u32 v10, v10, v11
        s_mov_b64 exec, {0x7f if 'G' in tl else 0x41}
        """)
        if 'g' in tl.lower():
            A("global_load_dword v138, v10, s[16:17]")
            A("global_load_dword v139, v10, s[18:19]")
        A(f"""
        s_mov_b64 exec, -1
        s_xor_b32 s55, s55, {cbx}
        s_lshl_b32 s55, s55, 8
        s_lshl_b32 s57, s56, 18
        s_add_u32 s57, s57, s55
        v_lshlrev_b32 v11, 15, v0
        v_add_u32 v10, s57, v11
        s_mul_i32 s57, s56, {112*2048}
        s_add_u32 s57, s57, s55
        v_add_u32 v11, s57, v11
        s_mov_b64 exec, {0x55 if 'O' in tl else 0x41}
        """)
        if 'o' in tl.lower():
            A("global_load_dword v138, v10, s[12:13]")
            A("global_load_dword v139, v11, s[20:21]")
        A("L_nox2:")
        A("s_mov_b64 exec, -1")
    else:
        A("s_mov_b64 exec, -1")
        A("L_nox:")
    A.mute = False
    A(f"""
    s_barrier
    s_sub_u32 {SW}, s3, 1
    s_and_b32 {SW}, {SW}, 3
    s_mov_b32 {SPROG}, 0
    v_and_b32 v{vN}, 15, v0
    v_mov_b32 v{vZ}, 0
    v_mov_b32 v{vMK}, 0x{0xFFFFFFFF ^ TAGM:x}
    v_mov_b32 v{vONE}, 1
    s_mov_b32 s38, {0x1000000 if xo else WS_END}
    s_mov_b32 s39, 0x20000
    s_add_u32 s36, s28, {wsoff}
    s_addc_u32 s37, s29, 0
    v_bfe_u32 v5, v0, 2, 2
    v_lshl_add_u32 v5, v{vQ}, 3, v5
    v_and_b32 v6, 3, v0
    v_lshlrev_b32 v6, 3, v6
    v_bfe_u32 v7, v0, 3, 2
    v_xor_b32 v7, {SW}, v7
    v_lshl_add_u32 v7, v7, 5, v6
    v_lshl_add_u32 v{aW}, v5, 7, v7
    s_lshl_b32 s55, {SW}, 1
    v_bfe_u32 v7, v0, 2, 3
    v_xor_b32 v7, s55, v7
    v_lshl_add_u32 v7, v7, 5, v6
    v_lshl_add_u32 v{aV0}, v5, 8, v7
    s_mov_b32 s60, 0x00030003
    s_mov_b32 s61, 0x00030003
    s_waitcnt lgkmcnt(0)
    s_add_u32 s48, s48, 1
    s_addc_u32 s49, s49, 0
    s_and_b32 s50, s48, {TAGM}
    s_lshr_b32 s55, s48, 12
    s_add_u32 s55, s55, s48
    s_and_b32 s51, s55, {TAGM}
    s_lshr_b64 s[56:57], s[48:49], 24
    s_add_u32 s55, s56, s48
    s_and_b32 s52, s55, {TAGM}
    s_lshr_b32 s55, s49, 4
    s_add_u32 s55, s55, s48
    s_and_b32 s53, s55, {TAGM}
    s_getreg_b32 s55, hwreg(HW_REG_XCC_ID, 0, 4)
    s_lshl4_add_u32 {SID}, s48, s55
    """)
    if half:
        A(f"s_bitcmp1_b32 s2, {half}")
        A(f"s_cselect_b32 s38, s38, 0")
    a3, aBR, aAS, aGS = 140, 153, 154, 155
    aL16, oFP2, vGC = 156, 157, 158

    def common2(reg3, bsrc, part, pitch=256):
        A(f"""
        s_mov_b32 s64, 0xff00ff00
        s_mov_b32 s65, 0xff00ff00
        s_mov_b32 s66, 0xcccccccc
        s_mov_b32 s67, 0xcccccccc
        s_mov_b64 s[44:45], s[24:25]
        s_mov_b32 s46, 4096
        s_mov_b32 s47, 0x20000
        """)
        jidx(SJ, "s55")
        A(f"""
        v_add_u32 v{a3}, {reg3}, v{aV0}
        v_xor_b32 v{a3+1}, 32, v{a3}
        v_and_b32 v5, 1, v0
        {'v_lshlrev_b32 v6, 8, v5' if pitch == 256 else f'v_mul_u32_u24 v6, {pitch}, v5'}
        v_lshl_add_u32 v6, v{vQ}, 4, v6
        v_add_u32 v{aBR}, {bsrc}, v6
        v_lshlrev_b32 v{aGS}, 3, v5
        """)
        if not sym:
            A(f"""
            s_lshl_b32 s55, {SW}, 10
            s_add_u32 s55, s55, {AS}
            v_lshlrev_b32 v6, 4, v0
            v_add_u32 v{aAS}, s55, v6
            """)
        else:
            A(f"""
            s_lshl_b32 s55, {SW}, 8
            s_add_u32 s55, s55, {AS + 1024 * part}
            v_and_b32 v6, 3, v0
            v_lshlrev_b32 v6, 6, v6
            v_lshl_add_u32 v6, v{vQ}, 4, v6
            v_add_u32 v{aAS}, s55, v6
            v_lshlrev_b32 v{aL16}, 4, v0
            s_and_b32 s55, {"s2" if b3 >= 2 else SJ}, 7
            s_lshl_b32 s55, s55, 15
            s_lshr_b32 s56, {"s2" if b3 >= 2 else SJ}, 3
            s_lshl_b32 s56, s56, 7
            s_add_u32 s55, s55, s56
            s_add_u32 s55, s55, {FP}
            v_lshrrev_b32 v5, 3, v0
            v_lshlrev_b32 v5, 12, v5
            v_and_b32 v6, 7, v0
            v_lshl_add_u32 v5, v6, 4, v5
            v_add_u32 v{oFP2}, s55, v5
            """)

    def id_load():
        A(f"""
        s_and_b32 s55, s2, 7
        s_lshl_b32 s55, s55, 7
        s_add_u32 s55, s55, {IDT}
        v_and_b32 v5, 31, v0
        v_lshlrev_b32 v5, 2, v5
        buffer_load_dword v{vID}, v5, {WS}, s55 offen
        """)

    def id_check(dst):
        A(f"v_cmp_ne_u32 {dst}, {SID}, v{vID}")

    def pub(stores, key, flag):
        def emit(pol):
            for ex, t in stores:
                if ex is not None:
                    A(f"s_mov_b64 exec, {ex}")
                A(t + pol)
        if key not in loc:
            emit(" sc1")
        else:
            a, b = A.lab("L_pw"), A.lab("L_pd")
            A(f"s_cmp_lg_u64 {flag}, 0")
            A(f"s_cbranch_scc1 {a}")
            emit(" " + lpol[key] if key in lpol else "")
            stamp(20)
            A(f"s_branch {b}")
            A(f"{a}:")
            emit(" sc1")
            stamp(21)
            A(f"{b}:")
        A("s_mov_b64 exec, -1")

    def hint_store(soff):
        A("s_mov_b64 exec, 1")
        A(f"v_mov_b32 v5, s48")
        A(f"buffer_store_byte v5, off, {WS}, {soff}")
        A("s_mov_b64 exec, -1")

    def hint_wait(soff, nd, flag, thr):
        sp, ok = A.lab("L_hsp"), A.lab("L_hok")
        A("s_and_b32 s56, s48, 0xff")
        A("s_mul_i32 s56, s56, 0x01010101")
        A("s_mov_b32 s57, s56")
        A(f"{sp}:")
        A(f"s_load_dwordx{nd} s[80:{80+nd-1}], s[28:29], {soff} glc")
        A(f"ds_read_b32 v5, v{vZ} offset:{PROG}")
        A("s_waitcnt lgkmcnt(0)")
        A(f"v_readfirstlane_b32 {SPROG}, v5")
        for i in range(0, nd, 2):
            A(f"s_xor_b64 s[{80+i}:{81+i}], s[{80+i}:{81+i}], s[56:57]")
        k = nd
        while k > 2:
            k //= 2
            for i in range(0, k, 2):
                A(f"s_or_b64 s[{80+i}:{81+i}], s[{80+i}:{81+i}], s[{80+k+i}:{81+k+i}]")
        A(f"s_cbranch_scc0 {ok}")
        budget()
        A(f"s_cmp_lt_i32 {SPROG}, {thr}")
        A(f"s_cbranch_scc1 {sp}")
        A(f"{ok}:")

    def wait_prog(thr):
        if isinstance(thr, str) and thr[0] in "TU":
            return wait_cnt(8 if thr[0] == "T" else 4, thr[1:], [])
        if isinstance(thr, str) and thr[0] == "i":
            return wait_cnt(4, int(thr[1:]), [])
        ok, sp = A.lab("L_pok"), A.lab("L_psp")
        if isinstance(thr, list):
            A("s_bfe_u32 s59, s2, 0x20003")
            A("s_cmp_eq_u32 s59, 1")
            A(f"s_cselect_b32 s59, {thr[1]}, {thr[0]}")
            thr = "s59"
        if isinstance(thr, tuple):
            A(f"s_bitcmp1_b32 s2, {hibit}")
            A(f"s_cselect_b32 s59, {thr[1]}, {thr[0]}")
            thr = "s59"
        A(f"s_cmp_ge_i32 {SPROG}, {thr}")
        A(f"s_cbranch_scc1 {ok}")
        A(f"{sp}:")
        A(f"ds_read_b32 v5, v{vZ} offset:{PROG}")
        A("s_waitcnt lgkmcnt(0)")
        A(f"v_readfirstlane_b32 {SPROG}, v5")
        budget()
        A(f"s_cmp_lt_i32 {SPROG}, {thr}")
        A(f"s_cbranch_scc1 {sp}")
        A(f"{ok}:")

    def arrive(cnt):
        A("s_mov_b64 exec, 1")
        A(f"ds_add_u32 v{vZ}, v{vONE} offset:{cnt}")
        A("s_mov_b64 exec, -1")

    def wait_cnt(cnt, n, reads):
        sp = A.lab("L_csp")
        A(f"{sp}:")
        A(f"ds_read_b32 v5, v{vZ} offset:{cnt}")
        for r in reads:
            A(r)
        A("s_waitcnt lgkmcnt(0)")
        A("v_readfirstlane_b32 s55, v5")
        budget()
        A(f"s_cmp_lt_u32 s55, {n}")
        A(f"s_cbranch_scc1 {sp}")

    def tag4(dst, src):
        for j in range(4):
            A(f"v_and_or_b32 v{dst+j}, v{src+j}, v{vMK}, {T[j]}")

    MASKS = [80, 82, 84, 86, 88, 90, 92, 94]

    def gather(loads, first, hop="", ex=None, rawoff=0, flag=None, mid=None, giveup=None):
        if nog is True or (nog and hop in nog):
            A("s_mov_b64 exec, -1")
            return
        g, dn = A.lab("L_g"), A.lab("L_gd")
        n = len(loads)

        def ld(dst, vo_, off, pol):
            o = f" offset:{off}" if off else ""
            A(f"buffer_load_dwordx4 v[{dst}:{dst+3}], v{vo_}, {WS}, 0 offen{o} {pol}")

        K = pipe.get(hop, 0)
        raw = (lambda dst: dst + rawoff) if K else (lambda dst: dst)
        ld0 = ld
        ld = lambda dst, vo_, off, pol: ld0(raw(dst), vo_, off, pol)

        def chk(i, dst):
            m = MASKS[i]
            for j in range(4):
                A(f"v_xor_b32 v{dst+j}, {T[j]}, v{raw(dst)+j}")
            A(f"v_or3_b32 v5, v{dst}, v{dst+1}, v{dst+2}")
            A(f"v_or_b32 v5, v5, v{dst+3}")
            A(f"v_and_b32 v5, {TAGM}, v5")
            A(f"v_cmp_ne_u32 s[{m}:{m+1}], 0, v5")

        def anym():
            if n == 1:
                A(f"s_mov_b64 vcc, s[{MASKS[0]}:{MASKS[0]+1}]")
            for i in range(1, n):
                src = f"s[{MASKS[0]}:{MASKS[0]+1}]" if i == 1 else "vcc"
                A(f"s_or_b64 vcc, {src}, s[{MASKS[i]}:{MASKS[i]+1}]")

        stamp({"q": 10, "o": 12, "g": 10, "f": 12}[hop])
        for i, (dst, vo_, off) in enumerate(loads):
            if ex and (i == 0 or ex[i] != ex[i-1]):
                A(f"s_mov_b64 exec, {ex[i]}")
            ld(dst, vo_, off, first)
        if mid:
            A("s_mov_b64 exec, -1")
            mid()
        for i, (dst, vo_, off) in enumerate(loads):
            if ex and (ex[i] != ex[i-1] or (mid and i == 0)):
                A(f"s_mov_b64 exec, {ex[i]}")
            A(f"s_waitcnt vmcnt({n-1-i})")
            chk(i, dst)
        anym()
        dstamp()
        stamp({"q": 11, "o": 13, "g": 11, "f": 13}[hop])
        if hop in once:
            A("s_mov_b64 exec, -1")
            return
        A(f"s_cbranch_vccz {dn}")
        if giveup:
            A(giveup)
        A(f"{g}:")
        if hop in "og" and rinv:
            A("buffer_inv sc0")
        def reissue(pol):
            for i, (dst, vo_, off) in enumerate(loads):
                A(f"s_mov_b64 exec, s[{MASKS[i]}:{MASKS[i]+1}]")
                ld(dst, vo_, off, pol)
        if flag is None or hop not in lret:
            reissue("sc1")
        else:
            a_, b_ = A.lab("L_ra"), A.lab("L_rb")
            A(f"s_cmp_lg_u64 {flag}, 0")
            A(f"s_cbranch_scc1 {a_}")
            reissue("nt")
            A(f"s_branch {b_}")
            A(f"{a_}:")
            reissue("sc1")
            A(f"{b_}:")
        if K:
            few = A.lab("L_few")
            A(f"s_bcnt1_i32_b64 s55, s[{MASKS[0]}:{MASKS[0]+1}]")
            for i in range(1, n):
                A(f"s_bcnt1_i32_b64 s56, s[{MASKS[i]}:{MASKS[i]+1}]")
                A("s_add_u32 s55, s55, s56")
            A(f"s_cmp_le_u32 s55, {pthr}")
            A(f"s_cbranch_scc1 {few}")
            A("s_waitcnt vmcnt(0)")
            A(f"{few}:")
            A(f"s_waitcnt vmcnt({n*(K-1)})")
        for i, (dst, vo_, off) in enumerate(loads):
            A(f"s_mov_b64 exec, s[{MASKS[i]}:{MASKS[i]+1}]")
            if not K:
                A(f"s_waitcnt vmcnt({n-1-i})")
            chk(i, dst)
        anym()
        if not K:
            dstamp()
        budget(16)
        A(f"s_cbranch_vccnz {g}")
        A(f"{dn}:")
        A("s_mov_b64 exec, -1")

    def gatherP(loads, raws, first, retry, hop, ex=None, chkf=None, flag=None):
        K, M = pg[hop]
        n = len(loads)
        top, dn = A.lab("L_q"), A.lab("L_qd")

        def issue(pol):
            for i, (dst, vo_, off) in enumerate(loads):
                A(f"s_mov_b64 exec, s[{MASKS[i]}:{MASKS[i]+1}]")
                o = f" offset:{off}" if off else ""
                A(f"buffer_load_dwordx4 v[{raws[i]}:{raws[i]+3}], v{vo_}, {WS}, 0 offen{o} {pol}")

        def chk():
            for i, (dst, vo_, off) in enumerate(loads):
                m = MASKS[i]
                A(f"s_mov_b64 exec, s[{m}:{m+1}]")
                if chkf:
                    chkf(raws[i])
                else:
                    for j in range(4):
                        A(f"v_xor_b32 v{dst+j}, {T[j]}, v{raws[i]+j}")
                    A(f"v_or3_b32 v5, v{dst}, v{dst+1}, v{dst+2}")
                    A(f"v_or_b32 v5, v5, v{dst+3}")
                    A(f"v_and_b32 v5, {TAGM}, v5")
                A(f"v_cmp_ne_u32 s[{m}:{m+1}], 0, v5")
            if n == 1:
                A(f"s_cmp_eq_u64 s[{MASKS[0]}:{MASKS[0]+1}], 0")
                A(f"s_cbranch_scc1 {dn}")
            else:
                for i in range(1, n):
                    src = f"s[{MASKS[0]}:{MASKS[0]+1}]" if i == 1 else "vcc"
                    A(f"s_or_b64 vcc, {src}, s[{MASKS[i]}:{MASKS[i]+1}]")
                A(f"s_cbranch_scc0 {dn}")

        stamp({"o": 12, "g": 10, "p": 12}[hop])
        for i in range(n):
            A(f"s_mov_b64 s[{MASKS[i]}:{MASKS[i]+1}], {ex[i] if ex else -1}")
            A(f"v_not_b32 v{raws[i]}, {T[0]}")
        issue(first)
        lp = A.lab("L_ql")
        A(f"{top}:")
        A(f"s_mov_b32 s55, {M}")
        A(f"{lp}:")
        chk()
        A("s_sub_u32 s55, s55, 1")
        A(f"s_cbranch_scc0 {lp}")
        A(f"s_waitcnt vmcnt({n*(K-1)})")
        chk()
        budget(16)
        dstamp()
        if flag is None:
            issue(retry)
            A(f"s_branch {top}")
        else:
            rm = A.lab("L_qr")
            A(f"s_cmp_lg_u64 {flag}, 0")
            A(f"s_cbranch_scc1 {rm}")
            issue(retry)
            A(f"s_branch {top}")
            A(f"{rm}:")
            issue("sc1")
            A(f"s_branch {top}")
        A(f"{dn}:")
        A("s_mov_b64 exec, -1")

    def mfma(dst, a, b, c):
        cs = "0" if c is None else f"v[{c}:{c+3}]"
        A(f"v_mfma_f32_16x16x32_bf16 v[{dst}:{dst+3}], v[{a}:{a+3}], v[{b}:{b+3}], {cs}")

    def gemv64(areg, acc, gbase, splits, first_vm=False, xr=None, cont=False, waits=None):
        s0 = 0
        for k, s1 in enumerate(splits):
            if k == 0 and first_vm and xl == 2:
                A("s_waitcnt vmcnt(0)")
                arrive(0x124)
                wait_cnt(0x124, 4, [])
                for s in range(8):
                    A(f"ds_read_b128 v[{X+4*s}:{X+4*s+3}], v34 offset:{64*s}")
            wait_prog(waits[k] if waits else gbase + s1)
            if k == 0 and first_vm and xl == 1:
                for s in range(8):
                    A(f"ds_read_b128 v[{X+4*s}:{X+4*s+3}], v34 offset:{64*s}")
            for s in range(s0, s1):
                A(f"ds_read_b64_tr_b16 v[{F+4*s}:{F+4*s+1}], v{areg} offset:{4096*s}")
                A(f"ds_read_b64_tr_b16 v[{F+4*s+2}:{F+4*s+3}], v{areg} offset:{4096*s+512}")
            if k == 0 and first_vm and not xl:
                A("s_waitcnt vmcnt(0)")
            for s in range(s0, s1):
                A(f"s_waitcnt lgkmcnt({2*(s1-1-s)})")
                mfma(acc, F + 4 * s, xr[s] if xr else X + 4 * s, None if s == 0 and not cont else acc)
            s0 = s1

    def bf16_round_pair(pk, lo, hi, a, b):
        A(f"v_cvt_pk_bf16_f32 v{pk}, v{a}, v{b}")
        A(f"v_lshlrev_b32 v{lo}, 16, v{pk}")
        A(f"v_and_b32 v{hi}, 0xffff0000, v{pk}")

    DPPM = "row_mask:0xf bank_mask:0xf"
    BT = X

    def bt_reads(n=4):
        return [f"ds_read_b128 v[{BT+4*s}:{BT+4*s+3}], v{aBR} offset:{64*s}" for s in range(n)]

    def wreg(s, t):
        return F + 16 * t + 4 * s if s < 4 else 120 + 8 * t + 4 * (s - 4)

    def rd3(ss):
        for s in ss:
            for t in range(2):
                r = wreg(s, t)
                A(f"ds_read_b64_tr_b16 v[{r}:{r+1}], v{a3+t} offset:{8192*s}")
                A(f"ds_read_b64_tr_b16 v[{r+2}:{r+3}], v{a3+t} offset:{8192*s+1024}")

    def mm3(ss):
        for s in ss:
            for t in range(2):
                mfma(ACC + 4 * t, wreg(s, t), BT + 4 * s, None if s == 0 else ACC + 4 * t)

    def sel3():
        for j in range(4):
            A(f"v_cndmask_b32 v{ACC+j}, v{ACC+j}, v{ACC+4+j}, {M_B1}")

    def red4(r):
        A(f"""
        v_permlane32_swap_b32 v{r}, v{r+2}
        v_permlane32_swap_b32 v{r+1}, v{r+3}
        v_add_f32 v{r}, v{r}, v{r+2}
        v_add_f32 v{r+1}, v{r+1}, v{r+3}
        v_permlane16_swap_b32 v{r}, v{r+1}
        v_add_f32 v{r}, v{r}, v{r+1}
        """)

    T16 = "s77"

    def pxg(voff, alds, ldsoff, ex, gate, cnt, hop):
        R = ACC + 4
        l0, l1 = A.lab("L_px0"), A.lab("L_px1")
        A("s_mov_b32 s58, 0x07060302")
        wait_prog(gate)
        stamp(12 if hop == "p" else 14)
        if ex:
            A(f"s_mov_b32 exec_hi, {ex}")
        if not (nog is True or (nog and hop in nog)):
            A(f"buffer_load_dwordx4 v[{R}:{R+3}], v{voff}, {WS}, 0 offen {ppol}")
            A(f"s_branch {l1}")
            A(f"{l0}:")
            budget(16)
            A("s_mov_b64 exec, vcc")
            A(f"buffer_load_dwordx4 v[{R}:{R+3}], v{voff}, {WS}, 0 offen sc1")
            A(f"{l1}:")
            A("s_waitcnt vmcnt(0)")
            A(f"v_xor_b32 v6, v{R}, v{R+1}")
            A(f"v_xor_b32 v7, v{R+2}, v{R+3}")
            A(f"v_xor_b32 v8, v{R}, v{R+2}")
            A(f"v_or3_b32 v6, v6, v7, v8")
            A(f"v_xor_b32 v7, {T16}, v{R}")
            A(f"v_or_b32 v6, v6, v7")
            A("v_and_b32 v6, 0xffff, v6")
            A(f"v_cmp_ne_u32 vcc, 0, v6")
            dstamp()
            if hop not in once:
                A(f"s_cbranch_vccnz {l0}")
            A("s_mov_b64 exec, -1")
            if ex:
                A(f"s_mov_b32 exec_hi, {ex}")
        A(f"v_perm_b32 v6, v{R+1}, v{R}, s58")
        A(f"v_perm_b32 v7, v{R+3}, v{R+2}, s58")
        A(f"ds_write_b64 v{alds}, v[6:7] offset:{ldsoff}")
        stamp(6)
        arrive(cnt)

    A("s_cmp_gt_u32 s3, 4")
    A("s_cbranch_scc1 L_F")

    oQP, oQG, aQsW, aQsR, aK = 11, 12, 13, 14, 15
    aPsW, aMsW, aPlo, aPhi, aMsR = 19, 20, 21, 22, 23
    oOP, oML, oOPG, oMLG, aOsW, oPX = 26, 27, 28, 29, 30, 31
    T16, FLG = "s77", "s[98:99]"
    SBG, SSPL = "s73", "s75"
    SC = "s76"
    A(f"""
    v_add_u32 v{aW}, {RA}, v{aW}
    s_lshr_b32 s55, {CB1}, 2
    s_lshl_b32 s55, s55, 12
    s_lshl_b32 s56, {RB1}, 10
    s_add_u32 s55, s55, s56
    s_and_b32 s56, {CB1}, 3
    s_lshl_b32 s56, s56, 8
    s_add_u32 s55, s55, s56
    s_lshl_b32 s56, {SW}, 6
    s_add_u32 s55, s55, s56
    v_and_b32 v5, 1, v0
    v_lshlrev_b32 v5, 16, v5
    v_lshl_add_u32 v5, v{vQ}, 4, v5
    v_add_u32 v{oQP}, s55, v5
    """)
    MQ = M_N2
    if "q" in cst:
        A(f"""
        s_lshl_b32 s55, s2, 9
        s_lshl_b32 s56, {SW}, 7
        s_add_u32 s55, s55, s56
        v_lshlrev_b32 v5, 4, v0
        v_add_u32 v{oQP}, s55, v5
        """)
        MQ = "0xff"
    stamp(1)
    gemv64(aW, ACC, 0, spl1, first_vm=True)
    arrive(FA)
    tag4(ACC + 4, ACC)
    A(f"s_mov_b64 exec, {MQ}")
    if qfrac:
        A(f"s_lshr_b32 s55, s2, 3")
        A(f"s_and_b32 s55, s55, {qfrac-1}")
        A(f"s_cselect_b64 exec, 0, exec")
    A(f"buffer_store_dwordx4 v[{ACC+4}:{ACC+7}], v{oQP}, {WS}, 0 offen sc1")
    A("s_mov_b64 exec, -1")
    stamp(2)
    OS2, OSP = 0x2800, 448
    common2(RC, OS2, 0, OSP) if real else common2(RB, OS, 0)
    bg(SBG, "s55")
    A(f"""
    s_lshr_b32 {SSPL}, s2, 3
    s_mov_b32 {SC}, {f32(LOG2E)}
    """)
    A(f"""
    s_lshl_b32 s55, {SW}, 13
    s_add_u32 s55, s55, {RB}
    v_xor_b32 v5, v{vQ}, v{vN}
    v_lshlrev_b32 v5, 4, v5
    v_lshl_add_u32 v5, v{vN}, 8, v5
    v_add_u32 v{aK}, s55, v5
    v_xor_b32 v{aK+1}, 64, v{aK}
    v_xor_b32 v{aK+2}, 128, v{aK}
    v_xor_b32 v{aK+3}, 192, v{aK}
    v_add_u32 v{aV0}, {RC}, v{aV0}
    v_xor_b32 v{aV1}, 32, v{aV0}
    """)
    A(f"""
    s_lshl_b32 s55, {SBG}, 2
    s_add_u32 s55, s55, {SW}
    s_lshl_b32 s55, s55, 12
    v_lshlrev_b32 v5, 4, v0
    v_add_u32 v{oQG}, s55, v5
    """)
    A(f"""
    s_mul_i32 s55, {SW}, {2*PITCH}
    s_add_u32 s55, s55, {QS}
    v_lshrrev_b32 v5, 5, v0
    v_mul_u32_u24 v5, {PITCH}, v5
    v_and_b32 v6, 31, v0
    v_lshl_add_u32 v5, v6, 3, v5
    v_add_u32 v{aQsW}, s55, v5
    v_and_b32 v6, 7, v0
    v_mul_u32_u24 v7, {PITCH}, v6
    v_lshl_add_u32 v8, v{vQ}, 4, v7
    v_add_u32 v{aQsR}, {QS}, v8
    v_add_u32 v8, {PS}, v8
    v_mov_b32 v9, {ZERO}
    v_cndmask_b32 v{aPlo}, v8, v9, {M_HI8}
    v_cndmask_b32 v{aPhi}, v9, v8, {M_HI8}
    v_lshlrev_b32 v9, 4, v6
    v_add_u32 v{aMsR}, {MS}, v9
    s_lshl_b32 s55, {SW}, 2
    v_add_u32 v{aMsW}, s55, v{aMsR}
    s_lshl_b32 s55, {SW}, 6
    s_add_u32 s55, s55, {PS}
    v_and_b32 v9, 8, v0
    v_lshlrev_b32 v9, 2, v9
    v_lshl_add_u32 v9, v{vQ}, 3, v9
    v_add3_u32 v{aPsW}, v7, v9, s55
    """)
    A(f"""
    s_lshl_b32 s55, {SBG}, 17
    s_lshl_b32 s56, {SW}, 12
    s_add_u32 s55, s55, s56
    s_lshl_b32 s56, {SSPL}, 7
    s_add_u32 s55, s55, s56
    s_add_u32 s55, s55, {OP}
    v_lshlrev_b32 v9, 1, v9
    v_lshl_add_u32 v9, v6, 14, v9
    v_add_u32 v{oOP}, s55, v9
    s_lshl_b32 s55, {SBG}, 12
    s_lshl_b32 s56, {SSPL}, 4
    s_add_u32 s55, s55, s56
    s_add_u32 s55, s55, {ML}
    v_lshlrev_b32 v9, 9, v6
    v_add_u32 v{oML}, s55, v9
    """)
    SJR, oPXG = SJ, oPX
    RB0 = f"s_cmp_ge_u32 {SW}, 2\n s_cbranch_scc1 L_a2"
    RB1_ = "s_branch L_a3"
    if red:
        SJR, oPXG, RB0, RB1_ = "s74", 159, "", ""
        A(f"s_cmp_ge_u32 {SW}, 2")
        A(f"s_cselect_b32 s74, {red[0]}, 0")
        A(f"s_xor_b32 s74, s74, {SJ}")
    A(f"""
    s_lshl_b32 s55, {SJR}, 12
    s_and_b32 s58, {SW}, 1
    s_lshl_b32 s59, s58, 6
    s_add_u32 s55, s55, s59
    s_add_u32 s55, s55, {OP}
    v_lshrrev_b32 v5, 2, v0
    v_and_b32 v6, 3, v0
    v_lshlrev_b32 v7, 4, v6
    v_lshl_add_u32 v8, v5, 7, v7
    v_add_u32 v{oOPG}, s55, v8
    s_lshr_b32 s57, {SJR}, 2
    s_lshl_b32 s57, s57, 9
    s_add_u32 s57, s57, {ML}
    v_and_b32 v8, 1, v0
    v_lshlrev_b32 v8, 8, v8
    v_lshl_add_u32 v8, v5, 4, v8
    v_add_u32 v{oMLG}, s57, v8
    {RB0}
    s_bfe_u32 s55, {SJR}, 0x50002
    s_lshl_b32 s55, s55, 10
    s_and_b32 s56, s2, 4
    s_lshl_b32 s56, s56, 7
    s_add_u32 s55, s55, s56
    s_and_b32 s56, {SJR}, 3
    s_lshl_b32 s56, s56, 7
    s_add_u32 s55, s55, s56
    s_add_u32 s55, s55, s59
    s_add_u32 s55, s55, {PX}
    v_lshl_add_u32 v8, v{vQ}, 2, v7
    v_add_u32 v{oPX}, s55, v8
    {RB1_}
    L_a2:
    """)
    if real:
        dygrp("s55", "s56", "s57")
        A(f"""
        s_mul_i32 s55, s55, {8*GSW}
        s_mul_i32 s56, s56, {NBW}
        s_cmp_eq_u32 {SW}, 3
        s_cselect_b32 s56, {NBW*GSW}, s56
        s_cselect_b32 s57, {NBW*32}, 0
        s_add_u32 s74, s55, s56
        v_bfe_u32 v8, v0, 2, 1
        v_lshl_add_u32 v9, v8, 9, v7
        v_add_u32 v{oPXG}, {PX}, v9
        v_mul_u32_u24 v8, {OSP}, v8
        v_lshl_add_u32 v8, v6, 3, v8
        v_lshrrev_b32 v9, 3, v0
        v_lshl_add_u32 v8, v9, 5, v8
        v_add_u32 v{aOsW}, s57, v8
        """)
        A.mute = True
    A(f"""
    s_lshl_b32 s55, {SSPL}, 10
    s_add_u32 s55, s55, {PX}
    v_lshlrev_b32 v8, 4, v0
    v_add_u32 v{oPXG}, s55, v8
    v_lshlrev_b32 v{aOsW}, 3, v0
    """)
    A.mute = False
    A(f"""
    L_a3:
    s_and_b32 {T16}, s48, 0xffff
    """)
    oOPG2 = 159
    if "o" in xo:
        A(f"v_add_u32 v{oOPG2}, 2048, v{oOPG}")
        for v_ in (oOP, oOPG, oOPG2):
            xf(v_, OP, 0x400000)
        for v_ in (oML, oMLG):
            xf(v_, ML, 0x800000)
    if "p" in xo:
        xf(oPX, PX, 0x880000)
    if "O" in cst:
        A(f"""
        s_xor_b32 s55, {SJ}, 1
        s_lshl_b32 s55, s55, 12
        s_lshl_b32 s56, {SW}, 10
        s_add_u32 s55, s55, s56
        s_add_u32 s55, s55, {OP}
        v_lshlrev_b32 v5, 4, v0
        v_add_u32 v{oOP}, s55, v5
        """)
    if "P" in cst:
        A(f"""
        s_xor_b32 s55, {SJ}, 1
        s_lshl_b32 s55, s55, 12
        s_lshl_b32 s56, {SW}, 10
        s_add_u32 s55, s55, s56
        s_add_u32 s55, s55, {OP}
        v_lshlrev_b32 v5, 6, v{vN}
        v_lshl_add_u32 v5, v{vQ}, 4, v5
        v_add_u32 v{oOP}, s55, v5
        """)
    if "M" in cst:
        A(f"v_mov_b32 v{oMLG}, v{oOPG}")
    if "o" in pre:
        A(f"buffer_load_dword v138, v{oOP}, {WS}, 0 offen {prepol}")
        A(f"buffer_load_dword v139, v{oML}, {WS}, 0 offen {prepol}")
    if "o" in pre2:
        L_ = A.lab("L_p2")
        A(f"s_cmp_ge_u32 {SW}, 2")
        A(f"s_cbranch_scc1 {L_}")
        A(f"buffer_load_dword v138, v{oOPG}, {WS}, 0 offen {prepol}")
        A(f"buffer_load_dword v138, v{oOPG}, {WS}, 0 offen offset:2048 {prepol}")
        A(f"buffer_load_dword v138, v{oMLG}, {WS}, 0 offen {prepol}")
        A(f"{L_}:")
    ONES = 132
    A(f"""
    v_mov_b32 v{ONES}, 0x3f803f80
    v_mov_b32 v{ONES+1}, 0x3f803f80
    v_mov_b32 v{ONES+2}, 0x3f803f80
    v_mov_b32 v{ONES+3}, 0x3f803f80
    s_lshl_b32 s55, {SW}, 1
    s_lshl_b32 s78, 3, s55
    s_mov_b32 s79, 0
    """)

    if "o" in cst:
        A(f"""
        s_lshl_b32 s55, s2, 12
        s_lshl_b32 s56, {SW}, 10
        s_add_u32 s55, s55, s56
        s_add_u32 s55, s55, {OP}
        v_lshlrev_b32 v5, 4, v0
        v_add_u32 v{oOP}, s55, v5
        s_lshl_b32 s55, s2, 7
        s_add_u32 s55, s55, {ML}
        v_add_u32 v{oML}, s55, v5
        s_cmp_eq_u32 {SW}, 0
        s_cselect_b32 s78, 0xff, 0
        """)

    def kfrags():
        if rot:
            wait_prog(16)
        else:
            A(f"s_lshl_b32 s77, {SW}, 1")
            A("s_add_u32 s77, s77, 10")
            wait_prog("s77")
        for t in range(2):
            for s in range(4):
                r = F + 16 * t + 4 * s
                A(f"ds_read_b128 v[{r}:{r+3}], v{aK+s} offset:{4096*t}")
        arrive(FB)

    G = X
    kfirst = (min(gq) if isinstance(gq, tuple) else gq) >= 16
    if kfirst:
        kfrags()
    if gq:
        wait_prog(gq)
    id_load()
    gather([(G + 4 * r, oQG, 1024 * (r % 4)) for r in range(qn)], fpol, hop="q")
    A("s_waitcnt vmcnt(0)")
    id_check(FLG)
    A(f"""
    v_pk_add_f32 v[{G}:{G+1}], v[{G}:{G+1}], v[{G+4}:{G+5}]
    v_pk_add_f32 v[{G+2}:{G+3}], v[{G+2}:{G+3}], v[{G+6}:{G+7}]
    v_pk_add_f32 v[{G+8}:{G+9}], v[{G+8}:{G+9}], v[{G+12}:{G+13}]
    v_pk_add_f32 v[{G+10}:{G+11}], v[{G+10}:{G+11}], v[{G+14}:{G+15}]
    v_pk_add_f32 v[{G}:{G+1}], v[{G}:{G+1}], v[{G+8}:{G+9}]
    v_pk_add_f32 v[{G+2}:{G+3}], v[{G+2}:{G+3}], v[{G+10}:{G+11}]
    v_cvt_pk_bf16_f32 v6, v{G}, v{G+1}
    v_cvt_pk_bf16_f32 v7, v{G+2}, v{G+3}
    ds_write_b64 v{aQsW}, v[6:7]
    """)
    arrive(CQ)
    stamp(3)
    if not kfirst:
        kfrags()
    QF = X + 16
    wait_cnt(CQ, 4, [f"ds_read_b128 v[{QF+4*s}:{QF+4*s+3}], v{aQsR} offset:{64*s}" for s in range(4)])
    for s in range(4):
        for t in range(2):
            mfma(ACC + 4 * t, F + 16 * t + 4 * s, QF + 4 * s, None if s == 0 else ACC + 4 * t)
    S = X
    for j in range(4):
        A(f"v_cndmask_b32 v{S+j}, v{ACC+j}, v{ACC+4+j}, {M_HI8}")
    bf16_round_pair(6, S, S + 1, S, S + 1)
    bf16_round_pair(7, S + 2, S + 3, S + 2, S + 3)
    for j in range(4):
        A(f"v_mul_f32 v{S+j}, {f32(SCALE)}, v{S+j}")
    bf16_round_pair(6, S, S + 1, S, S + 1)
    bf16_round_pair(7, S + 2, S + 3, S + 2, S + 3)
    A(f"""
    v_max3_f32 v6, v{S}, v{S+1}, v{S+2}
    v_max_f32 v6, v6, v{S+3}
    v_max_f32_dpp v6, v6, v6 row_ror:8 {DPPM}
    v_mov_b32 v7, v6
    v_permlane16_swap_b32 v6, v7
    v_max_f32 v6, v6, v7
    v_mov_b32 v7, v6
    v_permlane32_swap_b32 v6, v7
    v_max_f32 v6, v6, v7
    v_mul_f32 v7, {SC}, v6
    """)
    for j in range(4):
        A(f"v_fma_f32 v{S+j}, v{S+j}, {SC}, -v7")
    for j in range(4):
        A(f"v_exp_f32 v{S+j}, v{S+j}")
    A(f"""
    v_cvt_pk_bf16_f32 v8, v{S}, v{S+1}
    v_cvt_pk_bf16_f32 v9, v{S+2}, v{S+3}
    ds_write_b64 v{aPsW}, v[8:9]
    s_mov_b64 exec, 0xff
    ds_write_b32 v{aMsW}, v6
    """)
    arrive(CP)
    stamp(4)
    wait_prog(24)
    for t in range(2):
        for s in range(4):
            r = F + 16 * t + 4 * s
            A(f"ds_read_b64_tr_b16 v[{r}:{r+1}], v{aV0+t} offset:{8192*s}")
            A(f"ds_read_b64_tr_b16 v[{r+2}:{r+3}], v{aV0+t} offset:{8192*s+1024}")
    arrive(FC)
    PL, PH, MSV = X, X + 16, 36
    rd = [f"ds_read_b128 v[{MSV}:{MSV+3}], v{aMsR}"]
    for s in range(4):
        rd.append(f"ds_read_b128 v[{PL+4*s}:{PL+4*s+3}], v{aPlo} offset:{64*s}")
        rd.append(f"ds_read_b128 v[{PH+4*s}:{PH+4*s+3}], v{aPhi} offset:{64*s}")
    wait_cnt(CP, 4, rd)
    LAs = [120, 124, 128, 144]
    fw = ["v_max3_f32 v6, v36, v37, v38", "v_max_f32 v6, v6, v39"]
    for s in range(4):
        fw.append(f"v_sub_f32 v{MSV+s}, v{MSV+s}, v6")
    for s in range(4):
        fw.append(f"v_mul_f32 v{MSV+s}, {SC}, v{MSV+s}")
    for s in range(4):
        fw.append(f"v_exp_f32 v{MSV+s}, v{MSV+s}")
    fw.append(f"v_or_b32 v148, {T[0]}, v6")
    fw.append(f"v_mov_b32 v150, {T[2]}")
    fw.append(f"v_mov_b32 v151, {T[3]}")
    k = 0
    for t in range(2):
        for s in range(4):
            mfma(ACC + 4 * s, F + 16 * t + 4 * s, (PL, PH)[t] + 4 * s, None if t == 0 else ACC + 4 * s)
            for _ in range(2):
                if k < len(fw):
                    A(fw[k]); k += 1
    while k < len(fw):
        A(fw[k]); k += 1
    O = F
    for s in range(4):
        mfma(LAs[s], ONES, PL + 4 * s, None)
        for j in range(4):
            if s == 0:
                A(f"v_mul_f32 v{O+j}, v{MSV}, v{ACC+j}")
            else:
                A(f"v_fmac_f32 v{O+j}, v{MSV+s}, v{ACC+4*s+j}")
    tag4(O + 4, O)
    A(f"v_mul_f32 v7, v{MSV}, v{LAs[0]}")
    for s in range(1, 4):
        A(f"v_fmac_f32 v7, v{MSV+s}, v{LAs[s]}")
    A(f"v_and_or_b32 v149, v7, v{vMK}, {T[1]}")
    pub([(None, f"buffer_store_dwordx4 v[{O+4}:{O+7}], v{oOP}, {WS}, 0 offen"),
         ("s[78:79]", f"buffer_store_dwordx4 v[148:151], v{oML}, {WS}, 0 offen")], "o", FLG)
    if "o" in hint:
        A(f"""
        s_and_b32 s55, s2, 7
        s_lshl_b32 s55, s55, 7
        s_add_u32 s55, s55, {FLO}
        s_lshl_b32 s56, {SW}, 5
        s_add_u32 s56, s56, s55
        s_add_u32 s56, s56, {SSPL}
        """)
        hint_store("s56")
    stamp(5)
    MR, G0, G1 = ACC, ACC + 4, ACC + 8
    A(f"s_cmp_ge_u32 {SW}, 2")
    if red:
        A(f"s_cselect_b32 s59, {red[1]}, {go}")
        go = "s59"
    else:
        A("s_cbranch_scc1 L_px")
    if "o" in hint:
        A(f"s_and_b32 s56, {SJ}, 3")
        A("s_lshl_b32 s56, s56, 5")
        A("s_add_u32 s55, s55, s56")
        wait_prog(go0)
        hint_wait("s55", 8, FLG, go)
    elif go:
        wait_prog(go)
    if "o" in pg:
        gatherP([(MR, oMLG, 0), (G0, oOPG, 0), (G1, oOPG, 2048)], [120, 124, 128], opol, rpol, "o", flag=FLG)
    else:
        gather([(MR, oMLG, 0), (G0, oOPG, 0), (G1, oOPG2, 0) if "o" in xo else (G1, oOPG, 2048)], fpol if opol is None else opol, hop="o", flag=FLG,
               giveup=f"s_cmp_ge_u32 {SW}, 2\n s_cbranch_scc1 L_px" if red and len(red) < 3 else None)
    stamp(6)
    A(f"""
    v_max_f32_dpp v6, v{MR}, v{MR} quad_perm:[1,0,3,2] {DPPM}
    v_max_f32_dpp v6, v6, v6 row_ror:4 {DPPM}
    v_max_f32_dpp v6, v6, v6 row_ror:8 {DPPM}
    v_mov_b32 v7, v6
    v_permlane16_swap_b32 v6, v7
    v_max_f32 v6, v6, v7
    v_mov_b32 v7, v6
    v_permlane32_swap_b32 v6, v7
    v_max_f32 v6, v6, v7
    v_sub_f32 v8, v{MR}, v6
    v_mul_f32 v8, {SC}, v8
    v_exp_f32 v8, v8
    v_mul_f32 v6, v8, v{MR+1}
    """)
    lred = [f"v_add_f32_dpp v6, v6, v6 quad_perm:[1,0,3,2] {DPPM}",
            f"v_add_f32_dpp v6, v6, v6 row_ror:4 {DPPM}",
            f"v_add_f32_dpp v6, v6, v6 row_ror:8 {DPPM}",
            "v_mov_b32 v7, v6"]
    for j in range(4):
        A(f"v_mul_f32_dpp v{G0+j}, v8, v{G0+j} quad_perm:[0,0,0,0] {DPPM}")
        if j & 1:
            A(lred[j >> 1])
    for j in range(4):
        A(f"v_fmac_f32_dpp v{G0+j}, v8, v{G1+j} quad_perm:[1,1,1,1] {DPPM}")
        if j & 1:
            A(lred[2 + (j >> 1)])
    A(f"""
    v_permlane32_swap_b32 v{G0}, v{G0+2}
    v_permlane32_swap_b32 v{G0+1}, v{G0+3}
    v_permlane16_swap_b32 v6, v7
    v_add_f32 v{G0}, v{G0}, v{G0+2}
    v_add_f32 v{G0+1}, v{G0+1}, v{G0+3}
    v_add_f32 v6, v6, v7
    v_mov_b32 v7, v6
    v_permlane16_swap_b32 v{G0}, v{G0+1}
    v_permlane32_swap_b32 v6, v7
    v_add_f32 v{G0}, v{G0}, v{G0+1}
    v_add_f32 v6, v6, v7
    v_rcp_f32 v6, v6
    v_add_f32_dpp v{G0}, v{G0}, v{G0} row_ror:4 {DPPM}
    v_add_f32_dpp v{G0}, v{G0}, v{G0} row_ror:8 {DPPM}
    v_mul_f32 v{G0}, v{G0}, v6
    v_cvt_pk_bf16_f32 v7, v{G0}, v{G0}
    v_and_b32 v7, 0xffff0000, v7
    v_or_b32 v7, {T16}, v7
    """)
    if pxe:
        A(f"""
        v_and_b32 v8, 0xffffffc0, v{oPX}
        v_lshl_add_u32 v8, v0, 2, v8
        s_mov_b64 exec, 0xffff
        buffer_store_dword v7, v8, {WS}, 0 offen sc1
        s_mov_b64 exec, -1
        """)
    else:
        A(f"""
        s_mov_b64 exec, {M_N4}
        buffer_store_dword v7, v{oPX}, {WS}, 0 offen sc1
        s_mov_b64 exec, -1
        """)
    stamp(14)
    if not red:
        A("s_branch L_pxd")
    A("L_px:")
    if real:
        R = ACC + 4
        PTK = PEND - d
        assert gp >= PTK
        l0, l1 = A.lab("L_px0"), A.lab("L_px1")
        A(f"""
        s_mov_b32 s58, 0x07060302
        v_lshrrev_b32 v6, 3, v0
        v_mov_b32 v{R}, 0
        v_mov_b32 v{R+1}, 0
        v_mov_b32 v{R+2}, 0
        v_mov_b32 v{R+3}, 0
        s_mov_b32 s55, {NBW}
        s_mov_b64 s[82:83], -1
        s_cmp_eq_u32 {SW}, 3
        s_cbranch_scc1 L_px3
        """)
        wait_prog(gp2 or gp)
        A(f"s_bfm_b64 s[82:83], {8*NBW}, 0")
        A("s_branch L_px2")
        A("L_px3:")
        A("v_lshlrev_b32 v7, 2, v6")
        wait_prog(gp)
        A(f"""
        ds_read_b32 v6, v7 offset:{TK+32}
        s_waitcnt lgkmcnt(0)
        v_readlane_b32 s55, v6, 63
        v_and_b32 v6, 0xff, v6
        L_px2:
        v_add_u32 v6, s74, v6
        s_lshl_b32 s55, s55, 3
        v_lshrrev_b32 v7, 3, v6
        v_and_b32 v6, 7, v6
        v_lshl_add_u32 v7, v7, 10, v{oPXG}
        v_lshl_add_u32 v{oPXG}, v6, 6, v7
        s_bfm_b64 s[80:81], s55, 0
        s_mov_b64 exec, s[80:81]
        """)
        stamp(12)
        A(f"buffer_load_dwordx4 v[{R}:{R+3}], v{oPXG}, {WS}, 0 offen {ppol}")
        A("s_mov_b64 exec, -1")
        A("L_pxd:")
        wait_prog(f"U{PW0 + 4}")
        rd3([0, 1])
        wait_prog(PTK)
        A(f"ds_read_b32 v6, v{vZ} offset:{TK+32+28}")
        A("s_waitcnt lgkmcnt(0)")
        A("v_readfirstlane_b32 s74, v6")
        A(f"s_add_u32 s72, s74, {PW0 + NBW}")
        NS = (NBW + NCW + 1) // 2
        for s_ in range(2, NS):
            if s_ > 2:
                A(f"s_cmp_le_u32 s74, {2*s_ - NBW}")
                A("s_cbranch_scc1 L_rdd")
            ok = A.lab("L_tok")
            A(f"s_min_u32 s73, s72, {PW0 + 2*s_ + 2}")
            A("s_cmp_ge_u32 s55, s73")
            A(f"s_cbranch_scc1 {ok}")
            wait_prog("Us73")
            A(f"{ok}:")
            rd3([s_])
        A("L_rdd:")
        A(f"s_cmp_lt_u32 {SW}, 2")
        A("s_cbranch_scc1 L_pxw")
        A("s_mov_b64 exec, s[80:81]")
        A(f"s_branch {l1}")
        A(f"{l0}:")
        budget(16)
        A("s_mov_b64 exec, vcc")
        A(f"buffer_load_dwordx4 v[{R}:{R+3}], v{oPXG}, {WS}, 0 offen sc1")
        A(f"""
        {l1}:
        s_waitcnt vmcnt(0)
        v_xor_b32 v6, v{R}, v{R+1}
        v_xor_b32 v7, v{R+2}, v{R+3}
        v_xor_b32 v8, v{R}, v{R+2}
        v_or3_b32 v6, v6, v7, v8
        v_xor_b32 v7, {T16}, v{R}
        v_or_b32 v6, v6, v7
        v_and_b32 v6, 0xffff, v6
        v_cmp_ne_u32 vcc, 0, v6
        """)
        dstamp()
        A(f"""
        s_cbranch_vccnz {l0}
        s_mov_b64 exec, s[82:83]
        v_perm_b32 v6, v{R+1}, v{R}, s58
        v_perm_b32 v7, v{R+3}, v{R+2}, s58
        ds_write_b64 v{aOsW}, v[6:7] offset:{OS2}
        """)
        stamp(6)
        arrive(CO)
        A("L_pxw:")
        wait_cnt(CO, 4, bt_reads(NS) + [f"ds_read_b32 v{vGC}, v{aGS} offset:{GS}"])
        mm3(range(3))
        for s_ in range(3, NS):
            A(f"s_cmp_le_u32 s74, {2*s_ - NBW}")
            A("s_cbranch_scc1 L_comb")
            mm3([s_])
        A("s_branch L_comb")
        A.mute = True
    A("s_mov_b64 exec, -1") if red else None
    A(f"s_cmp_lg_u32 {SW}, 2" if red else f"s_cmp_eq_u32 {SW}, 3")
    A("s_cbranch_scc1 L_pxd")
    if early & 2:
        wait_prog(46)
        rd3(range(4))
    pxg(oPXG, aOsW, OS, None, gp, CO, "p")
    if early & 2:
        A("s_branch L_pxe")
    A("L_pxd:")
    if dz:
        wait_prog(PEND - 1)
        rd3(range(3))
        wait_prog(PEND)
        rd3([3])
    elif dy:
        wait_prog(45 + dy[1] + dy[2] - 1)
        rd3(range(3))
        wait_prog(45 + dy[1] + dy[2])
        rd3([3])
    else:
        wait_prog(48 if nar else 46)
        rd3(range(4))
    A("L_pxe:")
    wait_cnt(CO, 3, bt_reads() + [f"ds_read_b32 v9, v{aGS} offset:{GS}"])
    mm3(range(4))
    if sym:
        A("v_mov_b32 v{vGC}, v9".replace("{vGC}", str(vGC)))
        A("s_branch L_comb")
    else:
        sel3()
        for j in range(4):
            A(f"v_mul_f32 v{ACC+j}, v9, v{ACC+j}")
        A(f"ds_write_b128 v{aAS}, v[{ACC}:{ACC+3}]")
        arrive(CA)
        stamp(7)
        dump_stamps()
        A("s_endpgm")

    A.mute = False
    A("L_F:")
    ADINIT = ""
    if ad:
        ADINIT = f"""s_cmp_lt_u32 s2, 8
        s_cselect_b32 exec_lo, 0xff, 0
        s_lshl_b32 s55, s2, 7
        s_add_u32 s55, s55, {FLO}
        s_lshl_b32 s56, s48, 8
        v_mov_b32 v5, s56
        v_lshlrev_b32 v6, 2, v0
        buffer_store_dword v5, v6, {WS}, s55 offen"""
    if dy:
        NG = 32 // dy[0]
        ADINIT = f"""s_lshl_b32 s56, s48, 8
        v_mov_b32 v6, s56
        s_lshr_b64 s[56:57], s[48:49], 24
        v_mov_b32 v7, s56
        s_cmp_lt_u32 s2, {8*NG}
        s_cselect_b32 exec_lo, 1, 0
        s_and_b32 s55, s2, 7
        s_mul_i32 s55, s55, {NG}
        s_lshr_b32 s56, s2, 3
        s_add_u32 s55, s55, s56
        s_lshl_b32 s55, s55, 7
        s_add_u32 s55, s55, {CNT}
        buffer_store_dword{'x2 v[6:7]' if real else ' v6'}, off, {WS}, s55 {dpol}"""
        if dz and NCF:
            ADINIT += f"""
            s_and_b32 s55, s2, 5
            s_cselect_b32 exec_lo, 0, 1
            s_lshr_b32 s55, s2, 3
            s_and_b32 s56, s2, 2
            s_lshl4_add_u32 s55, s56, s55
            s_lshl_b32 s55, s55, 7
            s_add_u32 s55, s55, {CNTF}
            buffer_store_dword v6, off, {WS}, s55 {dpol}"""
    common2(RB if real else RC, HS, 1)
    if "c" in pre:
        WS0 = WS
        if "k" in pre:
            A("s_mov_b64 s[40:41], s[6:7]")
            A(f"s_mov_b32 s42, {64<<20}")
            A("s_mov_b32 s43, 0x20000")
            WS = "s[40:43]"
        A(f"""
        s_lshl_b32 s55, {SJ}, 12
        s_lshl_b32 s56, {SW}, 10
        s_add_u32 s55, s55, s56
        s_add_u32 s55, s55, {OP}
        v_lshlrev_b32 v5, 4, v0
        buffer_load_dwordx4 v[144:147], v5, {WS}, s55 offen {prepol}
        s_mul_i32 s55, {SJ}, 672
        s_and_b32 s56, {SW}, 1
        s_mul_i32 s56, s56, {56*3072}
        s_add_u32 s55, s55, s56
        s_add_u32 s55, s55, {GUP}
        s_lshl_b32 s56, {SJ}, 7
        s_add_u32 s56, s56, {ML}
        s_cmp_lt_u32 {SW}, 2
        s_cselect_b32 s55, s55, s56
        s_cselect_b32 exec_lo, -1, 0xff
        s_cselect_b32 exec_hi, 0x3ff, 0
        buffer_load_dwordx4 v[148:151], v5, {WS}, s55 offen {prepol}
        s_mov_b64 exec, -1
        """)
        WS = WS0
    A(f"""
    s_cmp_lg_u32 {SW}, 0
    s_cbranch_scc1 L_noid
    s_lshl_b32 s55, {SJ}, 2
    s_add_u32 s55, s55, {IDT}
    v_mov_b32 v5, {SID}
    s_mov_b64 exec, 1
    buffer_store_dword v5, off, {WS}, s55
    {ADINIT}
    s_mov_b64 exec, -1
    L_noid:
    """)
    aWg, aWu, oGU, oGG, aHsW, oFP, oFG, oOut = 11, 12, 13, 14, 16, 17, 22, 23
    SG0, SCB0 = "s69", "s70"
    M_GU, M_GG = "s[72:73]", ["s[74:75]", "s[76:77]"]
    XR = [X + 4 * s for s in range(8)] + [120, 124, 128, 132, 144, 148]
    NX = 14 if dg else 7
    for r in XR[:NX]:
        for i in range(4):
            A(f"v_mov_b32 v{r+i}, 0")
    A(f"""
    s_and_b32 s55, {SJ}, {-2 if dg else -1}
    s_mul_i32 s55, s55, 7
    s_lshr_b32 {SCB0}, s55, 5
    s_and_b32 {SG0}, s55, 31
    s_mov_b32 s57, 0x00f000f0
    """ if dg else f"""
    s_mul_i32 s55, {SJ}, 7
    s_lshr_b32 {SCB0}, s55, 5
    s_and_b32 {SG0}, s55, 31
    s_mov_b32 s57, 0x00f000f0
    """)
    def xfrags():
        A(f"""
        s_lshl_b32 s56, {SG0}, 6
        s_add_u32 s56, s56, {XS}
        v_bfe_u32 v5, v0, 2, 1
        v_lshlrev_b32 v5, 11, v5
        v_sub_u32 v5, v9, v5
        v_add_u32 v34, s56, v5
        s_mov_b32 s57, 0x00f000f0
        """)
        if xl == 1:
            assert spl1[0] >= NPEEL and NPEEL == d
            wait_prog(NPEEL)
        else:
            wait_cnt(0x124, 4, [])
        for s in range(NX):
            A(f"""
            s_cmp_ge_u32 {SG0}, {32 - s}
            s_cselect_b32 exec_lo, s57, s62
            s_cselect_b32 exec_hi, s57, s62
            ds_read_b128 v[{XR[s]}:{XR[s]+3}], v34 offset:{64*s}
            """)
        A("s_mov_b64 exec, -1")
    for s in range(0 if xl else NX):
        A(f"""
        s_add_u32 s56, {SG0}, {s}
        s_cmp_ge_u32 s56, 32
        s_cselect_b32 exec_lo, s57, s62
        s_cselect_b32 exec_hi, s57, s62
        s_and_b32 s56, s56, 31
        s_lshl_b32 s56, s56, 6
        buffer_load_dwordx4 v[{XR[s]}:{XR[s]+3}], v9, s[32:35], s56 offen
        """)
    A(f"""
    s_mov_b64 exec, -1
    v_add_u32 v{aWg}, {RD}, v{aW}
    v_add_u32 v{aWu}, {RA}, v{aW}
    """)
    if dg:
        A(f"""
        s_cmp_ge_u32 {SG0}, 19
        s_cselect_b32 s72, 0x00330033, s60
        s_mov_b32 s73, s72
        s_mul_i32 s55, {SCB0}, {16*9363}
        s_lshr_b32 s55, s55, 16
        s_lshr_b32 s56, {SJ}, 1
        s_sub_u32 s55, s56, s55
        s_lshl_b32 s55, s55, 7
        s_lshl2_add_u32 s56, {SCB0}, {SW}
        s_lshl_b32 s56, s56, 10
        s_and_b32 s57, {SJ}, 1
        s_lshl_b32 s57, s57, 9
        s_add_u32 s56, s56, s57
        s_add_u32 s56, s56, {GUP}
        v_mov_b32 v6, s55
        v_mov_b32 v7, 4096
        s_mov_b32 s58, 0xf0f0f0f0
        s_mov_b32 s59, 0xf0f0f0f0
        v_cndmask_b32 v6, v6, v7, s[58:59]
        v_and_b32 v5, 1, v0
        v_lshlrev_b32 v5, 6, v5
        v_lshl_add_u32 v5, v{vQ}, 4, v5
        v_add3_u32 v{oGU}, v5, v6, s56
        """)
    else: A(f"""
    s_cmp_ge_u32 {SG0}, 26
    s_cselect_b32 s72, 0x00ff00ff, s62
    s_mov_b32 s73, s72
    s_mul_i32 s55, {SCB0}, {32*9363}
    s_lshr_b32 s55, s55, 16
    s_sub_u32 s55, {SJ}, s55
    s_lshl_b32 s55, s55, 7
    s_lshl2_add_u32 s56, {SCB0}, {SW}
    s_lshl_b32 s56, s56, 11
    s_add_u32 s56, s56, {GUP}
    v_mov_b32 v6, s55
    v_mov_b32 v7, 8192
    s_mov_b32 s58, 0xf0f0f0f0
    s_mov_b32 s59, 0xf0f0f0f0
    v_cndmask_b32 v6, v6, v7, s[58:59]
    v_and_b32 v5, 1, v0
    v_lshlrev_b32 v5, 6, v5
    v_lshl_add_u32 v5, v{vQ}, 4, v5
    v_bfe_u32 v7, v0, 1, 1
    v_lshlrev_b32 v7, 10, v7
    v_add3_u32 v5, v5, v6, v7
    v_add_u32 v{oGU}, s56, v5
    """)
    oPH = oGG + 1
    SK = "s74"
    oGG2 = 18
    if dg:
        A(f"""
        s_lshr_b32 {SK}, s2, 3
        s_mul_i32 s55, {SK}, 7
        s_add_u32 s55, s55, {SW}
        s_lshl_b32 s56, s55, 10
        s_add_u32 s56, s56, {GUP}
        v_add_u32 v{oGG}, s56, v{aL16}
        v_add_u32 v{oGG2}, 4096, v{oGG}
        s_lshr_b32 s55, s55, 2
        s_mul_i32 s56, s55, 9363
        s_lshr_b32 s56, s56, 16
        s_mul_i32 s56, s56, 7
        s_sub_u32 s55, s55, s56
        s_mov_b32 s56, 0x00ffffff
        s_cmp_eq_u32 s55, 3
        s_cselect_b32 s78, -1, s56
        s_mov_b32 s79, s78
        s_cmp_eq_u32 s55, 2
        s_cselect_b32 s88, -1, s56
        s_cmp_eq_u32 {SW}, 3
        s_cselect_b32 s88, 0, s88
        s_mov_b32 s89, s88
        v_bfe_u32 v6, v0, 2, 1
        v_lshlrev_b32 v6, 8, v6
        v_lshrrev_b32 v7, 5, v0
        v_lshl_add_u32 v6, v7, 7, v6
        v_and_b32 v7, 3, v0
        v_lshl_add_u32 v6, v7, 3, v6
        v_bfe_u32 v7, v0, 3, 2
        v_lshl_add_u32 v6, v7, 1, v6
        s_lshl_b32 s55, {SW}, 5
        v_add_u32 v{aHsW}, s55, v6
        """)
    elif sp:
        A(f"""
        s_lshr_b32 {SK}, s2, 3
        s_and_b32 {T16}, s48, 0xffff
        s_and_b32 s55, s2, 7
        s_mul_i32 s55, s55, 28
        s_and_b32 s56, {SK}, 3
        s_lshl2_add_u32 s55, s56, s55
        s_add_u32 s55, s55, {SW}
        s_lshl_b32 s56, s55, 11
        s_add_u32 s56, s56, {GUP}
        v_add_u32 v{oGG}, s56, v{aL16}
        v_add_u32 v{oGG2}, {16*2048}, v{oGG}
        s_movk_i32 s79, 0xff
        s_bitcmp1_b32 s2, 3
        s_cselect_b32 s79, 0xffff, s79
        s_mov_b32 s78, -1
        s_cmp_ge_u32 s2, 248
        s_cselect_b64 s[88:89], 0, s[78:79]
        s_cselect_b32 s90, 0x00ff00ff, -1
        s_mov_b32 s91, s90
        s_lshl_b32 s56, {SK}, 3
        s_cmp_ge_u32 s2, 224
        s_cselect_b32 s55, s55, s56
        s_cselect_b64 vcc, -1, 0
        s_lshl_b32 s55, s55, 7
        s_add_u32 s55, s55, {PHB}
        v_and_b32 v6, 7, v0
        v_lshlrev_b32 v6, 4, v6
        v_lshl_add_u32 v6, v{vQ}, 2, v6
        v_and_b32 v7, 8, v0
        v_lshl_add_u32 v6, v7, 8, v6
        v_cndmask_b32 v6, v{aL16}, v6, vcc
        v_add_u32 v{oPH}, s55, v6
        v_bfe_u32 v6, v0, 2, 1
        v_lshlrev_b32 v6, 8, v6
        v_lshrrev_b32 v7, 3, v0
        v_lshl_add_u32 v6, v7, 5, v6
        v_and_b32 v7, 3, v0
        v_lshl_add_u32 v{aHsW}, v7, 3, v6
        """)
    else: A(f"""
    s_lshr_b32 {SK}, s2, 3
    s_and_b32 {T16}, s48, 0xffff
    s_and_b32 s55, s2, 7
    s_mul_i32 s55, s55, 28
    s_add_u32 s55, s55, {SK}
    s_lshl_b32 s56, s55, 11
    s_add_u32 s56, s56, {GUP}
    v_add_u32 v{oGG}, s56, v{aL16}
    s_movk_i32 s79, 0xff
    s_bitcmp1_b32 s2, 5
    s_cselect_b32 s79, 0xffff, s79
    s_mov_b32 s78, -1
    s_mul_i32 s56, {SK}, 7
    s_cmp_eq_u32 {SW}, 0
    s_cselect_b32 s55, s55, s56
    s_cselect_b64 vcc, -1, 0
    s_lshl_b32 s55, s55, 7
    s_add_u32 s55, s55, {PHB}
    v_and_b32 v6, 7, v0
    v_lshlrev_b32 v6, 4, v6
    v_lshl_add_u32 v6, v{vQ}, 2, v6
    v_cndmask_b32 v6, v{aL16}, v6, vcc
    v_add_u32 v{oPH}, s55, v6
    v_bfe_u32 v6, v0, 2, 1
    v_lshlrev_b32 v6, 8, v6
    v_lshrrev_b32 v7, 3, v0
    v_lshl_add_u32 v6, v7, 5, v6
    v_and_b32 v7, 3, v0
    v_lshl_add_u32 v{aHsW}, v7, 3, v6
    """)
    A(f"""
    s_mov_b64 s[40:41], s[22:23]
    s_mov_b32 s42, 2048
    s_mov_b32 s43, 0x20000
    s_lshr_b32 s57, {SJ}, 2
    s_lshl_b32 s55, s57, 12
    s_add_u32 s55, s55, {FP}
    v_add_u32 v{oFG}, s55, v{aL16}
    s_xor_b32 s57, s57, {8*cbx}
    s_lshl_b32 s55, s57, 5
    v_bfe_u32 v5, v0, 2, 1
    v_lshlrev_b32 v5, 11, v5
    v_lshl_add_u32 v5, v{vQ}, 1, v5
    v_and_b32 v6, 3, v0
    v_lshl_add_u32 v5, v6, 3, v5
    v_add_u32 v{oOut}, s55, v5
    """)
    if xl:
        xfrags()
    A(f"s_cmp_lt_u32 {SW}, 2")
    A("s_cbranch_scc1 L_nog")
    if xl:
        A(f"""
        s_and_b32 s55, {SW}, 1
        s_lshl_b32 s56, s55, 3
        s_lshl_b32 s55, s55, 11
        s_add_u32 s55, s55, {XS}
        v_lshlrev_b32 v5, 5, v0
        buffer_load_dwordx4 v[{F+8}:{F+11}], v5, s[40:43], 0 offen
        buffer_load_dwordx4 v[{F+12}:{F+15}], v5, s[40:43], 0 offen offset:16
        v_add_u32 v5, s55, v5
        ds_read_b128 v[{F}:{F+3}], v5
        ds_read_b128 v[{F+4}:{F+7}], v5 offset:16
        v_mov_b32 v9, 0
        s_waitcnt vmcnt(0) lgkmcnt(0)
        """)
    else: A(f"""
    s_and_b32 s55, {SW}, 1
    s_lshl_b32 s56, s55, 3
    s_lshl_b32 s55, s55, 11
    v_lshlrev_b32 v5, 5, v0
    buffer_load_dwordx4 v[{F}:{F+3}], v5, s[32:35], s55 offen
    buffer_load_dwordx4 v[{F+4}:{F+7}], v5, s[32:35], s55 offen offset:16
    buffer_load_dwordx4 v[{F+8}:{F+11}], v5, s[40:43], 0 offen
    buffer_load_dwordx4 v[{F+12}:{F+15}], v5, s[40:43], 0 offen offset:16
    v_mov_b32 v9, 0
    s_waitcnt vmcnt(0)
    """)
    for i in range(8):
        A(f"""
        v_lshlrev_b32 v5, 16, v{F+i}
        v_lshlrev_b32 v6, 16, v{F+8+i}
        v_and_b32 v7, 0xffff0000, v{F+i}
        v_and_b32 v8, 0xffff0000, v{F+8+i}
        v_mul_f32 v5, v5, v6
        v_mul_f32 v7, v7, v8
        """)
        bf16_round_pair(6, 5, 7, 5, 7)
        A("v_add_f32 v9, v9, v5")
        A("v_add_f32 v9, v9, v7")
    A(f"""
    v_add_f32_dpp v9, v9, v9 quad_perm:[1,0,3,2] {DPPM}
    v_add_f32_dpp v9, v9, v9 quad_perm:[2,3,0,1] {DPPM}
    v_add_f32_dpp v9, v9, v9 row_ror:4 {DPPM}
    v_add_f32_dpp v9, v9, v9 row_ror:8 {DPPM}
    v_mov_b32 v8, v9
    v_permlane16_swap_b32 v9, v8
    v_add_f32 v9, v9, v8
    v_mov_b32 v8, v9
    v_permlane32_swap_b32 v9, v8
    v_add_f32 v9, v9, v8
    v_cvt_pk_bf16_f32 v9, v9, v9
    v_lshlrev_b32 v9, 16, v9
    v_mul_f32 v9, {f32(-LOG2E)}, v9
    v_exp_f32 v9, v9
    v_add_f32 v9, 1.0, v9
    v_rcp_f32 v9, v9
    v_cvt_pk_bf16_f32 v8, v9, v9
    v_lshlrev_b32 v8, 16, v8
    v_sub_f32 v9, 1.0, v8
    v_cvt_pk_bf16_f32 v9, v9, v9
    v_lshlrev_b32 v9, 16, v9
    v_mov_b32 v5, s56
    ds_write_b64 v5, v[8:9] offset:{GS}
    """)
    if sp:
        A(f"""
        s_cmp_lt_u32 s2, 224
        s_cbranch_scc1 L_nz
        s_cmp_lg_u32 {SW}, 2
        s_cbranch_scc1 L_nz
        v_mov_b32 v{F}, 0
        v_mov_b32 v{F+1}, 0
        v_mov_b32 v{F+2}, 0
        v_mov_b32 v{F+3}, 0
        v_mov_b32 v5, 4
        ds_write_b128 v{aL16}, v[{F}:{F+3}] offset:{AS+1024}
        s_mov_b64 exec, 1
        ds_add_u32 v{vZ}, v5 offset:{CA}
        s_mov_b64 exec, -1
        L_nz:
        """)
    arrive(CO)
    arrive(CH)
    def fprefetch():
        L = A.lab("L_fp")
        A(f"s_and_b32 s55, {SJ}, 3")
        A(f"s_or_b32 s55, s55, {SW}")
        A(f"s_cbranch_scc1 {L}")
        A("s_mov_b32 exec_lo, 0x01010101")
        A("s_mov_b32 exec_hi, 0x01010101")
        for i in range(4):
            A(f"buffer_load_dword v138, v{oFG}, {WS}, 0 offen offset:{1024*i} {prepol}")
        A("s_mov_b64 exec, -1")
        A(f"{L}:")
    A("L_nog:")
    if fpre == 1:
        fprefetch()
    if dly:
        A("s_mov_b32 s70, s94")
    A("s_waitcnt vmcnt(0)")
    if "g" in pre2:
        L_ = A.lab("L_p2")
        A(f"s_cmp_lg_u32 {SW}, 0")
        A(f"s_cbranch_scc1 {L_}")
        A(f"s_cmp_ge_u32 {SK}, 28")
        A(f"s_cbranch_scc1 {L_}")
        A("s_mov_b64 exec, s[78:79]")
        A(f"buffer_load_dword v138, v{oGG}, {WS}, 0 offen {prepol}")
        A(f"buffer_load_dword v138, v{oGG}, {WS}, 0 offen offset:1024 {prepol}")
        A("s_mov_b64 exec, -1")
        A(f"{L_}:")
    stamp(1)
    gemv64(aWg, ACC, 24, spl7, waits=[28, 'T31'] if dz and NCF else None)
    if real:
        arrive(FC)
    stamp(2)
    id_load()
    if dg:
        gemv64(aWu, ACC, 31, spl7, xr=XR[7:], cont=True, waits=['T35', PF1] if dz and NCF else None)
        tag4(ACC + 8, ACC)
        A(f"s_mov_b64 exec, {M_GU}")
        A(f"buffer_store_dwordx4 v[{ACC+8}:{ACC+11}], v{oGU}, {WS}, 0 offen sc1")
        A("s_mov_b64 exec, -1")
        A("s_waitcnt vmcnt(1)")
        id_check("s[98:99]")
        stamp(3)
        R4 = [ACC + 12, ACC + 16]
        for i in range(8):
            A(f"v_mov_b32 v{R4[0]+i}, 0")
        if real:
            assert gh >= PW0
            wait_prog(PW0)
            rd3(range(4))
        wait_prog(gh)
        def fmid():
            wait_prog(52)
            rd3([0, 1, 2])
            if early & 4:
                wait_prog(53)
                rd3([3])
        gather([(R4[0], oGG, 0), (R4[1], oGG2, 0)], gpol, hop="g", ex=["s[78:79]", "s[88:89]"], mid=fmid if early & 1 else None)
        stamp(4)
        for r in R4:
            A(f"v_permlane16_swap_b32 v{r}, v{r+2}")
            A(f"v_permlane16_swap_b32 v{r+1}, v{r+3}")
        for r in R4:
            A(f"v_add_f32 v{r}, v{r}, v{r+2}")
            A(f"v_add_f32 v{r+1}, v{r+1}, v{r+3}")
        for r in R4:
            A(f"v_add_f32_dpp v{r}, v{r}, v{r} row_ror:8 {DPPM}")
            A(f"v_add_f32_dpp v{r+1}, v{r+1}, v{r+1} row_ror:8 {DPPM}")
        for r in R4:
            A(f"v_cndmask_b32 v{r}, v{r}, v{r+1}, {M_HI8}")
        A(f"v_permlane32_swap_b32 v{R4[0]}, v{R4[1]}")
        bf16_round_pair(5, 6, 7, R4[0], R4[1])
        A(f"""
        v_mul_f32 v8, v6, v6
        v_mov_b32 v9, {f32(GC1)}
        v_fmac_f32 v9, {f32(GC2)}, v8
        v_mul_f32 v9, v9, v6
        v_exp_f32 v9, v9
        v_add_f32 v9, 1.0, v9
        v_rcp_f32 v9, v9
        v_mul_f32 v9, v9, v6
        v_cvt_pk_bf16_f32 v9, v9, v9
        v_lshlrev_b32 v9, 16, v9
        v_mul_f32 v9, v9, v7
        v_cvt_pk_bf16_f32 v9, v9, v9
        ds_write_b16 v{aHsW}, v9 offset:{HS}
        """)
        stamp(6)
        arrive(CH)
        A.mute = True
    gemv64(aWu, ACC + 4, 33 if nar else 31, spl7)
    for j in range(4):
        A(f"v_cndmask_b32 v{ACC+8+j}, v{ACC+j}, v{ACC+4+j}, {M_B1}")
    tag4(ACC + 8, ACC + 8)
    A("s_waitcnt vmcnt(0)")
    id_check("s[98:99]")
    pub([(M_GU, f"buffer_store_dwordx4 v[{ACC+8}:{ACC+11}], v{oGU}, {WS}, 0 offen")], "g", "s[98:99]")
    if "g" in hint:
        A(f"""
        s_lshl_b32 s56, {SJ}, 2
        s_add_u32 s56, s56, {SW}
        s_add_u32 s56, s56, {FLG_}
        """)
        hint_store("s56")
    stamp(3)
    if fpre == 2:
        fprefetch()
    R4 = [ACC + 12, ACC + 16]
    if sp:
        R4 += [ACC + 20, ACC + 24]
        A("s_cmp_lt_u32 s2, 224")
        A("s_cbranch_scc1 L_ph")
    else:
        A(f"s_cmp_lg_u32 {SW}, 0")
        A("s_cbranch_scc1 L_ph")
        A(f"s_cmp_ge_u32 {SK}, 28")
        A("s_cbranch_scc1 L_phd")
    for i in range(4 * len(R4)):
        A(f"v_mov_b32 v{R4[0]+i}, 0")
    if gg:
        wait_prog(gg)
    if sp:
        gather([(R4[0], oGG, 0), (R4[1], oGG, 1024), (R4[2], oGG2, 0), (R4[3], oGG2, 1024)], fpol if gpol is None else gpol, hop="g",
               ex=["s[78:79]", "s[78:79]", "s[88:89]", "s[88:89]"], flag="s[98:99]")
    elif "g" in pg:
        gatherP([(R4[0], oGG, 0), (R4[1], oGG, 1024)], [ACC + 20, ACC + 24], gpol, "nt", "g", ex=["s[78:79]", "s[78:79]"], flag="s[98:99]")
        A("s_waitcnt vmcnt(0)") if pgw else None
    else:
        gather([(R4[0], oGG, 0), (R4[1], oGG, 1024)], fpol if gpol is None else gpol, hop="g", ex=["s[78:79]", "s[78:79]"], flag="s[98:99]")
    stamp(4)
    for r in R4:
        A(f"v_permlane32_swap_b32 v{r}, v{r+2}")
        A(f"v_permlane32_swap_b32 v{r+1}, v{r+3}")
    for r in R4:
        A(f"v_add_f32 v{r}, v{r}, v{r+2}")
        A(f"v_add_f32 v{r+1}, v{r+1}, v{r+3}")
    for r in R4:
        A(f"v_permlane16_swap_b32 v{r}, v{r+1}")
    for r in R4:
        A(f"v_add_f32 v{r}, v{r}, v{r+1}")
    for r in R4:
        A(f"v_add_f32_dpp v{r}, v{r}, v{r} row_ror:8 {DPPM}")
    if sp:
        A(f"v_cndmask_b32 v{R4[0]}, v{R4[0]}, v{R4[2]}, {M_HI8}")
        A(f"v_cndmask_b32 v{R4[1]}, v{R4[1]}, v{R4[3]}, {M_HI8}")
    bf16_round_pair(5, 6, 7, R4[0], R4[1])
    A(f"""
    v_mul_f32 v8, v6, v6
    v_mov_b32 v9, {f32(GC1)}
    v_fmac_f32 v9, {f32(GC2)}, v8
    v_mul_f32 v9, v9, v6
    v_exp_f32 v9, v9
    v_add_f32 v9, 1.0, v9
    v_rcp_f32 v9, v9
    v_mul_f32 v9, v9, v6
    v_cvt_pk_bf16_f32 v9, v9, v9
    v_lshlrev_b32 v9, 16, v9
    v_mul_f32 v9, v9, v7
    v_cvt_pk_bf16_f32 v9, v9, v9
    v_and_b32 v9, 0xffff0000, v9
    v_or_b32 v9, {T16}, v9
    s_mov_b32 exec_lo, {"s90" if sp else "0x00ff00ff"}
    s_mov_b32 exec_hi, {"s91" if sp else "0x00ff00ff"}
    buffer_store_dword v9, v{oPH}, {WS}, 0 offen sc1
    s_mov_b64 exec, -1
    """)
    stamp(5)
    if sp:
        A(f"s_cmp_lg_u32 {SW}, 0")
        A("s_cbranch_scc1 L_fin")
        wait_cnt(CA, 8, [])
        A("s_branch L_nlast")
    else:
        A("s_branch L_phd")
    A("L_ph:")
    if lat:
        A(f"s_cmp_lt_u32 {SW}, 2")
        A("s_cbranch_scc1 L_lat2")
        A(f"v_readfirstlane_b32 s55, v{oGG}")
        wait_prog(lat)
        A(f"s_cmp_eq_u32 {SW}, 2")
        A("s_cbranch_scc1 L_lat1")
        dstamp()
        for i in range(4):
            A(f"s_load_dwordx16 s[80:95], s[28:29], s55 glc")
            A("s_waitcnt lgkmcnt(0)")
            dstamp()
            A("s_add_u32 s55, s55, 128")
        A("s_branch L_lat2")
        A("L_lat1:")
        dstamp()
        for i in range(4):
            A(f"buffer_load_dwordx4 v[{ACC+12}:{ACC+15}], v{oGG}, {WS}, 0 offen nt")
            A("s_waitcnt vmcnt(0)")
            dstamp()
        A("L_lat2:")
    A(f"s_cmp_lg_u32 {SW}, 1")
    A("s_cbranch_scc1 L_phd")
    pxg(oPH, aHsW, HS, None if sp else "0xffffff", gh, CH, "h")
    A("L_phd:")
    A.mute = False
    if not early & 1 and not real:
        wait_prog(PW0 - 1 if dz else 44 if dy else 52)
        rd3([0, 1, 2])
    if not early & 4 and not real:
        wait_prog(PW0 if dz else 45 if dy else 54 if sp else 53)
        rd3([3])
    wait_cnt(CH, 6 if dg else 3, bt_reads() + [f"ds_read_b32 v{vGC}, v{aGS} offset:{GS+4}"])
    mm3([0, 1, 2])
    if not sym:
        wait_cnt(CA, 4, [f"ds_read_b128 v[{ACC+8}:{ACC+11}], v{aAS}", f"ds_read_b32 v9, v{aGS} offset:{GS+4}"])
        mm3([3])
        sel3()
        for j in range(4):
            A(f"v_fmac_f32 v{ACC+8+j}, v9, v{ACC+j}")
        tag4(ACC + 8, ACC + 8)
        A(f"s_mov_b64 exec, {M_N4}")
        A(f"buffer_store_dwordx4 v[{ACC+8}:{ACC+11}], v{oFP}, {WS}, 0 offen sc1")
        A("s_mov_b64 exec, -1")
        stamp(6)
        A(f"s_and_b32 s55, {SJ}, 3")
        A(f"s_or_b32 s55, s55, {SW}")
        A("s_cbranch_scc1 L_fin")
    else:
        mm3([3])
        A("L_comb:")
        sel3()
        for j in range(4):
            A(f"v_mul_f32 v{ACC+j}, v{vGC}, v{ACC+j}")
        A(f"""
        s_mov_b64 exec, {M_N4}
        ds_write_b128 v{aAS}, v[{ACC}:{ACC+3}]
        s_mov_b64 exec, 1
        ds_add_rtn_u32 v5, v{vZ}, v{vONE} offset:{CA}
        s_mov_b64 exec, -1
        ds_read_b128 v[{ACC+8}:{ACC+11}], v{aL16} offset:{AS}
        ds_read_b128 v[{ACC+12}:{ACC+15}], v{aL16} offset:{AS+1024}
        s_waitcnt lgkmcnt(2)
        v_readfirstlane_b32 s55, v5
        s_cmp_lg_u32 s55, 7
        s_cbranch_scc1 L_nlast
        s_waitcnt lgkmcnt(0)
        v_pk_add_f32 v[{ACC+8}:{ACC+9}], v[{ACC+8}:{ACC+9}], v[{ACC+12}:{ACC+13}]
        v_pk_add_f32 v[{ACC+10}:{ACC+11}], v[{ACC+10}:{ACC+11}], v[{ACC+14}:{ACC+15}]
        """)
        tag4(ACC + 8, ACC + 8)
        pub([(None, f"buffer_store_dwordx4 v[{ACC+8}:{ACC+11}], v{oFP2}, {WS}, 0 offen")], "f", "s[98:99]")
        stamp(8)
        A("L_nlast:")
        stamp(9)
        A(f"s_and_b32 s55, {SJ}, 3")
        if ccl:
            A(f"s_xor_b32 s55, s55, {ccl}")
        A(f"s_sub_u32 s56, s3, 5")
        A(f"s_or_b32 s55, s55, s56")
        A("s_cbranch_scc1 L_fin")
        if dly:
            A("L_dly:")
            A("s_memrealtime s[96:97]")
            A("s_waitcnt lgkmcnt(0)")
            A("s_sub_u32 s55, s96, s70")
            A(f"s_cmp_lt_u32 s55, {dly}")
            A("s_cbranch_scc1 L_dly")
    gather([(G + 4 * i, oFG, 1024 * i) for i in range(4)], ffpol, hop="f", rawoff=32, flag="s[98:99]")
    A(f"""
    v_pk_add_f32 v[{G}:{G+1}], v[{G}:{G+1}], v[{G+4}:{G+5}]
    v_pk_add_f32 v[{G+2}:{G+3}], v[{G+2}:{G+3}], v[{G+6}:{G+7}]
    v_pk_add_f32 v[{G+8}:{G+9}], v[{G+8}:{G+9}], v[{G+12}:{G+13}]
    v_pk_add_f32 v[{G+10}:{G+11}], v[{G+10}:{G+11}], v[{G+14}:{G+15}]
    v_pk_add_f32 v[{G}:{G+1}], v[{G}:{G+1}], v[{G+8}:{G+9}]
    v_pk_add_f32 v[{G+2}:{G+3}], v[{G+2}:{G+3}], v[{G+10}:{G+11}]
    """)
    red4(G)
    A(f"""
    v_add_f32_dpp v{G}, v{G}, v{G} row_ror:8 {DPPM}
    s_mov_b32 exec_lo, 0x00ff00ff
    s_mov_b32 exec_hi, 0x00ff00ff
    v_cvt_pk_bf16_f32 v6, v{G}, v{G}
    buffer_store_short v6, v{oOut}, s[44:47], 0 offen {outpol}
    s_cmp_lg_u32 s2, {8*ccl}
    s_cbranch_scc1 L_fin
    s_mov_b64 exec, 1
    v_mov_b32 v6, s48
    v_mov_b32 v7, s49
    s_mov_b32 s55, {EPOCH}
    v_mov_b32 v8, s55
    global_store_dwordx2 v8, v[6:7], s[28:29] sc1
    L_fin:
    """)
    A("s_mov_b64 exec, -1")
    stamp(7)
    dump_stamps()
    A("L_end:")
    A("s_endpgm")

    if "A" in nox:
        A.L = [l for l in A.L if not (l.startswith("buffer_load_dwordx4") and "v9, s[32:35], s55" in l)]
    if "F" in nox:
        A.L = [l for l in A.L if not (l.startswith("buffer_load_dwordx4") and "v9, s[32:35], s56" in l)]
    if "G" in nox:
        A.L = [l for l in A.L if not (l.startswith("buffer_load_dwordx4") and ("v5, s[32:35], s55" in l or "v5, s[40:43], 0" in l))]
    if nost:
        sel = {"q": f"v{oQP},", "o": f"v{oOP},", "m": f"v{oML},", "g": f"v{oGU},", "f": f"v{oFP},"}
        keys = list(sel.values()) if nost is True else [sel[c] for c in nost]
        A.L = [l for l in A.L if not (l.startswith("buffer_store_dwordx4") and "sc1" in l and any(k in l for k in keys))]
    if nost2:
        sel = {"q": f"v{oQP},", "o": f"v{oOP},", "m": f"v{oML},", "g": f"v{oGU},", "f": f"v{oFP2},"}
        keys = [sel[c] for c in nost2]
        A.L = [l for l in A.L if not (l.startswith("buffer_store_dwordx4") and any(k in l for k in keys))]
    if plain:
        sel = {"q": f"v{oQP},", "o": f"v{oOP},", "m": f"v{oML},", "g": f"v{oGU},", "f": f"v{oFP},"}
        keys = [sel[c] for c in plain]
        A.L = [l.replace(" sc1", "") if (l.startswith("buffer_store_dwordx4") and any(k in l for k in keys)) else l for l in A.L]
    if stpol != "sc1":
        A.L = [l.replace(" sc1", " " + stpol) if l.startswith("buffer_store_dwordx4") else l for l in A.L]
    body, nn = hazard_pass(A.L)
    out = []
    out.append(f"; @launch grid=(256,1,1) block=(576,1,1) lds={LDS_TOTAL + (4096 if xl else 0)}")
    out.append('.amdgcn_target "amdgcn-amd-amdhsa--gfx950"')
    out.append(".text")
    out.append(f".globl {NAME}_kernel")
    out.append(".p2align 8")
    out.append(f".type {NAME}_kernel,@function")
    out.append(f"{NAME}_kernel:")
    out += ["  " + l if not l.endswith(":") else l for l in body]
    if pf == 0:
        out.append(f".fill (16384 + 64 - (. - L_worker)) / 4, 4, 0xbf810000")
    elif pf == 1:
        out.append(f".fill (24576 + 64 - (. - {NAME}_kernel)) / 4, 4, 0xbf810000")
    out.append('.section .rodata,"a"')
    out.append(".p2align 6")
    out.append(f".amdhsa_kernel {NAME}_kernel")
    out.append("  .amdhsa_next_free_vgpr 160")
    out.append("  .amdhsa_next_free_sgpr 102")
    out.append("  .amdhsa_accum_offset 160")
    out.append("  .amdhsa_group_segment_fixed_size 0")
    out.append("  .amdhsa_kernarg_size 104")
    out.append("  .amdhsa_user_sgpr_count 2")
    out.append("  .amdhsa_user_sgpr_kernarg_segment_ptr 1")
    out.append("  .amdhsa_system_sgpr_workgroup_id_x 1")
    out.append(".end_amdhsa_kernel")
    return "\n".join(out) + "\n"


if __name__ == "__main__":
    import argparse, ast
    ap = argparse.ArgumentParser()
    ap.add_argument("out")
    ap.add_argument("kw", nargs="*")
    a = ap.parse_args()
    kw = {}
    for s in a.kw:
        k, v = s.split("=", 1)
        try:
            kw[k] = ast.literal_eval(v)
        except Exception:
            kw[k] = v
    open(a.out, "w").write(gen(**kw))
```

```python
import sys, struct
from asmlib import Asm, hazard_pass

NAME = "gated_mix__sliding_block_cached__geglu_ffn__decode"

PROG = 0
CQ, CP, CO, CH, FA, FB, FC, CA, CF = 0x100, 0x104, 0x108, 0x10C, 0x110, 0x114, 0x118, 0x11C, 0x120
ZERO = 0x200
HS, OS, QS, PS, MS, GS, AS = 0x400, 0x600, 0x800, 0x1100, 0x1A00, 0x1A80, 0x2000
PITCH = 288
RA, RC, RD, RB = 0x3000, 0xB000, 0x13000, 0x1A000
LDS_TOTAL = RB + 8 * 4096
QP, ML, EPOCH, GUP, OP, FP, WS_END = 0, 0x20000, 0x2F000, 0x40000, 0x100000, 0x200000, 0x300000
IDT, PX, PHB = 0x2E000, 0x30000, 0x38000
FLO, FLG_ = 0x2E800, 0x2EC00
WS_END = FP + 0x40000
TAGM = 0xFFF


def f32(x):
    return "0x%08x" % struct.unpack("<I", struct.pack("<f", x))[0]


LOG2E = 1.4426950408889634
SCALE = 128 ** -0.5
GC1 = -2.0 * LOG2E * 0.7978845608028654
GC2 = GC1 * 0.044715


def gen(qx=None, qset=0xcc, fm=None, fw=0, qw=0, rmap=(1, 8, 32), c3w=0, c3t=(3, 10), cperm=None, fsh=0, hold=None, D0=0, real=0, gp2=None, red=None, dz=None, dlead=0, dy=None, dpol='sc1', dmap=0, early=0, xcnt=None, xl=0, nox='', dg=0, nar=0, npol='nt', pgw=0, dyn=0, apol='', dmax=12, sp=0, pre2='', noat=0, lpol={}, sched=None, ad='', thr=(0, 24, 30), dds=(3, 4, 5, 6), lst=0, kvr=0, rsel='0x30003', kvs=0, tl='', tlw=8, lgrow=0, lat=0, gh=(49,48), lret='f', ffpol='nt', fpre=0, b3=3, pg={}, ccl=0, dly=0, pipe={}, pthr=32, wb=0, wbm=31, outpol='', unb=None, xo='', xkb=9, xcls=1, cbx=0, burst=0, nost2='', qn=4, sym=1, pxe=0, pf=2, win=None, wk=1, D=16, stamps=False, spl1=(4, 8), spl7=(4, 7), ntflag="nt", gq=16, go=34, gg=44, gp=45, loc='ogf', ppol='sc1', once='', rpol='sc1', rinv=0, pre='', prepol='', Dhi=0, D3hi=0, hibit=2, opol=None, gpol=None, hint='', go0=26, gg0=38, fsm=0, fpol="",
        nog=False, nost=False, rot=1, qmap=0, bgmap=0, D3=0, cst='', stpol='sc1', wsoff=0, half=0, ofrac=0, ostr=0, omask=0, mlin=0, ffrac=0, gfrac=0, plain='', qfrac=0):
    A = Asm()
    global RA, RC, RD, RB, LDS_TOTAL
    if dz:
        NCF, NBW, NCW, GSW = dz
        if NCF:
            RC, RD, RA, RB = 0x3000, 0xB000, 0x14000, 0x1C000
        if qx:
            E = max(max(qx) - 8, 0) * 4096
            RA, RC, RD, RB = 0x3000 + E, 0xB000 + E, 0x13000 + E, 0x1A000 + E
        LDS_TOTAL = RB + 8 * 4096
        dy = (GSW, NBW, NCW)
        PF1 = 35 + NCF if NCF else 38
        PW0 = PF1 + 7
        PEND = PW0 + NBW + NCW
    if fw:
        rmap = (1, 8, 32 >> fw)
    d = D // 4
    assert D % 4 == 0
    d3 = (D3 or D) // 4
    assert d3 >= d

    VST = 152
    XS = LDS_TOTAL

    def stamp(i):
        if stamps:
            if i == 0:
                A(f"v_mov_b32 v{VST}, 0")
            A("s_memrealtime s[96:97]")
            A("s_waitcnt lgkmcnt(0)")
            A(f"v_writelane_b32 v{VST}, s96, {i}")

    def dstamp():
        if stamps:
            A("s_memrealtime s[96:97]")
            A("s_waitcnt lgkmcnt(0)")
            A(f"v_writelane_b32 v{VST}, s96, m0")
            A("s_add_u32 m0, m0, 1")
            A("s_min_u32 m0, m0, 63")

    def dump_stamps():
        if not stamps:
            return
        A("s_mov_b64 exec, -1")
        A("s_add_u32 s28, s28, 0x8000000")
        A("s_addc_u32 s29, s29, 0")
        A("s_mul_i32 s55, s2, 9")
        A("s_add_u32 s55, s55, s3")
        A("s_lshl_b32 s55, s55, 8")
        A("v_lshlrev_b32 v5, 2, v0")
        A("v_add_u32 v5, s55, v5")
        A(f"global_store_dword v5, v{VST}, s[28:29]")

    BUD, SPROG = "s30", "s31"

    def budget(k=1):
        A(f"s_sub_u32 {BUD}, {BUD}, {k}")
        A("s_cbranch_scc1 L_end")

    RB1, CB1 = "s100", "s101"

    def xf(v, old, new, t=5):
        m = (1 << xkb) - 1
        A(f"v_subrev_u32 v{v}, {old}, v{v}")
        A(f"v_and_b32 v{t}, {m}, v{v}")
        A(f"v_lshrrev_b32 v{v}, {xkb}, v{v}")
        A(f"v_lshl_add_u32 v{v}, v{v}, 10, v{t}")
        A(f"v_add_u32 v{v}, {new + (xcls << xkb)}, v{v}")

    def tile1():
        if qx:
            tn = sum((8 - n + 8) << (4 * x) for x, n in enumerate(qx))
            ts, acc, cnt = 0, [0, 0], [0, 0]
            for x, n in enumerate(qx):
                st = (qset >> x) & 1
                ts |= (acc[st] | (cnt[st] << 5) | (st << 7)) << (8 * x)
                acc[st] += n
                cnt[st] += 1
            assert acc == [32, 32] and cnt == [4, 4] and min(qx) >= 1
            A(f"""
            s_and_b32 s95, s2, 7
            s_lshl_b32 s94, s95, 2
            s_lshl_b32 s95, s95, 3
            s_mov_b32 {RB1}, 0x{ts & 0xffffffff:x}
            s_mov_b32 {CB1}, 0x{ts >> 32:x}
            s_lshr_b32 s94, 0x{tn:x}, s94
            s_lshr_b64 s[100:101], s[100:101], s95
            s_and_b32 s94, s94, 15
            s_and_b32 s95, {RB1}, 31
            s_sub_u32 s94, s94, 8
            s_bfe_u32 s93, {RB1}, 0x10007
            s_lshr_b32 {CB1}, s2, 3
            s_bfe_u32 {RB1}, {RB1}, 0x20005
            s_lshl1_add_u32 {CB1}, {CB1}, s93
            """)
        elif qmap == 0:
            A(f"s_and_b32 {RB1}, s2, 3")
            A(f"s_lshr_b32 {CB1}, s2, 2")
        else:
            hi, lo = ("0x10000", "0x20001") if qmap == 1 else ("0x10002", "0x20000")
            A(f"""
            s_bfe_u32 {RB1}, s2, {hi}
            s_lshr_b32 s69, s2, 7
            s_lshl1_add_u32 {RB1}, {RB1}, s69
            s_bfe_u32 s69, s2, 0x40003
            s_bfe_u32 {CB1}, s2, {lo}
            s_lshl4_add_u32 {CB1}, {CB1}, s69
            """)

    def bg(dst, t):
        if bgmap == 0:
            A(f"s_and_b32 {dst}, s2, 7")
        else:
            A(f"s_and_b32 {dst}, s2, 1")
            A(f"s_bfe_u32 {t}, s2, 0x20001")
            A(f"s_lshl2_add_u32 {dst}, {dst}, {t}")

    def jidx(dst, t):
        A(f"s_and_b32 {dst}, s2, 7")
        A(f"s_lshl_b32 {dst}, {dst}, 5")
        A(f"s_lshr_b32 {t}, s2, 3")
        A(f"s_add_u32 {dst}, {dst}, {t}")

    def fpos(j):
        p = (fm + j) & 7
        return 0 if p == 7 else p

    def fmap(J, cb1, g1, n1, cb2, g2, h, t, p1=None, p2=None):
        ptab = sum(p << (2 * i) for i, p in enumerate((0, 1, 2, 1, 2, 3, 1, 2)))
        postab = sum(fpos(j) << (4 * j) for j in range(8))
        A(f"""
        s_bfe_u32 {t}, {J}, 0x30001
        s_bfe_u32 {h}, {J}, 0x10004
        """)
        if p1:
            A(f"""
            s_lshl_b32 {p1}, {t}, 1
            s_lshr_b32 {p1}, {ptab}, {p1}
            s_and_b32 {p1}, {p1}, 3
            s_lshl1_add_u32 {p2}, {h}, 1
            s_cmp_eq_u32 {t}, 7
            s_cselect_b32 {p2}, {p2}, 0
            """)
        A(f"""
        s_mul_i32 {t}, {t}, 14
        s_add_u32 {t}, {t}, 24
        s_and_b32 {g1}, {t}, 31
        s_lshr_b32 {t}, {t}, 5
        s_sub_u32 {n1}, 32, {g1}
        s_min_u32 {n1}, {n1}, 14
        s_mul_i32 {cb1}, {h}, 3
        s_add_u32 {cb1}, {cb1}, {t}
        s_add_u32 {cb2}, {cb1}, 1
        s_lshl_b32 {h}, {h}, 3
        s_cmp_eq_u32 {t}, 3
        s_cselect_b32 {cb2}, 0, {cb2}
        s_cselect_b32 {g2}, {h}, 0
        s_cmp_eq_u32 {t}, 0
        s_cselect_b32 {cb1}, 0, {cb1}
        s_cselect_b32 {h}, {h}, 0
        s_xor_b32 {g1}, {g1}, {h}
        """)
        if p1:
            A(f"s_lshr_b32 {h}, {h}, 2")
            A(f"s_add_u32 {p1}, {p1}, {h}")
        A(f"""
        s_lshr_b32 {t}, {J}, 5
        s_lshl_b32 {h}, {t}, 2
        s_lshr_b32 {h}, 0x{postab:x}, {h}
        s_and_b32 {h}, {h}, 7
        s_mul_i32 {t}, {t}, 7
        s_add_u32 {cb1}, {cb1}, {h}
        s_add_u32 {cb2}, {cb2}, {h}
        s_cmp_ge_u32 {cb1}, 7
        s_cselect_b32 {h}, 7, 0
        s_sub_u32 {cb1}, {cb1}, {h}
        s_cmp_ge_u32 {cb2}, 7
        s_cselect_b32 {h}, 7, 0
        s_sub_u32 {cb2}, {cb2}, {h}
        s_add_u32 {cb1}, {cb1}, {t}
        s_add_u32 {cb2}, {cb2}, {t}
        """)

    stamp(0)
    W8, W7, VK, VV, VO = 10, 14, 18, 22, 24
    vP, vPa, vFr, vFa, vT = 28, 29, 30, 31, 32
    A(f"""
    s_cmp_ge_u32 s2, 256
    s_cbranch_scc1 L_end
    s_load_dwordx2 s[32:33], s[0:1], 24
    s_load_dwordx16 s[4:19], s[0:1], 0
    s_load_dwordx8 s[20:27], s[0:1], 64
    s_load_dwordx2 s[28:29], s[0:1], 96
    v_lshrrev_b32 v1, 6, v0
    v_lshrrev_b32 v34, 3, v0
    v_readfirstlane_b32 s3, v1
    v_and_b32 v35, 7, v0
    v_and_b32 v36, 2, v34
    s_mov_b32 {BUD}, 0x100000
    s_mov_b32 s35, 0x20000
    """)
    tile1()
    QM0 = f"s_mov_b32 m0, {RA}"
    if qx:
        QM0 = f"""s_lshl_b32 s93, s94, 12
        s_add_u32 m0, s93, {RA}
        s_add_u32 s93, m0, {min(d, 7)*4096}
        s_min_u32 s93, s93, {RA + 8*4096}"""
    QW = ""
    if qw:
        QW = f"""v_lshrrev_b32 v6, {3+qw}, v0
        v_and_b32 v7, {(8<<qw)-1}, v0
        v_lshlrev_b32 v7, 4, v7
        v_lshl_add_u32 v{W8}, v6, 13, v7
        v_add_u32 v{W8+1}, {(8>>qw)*8192-1024}, v{W8}
        v_add_u32 v{W8+2}, {2*((8>>qw)*8192-1024)}, v{W8}
        v_add_u32 v{W8+3}, {3*((8>>qw)*8192-1024)}, v{W8}
        s_and_b32 s60, s2, {(4<<qw)-1}
        s_lshl_b32 s60, s60, {21-qw}
        s_lshr_b32 s68, s2, {2+qw}
        s_lshl_b32 s68, s68, {7+qw}
        s_add_u32 s60, s60, s68"""
    A(f"""
    s_cmp_lg_u32 s3, 0
    s_cbranch_scc1 L_worker
    s_setprio 3
    v_xor_b32 v35, v35, v36
    v_lshlrev_b32 v35, 4, v35
    v_xor_b32 v36, 64, v35
    v_lshl_add_u32 v{W8}, v34, 13, v35
    v_lshl_add_u32 v{W8+1}, v34, 13, v36
    v_add_u32 v{W8+1}, {65536-1024}, v{W8+1}
    v_add_u32 v{W8+2}, {2*(65536-1024)}, v{W8}
    v_add_u32 v{W8+3}, {2*(65536-1024)}, v{W8+1}
    s_lshl_b32 s68, {CB1}, 7
    {f"s_lshl_b32 s60, {RB1}, 21" if not qx else "s_lshl_b32 s60, s95, 18"}
    s_add_u32 s60, s60, s68
    {QW}
    s_mov_b32 s34, {8<<20}
    {QM0}
    s_waitcnt lgkmcnt(0)
    """)
    srds = [(36, 6, 64 << 20), (40, 8, 64 << 20), (44, 16, 7 << 20), (48, 18, 7 << 20),
            (52, 12, 8 << 20), (56, 20, 7 << 20)]
    NPEEL = burst or min(d, 7)

    UNB = ""
    if unb:
        tb0 = sum(((u[0] + 8) & 15) << (4 * c) for c, u in enumerate(unb))
        tb1 = sum(u[1] << (4 * c) for c, u in enumerate(unb))
        UNB = f"""s_and_b32 s70, s68, 3
        s_lshl_b32 s70, s70, 2
        s_lshr_b32 s71, {tb0}, s70
        s_and_b32 s71, s71, 15
        s_sub_u32 s71, s71, 8
        s_lshr_b32 s75, {tb1}, s70
        s_and_b32 s75, s75, 15
        s_sub_u32 s76, 7, s75
        s_lshl_b32 s75, s75, 12
        s_add_u32 s75, s75, {RA}
        s_mul_i32 s69, s67, 7
        s_add_u32 s69, s69, s71
        s_lshr_b32 s64, s69, 5
        s_lshl_b32 s64, s64, 7
        s_and_b32 s69, s69, 31
        s_mul_i32 s69, s69, {32*7168}
        s_add_u32 s64, s64, s69"""

    C3 = ""
    if c3w:
        C3 = f"""s_add_u32 s71, s70, {c3t[0]}
        s_add_u32 s72, s70, {c3t[1]}
        s_bfe_u32 s71, s71, 0x30005
        s_bfe_u32 s72, s72, 0x30005
        s_cmp_eq_u32 s71, 3
        s_cselect_b32 s88, 1, 0
        s_cmp_eq_u32 s72, 3
        s_cselect_b32 s88, 1, s88"""
    XCNT = ""
    if xcnt:
        assert sum(xcnt) == 112
        t0 = sum((c - 8) << (4 * i) for i, c in enumerate(xcnt))
        pre_ = [sum(xcnt[:i]) for i in range(8)]
        t1 = sum(v << (8 * i) for i, v in enumerate(pre_))
        XCNT = f"""s_and_b32 s71, s2, 7
        s_lshl_b32 s72, s71, 2
        s_lshr_b32 s75, 0x{t0:x}, s72
        s_and_b32 s75, s75, 15
        s_add_u32 s75, s75, 8
        s_mov_b32 s72, 0x{t1 & 0xffffffff:x}
        s_mov_b32 s73, 0x{t1 >> 32:x}
        s_lshl_b32 s71, s71, 3
        s_lshr_b64 s[72:73], s[72:73], s71
        s_and_b32 s72, s72, 255
        s_lshl_b32 s72, s72, 4
        s_lshr_b32 s70, s2, 4
        s_mul_i32 s70, s70, s75
        s_add_u32 s70, s70, s72
        s_sub_u32 s76, 14, s75
        s_sub_u32 s75, s75, 7
        s_lshl_b32 s75, s75, 12
        s_add_u32 s75, s75, {RA}"""

    CNT = 0x38000
    def dygrp(g, m, t):
        GS_ = dy[0]
        NG = 32 // GS_
        lg = NG.bit_length() - 1
        if dmap == 0:
            A(f"s_lshr_b32 {g}, s2, {3 + GS_.bit_length() - 1}")
            A(f"s_bfe_u32 {m}, s2, 0x{GS_.bit_length() - 1}0003")
        else:
            A(f"s_lshr_b32 {m}, s2, {3 + lg}")
            A(f"s_lshr_b32 {t}, s2, 3")
            A(f"s_add_u32 {g}, {m}, {t}")
            A(f"s_and_b32 {g}, {g}, {NG - 1}")

    def CPERM(r):
        if not cperm:
            return f"s_xor_b32 {r}, {r}, {cbx}"
        assert sorted(cperm) == list(range(8))
        t = sum(c << (4 * i) for i, c in enumerate(cperm))
        return f"s_lshl_b32 {r}, {r}, 2\n s_lshr_b32 {r}, 0x{t:x}, {r}\n s_and_b32 {r}, {r}, 7"
    CNTF = 0x3A000
    TK = 0x140
    def fgrp(gi, mi, t):
        A(f"""
        s_bfe_u32 {t}, s2, 0x10002
        s_and_b32 {mi}, s2, 1
        s_lshl1_add_u32 {mi}, {t}, {mi}
        s_lshr_b32 {t}, s2, 3
        s_add_u32 {gi}, {t}, {mi}
        s_and_b32 {gi}, {gi}, 3
        s_and_b32 {t}, {t}, 28
        s_add_u32 {gi}, {gi}, {t}
        s_and_b32 {t}, s2, 2
        s_lshl4_add_u32 {gi}, {t}, {gi}
        """)

    def loader_setup():
        A(f"""
        v_lshrrev_b32 v4, 4, v0
        v_and_b32 v5, 15, v0
        v_xor_b32 v6, v5, v4
        v_lshlrev_b32 v6, 4, v6
        v_lshl_add_u32 v{VK}, v4, 8, v6
        v_xor_b32 v{VK+1}, 64, v{VK}
        v_xor_b32 v{VK+2}, 128, v{VK}
        v_xor_b32 v{VK+3}, 192, v{VK}
        v_lshlrev_b32 v6, 1, v4
        v_xor_b32 v6, v5, v6
        v_lshlrev_b32 v6, 4, v6
        v_lshl_add_u32 v{VV}, v4, 8, v6
        v_xor_b32 v{VV+1}, 128, v{VV}
        v_lshl_add_u32 v{VO}, v4, 11, v6
        v_add_u32 v{VO+1}, 7168, v{VO}
        v_xor_b32 v{VO+3}, 128, v{VO}
        v_add_u32 v{VO+2}, {2*7168}, v{VO+3}
        v_add_u32 v{VO+3}, {3*7168}, v{VO+3}
        v_mul_u32_u24 v7, {rmap[0]*7168}, v34
        v_add_u32 v{W7}, v7, v35
        v_add_u32 v{W7+1}, v7, v36
        v_add_u32 v{W7+1}, {rmap[1]*7168-1024}, v{W7+1}
        v_add_u32 v{W7+2}, {2*(rmap[1]*7168-1024)}, v{W7}
        v_add_u32 v{W7+3}, {2*(rmap[1]*7168-1024)}, v{W7+1}
        {f"v_mov_b32 v{vP}, {min(NPEEL-d, 0)}" if not qx else f"s_min_i32 s94, s94, {8-d}" + chr(10) + f"v_mov_b32 v{vP}, s94"}
        v_lshlrev_b32 v{vPa}, 2, v0
        """)
        if fw:
            A(f"""
            v_lshrrev_b32 v6, {3+fw}, v0
            v_mul_u32_u24 v6, 7168, v6
            v_and_b32 v7, {(8<<fw)-1}, v0
            v_lshl_add_u32 v{W7}, v7, 4, v6
            v_add_u32 v{W7+1}, {(8>>fw)*7168-1024}, v{W7}
            v_add_u32 v{W7+2}, {2*((8>>fw)*7168-1024)}, v{W7}
            v_add_u32 v{W7+3}, {3*((8>>fw)*7168-1024)}, v{W7}
            """)
        if kvs:
            if kvs == 8:
                A(f"v_lshrrev_b32 v6, 5, v0")
                A(f"v_mul_u32_u24 v6, {4096-512}, v6")
            elif kvs == 16:
                A(f"v_mul_u32_u24 v6, {2048-256}, v4")
            else:
                A("v_mov_b32 v6, 0")
            A(f"v_mov_b32 v39, v{VV+1}")
            A(f"v_mov_b32 v38, v{VV+1}")
            A(f"v_mov_b32 v{VV+1}, v{VV}")
            for t, (rk, rv) in enumerate(zip(vk, vv)):
                if t:
                    A(f"v_add_u32 v6, {8192-1024}, v6")
                A(f"v_add_u32 v{rk}, v6, v{rk}")
                A(f"v_add_u32 v{rv}, v6, v{rv}")
        jidx("s67", "s68")
        A(f"""
        s_mul_i32 s69, s67, 7
        s_lshr_b32 s63, s69, 5
        s_lshl_b32 s63, s63, 7
        s_and_b32 s69, s69, 31
        s_mul_i32 s69, s69, {32*7168}
        s_add_u32 s63, s63, s69
        s_mov_b32 s64, s63
        {UNB}
        s_and_b32 s69, s68, 7
        s_xor_b32 s69, s69, {cbx}
        s_lshl_b32 s69, s69, 8
        s_lshr_b32 s67, s67, 3
        s_mul_i32 s66, s67, {112*2048}
        s_add_u32 s66, s66, s69
        s_and_b32 s65, s2, 3
        s_lshl_b32 s65, s65, 3
        s_and_b32 s67, s2, 4
        s_add_u32 s65, s65, s67
        s_lshr_b32 s67, s2, 6
        s_add_u32 s65, s65, s67
        s_lshl_b32 s65, s65, 18
        s_add_u32 s65, s65, s69
        """)
        if b3:
            A(f"""
            s_and_b32 s69, s2, 7
            {CPERM("s69")}
            s_lshl_b32 s69, s69, 8
            s_mul_i32 s66, s68, {(128 if sp else 112)*2048}
            s_add_u32 s66, s66, s69
            s_lshl_b32 s65, s68, 18
            s_add_u32 s65, s65, s69
            """)
        if nar:
            A(f"""
            v_lshrrev_b32 v6, 1, v0
            v_mul_u32_u24 v6, 7168, v6
            v_and_b32 v7, 1, v0
            v_lshl_add_u32 v{W7}, v7, 4, v6
            v_add_u32 v{W7+1}, {32*7168-1024}, v{W7}
            v_add_u32 v{W7+2}, {2*(32*7168-1024)}, v{W7}
            v_add_u32 v{W7+3}, {3*(32*7168-1024)}, v{W7}
            s_and_b32 s63, s2, 7
            s_mul_i32 s63, s63, 28
            s_add_u32 s63, s63, s68
            s_lshl_b32 s63, s63, 5
            s_mov_b32 s64, s63
            s_mul_i32 s66, s68, 5
            s_sub_u32 s70, s68, 28
            s_mul_i32 s70, s70, 21
            s_add_u32 s70, s70, 140
            s_cmp_ge_u32 s68, 28
            s_cselect_b32 s66, s70, s66
            s_lshl_b32 s66, s66, 15
            s_add_u32 s66, s66, s69
            """)
        if dg:
            jidx("s67", "s70")
            A(f"""
            s_and_b32 s70, s67, -2
            s_mul_i32 s70, s70, 7
            {C3}
            {XCNT}
            s_lshr_b32 s63, s70, {5+fw}
            s_lshl_b32 s63, s63, {7+fw}
            s_and_b32 s70, s70, {(32<<fw)-1}
            s_mul_i32 s70, s70, {rmap[2]*7168}
            s_add_u32 s63, s63, s70
            {f"s_add_u32 s63, s63, {fsh}" if fsh else ""}
            """)
            if fm is not None:
                fmap("s67", "s88", "s89", "s90", "s91", "s92", "s93", "s70")
                A(f"""
                s_lshl_b32 s63, s88, 7
                s_mul_i32 s89, s89, {32*7168}
                s_add_u32 s63, s63, s89
                s_mul_i32 s73, s90, {32*7168}
                s_add_u32 s73, s73, s63
                s_lshl_b32 s64, s91, 7
                s_mul_i32 s92, s92, {32*7168}
                s_add_u32 s64, s64, s92
                """)
        if dz and not NCF:
            A("v_mov_b32 v44, 1")
            A.mute = True
        if dz:
            fgrp("s83", "s84", "s70")
            A(f"""
            s_lshr_b32 s70, s83, 3
            s_mul_i32 s70, s70, 7
            s_and_b32 s71, s83, 3
            s_add_u32 s85, s70, s71
            s_lshl_b32 s85, s85, 7
            s_add_u32 s70, s70, s84
            s_add_u32 s70, s70, 3
            s_lshl_b32 s70, s70, 7
            s_mul_i32 s71, s71, {8*32*7168}
            s_add_u32 s70, s70, s71
            s_cmp_eq_u32 s84, 0
            s_cselect_b32 s63, s85, s70
            s_mul_i32 s64, s84, {3*32*7168}
            s_add_u32 s64, s64, s85
            s_add_u32 s64, s64, {8*32*7168}
            s_add_u32 s85, s85, {20*32*7168}
            s_lshl_b32 s70, s83, 7
            s_add_u32 s70, s70, {CNTF}
            v_mov_b32 v45, s70
            v_mov_b32 v44, 1
            """)
            A.mute = False
            dygrp("s75", "s76", "s77")
            A(f"""
            s_and_b32 s77, s2, 7
            s_mov_b32 s78, s69
            s_mul_i32 s77, s77, {32 // GSW}
            s_add_u32 s77, s77, s75
            s_lshl_b32 s77, s77, 7
            s_add_u32 s77, s77, {CNT}
            v_mov_b32 v46, s77
            {'v_writelane_b32 v46, s70, 60' if NCF else ''}
            s_mul_i32 s75, s75, {8*GSW}
            s_mul_i32 s76, s76, {NBW}
            s_add_u32 s76, s76, s75
            s_lshl_b32 s65, s76, 15
            s_add_u32 s65, s65, s78
            s_add_u32 s75, s75, {NBW*GSW}
            s_lshl_b32 s75, s75, 15
            s_add_u32 s78, s78, s75
            """)
        bg("s67", "s69")
        A(f"""
        s_lshl_b32 s61, s67, 23
        s_lshl_b32 s69, s68, 15
        s_add_u32 s61, s61, s69
        s_add_u32 s61, s61, {28672*256}
        s_mov_b32 s62, s61
        """)
        for r, p, n in srds:
            if dg and r == 48:
                continue
            if dg and r == 44:
                A("s_bitcmp1_b32 s83, 2" if dz and NCF else "s_bitcmp1_b32 s2, 3")
                A("s_cselect_b64 s[44:45], s[18:19], s[16:17]")
            else:
                A(f"s_mov_b64 s[{r}:{r+1}], s[{p}:{p+1}]")
            A(f"s_mov_b32 s{r+2}, {n}")
            A(f"s_mov_b32 s{r+3}, 0x20000")

    def group(srd, vo, soff):
        for t in range(4):
            off = f" offset:{1024*t}" if t else ""
            A(f"buffer_load_dwordx4 v{vo[t]}, s[{srd}:{srd+3}], {soff} offen{off} {ntflag} lds")

    def lstamp():
        if sched or ad:
            lstamp0()

    def lstamp0():
        A("s_waitcnt lgkmcnt(0)")
        A("s_mov_b64 exec, s[94:95]")
        A(f"v_mov_b32 v{VST}, s98")
        A("s_mov_b64 exec, -1")
        A("s_memrealtime s[98:99]")
        A("s_lshl_b64 s[94:95], s[94:95], 1")

    def publish():
        if lst:
            lstamp0()
        if ad or sched:
            A(f"v_add_u32 v{vI}, 1, v{vI}")
            A(f"v_mad_i32_i24 v{vP}, s78, v{vM}, v{vI}")
        else:
            A(f"v_add_u32 v{vP}, 1, v{vP}")
        A(f"ds_max_i32 v{vPa}, v{vP}")

    vRet, vOne, vCa, vI, vM = 40, 41, 42, 43, 44
    adst = {"on": False, "n": 0}

    def wwait(dd):
        if not adst["on"]:
            A(f"s_waitcnt vmcnt({4*dd})")
            return
        lo, l1, l3, lp = A.lab("L_wl"), A.lab("L_w1"), A.lab("L_w3"), A.lab("L_wp")
        ddt = sum(x << (4 * i) for i, x in enumerate(dds))
        A(f"""
        v_readfirstlane_b32 s75, v{vRet}
        s_xor_b32 s75, s75, s79
        s_cmp_lt_u32 s75, 32
        s_cselect_b32 s75, s75, {thr[0]}
        s_lshl_b32 s75, s75, 1
        s_lshr_b64 s[76:77], s[80:81], s75
        s_and_b32 s76, s76, 3
        s_lshl_b32 s75, s76, 2
        s_lshr_b32 s75, {ddt}, s75
        s_and_b32 s75, s75, 15
        s_sub_u32 s78, 0, s75
        s_bitcmp0_b32 s76, 1
        s_cbranch_scc1 {lo}
        s_bitcmp1_b32 s76, 0
        s_cbranch_scc1 {l3}
        s_waitcnt vmcnt({4*dds[2]})
        {l3}:
        s_waitcnt vmcnt({4*dds[3]})
        s_branch {lp}
        {lo}:
        s_bitcmp1_b32 s76, 0
        s_cbranch_scc1 {l1}
        s_waitcnt vmcnt({4*dds[0]})
        {l1}:
        s_waitcnt vmcnt({4*dds[1]})
        {lp}:
        """)

    def checkpoint(c):
        if c not in ad:
            return
        if not adst["on"]:
            tab = 0
            for r in range(32):
                tab |= sum(r >= t for t in thr) << (2 * r)
            A(f"""
            s_waitcnt lgkmcnt(0)
            s_add_u32 s79, s82, 1
            s_lshl_b32 s79, s79, 8
            v_not_b32 v{vRet}, s79
            s_mov_b32 s80, 0x{tab & 0xffffffff:x}
            s_mov_b32 s81, 0x{tab >> 32:x}
            """)
            adst["on"] = True
        A("s_mov_b64 exec, 1")
        if noat == 0:
            A(f"global_atomic_add v{vRet}, v{vCa}, v{vOne}, s[28:29] offset:{4*adst['n']} sc0")
        elif noat == 2:
            A(f"global_load_dword v{vRet}, v{vCa}, s[28:29] offset:{4*adst['n']} nt")
        A("s_mov_b64 exec, -1")
        adst["n"] += 1

    sst = {"i": NPEEL, "dd": d}

    def tloop(srd, vo, soff, step, ng, base, free=None, skip=0, pitch=4096, wrap=False, dd=None, grow=0):
        if not sched:
            return tloop0(srd, vo, soff, step, ng, base, free, skip, pitch, wrap, dd, grow)
        a = sst["i"] - skip
        cuts = sorted(c - a for c in sched if sst["i"] < c < a + ng) + [ng]
        for c in cuts:
            if sst["i"] in sched:
                sst["dd"] = sched[sst["i"]]
                A(f"s_mov_b32 s78, {-sst['dd']}")
            tloop0(srd, vo, soff, step, c, base, free if c == ng else None, sst["i"] - a, pitch, wrap, sst["dd"], 0)
            sst["i"] = a + c

    def tloop0(srd, vo, soff, step, ng, base, free=None, skip=0, pitch=4096, wrap=False, dd=None, grow=0):
        dd = dd or d
        if not skip:
            A(f"s_mov_b32 m0, {base}")
        if free is not None:
            A(f"v_mov_b32 v{vFa}, {free}")
        for i in range(grow):
            group(srd, vo, soff)
            A(f"s_add_u32 {soff}, {soff}, {step}")
            if wrap and fm is not None:
                A(f"s_cmp_eq_u32 {soff}, s73")
                A(f"s_cselect_b32 {soff}, s64, {soff}")
            elif wrap:
                A(f"s_cmp_ge_u32 {soff}, {(32<<fw)*rmap[2]*7168}")
                A(f"s_cselect_b32 s73, {(32<<fw)*rmap[2]*7168-(128<<fw)}, 0")
                A(f"s_sub_u32 {soff}, {soff}, s73")
            A(f"s_add_u32 m0, m0, {pitch}")
        L = A.lab("L_ld")
        A(f"{L}:")
        group(srd, vo, soff)
        if free is not None:
            A(f"ds_read_b32 v{vFr}, v{vFa}")
        A(f"s_add_u32 {soff}, {soff}, {step}")
        if wrap and fm is not None:
            A(f"s_cmp_eq_u32 {soff}, s73")
            A(f"s_cselect_b32 {soff}, s64, {soff}")
        elif wrap:
            A(f"s_cmp_ge_u32 {soff}, {(32<<fw)*rmap[2]*7168}")
            A(f"s_cselect_b32 s73, {(32<<fw)*rmap[2]*7168-(128<<fw)}, 0")
            A(f"s_sub_u32 {soff}, {soff}, s73")
        A(f"s_add_u32 m0, m0, {pitch}")
        wwait(dd)
        publish()
        A(f"s_cmp_lg_u32 m0, {base + ng*pitch if isinstance(ng, int) else ng}")
        A(f"s_cbranch_scc1 {L}")
        if free is not None:
            freechk(dd)

    fcnt = [4]
    def freechk(dd):
        if True:
            ok, sp = A.lab("L_fok"), A.lab("L_fsp")
            A("s_waitcnt lgkmcnt(0)")
            A(f"v_readfirstlane_b32 s74, v{vFr}")
            A(f"s_cmp_ge_u32 s74, {fcnt[0]}")
            A(f"s_cbranch_scc1 {ok}")
            A("s_waitcnt vmcnt(0)")
            if ad or sched:
                A(f"ds_max_i32 v{vPa}, v{vI}")
            else:
                A(f"v_add_u32 v{vT}, {dd}, v{vP}")
                A(f"ds_max_i32 v{vPa}, v{vT}")
            A(f"{sp}:")
            A(f"ds_read_b32 v{vFr}, v{vFa}")
            A("s_waitcnt lgkmcnt(0)")
            A(f"v_readfirstlane_b32 s74, v{vFr}")
            budget()
            A(f"s_cmp_lt_u32 s74, {fcnt[0]}")
            A(f"s_cbranch_scc1 {sp}")
            A(f"{ok}:")

    w8 = [W8 + t for t in range(4)]
    w7 = [W7 + t for t in range(4)]
    vk = [VK + t for t in range(4)]
    vv = [VV, VV + 1, 38, 39] if kvs else [VV, VV, VV + 1, VV + 1]
    vo = [VO + t for t in range(4)]
    A("L_ld0:")
    group(32, w8, "s60")
    A(f"s_add_u32 s60, s60, {(32>>qw)*8192}")
    A("s_add_u32 m0, m0, 4096")
    A(f"s_cmp_lg_u32 m0, {RA + NPEEL*4096}" if not qx else "s_cmp_lg_u32 m0, s93")
    A("s_cbranch_scc1 L_ld0")
    if xl == 1:
        A(f"""
        s_mov_b64 s[36:37], s[4:5]
        s_mov_b32 s38, 4096
        s_mov_b32 s39, 0x20000
        v_lshlrev_b32 v4, 4, v0
        s_mov_b32 m0, {XS}
        """)
        for t in range(4):
            A(f"buffer_load_dwordx4 v4, s[36:39], 0 offen{' offset:%d' % (1024*t) if t else ''} lds")
        A(f"s_mov_b32 m0, {RA + NPEEL*4096}")
    stamp(1)
    if real:
        A(f"s_load_dwordx2 s[80:81], s[28:29], {EPOCH}")
    elif ad or dy:
        A(f"s_load_dword s82, s[28:29], {EPOCH}")
    loader_setup()
    if ad or sched:
        assert NPEEL == d and not Dhi and not D3 and not win
        A(f"""
        s_and_b32 s75, s2, 7
        s_lshl_b32 s75, s75, 7
        s_add_u32 s75, s75, {FLO}
        v_mov_b32 v{vCa}, s75
        v_mov_b32 v{vOne}, 1
        v_mov_b32 v{vI}, {NPEEL}
        v_mov_b32 v{vM}, 1
        v_writelane_b32 v{vM}, 0, 1
        s_mov_b32 s78, {-d}
        """)
    if lst:
        A("s_mov_b64 s[94:95], 0x100")
        A("s_mov_b32 s98, 0")
    A("s_barrier")
    def wbl2():
        L = A.lab("L_wb")
        A(f"s_lshr_b32 s67, s2, 3")
        A(f"s_and_b32 s67, s67, {wbm}")
        A(f"s_cbranch_scc1 {L}")
        A("buffer_wbl2 sc1")
        A(f"{L}:")

    def stream(dx, d3x, stamp0=stamp):
        def stamp(i):
            if lst != 2 or i == 7:
                stamp0(i)
        if burst:
            for j in range(burst - 1, dx - 1, -1):
                A(f"s_waitcnt vmcnt({4*j})")
                publish()
            if burst < 8:
                tloop(32, w8, "s60", (32 >> qw) * 8192, 8, RA, skip=NPEEL, dd=dx, grow=max(dx - burst, 0))
        else:
            if qx:
                assert NPEEL == d and dx == d
                A(f"s_cmp_eq_u32 m0, {RA + 8*4096}")
                A("s_cbranch_scc1 L_qxd")
            tloop(32, w8, "s60", (32 >> qw) * 8192, 8, RA, skip=NPEEL, dd=d if lgrow else dx, grow=0 if lgrow else dx - d)
            if qx:
                A("L_qxd:")
        stamp(2)
        if kvs and not kvr:
            checkpoint("K")
            if "k" in ad:
                tloop(36, vk, "s61", 4096 // kvs, 4, RB, dd=dx)
                checkpoint("k")
                tloop(36, vk, "s61", 4096 // kvs, 8, RB, dd=dx, skip=4)
            else:
                tloop(36, vk, "s61", 4096 // kvs, 8, RB, dd=dx)
            checkpoint("V")
            tloop(40, vv, "s62", 4096 // kvs, 8, RC, dd=dx)
        elif not rot:
            tloop(36, vk, "s61", 4096, 8, RB, dd=dx)
            tloop(40, vv, "s62", 4096, 8, RC, dd=dx)
        else:
            A(f"s_bfe_u32 s67, s2, {rsel}")
            A("s_lshl_b32 s67, s67, 12")
            A("s_mov_b32 s68, s67")
            for srd, vo_, base in ((36, vk, RB), (40, vv, RC)):
                L = A.lab("L_rt")
                checkpoint("K" if srd == 36 else "V")
                dxx = d if (lgrow == 2 and srd == 36) else dx
                if sched:
                    if sst["i"] in sched:
                        sst["dd"] = sched[sst["i"]]
                        A(f"s_mov_b32 s78, {-sst['dd']}")
                    dxx = sst["dd"]
                    sst["i"] += 8
                if (lgrow == 1 and srd == 36) or (lgrow == 2 and srd == 40):
                    for _ in range(dx - d):
                        A(f"s_add_u32 m0, s68, {base}")
                        A("s_add_u32 s69, s68, s61")
                        group(srd, vo_, "s69")
                        A("s_add_u32 s68, s68, 4096")
                        A("s_and_b32 s68, s68, 0x7fff")
                A(f"{L}:")
                A(f"s_add_u32 m0, s68, {base}")
                if kvs:
                    A(f"s_lshr_b32 s69, s68, {kvs.bit_length()-1}")
                    A("s_add_u32 s69, s69, s61")
                else:
                    A("s_add_u32 s69, s68, s61")
                group(srd, vo_, "s69")
                A("s_add_u32 s68, s68, 4096")
                A("s_and_b32 s68, s68, 0x7fff")
                wwait(dxx)
                publish()
                A("s_cmp_lg_u32 s68, s67")
                A(f"s_cbranch_scc1 {L}")
        stamp(3)
        checkpoint("G")
        if nar:
            nonlocal ntflag
            sv = ntflag
            A("s_cmp_ge_u32 s2, 224")
            A("s_cbranch_scc1 L_nsp")
            ntflag = npol
            tloop(44, w7, "s63", 128 * 7168, 8, RD - 4096, free=FA, dd=dx)
            tloop(48, w7, "s64", 128 * 7168, 8, RA, free=FB, dd=dx)
            ntflag = sv
            stamp(4)
            tloop(52, vo, "s65", 32768, 8, RB, free=FC, dd=dx)
            stamp(5)
            tloop(56, vo, "s66", 32768, 5, RC, dd=dx)
            A("s_branch L_nsd")
            A("L_nsp:")
            tloop(56, vo, "s66", 32768, 8, RD - 4096, free=FA, dd=dx)
            tloop(56, vo, "s66", 32768, 8, RA, free=FB, dd=dx)
            stamp(4)
            tloop(52, vo, "s65", 32768, 8, RB, free=FC, dd=dx)
            stamp(5)
            tloop(56, vo, "s66", 32768, 5, RC, dd=dx)
            A("L_nsd:")
            stamp(6)
            for k in range(dx - 1, -1, -1):
                A(f"s_waitcnt vmcnt({4*k})")
                publish()
            stamp(7)
            dump_stamps()
            A("s_endpgm")
            return
        if dz:
            assert (D0 // 4 or dx) <= 5
            vC, vT1, vT2 = 47, 48, 49
            if real:
                assert not NCF
                A(f"""
                s_mov_b64 exec, 1
                global_load_dwordx2 v[50:51], v46, s[28:29] sc1
                s_mov_b64 exec, -1
                s_waitcnt lgkmcnt(0)
                s_add_u32 s80, s80, 1
                s_addc_u32 s81, s81, 0
                s_lshl_b32 s79, s80, 8
                s_lshr_b64 s[80:81], s[80:81], 24
                v_not_b32 v{vT2}, s79
                """)
                hk = dx if hold is None else hold
                if D0:
                    dx = D0 // 4
                    hk = min(hk, dx)
                for j in range(d - 1, hk - 1, -1):
                    A(f"s_waitcnt vmcnt({4*j})")
                    publish()
                if c3w:
                    A("s_cmp_eq_u32 s88, 0")
                    A("s_cbranch_scc1 L_c3n")
                    tloop(44, w7, "s63", rmap[2] * 7168, 7, RD, free=FA, wrap=True, dd=c3w, grow=c3w - dx)
                    tloop(44, w7, "s63", rmap[2] * 7168, 7, RA, free=FB, wrap=True, dd=c3w)
                    for j in range(c3w - 1, dx - 1, -1):
                        A(f"s_waitcnt vmcnt({4*j})")
                        publish()
                    A("s_branch L_cv")
                    A("L_c3n:")
                tloop(44, w7, "s63", rmap[2] * 7168, 7, RD, free=FA, wrap=True, dd=dx, grow=dx - hk)
                if c3w:
                    tloop(44, w7, "s63", rmap[2] * 7168, 7, RA, free=FB, wrap=True, dd=dx)
                A(f"""
                L_cv:
                v_readfirstlane_b32 s75, v50
                v_readfirstlane_b32 s76, v51
                s_xor_b32 s75, s75, s79
                s_lshr_b32 s75, s75, 8
                s_xor_b32 s76, s76, s80
                s_or_b32 s75, s75, s76
                s_cbranch_scc0 L_cok
                s_mov_b64 exec, 1
                global_load_dwordx2 v[50:51], v46, s[28:29] sc1
                s_mov_b64 exec, -1
                s_waitcnt vmcnt(0)
                s_sub_u32 {BUD}, {BUD}, 16
                s_cbranch_scc0 L_cv
                s_endpgm
                """)
                A.mute = True
            A(f"""
            s_mov_b32 exec_lo, 0
            s_mov_b32 exec_hi, 0x30000000
            global_load_dword v{vC}, v46, s[28:29] sc1
            s_mov_b64 exec, -1
            s_waitcnt lgkmcnt(0)
            s_add_u32 s79, s82, 1
            s_lshl_b32 s79, s79, 8
            """)
            if NCF:
                tloop(44, w7, "s63", 32 * 7168, 5, RD, free=FA, dd=dx)
            else:
                tloop(44, w7, "s63", rmap[2] * 7168, 7, RD, free=FA, wrap=True, dd=dx)
            A(f"""
            L_cv:
            v_readlane_b32 s75, v{vC}, 60
            v_readlane_b32 s76, v{vC}, 61
            s_xor_b32 s75, s75, s79
            s_xor_b32 s76, s76, s79
            s_or_b32 s75, s75, s76
            s_cmp_lt_u32 s75, 256
            s_cbranch_scc1 L_cok
            s_mov_b32 exec_lo, 0
            s_mov_b32 exec_hi, 0x30000000
            global_load_dword v{vC}, v46, s[28:29] sc1
            s_mov_b64 exec, -1
            s_waitcnt vmcnt(0)
            s_sub_u32 {BUD}, {BUD}, 16
            s_cbranch_scc0 L_cv
            s_endpgm
            """)
            A.mute = False
            A("L_cok:")
            if not NCF:
                if not c3w:
                    tloop(44, w7, "s63", rmap[2] * 7168, 7, RA, free=FB, wrap=True, dd=dx)
                stamp(4)
                A.mute = True
            A("s_mov_b64 s[86:87], 1")
            A("L_c1:")
            group(44, w7, "s63")
            A(f"""
            s_mov_b64 exec, s[86:87]
            global_atomic_add v{vT1}, v45, v44, s[28:29] sc0 {dpol}
            s_mov_b64 exec, -1
            s_lshl_b32 s86, s86, 1
            s_and_b32 s86, s86, {(1 << NCF) - 1}
            s_add_u32 s63, s63, {32*7168}
            s_add_u32 m0, m0, 4096
            s_cmp_eq_u32 m0, {RD + 8*4096}
            s_cselect_b32 s63, s64, s63
            s_waitcnt vmcnt({4*dx+1})
            """)
            publish()
            A(f"s_cmp_lg_u32 m0, {RD + 11*4096}")
            A("s_cbranch_scc1 L_c1")
            def dynloop(tag, vt, srd, vo_, mul, base, pool, nc, tk, jm):
                A(f"""
                s_mov_b32 s76, 0
                L_d{tag}:
                v_readlane_b32 s75, v{vt}, s76
                s_sub_u32 s75, s75, s79
                s_cmp_ge_u32 s75, {pool}
                s_cbranch_scc1 L_{'x' if real else 'e'}{tag}
                s_mul_i32 s75, s75, {mul}
                s_add_u32 s75, s75, {base}
                """)
                group(srd, vo_, "s75")
                A("s_add_u32 m0, m0, 4096")
                A("s_add_u32 s76, s76, 1")
                A(f"s_cmp_eq_u32 s76, {nc}")
                A(f"s_waitcnt vmcnt({4*dx})")
                A(f"s_cbranch_scc1 L_f{tag}")
                publish()
                A(f"s_branch L_d{tag}")
                if real:
                    A(f"""
                    L_x{tag}:
                    s_cmp_lt_u32 s75, 256
                    s_cbranch_scc1 L_e{tag}
                    s_waitcnt vmcnt(0)
                    s_sub_u32 {BUD}, {BUD}, 16
                    s_cbranch_scc0 L_d{tag}
                    s_endpgm
                    """)
                A(f"L_f{tag}:")
                A(f"v_add_u32 v{vP}, 1, v{vP}")
                A(f"""
                L_e{tag}:
                v_writelane_b32 v{vt}, s76, 7
                s_sub_u32 s76, {nc}, s76
                s_mov_b64 exec, 0xff
                ds_write_b32 v{vPa}, v{vt} offset:{tk}
                s_mov_b64 exec, {jm}
                v_add_u32 v{vP}, s76, v{vP}
                s_mov_b64 exec, -1
                ds_max_i32 v{vPa}, v{vP}
                """)
            dynloop("1", vT1, 44, w7, 32*7168, "s85", 12, NCF, TK, 3)
            if stamps:
                A(f"v_writelane_b32 v{VST}, s76, 29")
            stamp(4)
            A(f"v_mov_b32 v{vFa}, {FB}")
            A(f"ds_read_b32 v{vFr}, v{vFa}")
            freechk(dx)
            A.mute = False
            fcnt[0] = 8 if real else 4
            tloop(56, vo, "s66", 32768, 7, RB, free=FC, dd=dx)
            stamp(5)
            assert NBW == 5 and NCW <= 6
            A(f"""
            s_mov_b32 m0, {RC}
            s_mov_b64 s[86:87], 1
            L_c2:
            s_mov_b64 exec, s[86:87]
            global_atomic_add v{vT2}, v46, v44, s[28:29] sc0 {dpol}
            s_mov_b64 exec, -1
            """)
            group(52, vo, "s65")
            A(f"""
            s_lshl_b32 s86, s86, 1
            s_add_u32 s65, s65, 32768
            s_add_u32 m0, m0, 4096
            s_waitcnt vmcnt({4*dx + (0 if real else 1)})
            """)
            publish()
            A(f"s_cmp_lg_u32 m0, {RC + NBW*4096}")
            A("s_cbranch_scc1 L_c2")
            if NCW == 6:
                A("s_mov_b64 exec, s[86:87]")
                A(f"global_atomic_add v{vT2}, v46, v44, s[28:29] sc0 {dpol}")
                A("s_mov_b64 exec, -1")
            dynloop("2", vT2, 52, vo, 32768, "s78", GSW * (8 - NBW), NCW, TK + 32, 1)
            if stamps:
                A(f"v_writelane_b32 v{VST}, s76, 30")
            stamp(6)
            for k in range(dx - 1, -1, -1):
                A(f"s_waitcnt vmcnt({4*k})")
                publish()
            stamp(7)
            dump_stamps()
            A("s_endpgm")
            return
        tloop(44, w7, "s63", rmap[2] * 7168, 7, RD, free=FA, wrap=True, dd=dx)
        checkpoint("U")
        if unb or xcnt:
            A(f"v_add_u32 v{vP}, s76, v{vP}")
        tloop(44 if dg else 48, w7, "s63" if dg else "s64", 32 * 7168, "s75" if unb or xcnt else 7, RA, free=FB, wrap=True, dd=dx)
        stamp(4)
        checkpoint("O")
        if dy:
            GS_, NB, NC = dy
            NG = 32 // GS_
            POOL = GS_ * (8 - NB)
            Lc = dx + 1
            CL = [46 + i for i in range(NC)]
            dygrp("s75", "s76", "s77")
            A(f"""
            s_and_b32 s77, s2, 7
            s_lshl_b32 s78, s77, 8
            s_mul_i32 s77, s77, {NG}
            s_add_u32 s77, s77, s75
            s_lshl_b32 s77, s77, 7
            s_add_u32 s77, s77, {CNT}
            v_mov_b32 v45, s77
            v_mov_b32 v44, 1
            s_mul_i32 s75, s75, {8*GS_}
            s_mul_i32 s76, s76, {NB}
            s_add_u32 s76, s76, s75
            s_lshl_b32 s65, s76, 15
            s_add_u32 s65, s65, s78
            s_add_u32 s75, s75, {NB*GS_}
            s_lshl_b32 s75, s75, 15
            s_add_u32 s78, s78, s75
            s_waitcnt lgkmcnt(0)
            s_add_u32 s79, s82, 1
            s_lshl_b32 s79, s79, 8
            """)
            first = 45 + NB - Lc - dlead
            assert first >= 38 + 1
            def claim(r):
                A("s_mov_b64 exec, 1")
                A(f"global_atomic_add v{r}, v45, v44, s[28:29] sc0 {dpol}")
                A("s_mov_b64 exec, -1")
            nfix = min(first, 45) - 38
            tloop(56, vo, "s66", 32768, nfix, RB, free=FC, dd=dx)
            stamp(5)
            cl = []
            for i in range(38 + nfix, 45 + NB + NC):
                j = i - (45 + NB)
                if i == 45:
                    A(f"s_mov_b32 m0, {RC}")
                if i == 53:
                    A(f"s_mov_b32 m0, {RD}")
                if j >= 0:
                    A(f"v_readfirstlane_b32 s75, v{CL[j]}")
                    A("s_sub_u32 s75, s75, s79")
                    A(f"s_movk_i32 s76, {NC - j}")
                    A(f"s_cmp_ge_u32 s75, {POOL}")
                    A("s_cbranch_scc1 L_dend")
                    A("s_lshl_b32 s75, s75, 15")
                    A("s_add_u32 s75, s75, s78")
                if i < 45:
                    group(56, vo, "s66")
                    A("s_add_u32 s66, s66, 32768")
                elif j < 0:
                    group(52, vo, "s65")
                    A("s_add_u32 s65, s65, 32768")
                else:
                    group(52, vo, "s75")
                if first <= i < first + NC:
                    claim(CL[i - first]); cl.append(i)
                A("s_add_u32 m0, m0, 4096")
                A(f"s_waitcnt vmcnt({4*dx + sum(1 for c in cl if c >= i - dx + (0 if dlead else 1))})")
                publish()
            A("s_mov_b32 s76, 0")
            A("L_dend:")
            A(f"v_add_u32 v{vP}, s76, v{vP}")
            A(f"ds_max_i32 v{vPa}, v{vP}")
            stamp(6)
            if stamps:
                A(f"v_writelane_b32 v{VST}, s76, 30")
            for k in range(dx - 1, -1, -1):
                A(f"s_waitcnt vmcnt({4*k})")
                publish()
            stamp(7)
            dump_stamps()
            A("s_endpgm")
            return
        if dyn:
            Lc = dx + 1
            CL = [46 + i for i in range(Lc)]
            A("s_and_b32 s75, s2, 7")
            A("s_lshl_b32 s75, s75, 12")
            A("v_mov_b32 v45, s75")
            A("v_mov_b32 v44, 1")
            A("s_and_b32 s76, s2, 7")
            A("s_lshl_b32 s76, s76, 8")
            def claim(r):
                A("s_mov_b64 exec, 1")
                A(f"global_atomic_add v{r}, v45, v44, s[26:27] sc0 {apol}")
                A("s_mov_b64 exec, -1")
            tloop(52, vo, "s65", 32768, 8 - Lc, RB, free=None, dd=d3x)
            for i in range(Lc):
                group(52, vo, "s65")
                claim(CL[i])
                A("s_add_u32 s65, s65, 32768")
                A("s_add_u32 m0, m0, 4096")
                A(f"s_waitcnt vmcnt({4*dx + min(i + 1, dx)})")
                publish()
            stamp(5)
            A(f"s_mov_b32 m0, {RC}")
            for i in range(dmax):
                r = CL[i % Lc]
                A(f"v_readfirstlane_b32 s75, v{r}")
                A("s_cmp_ge_u32 s75, 224")
                A("s_cbranch_scc1 L_dend")
                A("s_lshl_b32 s75, s75, 15")
                A("s_add_u32 s75, s75, s76")
                group(56, vo, "s75")
                if i + Lc < dmax:
                    claim(r)
                A("s_add_u32 m0, m0, 4096")
                A(f"s_waitcnt vmcnt({4*dx + sum(1 for j in range(i - dx + 1, i + 1) if j + Lc < dmax)})")
            A("L_dend:")
            stamp(6)
            A("s_waitcnt vmcnt(0)")
            A(f"v_mov_b32 v{vP}, 53")
            A(f"ds_max_i32 v{vPa}, v{vP}")
            stamp(7)
            dump_stamps()
            A("s_endpgm")
            return
        tloop(52, vo, "s65", 32768, 8, RB, free=FC, dd=d3x, grow=d3x - dx)
        stamp(5)
        checkpoint("D")
        if sp:
            Lsk = A.lab("L_skd")
            A("s_cmp_ge_u32 s2, 224")
            A(f"s_cbranch_scc1 {Lsk}")
        tloop(56, vo, "s66", 32768, 8 if sp else 7, RC, dd=d3x)
        if sp:
            A(f"{Lsk}:")
        stamp(6)
        if wb == 2:
            wbl2()
        for k in range((max(dds) if ad else sst["dd"] if sched else d3x) - 1, -1, -1):
            A(f"s_waitcnt vmcnt({4*k})")
            if lst:
                lstamp()
            if ad or sched:
                A(f"v_mov_b32 v{vP}, {53-k}")
                A(f"ds_max_i32 v{vPa}, v{vP}")
            elif sp and k == 0:
                A(f"v_mov_b32 v{vP}, 54")
                A(f"ds_max_i32 v{vPa}, v{vP}")
            else:
                publish()
        if ad and stamps:
            A(f"v_writelane_b32 v{VST}, s76, 30")
        stamp(7)
        if wb == 1:
            wbl2()
        if lst:
            A("s_mov_b64 exec, s[94:95]")
            A(f"v_mov_b32 v{VST}, s98")
            A("s_mov_b64 exec, -1")
        if stamps and not lst:
            A("s_getreg_b32 s96, hwreg(HW_REG_HW_ID)")
            A(f"v_writelane_b32 v{VST}, s96, 31")
        dump_stamps()
        A("s_endpgm")


    if win:
        uniq = []
        for w_ in win:
            if w_ not in uniq:
                uniq.append(w_)
        A("s_bfe_u32 s67, s2, 0x20003")
        A(f"s_cmp_eq_u32 s67, {wk}")
        A("s_cselect_b32 s67, 2, 0")
        A(f"s_bfe_u32 s68, s2, 0x1000{hibit}")
        A("s_add_u32 s67, s67, s68")
        for i in range(1, 4):
            if win[i] != win[0]:
                A(f"s_cmp_eq_u32 s67, {i}")
                A(f"s_cbranch_scc1 L_win{uniq.index(win[i])}")
        for i, w_ in enumerate(uniq):
            A(f"L_win{i}:")
            stream(w_[0] // 4, w_[1] // 4)
    else:
        if Dhi:
            A(f"s_bitcmp1_b32 s2, {hibit}")
            A("s_cbranch_scc1 L_hi")
        stream(d, d3)
        if Dhi:
            A("L_hi:")
            stream(Dhi // 4, max(Dhi, D3hi) // 4)

    vN, vQ, vZ, vMK, vONE = 1, 2, 3, 4, 33
    aW, aV0, aV1 = 10, 24, 25
    X, F, ACC = 40, 72, 104
    T = ["s50", "s51", "s52", "s53"]
    SW = "s54"
    WS = "s[36:39]"
    M_N2, M_N4, M_HI8, M_B1 = "s[60:61]", "s[62:63]", "s[64:65]", "s[66:67]"
    SJ = "s68"
    SID = "s71"
    vID = 137
    if pf == 0:
        PFCODE = """s_cmp_gt_u32 s3, 2
        s_cbranch_scc1 L_nopf
        v_lshlrev_b32 v1, 7, v0
        v_add_u32 v1, -8192, v1
        global_load_dword v136, v1, s[40:41]"""
    elif pf == 1:
        PFCODE = f"""s_cmp_gt_u32 s3, 3
        s_cbranch_scc1 L_nopf
        s_sub_u32 s40, s40, L_worker+{8 if stamps else 4}-{NAME}_kernel
        s_subb_u32 s41, s41, 0
        v_lshlrev_b32 v1, 7, v0
        v_add_u32 v1, -8192, v1
        global_load_dword v136, v1, s[40:41]"""
    elif pf == 2:
        PFCODE = "s_nop 0"
    A("L_worker:")
    if dly:
        A("s_memrealtime s[94:95]")
    if stamps:
        A("s_mov_b32 m0, 32")
    A(f"""
    s_getpc_b64 s[40:41]
    {PFCODE}
    L_nopf:
    v_and_b32 v0, 63, v0
    v_mov_b32 v4, 0
    v_mov_b32 v5, 0
    v_mov_b32 v6, 0
    v_mov_b32 v7, 0
    v_lshlrev_b32 v2, 4, v0
    ds_write_b128 v2, v[4:7]
    ds_write_b128 v2, v[4:7] offset:1024
    {f"s_lshl_b32 s55, {RB1}, 9" if not qx else "v_mov_b32 v8, -8" + chr(10) + f"ds_write_b32 v4, v8 offset:{PROG}" + chr(10) + "s_lshl_b32 s55, s95, 6"}
    v_lshrrev_b32 v{vQ}, 4, v0
    v_and_b32 v9, 1, v0
    v_lshlrev_b32 v9, 11, v9
    v_lshl_add_u32 v9, v{vQ}, 4, v9
    s_mov_b32 s34, 4096
    s_mov_b32 s62, 0x000f000f
    s_mov_b32 s63, 0x000f000f
    s_waitcnt lgkmcnt(0)
    s_load_dwordx2 s[48:49], s[28:29], {EPOCH}
    """)
    if xl:
        A(f"s_add_u32 s55, s55, {XS}")
        A("v_add_u32 v34, s55, v9")
        if xl == 2:
            A(f"""
            s_mov_b64 s[32:33], s[4:5]
            s_cmp_gt_u32 s3, 4
            s_cbranch_scc1 L_nox1
            s_lshl_b32 s55, s3, 10
            s_add_u32 m0, s55, {XS - 1024}
            s_sub_u32 s55, s55, 1024
            v_lshlrev_b32 v5, 4, v0
            buffer_load_dwordx4 v5, s[32:35], s55 offen lds
            L_nox1:
            """)
            if stamps:
                A("s_mov_b32 m0, 32")
        A.mute = True
    A(f"""
    s_mov_b64 s[32:33], s[4:5]
    s_cmp_gt_u32 s3, 4
    s_cbranch_scc1 L_nox
    s_mov_b64 exec, s[62:63]
    """)
    for s in range(8):
        A(f"buffer_load_dwordx4 v[{X+4*s}:{X+4*s+3}], v9, s[32:35], s55 offen offset:{64*s}")
    if tl:
        A("s_branch L_nox2")
        A("L_nox:")
        A(f"s_cmp_lg_u32 s3, {tlw}")
        A("s_cbranch_scc1 L_nox2")
        A(f"""
        s_and_b32 s55, s2, 7
        s_lshr_b32 s56, s2, 3
        s_lshl_b32 s57, s55, 23
        s_lshl_b32 s58, s56, 15
        s_add_u32 s57, s57, s58
        s_add_u32 s57, s57, {28672*256}
        v_mov_b32 v10, s57
        s_mov_b64 exec, 1
        """)
        if 'k' in tl:
            A("global_load_dword v138, v10, s[6:7]")
            A("global_load_dword v139, v10, s[8:9]")
        A(f"""
        s_mov_b64 exec, -1
        s_lshl_b32 s57, s55, 5
        s_add_u32 s57, s57, s56
        s_mul_i32 s57, s57, 7
        v_add_u32 v10, s57, v0
        v_lshrrev_b32 v11, 5, v10
        v_lshlrev_b32 v11, 7, v11
        v_and_b32 v10, 31, v10
        v_mul_u32_u24 v10, {32*7168}, v10
        v_add_u32 v10, v10, v11
        s_mov_b64 exec, {0x7f if 'G' in tl else 0x41}
        """)
        if 'g' in tl.lower():
            A("global_load_dword v138, v10, s[16:17]")
            A("global_load_dword v139, v10, s[18:19]")
        A(f"""
        s_mov_b64 exec, -1
        s_xor_b32 s55, s55, {cbx}
        s_lshl_b32 s55, s55, 8
        s_lshl_b32 s57, s56, 18
        s_add_u32 s57, s57, s55
        v_lshlrev_b32 v11, 15, v0
        v_add_u32 v10, s57, v11
        s_mul_i32 s57, s56, {112*2048}
        s_add_u32 s57, s57, s55
        v_add_u32 v11, s57, v11
        s_mov_b64 exec, {0x55 if 'O' in tl else 0x41}
        """)
        if 'o' in tl.lower():
            A("global_load_dword v138, v10, s[12:13]")
            A("global_load_dword v139, v11, s[20:21]")
        A("L_nox2:")
        A("s_mov_b64 exec, -1")
    else:
        A("s_mov_b64 exec, -1")
        A("L_nox:")
    A.mute = False
    A(f"""
    s_barrier
    s_sub_u32 {SW}, s3, 1
    s_and_b32 {SW}, {SW}, 3
    s_mov_b32 {SPROG}, {-8 if qx else 0}
    v_and_b32 v{vN}, 15, v0
    v_mov_b32 v{vZ}, 0
    v_mov_b32 v{vMK}, 0x{0xFFFFFFFF ^ TAGM:x}
    v_mov_b32 v{vONE}, 1
    s_mov_b32 s38, {0x1000000 if xo else WS_END}
    s_mov_b32 s39, 0x20000
    s_add_u32 s36, s28, {wsoff}
    s_addc_u32 s37, s29, 0
    v_bfe_u32 v5, v0, 2, 2
    v_lshl_add_u32 v5, v{vQ}, 3, v5
    v_and_b32 v6, 3, v0
    v_lshlrev_b32 v6, 3, v6
    v_bfe_u32 v7, v0, 3, 2
    v_xor_b32 v7, {SW}, v7
    v_lshl_add_u32 v7, v7, 5, v6
    v_lshl_add_u32 v{aW}, v5, 7, v7
    s_lshl_b32 s55, {SW}, 1
    v_bfe_u32 v7, v0, 2, 3
    v_xor_b32 v7, s55, v7
    v_lshl_add_u32 v7, v7, 5, v6
    v_lshl_add_u32 v{aV0}, v5, 8, v7
    s_mov_b32 s60, 0x00030003
    s_mov_b32 s61, 0x00030003
    s_waitcnt lgkmcnt(0)
    s_add_u32 s48, s48, 1
    s_addc_u32 s49, s49, 0
    s_and_b32 s50, s48, {TAGM}
    s_lshr_b32 s55, s48, 12
    s_add_u32 s55, s55, s48
    s_and_b32 s51, s55, {TAGM}
    s_lshr_b64 s[56:57], s[48:49], 24
    s_add_u32 s55, s56, s48
    s_and_b32 s52, s55, {TAGM}
    s_lshr_b32 s55, s49, 4
    s_add_u32 s55, s55, s48
    s_and_b32 s53, s55, {TAGM}
    s_getreg_b32 s55, hwreg(HW_REG_XCC_ID, 0, 4)
    s_lshl4_add_u32 {SID}, s48, s55
    """)
    if half:
        A(f"s_bitcmp1_b32 s2, {half}")
        A(f"s_cselect_b32 s38, s38, 0")
    a3, aBR, aAS, aGS = 140, 153, 154, 155
    aL16, oFP2, vGC = 156, 157, 158

    def common2(reg3, bsrc, part, pitch=256):
        A(f"""
        s_mov_b32 s64, 0xff00ff00
        s_mov_b32 s65, 0xff00ff00
        s_mov_b32 s66, 0xcccccccc
        s_mov_b32 s67, 0xcccccccc
        s_mov_b64 s[44:45], s[24:25]
        s_mov_b32 s46, 4096
        s_mov_b32 s47, 0x20000
        """)
        jidx(SJ, "s55")
        A(f"""
        v_add_u32 v{a3}, {reg3}, v{aV0}
        v_xor_b32 v{a3+1}, 32, v{a3}
        v_and_b32 v5, 1, v0
        {'v_lshlrev_b32 v6, 8, v5' if pitch == 256 else f'v_mul_u32_u24 v6, {pitch}, v5'}
        v_lshl_add_u32 v6, v{vQ}, 4, v6
        v_add_u32 v{aBR}, {bsrc}, v6
        v_lshlrev_b32 v{aGS}, 3, v5
        """)
        if not sym:
            A(f"""
            s_lshl_b32 s55, {SW}, 10
            s_add_u32 s55, s55, {AS}
            v_lshlrev_b32 v6, 4, v0
            v_add_u32 v{aAS}, s55, v6
            """)
        else:
            A(f"""
            s_lshl_b32 s55, {SW}, 8
            s_add_u32 s55, s55, {AS + 1024 * part}
            v_and_b32 v6, 3, v0
            v_lshlrev_b32 v6, 6, v6
            v_lshl_add_u32 v6, v{vQ}, 4, v6
            v_add_u32 v{aAS}, s55, v6
            v_lshlrev_b32 v{aL16}, 4, v0
            s_and_b32 s55, {"s2" if b3 >= 2 else SJ}, 7
            s_lshl_b32 s55, s55, 15
            s_lshr_b32 s56, {"s2" if b3 >= 2 else SJ}, 3
            s_lshl_b32 s56, s56, 7
            s_add_u32 s55, s55, s56
            s_add_u32 s55, s55, {FP}
            v_lshrrev_b32 v5, 3, v0
            v_lshlrev_b32 v5, 12, v5
            v_and_b32 v6, 7, v0
            v_lshl_add_u32 v5, v6, 4, v5
            v_add_u32 v{oFP2}, s55, v5
            """)

    def id_load():
        A(f"""
        s_and_b32 s55, s2, 7
        s_lshl_b32 s55, s55, 7
        s_add_u32 s55, s55, {IDT}
        v_and_b32 v5, 31, v0
        v_lshlrev_b32 v5, 2, v5
        buffer_load_dword v{vID}, v5, {WS}, s55 offen
        """)

    def id_check(dst):
        A(f"v_cmp_ne_u32 {dst}, {SID}, v{vID}")

    def pub(stores, key, flag):
        def emit(pol):
            for ex, t in stores:
                if ex is not None:
                    A(f"s_mov_b64 exec, {ex}")
                A(t + pol)
        if key not in loc:
            emit(" sc1")
        else:
            a, b = A.lab("L_pw"), A.lab("L_pd")
            A(f"s_cmp_lg_u64 {flag}, 0")
            A(f"s_cbranch_scc1 {a}")
            emit(" " + lpol[key] if key in lpol else "")
            stamp(20)
            A(f"s_branch {b}")
            A(f"{a}:")
            emit(" sc1")
            stamp(21)
            A(f"{b}:")
        A("s_mov_b64 exec, -1")

    def hint_store(soff):
        A("s_mov_b64 exec, 1")
        A(f"v_mov_b32 v5, s48")
        A(f"buffer_store_byte v5, off, {WS}, {soff}")
        A("s_mov_b64 exec, -1")

    def hint_wait(soff, nd, flag, thr):
        sp, ok = A.lab("L_hsp"), A.lab("L_hok")
        A("s_and_b32 s56, s48, 0xff")
        A("s_mul_i32 s56, s56, 0x01010101")
        A("s_mov_b32 s57, s56")
        A(f"{sp}:")
        A(f"s_load_dwordx{nd} s[80:{80+nd-1}], s[28:29], {soff} glc")
        A(f"ds_read_b32 v5, v{vZ} offset:{PROG}")
        A("s_waitcnt lgkmcnt(0)")
        A(f"v_readfirstlane_b32 {SPROG}, v5")
        for i in range(0, nd, 2):
            A(f"s_xor_b64 s[{80+i}:{81+i}], s[{80+i}:{81+i}], s[56:57]")
        k = nd
        while k > 2:
            k //= 2
            for i in range(0, k, 2):
                A(f"s_or_b64 s[{80+i}:{81+i}], s[{80+i}:{81+i}], s[{80+k+i}:{81+k+i}]")
        A(f"s_cbranch_scc0 {ok}")
        budget()
        A(f"s_cmp_lt_i32 {SPROG}, {thr}")
        A(f"s_cbranch_scc1 {sp}")
        A(f"{ok}:")

    def wait_prog(thr):
        if isinstance(thr, str) and thr[0] in "TU":
            return wait_cnt(8 if thr[0] == "T" else 4, thr[1:], [])
        if isinstance(thr, str) and thr[0] == "i":
            return wait_cnt(4, int(thr[1:]), [])
        ok, sp = A.lab("L_pok"), A.lab("L_psp")
        if isinstance(thr, list):
            A("s_bfe_u32 s59, s2, 0x20003")
            A("s_cmp_eq_u32 s59, 1")
            A(f"s_cselect_b32 s59, {thr[1]}, {thr[0]}")
            thr = "s59"
        if isinstance(thr, tuple):
            A(f"s_bitcmp1_b32 s2, {hibit}")
            A(f"s_cselect_b32 s59, {thr[1]}, {thr[0]}")
            thr = "s59"
        A(f"s_cmp_ge_i32 {SPROG}, {thr}")
        A(f"s_cbranch_scc1 {ok}")
        A(f"{sp}:")
        A(f"ds_read_b32 v5, v{vZ} offset:{PROG}")
        A("s_waitcnt lgkmcnt(0)")
        A(f"v_readfirstlane_b32 {SPROG}, v5")
        budget()
        A(f"s_cmp_lt_i32 {SPROG}, {thr}")
        A(f"s_cbranch_scc1 {sp}")
        A(f"{ok}:")

    def arrive(cnt):
        A("s_mov_b64 exec, 1")
        A(f"ds_add_u32 v{vZ}, v{vONE} offset:{cnt}")
        A("s_mov_b64 exec, -1")

    def wait_cnt(cnt, n, reads):
        sp = A.lab("L_csp")
        A(f"{sp}:")
        A(f"ds_read_b32 v5, v{vZ} offset:{cnt}")
        for r in reads:
            A(r)
        A("s_waitcnt lgkmcnt(0)")
        A("v_readfirstlane_b32 s55, v5")
        budget()
        A(f"s_cmp_lt_u32 s55, {n}")
        A(f"s_cbranch_scc1 {sp}")

    def tag4(dst, src):
        for j in range(4):
            A(f"v_and_or_b32 v{dst+j}, v{src+j}, v{vMK}, {T[j]}")

    MASKS = [80, 82, 84, 86, 88, 90, 92, 94]

    def gather(loads, first, hop="", ex=None, rawoff=0, flag=None, mid=None, giveup=None):
        if nog is True or (nog and hop in nog):
            A("s_mov_b64 exec, -1")
            return
        g, dn = A.lab("L_g"), A.lab("L_gd")
        n = len(loads)

        def ld(dst, vo_, off, pol):
            o = f" offset:{off}" if off else ""
            A(f"buffer_load_dwordx4 v[{dst}:{dst+3}], v{vo_}, {WS}, 0 offen{o} {pol}")

        K = pipe.get(hop, 0)
        raw = (lambda dst: dst + rawoff) if K else (lambda dst: dst)
        ld0 = ld
        ld = lambda dst, vo_, off, pol: ld0(raw(dst), vo_, off, pol)

        def chk(i, dst):
            m = MASKS[i]
            for j in range(4):
                A(f"v_xor_b32 v{dst+j}, {T[j]}, v{raw(dst)+j}")
            A(f"v_or3_b32 v5, v{dst}, v{dst+1}, v{dst+2}")
            A(f"v_or_b32 v5, v5, v{dst+3}")
            A(f"v_and_b32 v5, {TAGM}, v5")
            A(f"v_cmp_ne_u32 s[{m}:{m+1}], 0, v5")

        def anym():
            if n == 1:
                A(f"s_mov_b64 vcc, s[{MASKS[0]}:{MASKS[0]+1}]")
            for i in range(1, n):
                src = f"s[{MASKS[0]}:{MASKS[0]+1}]" if i == 1 else "vcc"
                A(f"s_or_b64 vcc, {src}, s[{MASKS[i]}:{MASKS[i]+1}]")

        stamp({"q": 10, "o": 12, "g": 10, "f": 12}[hop])
        for i, (dst, vo_, off) in enumerate(loads):
            if ex and (i == 0 or ex[i] != ex[i-1]):
                A(f"s_mov_b64 exec, {ex[i]}")
            ld(dst, vo_, off, first)
        if mid:
            A("s_mov_b64 exec, -1")
            mid()
        for i, (dst, vo_, off) in enumerate(loads):
            if ex and (ex[i] != ex[i-1] or (mid and i == 0)):
                A(f"s_mov_b64 exec, {ex[i]}")
            A(f"s_waitcnt vmcnt({n-1-i})")
            chk(i, dst)
        anym()
        dstamp()
        stamp({"q": 11, "o": 13, "g": 11, "f": 13}[hop])
        if hop in once:
            A("s_mov_b64 exec, -1")
            return
        A(f"s_cbranch_vccz {dn}")
        if giveup:
            A(giveup)
        A(f"{g}:")
        if hop in "og" and rinv:
            A("buffer_inv sc0")
        def reissue(pol):
            for i, (dst, vo_, off) in enumerate(loads):
                A(f"s_mov_b64 exec, s[{MASKS[i]}:{MASKS[i]+1}]")
                ld(dst, vo_, off, pol)
        if flag is None or hop not in lret:
            reissue("sc1")
        else:
            a_, b_ = A.lab("L_ra"), A.lab("L_rb")
            A(f"s_cmp_lg_u64 {flag}, 0")
            A(f"s_cbranch_scc1 {a_}")
            reissue("nt")
            A(f"s_branch {b_}")
            A(f"{a_}:")
            reissue("sc1")
            A(f"{b_}:")
        if K:
            few = A.lab("L_few")
            A(f"s_bcnt1_i32_b64 s55, s[{MASKS[0]}:{MASKS[0]+1}]")
            for i in range(1, n):
                A(f"s_bcnt1_i32_b64 s56, s[{MASKS[i]}:{MASKS[i]+1}]")
                A("s_add_u32 s55, s55, s56")
            A(f"s_cmp_le_u32 s55, {pthr}")
            A(f"s_cbranch_scc1 {few}")
            A("s_waitcnt vmcnt(0)")
            A(f"{few}:")
            A(f"s_waitcnt vmcnt({n*(K-1)})")
        for i, (dst, vo_, off) in enumerate(loads):
            A(f"s_mov_b64 exec, s[{MASKS[i]}:{MASKS[i]+1}]")
            if not K:
                A(f"s_waitcnt vmcnt({n-1-i})")
            chk(i, dst)
        anym()
        if not K:
            dstamp()
        budget(16)
        A(f"s_cbranch_vccnz {g}")
        A(f"{dn}:")
        A("s_mov_b64 exec, -1")

    def gatherP(loads, raws, first, retry, hop, ex=None, chkf=None, flag=None):
        K, M = pg[hop]
        n = len(loads)
        top, dn = A.lab("L_q"), A.lab("L_qd")

        def issue(pol):
            for i, (dst, vo_, off) in enumerate(loads):
                A(f"s_mov_b64 exec, s[{MASKS[i]}:{MASKS[i]+1}]")
                o = f" offset:{off}" if off else ""
                A(f"buffer_load_dwordx4 v[{raws[i]}:{raws[i]+3}], v{vo_}, {WS}, 0 offen{o} {pol}")

        def chk():
            for i, (dst, vo_, off) in enumerate(loads):
                m = MASKS[i]
                A(f"s_mov_b64 exec, s[{m}:{m+1}]")
                if chkf:
                    chkf(raws[i])
                else:
                    for j in range(4):
                        A(f"v_xor_b32 v{dst+j}, {T[j]}, v{raws[i]+j}")
                    A(f"v_or3_b32 v5, v{dst}, v{dst+1}, v{dst+2}")
                    A(f"v_or_b32 v5, v5, v{dst+3}")
                    A(f"v_and_b32 v5, {TAGM}, v5")
                A(f"v_cmp_ne_u32 s[{m}:{m+1}], 0, v5")
            if n == 1:
                A(f"s_cmp_eq_u64 s[{MASKS[0]}:{MASKS[0]+1}], 0")
                A(f"s_cbranch_scc1 {dn}")
            else:
                for i in range(1, n):
                    src = f"s[{MASKS[0]}:{MASKS[0]+1}]" if i == 1 else "vcc"
                    A(f"s_or_b64 vcc, {src}, s[{MASKS[i]}:{MASKS[i]+1}]")
                A(f"s_cbranch_scc0 {dn}")

        stamp({"o": 12, "g": 10, "p": 12}[hop])
        for i in range(n):
            A(f"s_mov_b64 s[{MASKS[i]}:{MASKS[i]+1}], {ex[i] if ex else -1}")
            A(f"v_not_b32 v{raws[i]}, {T[0]}")
        issue(first)
        lp = A.lab("L_ql")
        A(f"{top}:")
        A(f"s_mov_b32 s55, {M}")
        A(f"{lp}:")
        chk()
        A("s_sub_u32 s55, s55, 1")
        A(f"s_cbranch_scc0 {lp}")
        A(f"s_waitcnt vmcnt({n*(K-1)})")
        chk()
        budget(16)
        dstamp()
        if flag is None:
            issue(retry)
            A(f"s_branch {top}")
        else:
            rm = A.lab("L_qr")
            A(f"s_cmp_lg_u64 {flag}, 0")
            A(f"s_cbranch_scc1 {rm}")
            issue(retry)
            A(f"s_branch {top}")
            A(f"{rm}:")
            issue("sc1")
            A(f"s_branch {top}")
        A(f"{dn}:")
        A("s_mov_b64 exec, -1")

    def mfma(dst, a, b, c):
        cs = "0" if c is None else f"v[{c}:{c+3}]"
        A(f"v_mfma_f32_16x16x32_bf16 v[{dst}:{dst+3}], v[{a}:{a+3}], v[{b}:{b+3}], {cs}")

    def gemv64(areg, acc, gbase, splits, first_vm=False, xr=None, cont=False, waits=None):
        s0 = 0
        for k, s1 in enumerate(splits):
            if k == 0 and first_vm and xl == 2:
                A("s_waitcnt vmcnt(0)")
                arrive(0x124)
                wait_cnt(0x124, 4, [])
                for s in range(8):
                    A(f"ds_read_b128 v[{X+4*s}:{X+4*s+3}], v34 offset:{64*s}")
            wait_prog(waits[k] if waits else gbase + s1)
            if k == 0 and first_vm and xl == 1:
                for s in range(8):
                    A(f"ds_read_b128 v[{X+4*s}:{X+4*s+3}], v34 offset:{64*s}")
            for s in range(s0, s1):
                A(f"ds_read_b64_tr_b16 v[{F+4*s}:{F+4*s+1}], v{areg} offset:{4096*s}")
                A(f"ds_read_b64_tr_b16 v[{F+4*s+2}:{F+4*s+3}], v{areg} offset:{4096*s+512}")
            if k == 0 and first_vm and not xl:
                A("s_waitcnt vmcnt(0)")
            for s in range(s0, s1):
                A(f"s_waitcnt lgkmcnt({2*(s1-1-s)})")
                mfma(acc, F + 4 * s, xr[s] if xr else X + 4 * s, None if s == 0 and not cont else acc)
            s0 = s1

    def bf16_round_pair(pk, lo, hi, a, b):
        A(f"v_cvt_pk_bf16_f32 v{pk}, v{a}, v{b}")
        A(f"v_lshlrev_b32 v{lo}, 16, v{pk}")
        A(f"v_and_b32 v{hi}, 0xffff0000, v{pk}")

    DPPM = "row_mask:0xf bank_mask:0xf"
    BT = X

    def bt_reads(n=4):
        return [f"ds_read_b128 v[{BT+4*s}:{BT+4*s+3}], v{aBR} offset:{64*s}" for s in range(n)]

    def wreg(s, t):
        return F + 16 * t + 4 * s if s < 4 else 120 + 8 * t + 4 * (s - 4)

    def rd3(ss):
        for s in ss:
            for t in range(2):
                r = wreg(s, t)
                A(f"ds_read_b64_tr_b16 v[{r}:{r+1}], v{a3+t} offset:{8192*s}")
                A(f"ds_read_b64_tr_b16 v[{r+2}:{r+3}], v{a3+t} offset:{8192*s+1024}")

    def mm3(ss):
        for s in ss:
            for t in range(2):
                mfma(ACC + 4 * t, wreg(s, t), BT + 4 * s, None if s == 0 else ACC + 4 * t)

    def sel3():
        for j in range(4):
            A(f"v_cndmask_b32 v{ACC+j}, v{ACC+j}, v{ACC+4+j}, {M_B1}")

    def red4(r):
        A(f"""
        v_permlane32_swap_b32 v{r}, v{r+2}
        v_permlane32_swap_b32 v{r+1}, v{r+3}
        v_add_f32 v{r}, v{r}, v{r+2}
        v_add_f32 v{r+1}, v{r+1}, v{r+3}
        v_permlane16_swap_b32 v{r}, v{r+1}
        v_add_f32 v{r}, v{r}, v{r+1}
        """)

    T16 = "s77"

    def pxg(voff, alds, ldsoff, ex, gate, cnt, hop):
        R = ACC + 4
        l0, l1 = A.lab("L_px0"), A.lab("L_px1")
        A("s_mov_b32 s58, 0x07060302")
        wait_prog(gate)
        stamp(12 if hop == "p" else 14)
        if ex:
            A(f"s_mov_b32 exec_hi, {ex}")
        if not (nog is True or (nog and hop in nog)):
            A(f"buffer_load_dwordx4 v[{R}:{R+3}], v{voff}, {WS}, 0 offen {ppol}")
            A(f"s_branch {l1}")
            A(f"{l0}:")
            budget(16)
            A("s_mov_b64 exec, vcc")
            A(f"buffer_load_dwordx4 v[{R}:{R+3}], v{voff}, {WS}, 0 offen sc1")
            A(f"{l1}:")
            A("s_waitcnt vmcnt(0)")
            A(f"v_xor_b32 v6, v{R}, v{R+1}")
            A(f"v_xor_b32 v7, v{R+2}, v{R+3}")
            A(f"v_xor_b32 v8, v{R}, v{R+2}")
            A(f"v_or3_b32 v6, v6, v7, v8")
            A(f"v_xor_b32 v7, {T16}, v{R}")
            A(f"v_or_b32 v6, v6, v7")
            A("v_and_b32 v6, 0xffff, v6")
            A(f"v_cmp_ne_u32 vcc, 0, v6")
            dstamp()
            if hop not in once:
                A(f"s_cbranch_vccnz {l0}")
            A("s_mov_b64 exec, -1")
            if ex:
                A(f"s_mov_b32 exec_hi, {ex}")
        A(f"v_perm_b32 v6, v{R+1}, v{R}, s58")
        A(f"v_perm_b32 v7, v{R+3}, v{R+2}, s58")
        A(f"ds_write_b64 v{alds}, v[6:7] offset:{ldsoff}")
        stamp(6)
        arrive(cnt)

    A("s_cmp_gt_u32 s3, 4")
    A("s_cbranch_scc1 L_F")

    oQP, oQG, aQsW, aQsR, aK = 11, 12, 13, 14, 15
    aPsW, aMsW, aPlo, aPhi, aMsR = 19, 20, 21, 22, 23
    oOP, oML, oOPG, oMLG, aOsW, oPX = 26, 27, 28, 29, 30, 31
    T16, FLG = "s77", "s[98:99]"
    SBG, SSPL = "s73", "s75"
    SC = "s76"
    A(f"""
    v_add_u32 v{aW}, {RA}, v{aW}
    s_lshr_b32 s55, {CB1}, 2
    s_lshl_b32 s55, s55, 12
    s_lshl_b32 s56, {RB1}, 10
    s_add_u32 s55, s55, s56
    s_and_b32 s56, {CB1}, 3
    s_lshl_b32 s56, s56, 8
    s_add_u32 s55, s55, s56
    s_lshl_b32 s56, {SW}, 6
    s_add_u32 s55, s55, s56
    v_and_b32 v5, 1, v0
    v_lshlrev_b32 v5, 16, v5
    v_lshl_add_u32 v5, v{vQ}, 4, v5
    v_add_u32 v{oQP}, s55, v5
    """)
    MQ = M_N2
    if "q" in cst:
        A(f"""
        s_lshl_b32 s55, s2, 9
        s_lshl_b32 s56, {SW}, 7
        s_add_u32 s55, s55, s56
        v_lshlrev_b32 v5, 4, v0
        v_add_u32 v{oQP}, s55, v5
        """)
        MQ = "0xff"
    stamp(1)
    if qx:
        assert xl == 2
        A(f"""
        s_lshl_b32 s55, s94, 12
        v_add_u32 v{aW}, s55, v{aW}
        v_mov_b32 v{ACC}, 0
        v_mov_b32 v{ACC+1}, 0
        v_mov_b32 v{ACC+2}, 0
        v_mov_b32 v{ACC+3}, 0
        s_waitcnt vmcnt(0)
        """)
        arrive(0x124)
        wait_cnt(0x124, 4, [])
        A("L_qx:")
        A(f"ds_read_b128 v[{X}:{X+3}], v34")
        A(f"ds_read_b128 v[{X+4}:{X+7}], v34 offset:64")
        A("s_add_u32 s94, s94, 1")
        wait_prog("s94")
        A(f"""
        ds_read_b64_tr_b16 v[{F}:{F+1}], v{aW}
        ds_read_b64_tr_b16 v[{F+2}:{F+3}], v{aW} offset:512
        s_min_i32 s55, {SPROG}, 8
        s_cmp_gt_i32 s55, s94
        s_cbranch_scc0 L_qx1
        ds_read_b64_tr_b16 v[{F+4}:{F+5}], v{aW} offset:4096
        ds_read_b64_tr_b16 v[{F+6}:{F+7}], v{aW} offset:4608
        s_add_u32 s94, s94, 1
        v_add_u32 v{aW}, 4096, v{aW}
        v_add_u32 v34, 64, v34
        s_waitcnt lgkmcnt(0)
        """)
        mfma(ACC, F + 4, X + 4, ACC)
        A(f"""
        L_qx1:
        v_add_u32 v{aW}, 4096, v{aW}
        v_add_u32 v34, 64, v34
        s_cmp_lt_i32 s94, 8
        s_waitcnt lgkmcnt(0)
        """)
        mfma(ACC, F, X, ACC)
        A("s_cbranch_scc1 L_qx")
    else:
        gemv64(aW, ACC, 0, spl1, first_vm=True)
    arrive(FA)
    tag4(ACC + 4, ACC)
    A(f"s_mov_b64 exec, {MQ}")
    if qfrac:
        A(f"s_lshr_b32 s55, s2, 3")
        A(f"s_and_b32 s55, s55, {qfrac-1}")
        A(f"s_cselect_b64 exec, 0, exec")
    A(f"buffer_store_dwordx4 v[{ACC+4}:{ACC+7}], v{oQP}, {WS}, 0 offen sc1")
    A("s_mov_b64 exec, -1")
    stamp(2)
    OS2, OSP = 0x2800, 448
    common2(RC, OS2, 0, OSP) if real else common2(RB, OS, 0)
    bg(SBG, "s55")
    A(f"""
    s_lshr_b32 {SSPL}, s2, 3
    s_mov_b32 {SC}, {f32(LOG2E)}
    """)
    A(f"""
    s_lshl_b32 s55, {SW}, 13
    s_add_u32 s55, s55, {RB}
    v_xor_b32 v5, v{vQ}, v{vN}
    v_lshlrev_b32 v5, 4, v5
    v_lshl_add_u32 v5, v{vN}, 8, v5
    v_add_u32 v{aK}, s55, v5
    v_xor_b32 v{aK+1}, 64, v{aK}
    v_xor_b32 v{aK+2}, 128, v{aK}
    v_xor_b32 v{aK+3}, 192, v{aK}
    v_add_u32 v{aV0}, {RC}, v{aV0}
    v_xor_b32 v{aV1}, 32, v{aV0}
    """)
    A(f"""
    s_lshl_b32 s55, {SBG}, 2
    s_add_u32 s55, s55, {SW}
    s_lshl_b32 s55, s55, 12
    v_lshlrev_b32 v5, 4, v0
    v_add_u32 v{oQG}, s55, v5
    """)
    A(f"""
    s_mul_i32 s55, {SW}, {2*PITCH}
    s_add_u32 s55, s55, {QS}
    v_lshrrev_b32 v5, 5, v0
    v_mul_u32_u24 v5, {PITCH}, v5
    v_and_b32 v6, 31, v0
    v_lshl_add_u32 v5, v6, 3, v5
    v_add_u32 v{aQsW}, s55, v5
    v_and_b32 v6, 7, v0
    v_mul_u32_u24 v7, {PITCH}, v6
    v_lshl_add_u32 v8, v{vQ}, 4, v7
    v_add_u32 v{aQsR}, {QS}, v8
    v_add_u32 v8, {PS}, v8
    v_mov_b32 v9, {ZERO}
    v_cndmask_b32 v{aPlo}, v8, v9, {M_HI8}
    v_cndmask_b32 v{aPhi}, v9, v8, {M_HI8}
    v_lshlrev_b32 v9, 4, v6
    v_add_u32 v{aMsR}, {MS}, v9
    s_lshl_b32 s55, {SW}, 2
    v_add_u32 v{aMsW}, s55, v{aMsR}
    s_lshl_b32 s55, {SW}, 6
    s_add_u32 s55, s55, {PS}
    v_and_b32 v9, 8, v0
    v_lshlrev_b32 v9, 2, v9
    v_lshl_add_u32 v9, v{vQ}, 3, v9
    v_add3_u32 v{aPsW}, v7, v9, s55
    """)
    A(f"""
    s_lshl_b32 s55, {SBG}, 17
    s_lshl_b32 s56, {SW}, 12
    s_add_u32 s55, s55, s56
    s_lshl_b32 s56, {SSPL}, 7
    s_add_u32 s55, s55, s56
    s_add_u32 s55, s55, {OP}
    v_lshlrev_b32 v9, 1, v9
    v_lshl_add_u32 v9, v6, 14, v9
    v_add_u32 v{oOP}, s55, v9
    s_lshl_b32 s55, {SBG}, 12
    s_lshl_b32 s56, {SSPL}, 4
    s_add_u32 s55, s55, s56
    s_add_u32 s55, s55, {ML}
    v_lshlrev_b32 v9, 9, v6
    v_add_u32 v{oML}, s55, v9
    """)
    SJR, oPXG = SJ, oPX
    RB0 = f"s_cmp_ge_u32 {SW}, 2\n s_cbranch_scc1 L_a2"
    RB1_ = "s_branch L_a3"
    if red:
        SJR, oPXG, RB0, RB1_ = "s74", 159, "", ""
        A(f"s_cmp_ge_u32 {SW}, 2")
        A(f"s_cselect_b32 s74, {red[0]}, 0")
        A(f"s_xor_b32 s74, s74, {SJ}")
    A(f"""
    s_lshl_b32 s55, {SJR}, 12
    s_and_b32 s58, {SW}, 1
    s_lshl_b32 s59, s58, 6
    s_add_u32 s55, s55, s59
    s_add_u32 s55, s55, {OP}
    v_lshrrev_b32 v5, 2, v0
    v_and_b32 v6, 3, v0
    v_lshlrev_b32 v7, 4, v6
    v_lshl_add_u32 v8, v5, 7, v7
    v_add_u32 v{oOPG}, s55, v8
    s_lshr_b32 s57, {SJR}, 2
    s_lshl_b32 s57, s57, 9
    s_add_u32 s57, s57, {ML}
    v_and_b32 v8, 1, v0
    v_lshlrev_b32 v8, 8, v8
    v_lshl_add_u32 v8, v5, 4, v8
    v_add_u32 v{oMLG}, s57, v8
    {RB0}
    s_bfe_u32 s55, {SJR}, 0x50002
    s_lshl_b32 s55, s55, 10
    s_and_b32 s56, s2, 4
    s_lshl_b32 s56, s56, 7
    s_add_u32 s55, s55, s56
    s_and_b32 s56, {SJR}, 3
    s_lshl_b32 s56, s56, 7
    s_add_u32 s55, s55, s56
    s_add_u32 s55, s55, s59
    s_add_u32 s55, s55, {PX}
    v_lshl_add_u32 v8, v{vQ}, 2, v7
    v_add_u32 v{oPX}, s55, v8
    {RB1_}
    L_a2:
    """)
    if real:
        dygrp("s55", "s56", "s57")
        A(f"""
        s_mul_i32 s55, s55, {8*GSW}
        s_mul_i32 s56, s56, {NBW}
        s_cmp_eq_u32 {SW}, 3
        s_cselect_b32 s56, {NBW*GSW}, s56
        s_cselect_b32 s57, {NBW*32}, 0
        s_add_u32 s74, s55, s56
        v_bfe_u32 v8, v0, 2, 1
        v_lshl_add_u32 v9, v8, 9, v7
        v_add_u32 v{oPXG}, {PX}, v9
        v_mul_u32_u24 v8, {OSP}, v8
        v_lshl_add_u32 v8, v6, 3, v8
        v_lshrrev_b32 v9, 3, v0
        v_lshl_add_u32 v8, v9, 5, v8
        v_add_u32 v{aOsW}, s57, v8
        """)
        A.mute = True
    A(f"""
    s_lshl_b32 s55, {SSPL}, 10
    s_add_u32 s55, s55, {PX}
    v_lshlrev_b32 v8, 4, v0
    v_add_u32 v{oPXG}, s55, v8
    v_lshlrev_b32 v{aOsW}, 3, v0
    """)
    A.mute = False
    A(f"""
    L_a3:
    s_and_b32 {T16}, s48, 0xffff
    """)
    oOPG2 = 159
    if "o" in xo:
        A(f"v_add_u32 v{oOPG2}, 2048, v{oOPG}")
        for v_ in (oOP, oOPG, oOPG2):
            xf(v_, OP, 0x400000)
        for v_ in (oML, oMLG):
            xf(v_, ML, 0x800000)
    if "p" in xo:
        xf(oPX, PX, 0x880000)
    if "O" in cst:
        A(f"""
        s_xor_b32 s55, {SJ}, 1
        s_lshl_b32 s55, s55, 12
        s_lshl_b32 s56, {SW}, 10
        s_add_u32 s55, s55, s56
        s_add_u32 s55, s55, {OP}
        v_lshlrev_b32 v5, 4, v0
        v_add_u32 v{oOP}, s55, v5
        """)
    if "P" in cst:
        A(f"""
        s_xor_b32 s55, {SJ}, 1
        s_lshl_b32 s55, s55, 12
        s_lshl_b32 s56, {SW}, 10
        s_add_u32 s55, s55, s56
        s_add_u32 s55, s55, {OP}
        v_lshlrev_b32 v5, 6, v{vN}
        v_lshl_add_u32 v5, v{vQ}, 4, v5
        v_add_u32 v{oOP}, s55, v5
        """)
    if "M" in cst:
        A(f"v_mov_b32 v{oMLG}, v{oOPG}")
    if "o" in pre:
        A(f"buffer_load_dword v138, v{oOP}, {WS}, 0 offen {prepol}")
        A(f"buffer_load_dword v139, v{oML}, {WS}, 0 offen {prepol}")
    if "o" in pre2:
        L_ = A.lab("L_p2")
        A(f"s_cmp_ge_u32 {SW}, 2")
        A(f"s_cbranch_scc1 {L_}")
        A(f"buffer_load_dword v138, v{oOPG}, {WS}, 0 offen {prepol}")
        A(f"buffer_load_dword v138, v{oOPG}, {WS}, 0 offen offset:2048 {prepol}")
        A(f"buffer_load_dword v138, v{oMLG}, {WS}, 0 offen {prepol}")
        A(f"{L_}:")
    ONES = 132
    A(f"""
    v_mov_b32 v{ONES}, 0x3f803f80
    v_mov_b32 v{ONES+1}, 0x3f803f80
    v_mov_b32 v{ONES+2}, 0x3f803f80
    v_mov_b32 v{ONES+3}, 0x3f803f80
    s_lshl_b32 s55, {SW}, 1
    s_lshl_b32 s78, 3, s55
    s_mov_b32 s79, 0
    """)

    if "o" in cst:
        A(f"""
        s_lshl_b32 s55, s2, 12
        s_lshl_b32 s56, {SW}, 10
        s_add_u32 s55, s55, s56
        s_add_u32 s55, s55, {OP}
        v_lshlrev_b32 v5, 4, v0
        v_add_u32 v{oOP}, s55, v5
        s_lshl_b32 s55, s2, 7
        s_add_u32 s55, s55, {ML}
        v_add_u32 v{oML}, s55, v5
        s_cmp_eq_u32 {SW}, 0
        s_cselect_b32 s78, 0xff, 0
        """)

    def kfrags():
        if rot:
            wait_prog(16)
        else:
            A(f"s_lshl_b32 s77, {SW}, 1")
            A("s_add_u32 s77, s77, 10")
            wait_prog("s77")
        for t in range(2):
            for s in range(4):
                r = F + 16 * t + 4 * s
                A(f"ds_read_b128 v[{r}:{r+3}], v{aK+s} offset:{4096*t}")
        arrive(FB)

    G = X
    kfirst = (min(gq) if isinstance(gq, tuple) else gq) >= 16
    if kfirst:
        kfrags()
    if gq:
        wait_prog(gq)
    id_load()
    gather([(G + 4 * r, oQG, 1024 * (r % 4)) for r in range(qn)], fpol, hop="q")
    A("s_waitcnt vmcnt(0)")
    id_check(FLG)
    A(f"""
    v_pk_add_f32 v[{G}:{G+1}], v[{G}:{G+1}], v[{G+4}:{G+5}]
    v_pk_add_f32 v[{G+2}:{G+3}], v[{G+2}:{G+3}], v[{G+6}:{G+7}]
    v_pk_add_f32 v[{G+8}:{G+9}], v[{G+8}:{G+9}], v[{G+12}:{G+13}]
    v_pk_add_f32 v[{G+10}:{G+11}], v[{G+10}:{G+11}], v[{G+14}:{G+15}]
    v_pk_add_f32 v[{G}:{G+1}], v[{G}:{G+1}], v[{G+8}:{G+9}]
    v_pk_add_f32 v[{G+2}:{G+3}], v[{G+2}:{G+3}], v[{G+10}:{G+11}]
    v_cvt_pk_bf16_f32 v6, v{G}, v{G+1}
    v_cvt_pk_bf16_f32 v7, v{G+2}, v{G+3}
    ds_write_b64 v{aQsW}, v[6:7]
    """)
    arrive(CQ)
    stamp(3)
    if not kfirst:
        kfrags()
    QF = X + 16
    wait_cnt(CQ, 4, [f"ds_read_b128 v[{QF+4*s}:{QF+4*s+3}], v{aQsR} offset:{64*s}" for s in range(4)])
    for s in range(4):
        for t in range(2):
            mfma(ACC + 4 * t, F + 16 * t + 4 * s, QF + 4 * s, None if s == 0 else ACC + 4 * t)
    S = X
    for j in range(4):
        A(f"v_cndmask_b32 v{S+j}, v{ACC+j}, v{ACC+4+j}, {M_HI8}")
    bf16_round_pair(6, S, S + 1, S, S + 1)
    bf16_round_pair(7, S + 2, S + 3, S + 2, S + 3)
    for j in range(4):
        A(f"v_mul_f32 v{S+j}, {f32(SCALE)}, v{S+j}")
    bf16_round_pair(6, S, S + 1, S, S + 1)
    bf16_round_pair(7, S + 2, S + 3, S + 2, S + 3)
    A(f"""
    v_max3_f32 v6, v{S}, v{S+1}, v{S+2}
    v_max_f32 v6, v6, v{S+3}
    v_max_f32_dpp v6, v6, v6 row_ror:8 {DPPM}
    v_mov_b32 v7, v6
    v_permlane16_swap_b32 v6, v7
    v_max_f32 v6, v6, v7
    v_mov_b32 v7, v6
    v_permlane32_swap_b32 v6, v7
    v_max_f32 v6, v6, v7
    v_mul_f32 v7, {SC}, v6
    """)
    for j in range(4):
        A(f"v_fma_f32 v{S+j}, v{S+j}, {SC}, -v7")
    for j in range(4):
        A(f"v_exp_f32 v{S+j}, v{S+j}")
    A(f"""
    v_cvt_pk_bf16_f32 v8, v{S}, v{S+1}
    v_cvt_pk_bf16_f32 v9, v{S+2}, v{S+3}
    ds_write_b64 v{aPsW}, v[8:9]
    s_mov_b64 exec, 0xff
    ds_write_b32 v{aMsW}, v6
    """)
    arrive(CP)
    stamp(4)
    wait_prog(24)
    for t in range(2):
        for s in range(4):
            r = F + 16 * t + 4 * s
            A(f"ds_read_b64_tr_b16 v[{r}:{r+1}], v{aV0+t} offset:{8192*s}")
            A(f"ds_read_b64_tr_b16 v[{r+2}:{r+3}], v{aV0+t} offset:{8192*s+1024}")
    arrive(FC)
    PL, PH, MSV = X, X + 16, 36
    rd = [f"ds_read_b128 v[{MSV}:{MSV+3}], v{aMsR}"]
    for s in range(4):
        rd.append(f"ds_read_b128 v[{PL+4*s}:{PL+4*s+3}], v{aPlo} offset:{64*s}")
        rd.append(f"ds_read_b128 v[{PH+4*s}:{PH+4*s+3}], v{aPhi} offset:{64*s}")
    wait_cnt(CP, 4, rd)
    LAs = [120, 124, 128, 144]
    fw = ["v_max3_f32 v6, v36, v37, v38", "v_max_f32 v6, v6, v39"]
    for s in range(4):
        fw.append(f"v_sub_f32 v{MSV+s}, v{MSV+s}, v6")
    for s in range(4):
        fw.append(f"v_mul_f32 v{MSV+s}, {SC}, v{MSV+s}")
    for s in range(4):
        fw.append(f"v_exp_f32 v{MSV+s}, v{MSV+s}")
    fw.append(f"v_or_b32 v148, {T[0]}, v6")
    fw.append(f"v_mov_b32 v150, {T[2]}")
    fw.append(f"v_mov_b32 v151, {T[3]}")
    k = 0
    for t in range(2):
        for s in range(4):
            mfma(ACC + 4 * s, F + 16 * t + 4 * s, (PL, PH)[t] + 4 * s, None if t == 0 else ACC + 4 * s)
            for _ in range(2):
                if k < len(fw):
                    A(fw[k]); k += 1
    while k < len(fw):
        A(fw[k]); k += 1
    O = F
    for s in range(4):
        mfma(LAs[s], ONES, PL + 4 * s, None)
        for j in range(4):
            if s == 0:
                A(f"v_mul_f32 v{O+j}, v{MSV}, v{ACC+j}")
            else:
                A(f"v_fmac_f32 v{O+j}, v{MSV+s}, v{ACC+4*s+j}")
    tag4(O + 4, O)
    A(f"v_mul_f32 v7, v{MSV}, v{LAs[0]}")
    for s in range(1, 4):
        A(f"v_fmac_f32 v7, v{MSV+s}, v{LAs[s]}")
    A(f"v_and_or_b32 v149, v7, v{vMK}, {T[1]}")
    pub([(None, f"buffer_store_dwordx4 v[{O+4}:{O+7}], v{oOP}, {WS}, 0 offen"),
         ("s[78:79]", f"buffer_store_dwordx4 v[148:151], v{oML}, {WS}, 0 offen")], "o", FLG)
    if "o" in hint:
        A(f"""
        s_and_b32 s55, s2, 7
        s_lshl_b32 s55, s55, 7
        s_add_u32 s55, s55, {FLO}
        s_lshl_b32 s56, {SW}, 5
        s_add_u32 s56, s56, s55
        s_add_u32 s56, s56, {SSPL}
        """)
        hint_store("s56")
    stamp(5)
    MR, G0, G1 = ACC, ACC + 4, ACC + 8
    A(f"s_cmp_ge_u32 {SW}, 2")
    if red:
        A(f"s_cselect_b32 s59, {red[1]}, {go}")
        go = "s59"
    else:
        A("s_cbranch_scc1 L_px")
    if "o" in hint:
        A(f"s_and_b32 s56, {SJ}, 3")
        A("s_lshl_b32 s56, s56, 5")
        A("s_add_u32 s55, s55, s56")
        wait_prog(go0)
        hint_wait("s55", 8, FLG, go)
    elif go:
        wait_prog(go)
    if "o" in pg:
        gatherP([(MR, oMLG, 0), (G0, oOPG, 0), (G1, oOPG, 2048)], [120, 124, 128], opol, rpol, "o", flag=FLG)
    else:
        gather([(MR, oMLG, 0), (G0, oOPG, 0), (G1, oOPG2, 0) if "o" in xo else (G1, oOPG, 2048)], fpol if opol is None else opol, hop="o", flag=FLG,
               giveup=f"s_cmp_ge_u32 {SW}, 2\n s_cbranch_scc1 L_px" if red and len(red) < 3 else None)
    stamp(6)
    A(f"""
    v_max_f32_dpp v6, v{MR}, v{MR} quad_perm:[1,0,3,2] {DPPM}
    v_max_f32_dpp v6, v6, v6 row_ror:4 {DPPM}
    v_max_f32_dpp v6, v6, v6 row_ror:8 {DPPM}
    v_mov_b32 v7, v6
    v_permlane16_swap_b32 v6, v7
    v_max_f32 v6, v6, v7
    v_mov_b32 v7, v6
    v_permlane32_swap_b32 v6, v7
    v_max_f32 v6, v6, v7
    v_sub_f32 v8, v{MR}, v6
    v_mul_f32 v8, {SC}, v8
    v_exp_f32 v8, v8
    v_mul_f32 v6, v8, v{MR+1}
    """)
    lred = [f"v_add_f32_dpp v6, v6, v6 quad_perm:[1,0,3,2] {DPPM}",
            f"v_add_f32_dpp v6, v6, v6 row_ror:4 {DPPM}",
            f"v_add_f32_dpp v6, v6, v6 row_ror:8 {DPPM}",
            "v_mov_b32 v7, v6"]
    for j in range(4):
        A(f"v_mul_f32_dpp v{G0+j}, v8, v{G0+j} quad_perm:[0,0,0,0] {DPPM}")
        if j & 1:
            A(lred[j >> 1])
    for j in range(4):
        A(f"v_fmac_f32_dpp v{G0+j}, v8, v{G1+j} quad_perm:[1,1,1,1] {DPPM}")
        if j & 1:
            A(lred[2 + (j >> 1)])
    A(f"""
    v_permlane32_swap_b32 v{G0}, v{G0+2}
    v_permlane32_swap_b32 v{G0+1}, v{G0+3}
    v_permlane16_swap_b32 v6, v7
    v_add_f32 v{G0}, v{G0}, v{G0+2}
    v_add_f32 v{G0+1}, v{G0+1}, v{G0+3}
    v_add_f32 v6, v6, v7
    v_mov_b32 v7, v6
    v_permlane16_swap_b32 v{G0}, v{G0+1}
    v_permlane32_swap_b32 v6, v7
    v_add_f32 v{G0}, v{G0}, v{G0+1}
    v_add_f32 v6, v6, v7
    v_rcp_f32 v6, v6
    v_add_f32_dpp v{G0}, v{G0}, v{G0} row_ror:4 {DPPM}
    v_add_f32_dpp v{G0}, v{G0}, v{G0} row_ror:8 {DPPM}
    v_mul_f32 v{G0}, v{G0}, v6
    v_cvt_pk_bf16_f32 v7, v{G0}, v{G0}
    v_and_b32 v7, 0xffff0000, v7
    v_or_b32 v7, {T16}, v7
    """)
    if pxe:
        A(f"""
        v_and_b32 v8, 0xffffffc0, v{oPX}
        v_lshl_add_u32 v8, v0, 2, v8
        s_mov_b64 exec, 0xffff
        buffer_store_dword v7, v8, {WS}, 0 offen sc1
        s_mov_b64 exec, -1
        """)
    else:
        A(f"""
        s_mov_b64 exec, {M_N4}
        buffer_store_dword v7, v{oPX}, {WS}, 0 offen sc1
        s_mov_b64 exec, -1
        """)
    stamp(14)
    if not red:
        A("s_branch L_pxd")
    A("L_px:")
    if real:
        R = ACC + 4
        PTK = PEND - (D0 // 4 or d)
        assert gp >= PTK
        l0, l1 = A.lab("L_px0"), A.lab("L_px1")
        A(f"""
        s_mov_b32 s58, 0x07060302
        v_lshrrev_b32 v6, 3, v0
        v_mov_b32 v{R}, 0
        v_mov_b32 v{R+1}, 0
        v_mov_b32 v{R+2}, 0
        v_mov_b32 v{R+3}, 0
        s_mov_b32 s55, {NBW}
        s_mov_b64 s[82:83], -1
        s_cmp_eq_u32 {SW}, 3
        s_cbranch_scc1 L_px3
        """)
        wait_prog(gp2 or gp)
        A(f"s_bfm_b64 s[82:83], {8*NBW}, 0")
        A("s_branch L_px2")
        A("L_px3:")
        A("v_lshlrev_b32 v7, 2, v6")
        wait_prog(gp)
        A(f"""
        ds_read_b32 v6, v7 offset:{TK+32}
        s_waitcnt lgkmcnt(0)
        v_readlane_b32 s55, v6, 63
        v_and_b32 v6, 0xff, v6
        L_px2:
        v_add_u32 v6, s74, v6
        s_lshl_b32 s55, s55, 3
        v_lshrrev_b32 v7, 3, v6
        v_and_b32 v6, 7, v6
        v_lshl_add_u32 v7, v7, 10, v{oPXG}
        v_lshl_add_u32 v{oPXG}, v6, 6, v7
        s_bfm_b64 s[80:81], s55, 0
        s_mov_b64 exec, s[80:81]
        """)
        stamp(12)
        A(f"buffer_load_dwordx4 v[{R}:{R+3}], v{oPXG}, {WS}, 0 offen {ppol}")
        A("s_mov_b64 exec, -1")
        A("L_pxd:")
        wait_prog(f"U{PW0 + 4}")
        rd3([0, 1])
        wait_prog(PTK)
        A(f"ds_read_b32 v6, v{vZ} offset:{TK+32+28}")
        A("s_waitcnt lgkmcnt(0)")
        A("v_readfirstlane_b32 s74, v6")
        A(f"s_add_u32 s72, s74, {PW0 + NBW}")
        NS = (NBW + NCW + 1) // 2
        for s_ in range(2, NS):
            if s_ > 2:
                A(f"s_cmp_le_u32 s74, {2*s_ - NBW}")
                A("s_cbranch_scc1 L_rdd")
            ok = A.lab("L_tok")
            A(f"s_min_u32 s73, s72, {PW0 + 2*s_ + 2}")
            A("s_cmp_ge_u32 s55, s73")
            A(f"s_cbranch_scc1 {ok}")
            wait_prog("Us73")
            A(f"{ok}:")
            rd3([s_])
        A("L_rdd:")
        A(f"s_cmp_lt_u32 {SW}, 2")
        A("s_cbranch_scc1 L_pxw")
        A("s_mov_b64 exec, s[80:81]")
        A(f"s_branch {l1}")
        A(f"{l0}:")
        budget(16)
        A("s_mov_b64 exec, vcc")
        A(f"buffer_load_dwordx4 v[{R}:{R+3}], v{oPXG}, {WS}, 0 offen sc1")
        A(f"""
        {l1}:
        s_waitcnt vmcnt(0)
        v_xor_b32 v6, v{R}, v{R+1}
        v_xor_b32 v7, v{R+2}, v{R+3}
        v_xor_b32 v8, v{R}, v{R+2}
        v_or3_b32 v6, v6, v7, v8
        v_xor_b32 v7, {T16}, v{R}
        v_or_b32 v6, v6, v7
        v_and_b32 v6, 0xffff, v6
        v_cmp_ne_u32 vcc, 0, v6
        """)
        dstamp()
        A(f"""
        s_cbranch_vccnz {l0}
        s_mov_b64 exec, s[82:83]
        v_perm_b32 v6, v{R+1}, v{R}, s58
        v_perm_b32 v7, v{R+3}, v{R+2}, s58
        ds_write_b64 v{aOsW}, v[6:7] offset:{OS2}
        """)
        stamp(6)
        arrive(CO)
        A("L_pxw:")
        wait_cnt(CO, 4, bt_reads(NS) + [f"ds_read_b32 v{vGC}, v{aGS} offset:{GS}"])
        mm3(range(3))
        for s_ in range(3, NS):
            A(f"s_cmp_le_u32 s74, {2*s_ - NBW}")
            A("s_cbranch_scc1 L_comb")
            mm3([s_])
        A("s_branch L_comb")
        A.mute = True
    A("s_mov_b64 exec, -1") if red else None
    A(f"s_cmp_lg_u32 {SW}, 2" if red else f"s_cmp_eq_u32 {SW}, 3")
    A("s_cbranch_scc1 L_pxd")
    if early & 2:
        wait_prog(46)
        rd3(range(4))
    pxg(oPXG, aOsW, OS, None, gp, CO, "p")
    if early & 2:
        A("s_branch L_pxe")
    A("L_pxd:")
    if dz:
        wait_prog(PEND - 1)
        rd3(range(3))
        wait_prog(PEND)
        rd3([3])
    elif dy:
        wait_prog(45 + dy[1] + dy[2] - 1)
        rd3(range(3))
        wait_prog(45 + dy[1] + dy[2])
        rd3([3])
    else:
        wait_prog(48 if nar else 46)
        rd3(range(4))
    A("L_pxe:")
    wait_cnt(CO, 3, bt_reads() + [f"ds_read_b32 v9, v{aGS} offset:{GS}"])
    mm3(range(4))
    if sym:
        A("v_mov_b32 v{vGC}, v9".replace("{vGC}", str(vGC)))
        A("s_branch L_comb")
    else:
        sel3()
        for j in range(4):
            A(f"v_mul_f32 v{ACC+j}, v9, v{ACC+j}")
        A(f"ds_write_b128 v{aAS}, v[{ACC}:{ACC+3}]")
        arrive(CA)
        stamp(7)
        dump_stamps()
        A("s_endpgm")

    A.mute = False
    A("L_F:")
    ADINIT = ""
    if ad:
        ADINIT = f"""s_cmp_lt_u32 s2, 8
        s_cselect_b32 exec_lo, 0xff, 0
        s_lshl_b32 s55, s2, 7
        s_add_u32 s55, s55, {FLO}
        s_lshl_b32 s56, s48, 8
        v_mov_b32 v5, s56
        v_lshlrev_b32 v6, 2, v0
        buffer_store_dword v5, v6, {WS}, s55 offen"""
    if dy:
        NG = 32 // dy[0]
        ADINIT = f"""s_lshl_b32 s56, s48, 8
        v_mov_b32 v6, s56
        s_lshr_b64 s[56:57], s[48:49], 24
        v_mov_b32 v7, s56
        s_cmp_lt_u32 s2, {8*NG}
        s_cselect_b32 exec_lo, 1, 0
        s_and_b32 s55, s2, 7
        s_mul_i32 s55, s55, {NG}
        s_lshr_b32 s56, s2, 3
        s_add_u32 s55, s55, s56
        s_lshl_b32 s55, s55, 7
        s_add_u32 s55, s55, {CNT}
        buffer_store_dword{'x2 v[6:7]' if real else ' v6'}, off, {WS}, s55 {dpol}"""
        if dz and NCF:
            ADINIT += f"""
            s_and_b32 s55, s2, 5
            s_cselect_b32 exec_lo, 0, 1
            s_lshr_b32 s55, s2, 3
            s_and_b32 s56, s2, 2
            s_lshl4_add_u32 s55, s56, s55
            s_lshl_b32 s55, s55, 7
            s_add_u32 s55, s55, {CNTF}
            buffer_store_dword v6, off, {WS}, s55 {dpol}"""
    common2(RB if real else RC, HS, 1)
    if "c" in pre:
        WS0 = WS
        if "k" in pre:
            A("s_mov_b64 s[40:41], s[6:7]")
            A(f"s_mov_b32 s42, {64<<20}")
            A("s_mov_b32 s43, 0x20000")
            WS = "s[40:43]"
        A(f"""
        s_lshl_b32 s55, {SJ}, 12
        s_lshl_b32 s56, {SW}, 10
        s_add_u32 s55, s55, s56
        s_add_u32 s55, s55, {OP}
        v_lshlrev_b32 v5, 4, v0
        buffer_load_dwordx4 v[144:147], v5, {WS}, s55 offen {prepol}
        s_mul_i32 s55, {SJ}, 672
        s_and_b32 s56, {SW}, 1
        s_mul_i32 s56, s56, {56*3072}
        s_add_u32 s55, s55, s56
        s_add_u32 s55, s55, {GUP}
        s_lshl_b32 s56, {SJ}, 7
        s_add_u32 s56, s56, {ML}
        s_cmp_lt_u32 {SW}, 2
        s_cselect_b32 s55, s55, s56
        s_cselect_b32 exec_lo, -1, 0xff
        s_cselect_b32 exec_hi, 0x3ff, 0
        buffer_load_dwordx4 v[148:151], v5, {WS}, s55 offen {prepol}
        s_mov_b64 exec, -1
        """)
        WS = WS0
    A(f"""
    s_cmp_lg_u32 {SW}, 0
    s_cbranch_scc1 L_noid
    s_lshl_b32 s55, {SJ}, 2
    s_add_u32 s55, s55, {IDT}
    v_mov_b32 v5, {SID}
    s_mov_b64 exec, 1
    buffer_store_dword v5, off, {WS}, s55
    {ADINIT}
    s_mov_b64 exec, -1
    L_noid:
    """)
    aWg, aWu, oGU, oGG, aHsW, oFP, oFG, oOut = 11, 12, 13, 14, 16, 17, 22, 23
    SG0, SCB0 = "s69", "s70"
    M_GU, M_GG = "s[72:73]", ["s[74:75]", "s[76:77]"]
    XR = [X + 4 * s for s in range(8)] + [120, 124, 128, 132, 144, 148]
    NX = 14 if dg else 7
    for r in XR[:NX]:
        for i in range(4):
            A(f"v_mov_b32 v{r+i}, 0")
    A(f"""
    s_and_b32 s55, {SJ}, {-2 if dg else -1}
    s_mul_i32 s55, s55, 7
    s_lshr_b32 {SCB0}, s55, 5
    s_and_b32 {SG0}, s55, 31
    s_mov_b32 s57, 0x00f000f0
    """ if dg else f"""
    s_mul_i32 s55, {SJ}, 7
    s_lshr_b32 {SCB0}, s55, 5
    s_and_b32 {SG0}, s55, 31
    s_mov_b32 s57, 0x00f000f0
    """)
    if fm is not None:
        assert dg and xl == 2
        fmap(SJ, SCB0, SG0, "s90", "s91", "s92", "s93", "s55", "s75", "s76")
        A(f"""
        s_add_u32 s93, {SG0}, s90
        s_sub_u32 s92, s93, s92
        s_lshl_b32 s92, s92, 6
        """)
    xmap = rmap if rmap[0] == 1 and not fw else (1, 8, 32)
    def xfrags():
        A(f"s_mov_b32 s57, {2*xmap[1] - 16}")
        A(f"""
        s_mul_i32 s56, {SG0}, {2*xmap[2]}
        s_add_u32 s56, s56, {XS}
        v_bfe_u32 v5, v0, 2, 1
        {f"v_mul_u32_u24 v5, {64*xmap[2]}, v5" if fm is None else "v_mul_u32_u24 v5, s92, v5"}
        v_sub_u32 v5, v9, v5
        v_mad_u32_u24 v5, v{vQ}, s57, v5
        v_add_u32 v34, s56, v5
        s_mov_b32 s57, 0x00f000f0
        """)
        if xl == 1:
            assert spl1[0] >= NPEEL and NPEEL == d
            wait_prog(NPEEL)
        else:
            wait_cnt(0x124, 4, [])
        for s in range(NX):
            A(f"""
            {f"s_cmp_ge_u32 {SG0}, {32 - s}" if fm is None else f"s_cmp_le_u32 s90, {s}"}
            s_cselect_b32 exec_lo, s57, s62
            s_cselect_b32 exec_hi, s57, s62
            ds_read_b128 v[{XR[s]}:{XR[s]+3}], v34 offset:{2*xmap[2]*s}
            """)
        A("s_mov_b64 exec, -1")
    for s in range(0 if xl else NX):
        A(f"""
        s_add_u32 s56, {SG0}, {s}
        s_cmp_ge_u32 s56, 32
        s_cselect_b32 exec_lo, s57, s62
        s_cselect_b32 exec_hi, s57, s62
        s_and_b32 s56, s56, 31
        s_lshl_b32 s56, s56, 6
        buffer_load_dwordx4 v[{XR[s]}:{XR[s]+3}], v9, s[32:35], s56 offen
        """)
    A(f"""
    s_mov_b64 exec, -1
    v_add_u32 v{aWg}, {RD}, v{aW}
    v_add_u32 v{aWu}, {RA}, v{aW}
    """)
    if fm is not None:
        A(f"""
        s_cmp_lt_u32 s90, 14
        s_cselect_b32 s72, 0x00330033, s60
        s_mov_b32 s73, s72
        s_lshl_b32 s55, s75, 7
        s_lshl_b32 s56, {SCB0}, 12
        s_add_u32 s55, s55, s56
        s_lshl_b32 s76, s76, 7
        s_lshl_b32 s56, s91, 12
        s_add_u32 s76, s76, s56
        s_lshl_b32 s56, {SW}, 10
        s_and_b32 s57, {SJ}, 1
        s_lshl_b32 s57, s57, 9
        s_add_u32 s56, s56, s57
        s_add_u32 s56, s56, {GUP}
        v_mov_b32 v6, s55
        v_mov_b32 v7, s76
        s_mov_b32 s58, 0xf0f0f0f0
        s_mov_b32 s59, 0xf0f0f0f0
        v_cndmask_b32 v6, v6, v7, s[58:59]
        v_and_b32 v5, 1, v0
        v_lshlrev_b32 v5, 6, v5
        v_lshl_add_u32 v5, v{vQ}, 4, v5
        v_add3_u32 v{oGU}, v5, v6, s56
        """)
    elif dg:
        A(f"""
        s_cmp_ge_u32 {SG0}, 19
        s_cselect_b32 s72, 0x00330033, s60
        s_mov_b32 s73, s72
        s_mul_i32 s55, {SCB0}, {16*9363}
        s_lshr_b32 s55, s55, 16
        s_lshr_b32 s56, {SJ}, 1
        s_sub_u32 s55, s56, s55
        s_lshl_b32 s55, s55, 7
        s_lshl2_add_u32 s56, {SCB0}, {SW}
        s_lshl_b32 s56, s56, 10
        s_and_b32 s57, {SJ}, 1
        s_lshl_b32 s57, s57, 9
        s_add_u32 s56, s56, s57
        s_add_u32 s56, s56, {GUP}
        v_mov_b32 v6, s55
        v_mov_b32 v7, 4096
        s_mov_b32 s58, 0xf0f0f0f0
        s_mov_b32 s59, 0xf0f0f0f0
        v_cndmask_b32 v6, v6, v7, s[58:59]
        v_and_b32 v5, 1, v0
        v_lshlrev_b32 v5, 6, v5
        v_lshl_add_u32 v5, v{vQ}, 4, v5
        v_add3_u32 v{oGU}, v5, v6, s56
        """)
    else: A(f"""
    s_cmp_ge_u32 {SG0}, 26
    s_cselect_b32 s72, 0x00ff00ff, s62
    s_mov_b32 s73, s72
    s_mul_i32 s55, {SCB0}, {32*9363}
    s_lshr_b32 s55, s55, 16
    s_sub_u32 s55, {SJ}, s55
    s_lshl_b32 s55, s55, 7
    s_lshl2_add_u32 s56, {SCB0}, {SW}
    s_lshl_b32 s56, s56, 11
    s_add_u32 s56, s56, {GUP}
    v_mov_b32 v6, s55
    v_mov_b32 v7, 8192
    s_mov_b32 s58, 0xf0f0f0f0
    s_mov_b32 s59, 0xf0f0f0f0
    v_cndmask_b32 v6, v6, v7, s[58:59]
    v_and_b32 v5, 1, v0
    v_lshlrev_b32 v5, 6, v5
    v_lshl_add_u32 v5, v{vQ}, 4, v5
    v_bfe_u32 v7, v0, 1, 1
    v_lshlrev_b32 v7, 10, v7
    v_add3_u32 v5, v5, v6, v7
    v_add_u32 v{oGU}, s56, v5
    """)
    oPH = oGG + 1
    SK = "s74"
    oGG2 = 18
    if dg:
        GM = """s_mul_i32 s56, s55, 9363
        s_lshr_b32 s56, s56, 16
        s_mul_i32 s56, s56, 7
        s_sub_u32 s55, s55, s56
        s_mov_b32 s56, 0x00ffffff
        s_cmp_eq_u32 s55, 3
        s_cselect_b32 s78, -1, s56
        s_mov_b32 s79, s78
        s_cmp_eq_u32 s55, 2
        s_cselect_b32 s88, -1, s56"""
        if fm is not None:
            h4 = sum(1 << cb for cb in range(56) if (cb % 7 - fpos(cb // 7)) % 7 in (0, 2, 5))
            GM = f"""s_mov_b32 s76, 0x{h4 & 0xffffffff:x}
            s_mov_b32 s77, 0x{h4 >> 32:x}
            s_lshr_b64 s[76:77], s[76:77], s55
            s_mov_b32 s56, 0x00ffffff
            s_bitcmp1_b32 s76, 0
            s_cselect_b32 s78, -1, s56
            s_mov_b32 s79, s78
            s_bitcmp1_b32 s76, 1
            s_cselect_b32 s88, -1, s56"""
        A(f"""
        s_lshr_b32 {SK}, s2, 3
        s_mul_i32 s55, {SK}, 7
        s_add_u32 s55, s55, {SW}
        s_lshl_b32 s56, s55, 10
        s_add_u32 s56, s56, {GUP}
        v_add_u32 v{oGG}, s56, v{aL16}
        v_add_u32 v{oGG2}, 4096, v{oGG}
        s_lshr_b32 s55, s55, 2
        {GM}
        s_cmp_eq_u32 {SW}, 3
        s_cselect_b32 s88, 0, s88
        s_mov_b32 s89, s88
        v_bfe_u32 v6, v0, 2, 1
        v_lshlrev_b32 v6, 8, v6
        v_lshrrev_b32 v7, 5, v0
        v_lshl_add_u32 v6, v7, 7, v6
        v_and_b32 v7, 3, v0
        v_lshl_add_u32 v6, v7, 3, v6
        v_bfe_u32 v7, v0, 3, 2
        v_lshl_add_u32 v6, v7, 1, v6
        s_lshl_b32 s55, {SW}, 5
        v_add_u32 v{aHsW}, s55, v6
        """)
    elif sp:
        A(f"""
        s_lshr_b32 {SK}, s2, 3
        s_and_b32 {T16}, s48, 0xffff
        s_and_b32 s55, s2, 7
        s_mul_i32 s55, s55, 28
        s_and_b32 s56, {SK}, 3
        s_lshl2_add_u32 s55, s56, s55
        s_add_u32 s55, s55, {SW}
        s_lshl_b32 s56, s55, 11
        s_add_u32 s56, s56, {GUP}
        v_add_u32 v{oGG}, s56, v{aL16}
        v_add_u32 v{oGG2}, {16*2048}, v{oGG}
        s_movk_i32 s79, 0xff
        s_bitcmp1_b32 s2, 3
        s_cselect_b32 s79, 0xffff, s79
        s_mov_b32 s78, -1
        s_cmp_ge_u32 s2, 248
        s_cselect_b64 s[88:89], 0, s[78:79]
        s_cselect_b32 s90, 0x00ff00ff, -1
        s_mov_b32 s91, s90
        s_lshl_b32 s56, {SK}, 3
        s_cmp_ge_u32 s2, 224
        s_cselect_b32 s55, s55, s56
        s_cselect_b64 vcc, -1, 0
        s_lshl_b32 s55, s55, 7
        s_add_u32 s55, s55, {PHB}
        v_and_b32 v6, 7, v0
        v_lshlrev_b32 v6, 4, v6
        v_lshl_add_u32 v6, v{vQ}, 2, v6
        v_and_b32 v7, 8, v0
        v_lshl_add_u32 v6, v7, 8, v6
        v_cndmask_b32 v6, v{aL16}, v6, vcc
        v_add_u32 v{oPH}, s55, v6
        v_bfe_u32 v6, v0, 2, 1
        v_lshlrev_b32 v6, 8, v6
        v_lshrrev_b32 v7, 3, v0
        v_lshl_add_u32 v6, v7, 5, v6
        v_and_b32 v7, 3, v0
        v_lshl_add_u32 v{aHsW}, v7, 3, v6
        """)
    else: A(f"""
    s_lshr_b32 {SK}, s2, 3
    s_and_b32 {T16}, s48, 0xffff
    s_and_b32 s55, s2, 7
    s_mul_i32 s55, s55, 28
    s_add_u32 s55, s55, {SK}
    s_lshl_b32 s56, s55, 11
    s_add_u32 s56, s56, {GUP}
    v_add_u32 v{oGG}, s56, v{aL16}
    s_movk_i32 s79, 0xff
    s_bitcmp1_b32 s2, 5
    s_cselect_b32 s79, 0xffff, s79
    s_mov_b32 s78, -1
    s_mul_i32 s56, {SK}, 7
    s_cmp_eq_u32 {SW}, 0
    s_cselect_b32 s55, s55, s56
    s_cselect_b64 vcc, -1, 0
    s_lshl_b32 s55, s55, 7
    s_add_u32 s55, s55, {PHB}
    v_and_b32 v6, 7, v0
    v_lshlrev_b32 v6, 4, v6
    v_lshl_add_u32 v6, v{vQ}, 2, v6
    v_cndmask_b32 v6, v{aL16}, v6, vcc
    v_add_u32 v{oPH}, s55, v6
    v_bfe_u32 v6, v0, 2, 1
    v_lshlrev_b32 v6, 8, v6
    v_lshrrev_b32 v7, 3, v0
    v_lshl_add_u32 v6, v7, 5, v6
    v_and_b32 v7, 3, v0
    v_lshl_add_u32 v{aHsW}, v7, 3, v6
    """)
    A(f"""
    s_mov_b64 s[40:41], s[22:23]
    s_mov_b32 s42, 2048
    s_mov_b32 s43, 0x20000
    s_lshr_b32 s57, {SJ}, 2
    s_lshl_b32 s55, s57, 12
    s_add_u32 s55, s55, {FP}
    v_add_u32 v{oFG}, s55, v{aL16}
    {f"s_xor_b32 s57, s57, {8*cbx}" if not cperm else "s_and_b32 s56, s2, 7" + chr(10) + CPERM("s56") + chr(10) + "s_and_b32 s57, s57, 7" + chr(10) + "s_lshl3_add_u32 s57, s56, s57"}
    s_lshl_b32 s55, s57, 5
    v_bfe_u32 v5, v0, 2, 1
    v_lshlrev_b32 v5, 11, v5
    v_lshl_add_u32 v5, v{vQ}, 1, v5
    v_and_b32 v6, 3, v0
    v_lshl_add_u32 v5, v6, 3, v5
    v_add_u32 v{oOut}, s55, v5
    """)
    if xl:
        xfrags()
    A(f"s_cmp_lt_u32 {SW}, 2")
    A("s_cbranch_scc1 L_nog")
    if xl:
        A(f"""
        s_and_b32 s55, {SW}, 1
        s_lshl_b32 s56, s55, 3
        s_lshl_b32 s55, s55, 11
        s_add_u32 s55, s55, {XS}
        v_lshlrev_b32 v5, 5, v0
        buffer_load_dwordx4 v[{F+8}:{F+11}], v5, s[40:43], 0 offen
        buffer_load_dwordx4 v[{F+12}:{F+15}], v5, s[40:43], 0 offen offset:16
        v_add_u32 v5, s55, v5
        ds_read_b128 v[{F}:{F+3}], v5
        ds_read_b128 v[{F+4}:{F+7}], v5 offset:16
        v_mov_b32 v9, 0
        s_waitcnt vmcnt(0) lgkmcnt(0)
        """)
    else: A(f"""
    s_and_b32 s55, {SW}, 1
    s_lshl_b32 s56, s55, 3
    s_lshl_b32 s55, s55, 11
    v_lshlrev_b32 v5, 5, v0
    buffer_load_dwordx4 v[{F}:{F+3}], v5, s[32:35], s55 offen
    buffer_load_dwordx4 v[{F+4}:{F+7}], v5, s[32:35], s55 offen offset:16
    buffer_load_dwordx4 v[{F+8}:{F+11}], v5, s[40:43], 0 offen
    buffer_load_dwordx4 v[{F+12}:{F+15}], v5, s[40:43], 0 offen offset:16
    v_mov_b32 v9, 0
    s_waitcnt vmcnt(0)
    """)
    for i in range(8):
        A(f"""
        v_lshlrev_b32 v5, 16, v{F+i}
        v_lshlrev_b32 v6, 16, v{F+8+i}
        v_and_b32 v7, 0xffff0000, v{F+i}
        v_and_b32 v8, 0xffff0000, v{F+8+i}
        v_mul_f32 v5, v5, v6
        v_mul_f32 v7, v7, v8
        """)
        bf16_round_pair(6, 5, 7, 5, 7)
        A("v_add_f32 v9, v9, v5")
        A("v_add_f32 v9, v9, v7")
    A(f"""
    v_add_f32_dpp v9, v9, v9 quad_perm:[1,0,3,2] {DPPM}
    v_add_f32_dpp v9, v9, v9 quad_perm:[2,3,0,1] {DPPM}
    v_add_f32_dpp v9, v9, v9 row_ror:4 {DPPM}
    v_add_f32_dpp v9, v9, v9 row_ror:8 {DPPM}
    v_mov_b32 v8, v9
    v_permlane16_swap_b32 v9, v8
    v_add_f32 v9, v9, v8
    v_mov_b32 v8, v9
    v_permlane32_swap_b32 v9, v8
    v_add_f32 v9, v9, v8
    v_cvt_pk_bf16_f32 v9, v9, v9
    v_lshlrev_b32 v9, 16, v9
    v_mul_f32 v9, {f32(-LOG2E)}, v9
    v_exp_f32 v9, v9
    v_add_f32 v9, 1.0, v9
    v_rcp_f32 v9, v9
    v_cvt_pk_bf16_f32 v8, v9, v9
    v_lshlrev_b32 v8, 16, v8
    v_sub_f32 v9, 1.0, v8
    v_cvt_pk_bf16_f32 v9, v9, v9
    v_lshlrev_b32 v9, 16, v9
    v_mov_b32 v5, s56
    ds_write_b64 v5, v[8:9] offset:{GS}
    """)
    if sp:
        A(f"""
        s_cmp_lt_u32 s2, 224
        s_cbranch_scc1 L_nz
        s_cmp_lg_u32 {SW}, 2
        s_cbranch_scc1 L_nz
        v_mov_b32 v{F}, 0
        v_mov_b32 v{F+1}, 0
        v_mov_b32 v{F+2}, 0
        v_mov_b32 v{F+3}, 0
        v_mov_b32 v5, 4
        ds_write_b128 v{aL16}, v[{F}:{F+3}] offset:{AS+1024}
        s_mov_b64 exec, 1
        ds_add_u32 v{vZ}, v5 offset:{CA}
        s_mov_b64 exec, -1
        L_nz:
        """)
    arrive(CO)
    arrive(CH)
    def fprefetch():
        L = A.lab("L_fp")
        A(f"s_and_b32 s55, {SJ}, 3")
        A(f"s_or_b32 s55, s55, {SW}")
        A(f"s_cbranch_scc1 {L}")
        A("s_mov_b32 exec_lo, 0x01010101")
        A("s_mov_b32 exec_hi, 0x01010101")
        for i in range(4):
            A(f"buffer_load_dword v138, v{oFG}, {WS}, 0 offen offset:{1024*i} {prepol}")
        A("s_mov_b64 exec, -1")
        A(f"{L}:")
    A("L_nog:")
    if fpre == 1:
        fprefetch()
    if dly:
        A("s_mov_b32 s70, s94")
    A("s_waitcnt vmcnt(0)")
    if "g" in pre2:
        L_ = A.lab("L_p2")
        A(f"s_cmp_lg_u32 {SW}, 0")
        A(f"s_cbranch_scc1 {L_}")
        A(f"s_cmp_ge_u32 {SK}, 28")
        A(f"s_cbranch_scc1 {L_}")
        A("s_mov_b64 exec, s[78:79]")
        A(f"buffer_load_dword v138, v{oGG}, {WS}, 0 offen {prepol}")
        A(f"buffer_load_dword v138, v{oGG}, {WS}, 0 offen offset:1024 {prepol}")
        A("s_mov_b64 exec, -1")
        A(f"{L_}:")
    stamp(1)
    gemv64(aWg, ACC, 24, spl7, waits=[28, 'T31'] if dz and NCF else None)
    if real:
        arrive(FC)
    stamp(2)
    id_load()
    if dg:
        gemv64(aWu, ACC, 31, spl7, xr=XR[7:], cont=True, waits=['T35', PF1] if dz and NCF else None)
        tag4(ACC + 8, ACC)
        A(f"s_mov_b64 exec, {M_GU}")
        A(f"buffer_store_dwordx4 v[{ACC+8}:{ACC+11}], v{oGU}, {WS}, 0 offen sc1")
        A("s_mov_b64 exec, -1")
        A("s_waitcnt vmcnt(1)")
        id_check("s[98:99]")
        stamp(3)
        R4 = [ACC + 12, ACC + 16]
        for i in range(8):
            A(f"v_mov_b32 v{R4[0]+i}, 0")
        if real:
            assert gh >= PW0
            wait_prog(PW0)
            rd3(range(4))
        wait_prog(gh)
        def fmid():
            wait_prog(52)
            rd3([0, 1, 2])
            if early & 4:
                wait_prog(53)
                rd3([3])
        gather([(R4[0], oGG, 0), (R4[1], oGG2, 0)], gpol, hop="g", ex=["s[78:79]", "s[88:89]"], mid=fmid if early & 1 else None)
        stamp(4)
        for r in R4:
            A(f"v_permlane16_swap_b32 v{r}, v{r+2}")
            A(f"v_permlane16_swap_b32 v{r+1}, v{r+3}")
        for r in R4:
            A(f"v_add_f32 v{r}, v{r}, v{r+2}")
            A(f"v_add_f32 v{r+1}, v{r+1}, v{r+3}")
        for r in R4:
            A(f"v_add_f32_dpp v{r}, v{r}, v{r} row_ror:8 {DPPM}")
            A(f"v_add_f32_dpp v{r+1}, v{r+1}, v{r+1} row_ror:8 {DPPM}")
        for r in R4:
            A(f"v_cndmask_b32 v{r}, v{r}, v{r+1}, {M_HI8}")
        A(f"v_permlane32_swap_b32 v{R4[0]}, v{R4[1]}")
        bf16_round_pair(5, 6, 7, R4[0], R4[1])
        A(f"""
        v_mul_f32 v8, v6, v6
        v_mov_b32 v9, {f32(GC1)}
        v_fmac_f32 v9, {f32(GC2)}, v8
        v_mul_f32 v9, v9, v6
        v_exp_f32 v9, v9
        v_add_f32 v9, 1.0, v9
        v_rcp_f32 v9, v9
        v_mul_f32 v9, v9, v6
        v_cvt_pk_bf16_f32 v9, v9, v9
        v_lshlrev_b32 v9, 16, v9
        v_mul_f32 v9, v9, v7
        v_cvt_pk_bf16_f32 v9, v9, v9
        ds_write_b16 v{aHsW}, v9 offset:{HS}
        """)
        stamp(6)
        arrive(CH)
        A.mute = True
    gemv64(aWu, ACC + 4, 33 if nar else 31, spl7)
    for j in range(4):
        A(f"v_cndmask_b32 v{ACC+8+j}, v{ACC+j}, v{ACC+4+j}, {M_B1}")
    tag4(ACC + 8, ACC + 8)
    A("s_waitcnt vmcnt(0)")
    id_check("s[98:99]")
    pub([(M_GU, f"buffer_store_dwordx4 v[{ACC+8}:{ACC+11}], v{oGU}, {WS}, 0 offen")], "g", "s[98:99]")
    if "g" in hint:
        A(f"""
        s_lshl_b32 s56, {SJ}, 2
        s_add_u32 s56, s56, {SW}
        s_add_u32 s56, s56, {FLG_}
        """)
        hint_store("s56")
    stamp(3)
    if fpre == 2:
        fprefetch()
    R4 = [ACC + 12, ACC + 16]
    if sp:
        R4 += [ACC + 20, ACC + 24]
        A("s_cmp_lt_u32 s2, 224")
        A("s_cbranch_scc1 L_ph")
    else:
        A(f"s_cmp_lg_u32 {SW}, 0")
        A("s_cbranch_scc1 L_ph")
        A(f"s_cmp_ge_u32 {SK}, 28")
        A("s_cbranch_scc1 L_phd")
    for i in range(4 * len(R4)):
        A(f"v_mov_b32 v{R4[0]+i}, 0")
    if gg:
        wait_prog(gg)
    if sp:
        gather([(R4[0], oGG, 0), (R4[1], oGG, 1024), (R4[2], oGG2, 0), (R4[3], oGG2, 1024)], fpol if gpol is None else gpol, hop="g",
               ex=["s[78:79]", "s[78:79]", "s[88:89]", "s[88:89]"], flag="s[98:99]")
    elif "g" in pg:
        gatherP([(R4[0], oGG, 0), (R4[1], oGG, 1024)], [ACC + 20, ACC + 24], gpol, "nt", "g", ex=["s[78:79]", "s[78:79]"], flag="s[98:99]")
        A("s_waitcnt vmcnt(0)") if pgw else None
    else:
        gather([(R4[0], oGG, 0), (R4[1], oGG, 1024)], fpol if gpol is None else gpol, hop="g", ex=["s[78:79]", "s[78:79]"], flag="s[98:99]")
    stamp(4)
    for r in R4:
        A(f"v_permlane32_swap_b32 v{r}, v{r+2}")
        A(f"v_permlane32_swap_b32 v{r+1}, v{r+3}")
    for r in R4:
        A(f"v_add_f32 v{r}, v{r}, v{r+2}")
        A(f"v_add_f32 v{r+1}, v{r+1}, v{r+3}")
    for r in R4:
        A(f"v_permlane16_swap_b32 v{r}, v{r+1}")
    for r in R4:
        A(f"v_add_f32 v{r}, v{r}, v{r+1}")
    for r in R4:
        A(f"v_add_f32_dpp v{r}, v{r}, v{r} row_ror:8 {DPPM}")
    if sp:
        A(f"v_cndmask_b32 v{R4[0]}, v{R4[0]}, v{R4[2]}, {M_HI8}")
        A(f"v_cndmask_b32 v{R4[1]}, v{R4[1]}, v{R4[3]}, {M_HI8}")
    bf16_round_pair(5, 6, 7, R4[0], R4[1])
    A(f"""
    v_mul_f32 v8, v6, v6
    v_mov_b32 v9, {f32(GC1)}
    v_fmac_f32 v9, {f32(GC2)}, v8
    v_mul_f32 v9, v9, v6
    v_exp_f32 v9, v9
    v_add_f32 v9, 1.0, v9
    v_rcp_f32 v9, v9
    v_mul_f32 v9, v9, v6
    v_cvt_pk_bf16_f32 v9, v9, v9
    v_lshlrev_b32 v9, 16, v9
    v_mul_f32 v9, v9, v7
    v_cvt_pk_bf16_f32 v9, v9, v9
    v_and_b32 v9, 0xffff0000, v9
    v_or_b32 v9, {T16}, v9
    s_mov_b32 exec_lo, {"s90" if sp else "0x00ff00ff"}
    s_mov_b32 exec_hi, {"s91" if sp else "0x00ff00ff"}
    buffer_store_dword v9, v{oPH}, {WS}, 0 offen sc1
    s_mov_b64 exec, -1
    """)
    stamp(5)
    if sp:
        A(f"s_cmp_lg_u32 {SW}, 0")
        A("s_cbranch_scc1 L_fin")
        wait_cnt(CA, 8, [])
        A("s_branch L_nlast")
    else:
        A("s_branch L_phd")
    A("L_ph:")
    if lat:
        A(f"s_cmp_lt_u32 {SW}, 2")
        A("s_cbranch_scc1 L_lat2")
        A(f"v_readfirstlane_b32 s55, v{oGG}")
        wait_prog(lat)
        A(f"s_cmp_eq_u32 {SW}, 2")
        A("s_cbranch_scc1 L_lat1")
        dstamp()
        for i in range(4):
            A(f"s_load_dwordx16 s[80:95], s[28:29], s55 glc")
            A("s_waitcnt lgkmcnt(0)")
            dstamp()
            A("s_add_u32 s55, s55, 128")
        A("s_branch L_lat2")
        A("L_lat1:")
        dstamp()
        for i in range(4):
            A(f"buffer_load_dwordx4 v[{ACC+12}:{ACC+15}], v{oGG}, {WS}, 0 offen nt")
            A("s_waitcnt vmcnt(0)")
            dstamp()
        A("L_lat2:")
    A(f"s_cmp_lg_u32 {SW}, 1")
    A("s_cbranch_scc1 L_phd")
    pxg(oPH, aHsW, HS, None if sp else "0xffffff", gh, CH, "h")
    A("L_phd:")
    A.mute = False
    if not early & 1 and not real:
        wait_prog(PW0 - 1 if dz else 44 if dy else 52)
        rd3([0, 1, 2])
    if not early & 4 and not real:
        wait_prog(PW0 if dz else 45 if dy else 54 if sp else 53)
        rd3([3])
    wait_cnt(CH, 6 if dg else 3, bt_reads() + [f"ds_read_b32 v{vGC}, v{aGS} offset:{GS+4}"])
    mm3([0, 1, 2])
    if not sym:
        wait_cnt(CA, 4, [f"ds_read_b128 v[{ACC+8}:{ACC+11}], v{aAS}", f"ds_read_b32 v9, v{aGS} offset:{GS+4}"])
        mm3([3])
        sel3()
        for j in range(4):
            A(f"v_fmac_f32 v{ACC+8+j}, v9, v{ACC+j}")
        tag4(ACC + 8, ACC + 8)
        A(f"s_mov_b64 exec, {M_N4}")
        A(f"buffer_store_dwordx4 v[{ACC+8}:{ACC+11}], v{oFP}, {WS}, 0 offen sc1")
        A("s_mov_b64 exec, -1")
        stamp(6)
        A(f"s_and_b32 s55, {SJ}, 3")
        A(f"s_or_b32 s55, s55, {SW}")
        A("s_cbranch_scc1 L_fin")
    else:
        mm3([3])
        A("L_comb:")
        sel3()
        for j in range(4):
            A(f"v_mul_f32 v{ACC+j}, v{vGC}, v{ACC+j}")
        A(f"""
        s_mov_b64 exec, {M_N4}
        ds_write_b128 v{aAS}, v[{ACC}:{ACC+3}]
        s_mov_b64 exec, 1
        ds_add_rtn_u32 v5, v{vZ}, v{vONE} offset:{CA}
        s_mov_b64 exec, -1
        ds_read_b128 v[{ACC+8}:{ACC+11}], v{aL16} offset:{AS}
        ds_read_b128 v[{ACC+12}:{ACC+15}], v{aL16} offset:{AS+1024}
        s_waitcnt lgkmcnt(2)
        v_readfirstlane_b32 s55, v5
        s_cmp_lg_u32 s55, 7
        s_cbranch_scc1 L_nlast
        s_waitcnt lgkmcnt(0)
        v_pk_add_f32 v[{ACC+8}:{ACC+9}], v[{ACC+8}:{ACC+9}], v[{ACC+12}:{ACC+13}]
        v_pk_add_f32 v[{ACC+10}:{ACC+11}], v[{ACC+10}:{ACC+11}], v[{ACC+14}:{ACC+15}]
        """)
        tag4(ACC + 8, ACC + 8)
        pub([(None, f"buffer_store_dwordx4 v[{ACC+8}:{ACC+11}], v{oFP2}, {WS}, 0 offen")], "f", "s[98:99]")
        stamp(8)
        A("L_nlast:")
        stamp(9)
        A(f"s_and_b32 s55, {SJ}, 3")
        if ccl:
            A(f"s_xor_b32 s55, s55, {ccl}")
        A(f"s_sub_u32 s56, s3, 5")
        A(f"s_or_b32 s55, s55, s56")
        A("s_cbranch_scc1 L_fin")
        if dly:
            A("L_dly:")
            A("s_memrealtime s[96:97]")
            A("s_waitcnt lgkmcnt(0)")
            A("s_sub_u32 s55, s96, s70")
            A(f"s_cmp_lt_u32 s55, {dly}")
            A("s_cbranch_scc1 L_dly")
    gather([(G + 4 * i, oFG, 1024 * i) for i in range(4)], ffpol, hop="f", rawoff=32, flag="s[98:99]")
    A(f"""
    v_pk_add_f32 v[{G}:{G+1}], v[{G}:{G+1}], v[{G+4}:{G+5}]
    v_pk_add_f32 v[{G+2}:{G+3}], v[{G+2}:{G+3}], v[{G+6}:{G+7}]
    v_pk_add_f32 v[{G+8}:{G+9}], v[{G+8}:{G+9}], v[{G+12}:{G+13}]
    v_pk_add_f32 v[{G+10}:{G+11}], v[{G+10}:{G+11}], v[{G+14}:{G+15}]
    v_pk_add_f32 v[{G}:{G+1}], v[{G}:{G+1}], v[{G+8}:{G+9}]
    v_pk_add_f32 v[{G+2}:{G+3}], v[{G+2}:{G+3}], v[{G+10}:{G+11}]
    """)
    red4(G)
    A(f"""
    v_add_f32_dpp v{G}, v{G}, v{G} row_ror:8 {DPPM}
    s_mov_b32 exec_lo, 0x00ff00ff
    s_mov_b32 exec_hi, 0x00ff00ff
    v_cvt_pk_bf16_f32 v6, v{G}, v{G}
    buffer_store_short v6, v{oOut}, s[44:47], 0 offen {outpol}
    s_cmp_lg_u32 s2, {8*ccl}
    s_cbranch_scc1 L_fin
    s_mov_b64 exec, 1
    v_mov_b32 v6, s48
    v_mov_b32 v7, s49
    s_mov_b32 s55, {EPOCH}
    v_mov_b32 v8, s55
    global_store_dwordx2 v8, v[6:7], s[28:29] sc1
    L_fin:
    """)
    A("s_mov_b64 exec, -1")
    stamp(7)
    dump_stamps()
    A("L_end:")
    A("s_endpgm")

    if "A" in nox:
        A.L = [l for l in A.L if not (l.startswith("buffer_load_dwordx4") and "v9, s[32:35], s55" in l)]
    if "F" in nox:
        A.L = [l for l in A.L if not (l.startswith("buffer_load_dwordx4") and "v9, s[32:35], s56" in l)]
    if "G" in nox:
        A.L = [l for l in A.L if not (l.startswith("buffer_load_dwordx4") and ("v5, s[32:35], s55" in l or "v5, s[40:43], 0" in l))]
    if nost:
        sel = {"q": f"v{oQP},", "o": f"v{oOP},", "m": f"v{oML},", "g": f"v{oGU},", "f": f"v{oFP},"}
        keys = list(sel.values()) if nost is True else [sel[c] for c in nost]
        A.L = [l for l in A.L if not (l.startswith("buffer_store_dwordx4") and "sc1" in l and any(k in l for k in keys))]
    if nost2:
        sel = {"q": f"v{oQP},", "o": f"v{oOP},", "m": f"v{oML},", "g": f"v{oGU},", "f": f"v{oFP2},"}
        keys = [sel[c] for c in nost2]
        A.L = [l for l in A.L if not (l.startswith("buffer_store_dwordx4") and any(k in l for k in keys))]
    if plain:
        sel = {"q": f"v{oQP},", "o": f"v{oOP},", "m": f"v{oML},", "g": f"v{oGU},", "f": f"v{oFP},"}
        keys = [sel[c] for c in plain]
        A.L = [l.replace(" sc1", "") if (l.startswith("buffer_store_dwordx4") and any(k in l for k in keys)) else l for l in A.L]
    if stpol != "sc1":
        A.L = [l.replace(" sc1", " " + stpol) if l.startswith("buffer_store_dwordx4") else l for l in A.L]
    body, nn = hazard_pass(A.L)
    out = []
    out.append(f"; @launch grid=(256,1,1) block=(576,1,1) lds={LDS_TOTAL + (4096 if xl else 0)}")
    out.append('.amdgcn_target "amdgcn-amd-amdhsa--gfx950"')
    out.append(".text")
    out.append(f".globl {NAME}_kernel")
    out.append(".p2align 8")
    out.append(f".type {NAME}_kernel,@function")
    out.append(f"{NAME}_kernel:")
    out += ["  " + l if not l.endswith(":") else l for l in body]
    if pf == 0:
        out.append(f".fill (16384 + 64 - (. - L_worker)) / 4, 4, 0xbf810000")
    elif pf == 1:
        out.append(f".fill (24576 + 64 - (. - {NAME}_kernel)) / 4, 4, 0xbf810000")
    out.append('.section .rodata,"a"')
    out.append(".p2align 6")
    out.append(f".amdhsa_kernel {NAME}_kernel")
    out.append("  .amdhsa_next_free_vgpr 160")
    out.append("  .amdhsa_next_free_sgpr 102")
    out.append("  .amdhsa_accum_offset 160")
    out.append("  .amdhsa_group_segment_fixed_size 0")
    out.append("  .amdhsa_kernarg_size 104")
    out.append("  .amdhsa_user_sgpr_count 2")
    out.append("  .amdhsa_user_sgpr_kernarg_segment_ptr 1")
    out.append("  .amdhsa_system_sgpr_workgroup_id_x 1")
    out.append(".end_amdhsa_kernel")
    return "\n".join(out) + "\n"


if __name__ == "__main__":
    import argparse, ast
    ap = argparse.ArgumentParser()
    ap.add_argument("out")
    ap.add_argument("kw", nargs="*")
    a = ap.parse_args()
    kw = {}
    for s in a.kw:
        k, v = s.split("=", 1)
        try:
            kw[k] = ast.literal_eval(v)
        except Exception:
            kw[k] = v
    open(a.out, "w").write(gen(**kw))
```
